```python
import torch

def _softmax(x, axis=-1):
    return torch.softmax(x, dim=axis)
def _gelu(x):
    return torch.nn.functional.gelu(x, approximate="tanh")
def _silu(x):
    return torch.nn.functional.silu(x)
def _sigmoid(x):
    return torch.sigmoid(x)
def _layernorm(x, axis=-1, eps=1e-5):
    m = x.mean(dim=axis, keepdim=True)
    v = x.var(dim=axis, keepdim=True, unbiased=False)
    return (x - m) / torch.sqrt(v + eps)
def _scatter_add(tgt, idx, src, axis=0):
    return tgt.clone().index_add_(axis, idx, src)
def _segment_sum(src, seg, n):
    out = torch.zeros((n,) + src.shape[1:], dtype=src.dtype)
    return out.index_add_(0, seg, src)
def _pad(x, pw):
    flat = tuple(v for pair in reversed(pw) for v in pair)
    return torch.nn.functional.pad(x, flat)

kernel_name = 'concat_heads__compressed_kv_cla__sliding_block_cached__decode'

def setup_inputs():

    _w = (lambda a: (lambda t: t.to(torch.bfloat16) if t.is_floating_point() else t)(torch.as_tensor(a)))
    def _A_setup():
        B, H, Sq, Sk, D, M = 2, 32, 1, 8192, 128, 512
        Dc = 4 * D
        return {
            "x": _w((lambda *s: torch.randn(*s, dtype=torch.bfloat16) * 3.2)(B, Sq, M)),
            "c_kv": _w((lambda *s: torch.randn(*s, dtype=torch.bfloat16) * 0.1)(B, Sk, Dc)),
            "w_q": _w((lambda *s: torch.randn(*s, dtype=torch.bfloat16) * 6.4)(M, H, D) * (M ** -0.5)),
            "w_uk": _w((lambda *s: torch.randn(*s, dtype=torch.bfloat16) * 6.4)(Dc, H, D) * (Dc ** -0.5)),
            "w_uv": _w((lambda *s: torch.randn(*s, dtype=torch.bfloat16) * 0.1)(Dc, H, D) * (Dc ** -0.5)),
            "w_o": _w((lambda *s: torch.randn(*s, dtype=torch.bfloat16) * 0.1)(H, D, M) * ((H * D) ** -0.5)),
        }
    _A_in = _A_setup()

    def _B_setup():
        B, Sq, D = 2, 1, 512
        Hq, Hkv, Sk, Dh = 32, 32, 8192, 128
        assert Hq % Hkv == 0, (Hq, Hkv)
        return {
            "x": _w((lambda *s: torch.randn(*s, dtype=torch.bfloat16) * 1.6)(B, Sq, D)),
            "k_cache": _w((lambda *s: torch.randn(*s, dtype=torch.bfloat16) * 1.6)(B, Hkv, Sk, Dh)),
            "v_cache": _w((lambda *s: torch.randn(*s, dtype=torch.bfloat16) * 0.05)(B, Hkv, Sk, Dh)),
            "wq": _w((lambda *s: torch.randn(*s, dtype=torch.bfloat16) * 1.6)(D, Hq * Dh) * (D ** -0.5)),
            "wo": _w((lambda *s: torch.randn(*s, dtype=torch.bfloat16) * 0.05)(Hq * Dh, D) * ((Hq * Dh) ** -0.5)),
        }
    _B_in = _B_setup()

    return {
        "A_x": _A_in["x"],
        "A_c_kv": _A_in["c_kv"],
        "A_w_q": _A_in["w_q"],
        "A_w_uk": _A_in["w_uk"],
        "A_w_uv": _A_in["w_uv"],
        "A_w_o": _A_in["w_o"],
        "B_x": _B_in["x"],
        "B_k_cache": _B_in["k_cache"],
        "B_v_cache": _B_in["v_cache"],
        "B_wq": _B_in["wq"],
        "B_wo": _B_in["wo"],
    }

def reference(A_x, A_c_kv, A_w_q, A_w_uk, A_w_uv, A_w_o, B_x, B_k_cache, B_v_cache, B_wq, B_wo):
    def _A_ref(x, c_kv, w_q, w_uk, w_uv, w_o):
        B, Sq, M = x.shape[0], x.shape[1], x.shape[2]
        Sk = c_kv.shape[1]
        H, D = w_q.shape[1], w_q.shape[2]
        q = torch.einsum("bqm,mhd->bhqd", x, w_q)
        k = torch.einsum("bkc,chd->bhkd", c_kv, w_uk)
        v = torch.einsum("bkc,chd->bhkd", c_kv, w_uv)
        scores = torch.einsum("bhqd,bhkd->bhqk", q, k) * (D ** -0.5)
        off = Sk - Sq
        qi = torch.arange(Sq)[:, None]
        kj = torch.arange(Sk)[None, :]
        cmask = kj <= (qi + off)
        scores = torch.where(cmask[None, None], scores, -1e9)
        p = _softmax(scores, axis=-1)
        ctx = torch.einsum("bhqk,bhkd->bhqd", p, v)
        return torch.einsum("bhqd,hdm->bqm", ctx, w_o)

    def _B_ref(x, k_cache, v_cache, wq, wo):
        B, Sq, D = x.shape
        Hq, Dh = 32, 128
        Hkv, Sk = k_cache.shape[1], k_cache.shape[2]
        W = min(4096, max(256, Sk // 4))
        rep = Hq // Hkv
        q = (lambda x, *d: x.permute(*d))((x @ wq).reshape(B, Sq, Hq, Dh), 0, 2, 1, 3)
        k = (lambda x, n, axis: torch.repeat_interleave(x, n, dim=axis))(k_cache[:, :, Sk - W:, :], rep, axis=1)
        v = (lambda x, n, axis: torch.repeat_interleave(x, n, dim=axis))(v_cache[:, :, Sk - W:, :], rep, axis=1)
        scores = torch.einsum("bhqd,bhkd->bhqk", q, k) * (Dh ** -0.5)
        p = _softmax(scores, axis=-1)
        o = torch.einsum("bhqk,bhkd->bhqd", p, v)
        return (lambda x, *d: x.permute(*d))(o, 0, 2, 1, 3).reshape(B, Sq, Hq * Dh) @ wo

    a = _A_ref(A_x, A_c_kv, A_w_q, A_w_uk, A_w_uv, A_w_o)
    b = _B_ref(B_x, B_k_cache, B_v_cache, B_wq, B_wo)
    return torch.concatenate([a, b], axis=-1)
```

```python
import sys

NAME = "concat_heads__compressed_kv_cla__sliding_block_cached__decode"

KA = dict(A_x=0, A_ckv=8, A_wq=16, A_wuk=24, A_wuv=32, A_wo=40, B_x=48, B_k=56, B_v=64,
          B_wq=72, B_wo=80, out=88, dbg=96, ws=104)
SZ = dict(A_x=2048, A_ckv=16777216, A_wq=4194304, A_wuk=4194304, A_wuv=4194304, A_wo=4194304,
          B_x=2048, B_k=134217728, B_v=134217728, B_wq=4194304, B_wo=4194304, out=4096, dbg=256,
          ws=536870912)

QA_HI = 0x00000
QA_LO = 0x10000
QB = 0x20000
ASTAT = 0x30000
BPART = 0x40000
BSTAT = 0x60000
CTX = 0x70000
OPART = 0x80000
APART = 0x100000

SCALE_BITS = 0x3DB504F3
LOG2E_BITS = 0x3FB8AA3B

out = []
import os
DEBUG = bool(os.environ.get('DEBUG'))


def e(s):
    out.append("    " + s)


def lab(s):
    out.append(s + ":")


def srd(dst, name):
    e(f"s_load_dwordx2 s[{dst}:{dst+1}], s[0:1], {KA[name]}")


def srd_fin(dst, name):
    e(f"s_mov_b32 s{dst+2}, {SZ[name]}")
    e(f"s_mov_b32 s{dst+3}, 0x20000")


def vr(a, n):
    return f"v[{a}:{a+n-1}]"


def ar(a, n):
    return f"a[{a}:{a+n-1}]"


def kernel_header(label):
    out.append(f".globl {label}")
    out.append(".p2align 8")
    out.append(f".type {label},@function")
    lab(label)


descs = []


def kernel_desc(label, vgpr, accum, sgpr=102):
    descs.append(f""".p2align 6
.amdhsa_kernel {label}
  .amdhsa_next_free_vgpr {vgpr}
  .amdhsa_next_free_sgpr {sgpr}
  .amdhsa_accum_offset {accum}
  .amdhsa_group_segment_fixed_size 0
  .amdhsa_kernarg_size 112
  .amdhsa_user_sgpr_count 2
  .amdhsa_user_sgpr_kernarg_segment_ptr 1
  .amdhsa_system_sgpr_workgroup_id_x 1
.end_amdhsa_kernel""")


def unpack2(dlo, dhi, src):
    e(f"v_lshlrev_b32 v{dlo}, 16, v{src}")
    e(f"v_and_b32 v{dhi}, 0xffff0000, v{src}")


def gemv_rows(nrows, wbase, xbase0, xbase1, acc, tmp, xt, vm_after):
    for i in range(nrows):
        e(f"s_waitcnt vmcnt({nrows - 1 - i + vm_after})")
        if i % 2 == 0:
            e(f"v_lshlrev_b32 v{xt}, 16, v{xbase0 + i // 2}")
            e(f"v_lshlrev_b32 v{xt+1}, 16, v{xbase1 + i // 2}")
        else:
            e(f"v_and_b32 v{xt}, 0xffff0000, v{xbase0 + i // 2}")
            e(f"v_and_b32 v{xt+1}, 0xffff0000, v{xbase1 + i // 2}")
        for k in range(4):
            unpack2(tmp + 2 * k, tmp + 2 * k + 1, wbase + 4 * i + k)
        for k in range(8):
            e(f"v_fmac_f32 v{acc + k}, v{tmp + k}, v{xt}")
            e(f"v_fmac_f32 v{acc + 8 + k}, v{tmp + k}, v{xt+1}")


def k1():
    L = "k1_kernel"
    kernel_header(L)
    e("s_cmp_ge_u32 s2, 192")
    e("s_cbranch_scc1 K1_END")
    e("s_cmp_ge_u32 s2, 128")
    e("s_cbranch_scc1 K1_B")
    srd(8, "A_x"); srd(12, "A_wq"); srd(16, "A_wuk"); srd(20, "ws")
    e("s_and_b32 s24, s2, 31")
    e("s_lshr_b32 s25, s2, 5")
    e("v_and_b32 v1, 15, v0")
    e("v_lshrrev_b32 v2, 4, v0")
    e("v_lshlrev_b32 v3, 18, v2")
    e("v_lshl_add_u32 v3, v1, 4, v3")
    e("v_lshlrev_b32 v4, 6, v2")
    e("v_lshlrev_b32 v5, 13, v2")
    e("v_lshl_add_u32 v5, v1, 4, v5")
    e("s_lshl_b32 s26, s24, 8")
    e("s_waitcnt lgkmcnt(0)")
    srd_fin(8, "A_x"); srd_fin(12, "A_wq"); srd_fin(16, "A_wuk"); srd_fin(20, "ws")
    for b in range(2):
        for k in range(4):
            e(f"buffer_load_dwordx4 {vr(8 + 16 * b + 4 * k, 4)}, v4, s[8:11], 0 offen offset:{1024 * b + 16 * k}")
    e("s_mov_b32 s27, s26")
    for i in range(32):
        e(f"buffer_load_dwordx4 {vr(40 + 4 * i, 4)}, v3, s[12:15], s27 offen")
        e("s_add_u32 s27, s27, 8192")
    e("s_lshl_b32 s27, s25, 20")
    e("s_add_u32 s27, s27, s26")
    for i in range(8):
        e(f"buffer_load_dwordx4 {vr(168 + 4 * i, 4)}, v5, s[16:19], s27 offen")
        e("s_add_u32 s27, s27, 0x20000")
    for k in range(16):
        e(f"v_mov_b32 v{200 + k}, 0")
    gemv_rows(32, 40, 8, 24, 200, 218, 216, 8)
    e("v_lshlrev_b32 v6, 10, v2")
    e("v_lshl_add_u32 v6, v1, 5, v6")
    e(f"ds_write_b128 v6, {vr(200, 4)}")
    e(f"ds_write_b128 v6, {vr(204, 4)} offset:16")
    e(f"ds_write_b128 v6, {vr(208, 4)} offset:512")
    e(f"ds_write_b128 v6, {vr(212, 4)} offset:528")
    e("s_waitcnt lgkmcnt(0)")
    e("s_barrier")
    e("v_lshlrev_b32 v6, 2, v0")
    for g in range(16):
        e(f"ds_read_b32 v{8 + g}, v6 offset:{1024 * g}")
    e("s_waitcnt lgkmcnt(0)")
    for g in range(1, 16):
        e(f"v_add_f32 v8, v8, v{8 + g}")
    e("v_cvt_pk_bf16_f32 v8, v8, v8")
    e("v_lshlrev_b32 v6, 1, v0")
    e("ds_write_b16 v6, v8 offset:16384")
    e("s_waitcnt lgkmcnt(0)")
    e("s_barrier")
    e("v_lshlrev_b32 v6, 4, v1")
    e(f"ds_read_b128 {vr(8, 4)}, v6 offset:16384")
    e(f"ds_read_b128 {vr(12, 4)}, v6 offset:16640")
    e("s_waitcnt vmcnt(0) lgkmcnt(0)")
    for k in range(4):
        for i in range(8):
            for b in range(2):
                d = 24 + 2 * i + b
                c = "0" if k == 0 else f"v{d}"
                e(f"v_dot2_f32_bf16 v{d}, v{168 + 4 * i + k}, v{8 + 4 * b + k}, {c}")
    e("s_nop 3")
    for sh in (8, 4, 2, 1):
        for d in range(24, 40):
            e(f"v_add_f32_dpp v{d}, v{d}, v{d} row_ror:{sh} row_mask:0xf bank_mask:0xf")
        e("s_nop 1")
    e("v_lshlrev_b32 v6, 2, v2")
    for i in range(8):
        for b in range(2):
            e(f"ds_write_b32 v6, v{24 + 2 * i + b} offset:{16896 + 512 * b + 64 * i}")
    e("s_waitcnt lgkmcnt(0)")
    e("s_barrier")
    e("v_cmp_gt_u32 vcc, 32, v0")
    e("s_and_saveexec_b64 s[28:29], vcc")
    e("s_cbranch_execz K1_END")
    e("v_lshlrev_b32 v6, 5, v0")
    e(f"ds_read_b128 {vr(8, 4)}, v6 offset:16896")
    e(f"ds_read_b128 {vr(12, 4)}, v6 offset:16912")
    e("s_waitcnt lgkmcnt(0)")
    for k in range(4):
        a, b_ = 8 + 2 * k, 9 + 2 * k
        e(f"v_cvt_pk_bf16_f32 v{16 + k}, v{a}, v{b_}")
        unpack2(24, 25, 16 + k)
        e(f"v_sub_f32 v24, v{a}, v24")
        e(f"v_sub_f32 v25, v{b_}, v25")
        e(f"v_cvt_pk_bf16_f32 v{20 + k}, v24, v25")
    e("v_lshrrev_b32 v6, 4, v0")
    e("v_and_b32 v7, 15, v0")
    e("v_lshrrev_b32 v24, 1, v7")
    e("v_and_b32 v25, 1, v7")
    e("v_lshlrev_b32 v6, 15, v6")
    e("v_lshl_add_u32 v6, v24, 10, v6")
    e("v_lshl_add_u32 v6, v25, 9, v6")
    e("s_lshl_b32 s27, s25, 13")
    e("s_lshl_b32 s28, s24, 4")
    e("s_add_u32 s27, s27, s28")
    e(f"buffer_store_dwordx4 {vr(16, 4)}, v6, s[20:23], s27 offen")
    e(f"s_add_u32 s27, s27, {QA_LO}")
    e(f"buffer_store_dwordx4 {vr(20, 4)}, v6, s[20:23], s27 offen")
    e("s_branch K1_END")
    lab("K1_B")
    srd(8, "B_x"); srd(12, "B_wq"); srd(20, "ws")
    e("s_sub_u32 s3, s2, 128")
    e("s_and_b32 s24, s3, 31")
    e("s_lshr_b32 s25, s3, 5")
    e("v_and_b32 v1, 7, v0")
    e("v_lshrrev_b32 v2, 3, v0")
    e("v_lshlrev_b32 v3, 17, v2")
    e("v_lshl_add_u32 v3, v1, 4, v3")
    e("v_lshlrev_b32 v4, 5, v2")
    e("s_lshl_b32 s26, s24, 8")
    e("s_lshl_b32 s27, s25, 7")
    e("s_add_u32 s26, s26, s27")
    e("s_waitcnt lgkmcnt(0)")
    srd_fin(8, "B_x"); srd_fin(12, "B_wq"); srd_fin(20, "ws")
    for b in range(2):
        for k in range(2):
            e(f"buffer_load_dwordx4 {vr(8 + 8 * b + 4 * k, 4)}, v4, s[8:11], 0 offen offset:{1024 * b + 16 * k}")
    e("s_mov_b32 s27, s26")
    for i in range(16):
        e(f"buffer_load_dwordx4 {vr(40 + 4 * i, 4)}, v3, s[12:15], s27 offen")
        e("s_add_u32 s27, s27, 8192")
    for k in range(16):
        e(f"v_mov_b32 v{200 + k}, 0")
    gemv_rows(16, 40, 8, 16, 200, 218, 216, 0)
    e("v_lshlrev_b32 v6, 9, v2")
    e("v_lshl_add_u32 v6, v1, 5, v6")
    e(f"ds_write_b128 v6, {vr(200, 4)}")
    e(f"ds_write_b128 v6, {vr(204, 4)} offset:16")
    e(f"ds_write_b128 v6, {vr(208, 4)} offset:256")
    e(f"ds_write_b128 v6, {vr(212, 4)} offset:272")
    e("s_waitcnt lgkmcnt(0)")
    e("s_barrier")
    e("v_cmp_gt_u32 vcc, 128, v0")
    e("s_and_saveexec_b64 s[28:29], vcc")
    e("s_cbranch_execz K1_END")
    e("v_lshlrev_b32 v6, 2, v0")
    for g in range(32):
        e(f"ds_read_b32 v{8 + g}, v6 offset:{512 * g}")
    e("s_waitcnt lgkmcnt(0)")
    for g in range(1, 32):
        e(f"v_add_f32 v8, v8, v{8 + g}")
    e("v_cvt_pk_bf16_f32 v8, v8, v8")
    e("v_lshrrev_b32 v6, 6, v0")
    e("v_and_b32 v7, 63, v0")
    e("v_lshlrev_b32 v6, 13, v6")
    e("v_lshl_add_u32 v6, v7, 1, v6")
    e(f"s_add_u32 s27, s26, {QB}")
    e("buffer_store_short v8, v6, s[20:23], s27 offen")
    lab("K1_END")
    e("s_endpgm")
    kernel_desc(L, 232, 232)
    return f"; @launch kernel={L} grid=(192,1,1) block=(256,1,1) lds=18432"


TILE = 0
PX = 131072
MX = 139264
LX = 139776
BO = 140288
BS = BO + 8192
K2_LDS = BS + 128


def fsw(r):
    return ((r & 3) << 2) | ((r >> 2) & 3)


def bloads(K, V, soff):
    for (base, srdn) in ((K, 12), (V, 16)):
        for i in range(8):
            va = 6 if i < 4 else 7
            e(f"buffer_load_dwordx4 {vr(base + 4 * i, 4)}, v{va}, s[{srdn}:{srdn+3}], s{soff} offen offset:{(i % 4) * 1024}")


def round_scale(a, b, t):
    e(f"v_cvt_pk_bf16_f32 v{t}, v{a}, v{b}")
    unpack2(a, b, t)
    e(f"v_mul_f32 v{a}, s34, v{a}")
    e(f"v_mul_f32 v{b}, s34, v{b}")
    e(f"v_cvt_pk_bf16_f32 v{t}, v{a}, v{b}")
    unpack2(a, b, t)
    e(f"v_mul_f32 v{a}, s35, v{a}")
    e(f"v_mul_f32 v{b}, s35, v{b}")


def bcompute(K, V):
    for k in range(4):
        for i in range(8):
            c = "0" if k == 0 else f"v{18+i}"
            e(f"v_dot2_f32_bf16 v{18+i}, v{K + 4*i + k}, v{2+k}, {c}")
    for sh in (8, 4, 2, 1):
        for i in range(8):
            e(f"v_add_f32_dpp v{18+i}, v{18+i}, v{18+i} row_ror:{sh} row_mask:0xf bank_mask:0xf")
    for i in range(0, 8, 2):
        round_scale(18 + i, 19 + i, 26)
    e("v_max3_f32 v26, v18, v19, v20")
    e("v_max3_f32 v26, v26, v21, v22")
    e("v_max3_f32 v26, v26, v23, v24")
    e("v_max3_f32 v26, v26, v25, v8")
    e("v_sub_f32 v27, v8, v26")
    e("v_exp_f32 v27, v27")
    e("v_mov_b32 v8, v26")
    for i in range(8):
        e(f"v_sub_f32 v{18+i}, v{18+i}, v26")
    for i in range(8):
        e(f"v_exp_f32 v{18+i}, v{18+i}")
    e("v_mul_f32 v9, v9, v27")
    for j in range(8):
        e(f"v_mul_f32 v{10+j}, v{10+j}, v27")
    for i in range(8):
        e(f"v_add_f32 v9, v9, v{18+i}")
    for i in range(8):
        for k in range(4):
            unpack2(34 + 2 * k, 35 + 2 * k, V + 4 * i + k)
        for j in range(8):
            e(f"v_fmac_f32 v{10+j}, v{34+j}, v{18+i}")


def dma_tile():
    for i in range(32):
        if i % 4 == 0:
            e(f"s_add_u32 m0, s41, {i * 1024}")
            e(f"s_add_u32 s42, s40, {i * 1024}")
        e(f"v_xor_b32 v11, {fsw(i & 15) * 16}, v16")
        e(f"buffer_load_dwordx4 v11, s[8:11], s42 offen offset:{(i % 4) * 1024} lds")


def a_tile(first):
    for s in range(8):
        e(f"ds_read_b128 {vr(64 + 4 * s, 4)}, v{24 + s}")
    for s in range(32):
        e(f"s_waitcnt lgkmcnt({min(7, 31 - s)})")
        f = vr(64 + 4 * (s % 8), 4)
        c = "0" if s == 0 else vr(48, 16)
        e(f"v_mfma_f32_32x32x16_bf16 {vr(48, 16)}, {f}, {ar(4 * s, 4)}, {c}")
        e(f"v_mfma_f32_32x32x16_bf16 {vr(48, 16)}, {f}, {ar(128 + 4 * s, 4)}, {vr(48, 16)}")
        if s + 8 < 32:
            e(f"ds_read_b128 {f}, v{24 + (s % 8)} offset:{((s + 8) >> 3) * 256}")
    e("s_nop 15")
    if DEBUG and first:
        e("s_cmp_lg_u32 s24, 0")
        e("s_cbranch_scc1 K2_DBG_SKIP2")
        e("v_lshlrev_b32 v64, 6, v0")
        e(f"s_mov_b32 s27, {0x700000}")
        for q in range(4):
            e(f"buffer_store_dwordx4 {vr(48+4*q,4)}, v64, s[20:23], s27 offen offset:{16*q}")
        e("s_waitcnt vmcnt(0)")
        lab("K2_DBG_SKIP2")
    for i in range(0, 16, 2):
        round_scale(48 + i, 49 + i, 11)
    e("v_max3_f32 v12, v48, v49, v50")
    for i in range(51, 63, 2):
        e(f"v_max3_f32 v12, v12, v{i}, v{i+1}")
    e("v_max_f32 v12, v12, v63")
    e("v_mov_b32 v13, v12")
    e("s_nop 1")
    e("v_permlane32_swap_b32 v12, v13")
    e("s_nop 1")
    e("v_max_f32 v12, v12, v13")
    e("ds_write_b32 v17, v12")
    e("s_waitcnt lgkmcnt(0)")
    e("s_barrier")
    for w in range(4):
        e(f"ds_read_b32 v{12 + w}, v18 offset:{128 * w}")
    e("s_waitcnt lgkmcnt(0)")
    e("v_max3_f32 v12, v12, v13, v14")
    e("v_max3_f32 v12, v12, v15, v8")
    e("v_sub_f32 v10, v8, v12")
    e("v_exp_f32 v10, v10")
    e("v_mov_b32 v8, v12")
    for i in range(16):
        e(f"v_sub_f32 v{48+i}, v{48+i}, v12")
    for i in range(16):
        e(f"v_exp_f32 v{48+i}, v{48+i}")
    e("v_mul_f32 v9, v9, v10")
    for i in range(16):
        e(f"v_add_f32 v9, v9, v{48+i}")
    for i in range(8):
        e(f"v_cvt_pk_bf16_f32 v{96+i}, v{48+2*i}, v{49+2*i}")
    e(f"ds_write_b128 v19, {vr(96, 4)}")
    e(f"ds_write_b128 v19, {vr(100, 4)} offset:1024")
    e("s_waitcnt lgkmcnt(0)")
    e("s_barrier")
    for tu in range(8):
        e(f"ds_read_b128 {vr(64 + 4 * tu, 4)}, v20 offset:{(tu >> 1) * 2048 + (tu & 1) * 1024}")
    if not first:
        for i in range(64):
            e(f"v_mul_f32 v{192+i}, v{192+i}, v10")

    def trreads(tu):
        t, u = tu >> 1, tu & 1
        bufb = 96 + 16 * (tu & 1)
        for cc in range(4):
            for v in range(2):
                a = 32 + 8 * (t >> 1) + 2 * cc + v
                off = (32 * (t & 1) + 16 * u + 8 * v) * 1024
                e(f"ds_read_b64_tr_b16 {vr(bufb + 4 * cc + 2 * v, 2)}, v{a} offset:{off}")
    trreads(0)
    for tu in range(8):
        if tu + 1 < 8:
            trreads(tu + 1)
            e("s_waitcnt lgkmcnt(8)")
        else:
            e("s_waitcnt lgkmcnt(0)")
        bufb = 96 + 16 * (tu & 1)
        for cc in range(4):
            acc = vr(192 + 16 * cc, 16)
            c = "0" if (first and tu == 0) else acc
            e(f"v_mfma_f32_32x32x16_bf16 {acc}, {vr(bufb + 4 * cc, 4)}, {vr(64 + 4 * tu, 4)}, {c}")


def k2():
    L = "k2_kernel"
    kernel_header(L)
    e("s_cmp_ge_u32 s2, 256")
    e("s_cbranch_scc1 K2_END")
    srd(8, "A_ckv"); srd(12, "B_k"); srd(16, "B_v"); srd(20, "ws")
    e("s_and_b32 s3, s2, 7")
    e("s_lshr_b32 s4, s2, 3")
    e("s_lshr_b32 s5, s3, 2")
    e("s_lshl_b32 s24, s4, 1")
    e("s_or_b32 s24, s24, s5")
    e("s_add_u32 s25, s3, s4")
    e("s_and_b32 s25, s25, 3")
    e("v_and_b32 v1, 63, v0")
    e("v_lshrrev_b32 v2, 6, v0")
    e("s_nop 0")
    e("v_readfirstlane_b32 s26, v2")
    e(f"s_mov_b32 s34, {SCALE_BITS:#x}")
    e(f"s_mov_b32 s35, {LOG2E_BITS:#x}")
    e("v_lshlrev_b32 v16, 4, v1")
    e("s_lshl_b32 s27, s26, 13")
    e("v_add_u32 v6, s27, v16")
    e("v_add_u32 v7, 4096, v6")
    e("v_and_b32 v8, 15, v1")
    e("v_lshlrev_b32 v8, 4, v8")
    e("s_lshl_b32 s27, s24, 8")
    e(f"s_add_u32 s27, s27, {QB}")
    e("s_lshl_b32 s30, s24, 21")
    e("s_add_u32 s30, s30, 1572864")
    e("s_waitcnt lgkmcnt(0)")
    srd_fin(8, "A_ckv"); srd_fin(12, "B_k"); srd_fin(16, "B_v"); srd_fin(20, "ws")
    e(f"buffer_load_dwordx4 {vr(2, 4)}, v8, s[20:23], s27 offen")
    e("s_cmp_lg_u32 s25, 0")
    e("s_cbranch_scc1 K2_BONLY")
    e("s_lshr_b32 s36, s24, 5")
    e("s_and_b32 s37, s24, 31")
    e("s_lshl_b32 s27, s36, 15")
    for part in range(2):
        for s in range(32):
            if s % 4 == 0:
                e(f"s_add_u32 s28, s27, {part * QA_LO + s * 1024}")
            e(f"buffer_load_dwordx4 {ar(128 * part + 4 * s, 4)}, v16, s[20:23], s28 offen offset:{(s % 4) * 1024}")
    e("s_lshl_b32 s40, s36, 23")
    e("s_lshl_b32 s27, s37, 18")
    e("s_add_u32 s40, s40, s27")
    e("s_lshl_b32 s41, s26, 15")
    e("s_add_u32 s40, s40, s41")
    dma_tile()
    e("s_add_u32 s31, s30, 491520")
    bloads(128, 160, 31)
    e("v_and_b32 v48, 31, v1")
    e("v_lshrrev_b32 v49, 5, v1")
    e("v_and_b32 v50, 3, v1")
    e("v_lshlrev_b32 v50, 2, v50")
    e("v_bfe_u32 v51, v1, 2, 2")
    e("v_or_b32 v50, v50, v51")
    e("v_xor_b32 v50, v50, v49")
    e("v_lshlrev_b32 v50, 4, v50")
    e("v_lshlrev_b32 v51, 10, v48")
    e("v_add_u32 v51, s41, v51")
    for k in range(8):
        e(f"v_xor_b32 v52, {32 * k}, v50")
        e(f"v_add_u32 v{24 + k}, v51, v52")
    e("v_lshrrev_b32 v52, 4, v1")
    e("v_lshrrev_b32 v53, 5, v1")
    e("v_bfe_u32 v54, v1, 2, 2")
    e("v_and_b32 v55, 3, v1")
    e("v_and_b32 v56, 1, v52")
    e("v_lshlrev_b32 v56, 1, v56")
    e("v_lshrrev_b32 v57, 1, v55")
    e("v_add_u32 v56, v56, v57")
    e("v_lshl_or_b32 v57, v54, 2, v53")
    e("v_xor_b32 v56, v56, v57")
    e("v_lshlrev_b32 v56, 4, v56")
    e("v_and_b32 v57, 1, v55")
    e("v_lshl_add_u32 v56, v57, 3, v56")
    e("v_lshl_add_u32 v57, v53, 2, v54")
    e("v_lshl_add_u32 v56, v57, 10, v56")
    e("s_lshl_b32 s27, s26, 8")
    e("v_add_u32 v56, s27, v56")
    for cc in range(4):
        for v in range(2):
            e(f"v_xor_b32 v{32 + 2 * cc + v}, {64 * cc + 32 * v}, v56")
            e(f"v_add_u32 v{40 + 2 * cc + v}, 0x10000, v{32 + 2 * cc + v}")
    e("v_lshlrev_b32 v18, 2, v48")
    e(f"v_add_u32 v18, {MX}, v18")
    e("s_lshl_b32 s27, s26, 7")
    e("v_add_u32 v17, s27, v18")
    e(f"v_add_u32 v20, {PX}, v16")
    e("s_lshl_b32 s27, s26, 11")
    e("v_add_u32 v19, s27, v20")
    e("v_mov_b32 v8, 0xff800000")
    e("v_mov_b32 v9, 0")
    e("s_waitcnt vmcnt(16)")
    e("s_barrier")
    if DEBUG:
        e("s_cmp_lg_u32 s24, 0")
        e("s_cbranch_scc1 K2_DBG_SKIP")
        e("v_add_u32 v64, s41, v16")
        for i in range(32):
            e(f"ds_read_b128 v[68:71], v64 offset:{i*1024}")
            e("s_waitcnt lgkmcnt(0)")
            e(f"s_mov_b32 s27, {0x600000 + i*1024}")
            e(f"buffer_store_dwordx4 v[68:71], v64, s[20:23], s27 offen")
            e("s_waitcnt vmcnt(0)")
        lab("K2_DBG_SKIP")
    a_tile(True)
    e("s_barrier")
    e("s_add_u32 s40, s40, 0x20000")
    dma_tile()
    e("s_waitcnt vmcnt(0)")
    e("s_barrier")
    a_tile(False)
    e("v_mov_b32 v13, v9")
    e("s_nop 1")
    e("v_permlane32_swap_b32 v9, v13")
    e("s_nop 1")
    e("v_add_f32 v9, v9, v13")
    e(f"ds_write_b32 v17, v9 offset:{LX - MX}")
    e("v_and_b32 v11, 31, v1")
    e("v_lshrrev_b32 v12, 5, v1")
    e("v_lshlrev_b32 v14, 11, v11")
    e("v_lshl_add_u32 v14, v12, 4, v14")
    e("s_lshl_b32 s27, s36, 5")
    e("s_add_u32 s27, s27, s37")
    e("s_lshl_b32 s27, s27, 16")
    e("s_lshl_b32 s28, s26, 9")
    e("s_add_u32 s27, s27, s28")
    e(f"s_add_u32 s27, s27, {APART}")
    e("s_nop 7")
    for cc in range(4):
        for q in range(4):
            e(f"buffer_store_dwordx4 {vr(192 + 16 * cc + 4 * q, 4)}, v14, s[20:23], s27 offen offset:{cc * 128 + q * 32}")
    e("s_waitcnt lgkmcnt(0)")
    e("s_barrier")
    e("s_cmp_lg_u32 s26, 0")
    e("s_cbranch_scc1 K2_ASTAT_DONE")
    for w in range(4):
        e(f"ds_read_b32 v{12 + w}, v18 offset:{LX - MX + 128 * w}")
    e("s_waitcnt lgkmcnt(0)")
    e("v_add_f32 v12, v12, v13")
    e("v_add_f32 v14, v14, v15")
    e("v_add_f32 v9, v12, v14")
    e("v_lshlrev_b32 v14, 8, v11")
    e("s_lshl_b32 s27, s36, 13")
    e("s_lshl_b32 s28, s37, 3")
    e("s_add_u32 s27, s27, s28")
    e(f"s_add_u32 s27, s27, {ASTAT}")
    e(f"buffer_store_dwordx2 v[8:9], v14, s[20:23], s27 offen")
    lab("K2_ASTAT_DONE")
    e("v_mov_b32 v8, 0xff800000")
    for j in range(9, 18):
        e(f"v_mov_b32 v{j}, 0")
    bcompute(128, 160)
    e("s_branch K2_BFIN")
    lab("K2_BONLY")
    e("s_sub_u32 s27, s25, 1")
    e("s_mul_i32 s27, s27, 163840")
    e("s_add_u32 s31, s30, s27")
    bloads(128, 160, 31)
    e("v_mov_b32 v8, 0xff800000")
    for j in range(9, 18):
        e(f"v_mov_b32 v{j}, 0")
    for u in range(5):
        if u < 4:
            e("s_add_u32 s31, s31, 32768")
            if (u + 1) & 1:
                bloads(192, 224, 31)
            else:
                bloads(128, 160, 31)
            e("s_waitcnt vmcnt(16)")
        else:
            e("s_waitcnt vmcnt(0)")
        if u & 1:
            bcompute(192, 224)
        else:
            bcompute(128, 160)
    lab("K2_BFIN")
    e("v_lshrrev_b32 v18, 4, v1")
    e("s_lshl_b32 s27, s26, 2")
    e("v_add_u32 v18, s27, v18")
    e("v_and_b32 v19, 15, v1")
    e("v_lshlrev_b32 v20, 9, v18")
    e("v_lshl_add_u32 v20, v19, 5, v20")
    e(f"v_add_u32 v20, {BO}, v20")
    e(f"ds_write_b128 v20, {vr(10, 4)}")
    e(f"ds_write_b128 v20, {vr(14, 4)} offset:16")
    e("v_lshlrev_b32 v21, 3, v18")
    e(f"v_add_u32 v21, {BS}, v21")
    e("ds_write_b64 v21, v[8:9]")
    e("s_waitcnt lgkmcnt(0)")
    e("s_barrier")
    e("s_cmp_ge_u32 s26, 2")
    e("s_cbranch_scc1 K2_END")
    e(f"v_mov_b32 v21, {BS}")
    for s in range(16):
        e(f"ds_read_b64 {vr(64 + 2 * s, 2)}, v21 offset:{8 * s}")
    e("v_lshlrev_b32 v20, 2, v0")
    e(f"v_add_u32 v20, {BO}, v20")
    for s in range(16):
        e(f"ds_read_b32 v{96 + s}, v20 offset:{512 * s}")
    e("s_waitcnt lgkmcnt(0)")
    e("v_max3_f32 v8, v64, v66, v68")
    for s in range(3, 15, 2):
        e(f"v_max3_f32 v8, v8, v{64 + 2 * s}, v{66 + 2 * s}")
    e("v_max_f32 v8, v8, v94")
    for s in range(16):
        e(f"v_sub_f32 v{64 + 2 * s}, v{64 + 2 * s}, v8")
    for s in range(16):
        e(f"v_exp_f32 v{64 + 2 * s}, v{64 + 2 * s}")
    e("s_nop 0")
    e("v_mul_f32 v9, v64, v65")
    e("v_mul_f32 v10, v64, v96")
    for s in range(1, 16):
        e(f"v_fmac_f32 v9, v{64 + 2 * s}, v{65 + 2 * s}")
        e(f"v_fmac_f32 v10, v{64 + 2 * s}, v{96 + s}")
    e("s_lshl_b32 s27, s24, 2")
    e("s_add_u32 s27, s27, s25")
    e("s_lshl_b32 s28, s27, 9")
    e(f"s_add_u32 s28, s28, {BPART}")
    e("v_lshlrev_b32 v20, 2, v0")
    e("buffer_store_dword v10, v20, s[20:23], s28 offen")
    e("s_lshl_b32 s28, s27, 3")
    e(f"s_add_u32 s28, s28, {BSTAT}")
    e("v_cmp_eq_u32 vcc, 0, v0")
    e("s_and_saveexec_b64 s[38:39], vcc")
    e("s_cbranch_execz K2_END")
    e("v_mov_b32 v20, 0")
    e("buffer_store_dwordx2 v[8:9], v20, s[20:23], s28 offen")
    lab("K2_END")
    e("s_endpgm")
    kernel_desc(L, 512, 256)
    return f"; @launch kernel={L} grid=(256,1,1) block=(256,1,1) lds={K2_LDS}"


def k3():
    L = "k3_kernel"
    kernel_header(L)
    e("s_cmp_ge_u32 s2, 256")
    e("s_cbranch_scc1 K3_END")
    srd(12, "A_wuv"); srd(20, "ws")
    e("s_lshr_b32 s24, s2, 6")
    e("s_and_b32 s25, s2, 63")
    e("s_and_b32 s26, s2, 31")
    e("s_bfe_u32 s27, s2, 0x10005")
    e("v_lshrrev_b32 v1, 2, v0")
    e("v_and_b32 v2, 3, v0")
    e("v_lshlrev_b32 v3, 16, v1")
    e("v_lshl_add_u32 v3, v2, 4, v3")
    e("v_lshlrev_b32 v4, 3, v0")
    e("s_waitcnt lgkmcnt(0)")
    srd_fin(12, "A_wuv"); srd_fin(20, "ws")
    e("s_lshl_b32 s28, s25, 8")
    e(f"s_add_u32 s28, s28, {ASTAT}")
    e("s_add_u32 s30, s20, s28")
    e("s_addc_u32 s31, s21, 0")
    for k in range(4):
        e(f"s_load_dwordx16 s[{36 + 16 * k}:{51 + 16 * k}], s[30:31], {64 * k}")
    e("s_lshl_b32 s28, s27, 21")
    e("s_lshl_b32 s29, s26, 11")
    e("s_add_u32 s28, s28, s29")
    e(f"s_add_u32 s28, s28, {APART}")
    for s in range(32):
        e(f"buffer_load_dwordx2 {vr(64 + 2 * s, 2)}, v4, s[20:23], s28 offen")
        e("s_add_u32 s28, s28, 0x10000")
    e("s_lshl_b32 s28, s26, 8")
    e("s_lshl_b32 s29, s24, 6")
    e("s_add_u32 s28, s28, s29")
    for i in range(8):
        e(f"buffer_load_dwordx4 {vr(128 + 4 * i, 4)}, v3, s[12:15], s28 offen")
        e("s_add_u32 s28, s28, 8192")
    e("s_waitcnt lgkmcnt(0)")
    e("v_mov_b32 v5, s36")
    for s in range(1, 32):
        e(f"v_max_f32 v5, s{36 + 2 * s}, v5")
    for s in range(32):
        e(f"v_sub_f32 v{8 + s}, s{36 + 2 * s}, v5")
    for s in range(32):
        e(f"v_exp_f32 v{8 + s}, v{8 + s}")
    e("s_nop 0")
    e("v_mul_f32 v6, s37, v8")
    for s in range(1, 32):
        e(f"v_fmac_f32 v6, s{37 + 2 * s}, v{8 + s}")
    e("v_rcp_f32 v6, v6")
    e("v_mov_b32 v40, 0")
    e("v_mov_b32 v41, 0")
    for s in range(32):
        e(f"s_waitcnt vmcnt({31 - s + 8})")
        e(f"v_fmac_f32 v40, v{8 + s}, v{64 + 2 * s}")
        e(f"v_fmac_f32 v41, v{8 + s}, v{65 + 2 * s}")
    e("v_mul_f32 v40, v40, v6")
    e("v_mul_f32 v41, v41, v6")
    e("ds_write_b64 v4, v[40:41]")
    e("s_waitcnt lgkmcnt(0)")
    e("s_barrier")
    e("v_lshlrev_b32 v5, 5, v1")
    e(f"ds_read_b128 {vr(8, 4)}, v5")
    e(f"ds_read_b128 {vr(12, 4)}, v5 offset:16")
    for k in range(8):
        e(f"v_mov_b32 v{40 + k}, 0")
    e("s_waitcnt vmcnt(0) lgkmcnt(0)")
    for i in range(8):
        for k in range(4):
            unpack2(48 + 2 * k, 49 + 2 * k, 128 + 4 * i + k)
        for k in range(8):
            e(f"v_fmac_f32 v{40 + k}, v{48 + k}, v{8 + i}")
    e("v_lshlrev_b32 v5, 7, v1")
    e("v_lshl_add_u32 v5, v2, 5, v5")
    e(f"ds_write_b128 v5, {vr(40, 4)} offset:2048")
    e(f"ds_write_b128 v5, {vr(44, 4)} offset:2064")
    e("s_waitcnt lgkmcnt(0)")
    e("s_barrier")
    e("v_cmp_gt_u32 vcc, 32, v0")
    e("s_and_saveexec_b64 s[32:33], vcc")
    e("s_cbranch_execz K3_END")
    e("v_lshlrev_b32 v5, 2, v0")
    for g in range(64):
        e(f"ds_read_b32 v{64 + g}, v5 offset:{2048 + 128 * g}")
    e("s_waitcnt lgkmcnt(0)")
    for g in range(32):
        e(f"v_add_f32 v{64 + g}, v{64 + g}, v{96 + g}")
    for g in range(16):
        e(f"v_add_f32 v{64 + g}, v{64 + g}, v{80 + g}")
    for g in range(8):
        e(f"v_add_f32 v{64 + g}, v{64 + g}, v{72 + g}")
    for g in range(4):
        e(f"v_add_f32 v{64 + g}, v{64 + g}, v{68 + g}")
    e("v_add_f32 v64, v64, v66")
    e("v_add_f32 v65, v65, v67")
    e("v_add_f32 v64, v64, v65")
    e("v_cvt_pk_bf16_f32 v64, v64, v64")
    e("s_lshl_b32 s28, s25, 8")
    e("s_lshl_b32 s29, s24, 6")
    e("s_add_u32 s28, s28, s29")
    e(f"s_add_u32 s28, s28, {CTX}")
    e("v_lshlrev_b32 v5, 1, v0")
    e("buffer_store_short v64, v5, s[20:23], s28 offen")
    lab("K3_END")
    e("s_endpgm")
    kernel_desc(L, 160, 160)
    return f"; @launch kernel={L} grid=(256,1,1) block=(256,1,1) lds=10240"


def k4():
    L = "k4_kernel"
    kernel_header(L)
    e("s_cmp_ge_u32 s2, 128")
    e("s_cbranch_scc1 K4_END")
    srd(20, "ws"); srd(16, "out"); srd(8, "dbg")
    e("s_lshr_b32 s24, s2, 6")
    e("s_bfe_u32 s25, s2, 0x30003")
    e("s_and_b32 s26, s2, 7")
    e("s_cmp_lg_u32 s24, 0")
    e("s_cbranch_scc1 K4_LB")
    srd(12, "A_wo")
    e("s_branch K4_LD")
    lab("K4_LB")
    srd(12, "B_wo")
    lab("K4_LD")
    e("v_lshrrev_b32 v1, 3, v0")
    e("v_and_b32 v2, 7, v0")
    e("v_lshlrev_b32 v3, 14, v1")
    e("v_lshl_add_u32 v3, v2, 4, v3")
    e("v_lshrrev_b32 v4, 7, v0")
    e("v_and_b32 v5, 127, v0")
    e("s_waitcnt lgkmcnt(0)")
    srd_fin(12, "A_wo"); srd_fin(20, "ws"); srd_fin(16, "out"); srd_fin(8, "dbg")
    e("s_lshl_b32 s28, s25, 19")
    e("s_lshl_b32 s29, s26, 7")
    e("s_add_u32 s28, s28, s29")
    for i in range(16):
        if i and i % 4 == 0:
            e("s_add_u32 s28, s28, 4096")
        e(f"buffer_load_dwordx4 {vr(64 + 4 * i, 4)}, v3, s[12:15], s28 offen offset:{(i % 4) * 1024}")
    e("v_lshlrev_b32 v7, 2, v0")
    e("v_lshlrev_b32 v6, 11, v4")
    e("v_lshl_add_u32 v7, v5, 2, v6")
    e("s_cmp_lg_u32 s24, 0")
    e("s_cbranch_scc1 K4_VB")
    e("v_lshlrev_b32 v6, 13, v4")
    e("v_lshl_add_u32 v6, v5, 1, v6")
    e("s_lshl_b32 s29, s25, 10")
    e(f"s_add_u32 s29, s29, {CTX}")
    for hh in range(4):
        e(f"buffer_load_ushort v{8 + hh}, v6, s[20:23], s29 offen offset:{256 * hh}")
    e("s_waitcnt vmcnt(0)")
    for hh in range(4):
        e(f"v_lshlrev_b32 v{8 + hh}, 16, v{8 + hh}")
        e(f"ds_write_b32 v7, v{8 + hh} offset:{512 * hh}")
    e("s_branch K4_VD")
    lab("K4_VB")
    e("v_lshlrev_b32 v6, 10, v4")
    e("s_lshl_b32 s29, s25, 7")
    e(f"s_add_u32 s29, s29, {BSTAT}")
    for hh in range(4):
        e(f"buffer_load_dwordx4 {vr(8 + 8 * hh, 4)}, v6, s[20:23], s29 offen offset:{32 * hh}")
        e(f"buffer_load_dwordx4 {vr(12 + 8 * hh, 4)}, v6, s[20:23], s29 offen offset:{32 * hh + 16}")
    e("v_lshlrev_b32 v6, 16, v4")
    e("v_lshl_add_u32 v6, v5, 2, v6")
    e("s_lshl_b32 s29, s25, 13")
    e(f"s_add_u32 s29, s29, {BPART}")
    for hh in range(4):
        for r in range(4):
            if hh >= 2 and r == 0 and hh == 2:
                e("s_add_u32 s29, s29, 4096")
            e(f"buffer_load_dword v{40 + 4 * hh + r}, v6, s[20:23], s29 offen offset:{(hh % 2) * 2048 + 512 * r}")
    e("s_waitcnt vmcnt(0)")
    for hh in range(4):
        b0 = 8 + 8 * hh
        e(f"v_max3_f32 v56, v{b0}, v{b0 + 2}, v{b0 + 4}")
        e(f"v_max_f32 v56, v56, v{b0 + 6}")
        for r in range(4):
            e(f"v_sub_f32 v{b0 + 2 * r}, v{b0 + 2 * r}, v56")
        for r in range(4):
            e(f"v_exp_f32 v{b0 + 2 * r}, v{b0 + 2 * r}")
        e("s_nop 0")
        e(f"v_mul_f32 v57, v{b0}, v{b0 + 1}")
        e(f"v_mul_f32 v58, v{b0}, v{40 + 4 * hh}")
        for r in range(1, 4):
            e(f"v_fmac_f32 v57, v{b0 + 2 * r}, v{b0 + 2 * r + 1}")
            e(f"v_fmac_f32 v58, v{b0 + 2 * r}, v{40 + 4 * hh + r}")
        e("v_rcp_f32 v57, v57")
        e("s_nop 0")
        e("v_mul_f32 v58, v58, v57")
        e("v_cvt_pk_bf16_f32 v58, v58, v58")
        e("v_lshlrev_b32 v58, 16, v58")
        e(f"ds_write_b32 v7, v58 offset:{512 * hh}")
    lab("K4_VD")
    e("s_waitcnt lgkmcnt(0)")
    e("s_barrier")
    e("v_lshlrev_b32 v6, 6, v1")
    for b in range(2):
        for k in range(4):
            e(f"ds_read_b128 {vr(8 + 16 * b + 4 * k, 4)}, v6 offset:{2048 * b + 16 * k}")
    for k in range(16):
        e(f"v_mov_b32 v{40 + k}, 0")
    e("s_waitcnt vmcnt(0) lgkmcnt(0)")
    for i in range(16):
        for k in range(4):
            unpack2(56 + 2 * k, 57 + 2 * k, 64 + 4 * i + k)
        for k in range(8):
            e(f"v_fmac_f32 v{40 + k}, v{56 + k}, v{8 + i}")
            e(f"v_fmac_f32 v{48 + k}, v{56 + k}, v{24 + i}")
    e("v_lshlrev_b32 v6, 9, v1")
    e("v_lshl_add_u32 v6, v2, 5, v6")
    e(f"ds_write_b128 v6, {vr(40, 4)} offset:4096")
    e(f"ds_write_b128 v6, {vr(44, 4)} offset:4112")
    e(f"ds_write_b128 v6, {vr(48, 4)} offset:4352")
    e(f"ds_write_b128 v6, {vr(52, 4)} offset:4368")
    e("s_waitcnt lgkmcnt(0)")
    e("s_barrier")
    e("v_lshrrev_b32 v4, 6, v0")
    e("s_nop 0")
    e("v_readfirstlane_b32 s27, v4")
    e("s_cmp_ge_u32 s27, 2")
    e("s_cbranch_scc1 K4_END")
    e("v_lshlrev_b32 v6, 2, v0")
    for g in range(32):
        e(f"ds_read_b32 v{64 + g}, v6 offset:{4096 + 512 * g}")
    e("s_waitcnt lgkmcnt(0)")
    for n in (16, 8, 4, 2, 1):
        for g in range(n):
            e(f"v_add_f32 v{64 + g}, v{64 + g}, v{64 + n + g}")
    e("v_and_b32 v5, 63, v0")
    e("v_lshlrev_b32 v5, 2, v5")
    e("s_lshl_b32 s28, s24, 15")
    e("s_lshl_b32 s29, s27, 11")
    e("s_add_u32 s28, s28, s29")
    e("s_lshl_b32 s29, s26, 8")
    e("s_add_u32 s28, s28, s29")
    e(f"s_add_u32 s28, s28, {OPART}")
    e("s_lshl_b32 s29, s25, 12")
    e("s_add_u32 s29, s29, s28")
    e("buffer_store_dword v64, v5, s[20:23], s29 offen sc0 sc1")
    e("s_waitcnt vmcnt(0)")
    e("s_lshl_b32 s30, s24, 3")
    e("s_add_u32 s30, s30, s26")
    e("s_lshl_b32 s30, s30, 1")
    e("s_add_u32 s30, s30, s27")
    e("s_lshl_b32 s30, s30, 2")
    e("v_mov_b32 v8, 1")
    e("v_mov_b32 v9, 0")
    e("s_mov_b64 s[32:33], exec")
    e("s_mov_b64 exec, 1")
    e("buffer_atomic_add v8, v9, s[8:11], s30 offen sc0 sc1")
    e("s_waitcnt vmcnt(0)")
    e("s_mov_b64 exec, s[32:33]")
    e("v_readfirstlane_b32 s31, v8")
    e("s_cmp_lg_u32 s31, 7")
    e("s_cbranch_scc1 K4_END")
    for r in range(8):
        e(f"buffer_load_dword v{64 + r}, v5, s[20:23], s28 offen sc0 sc1")
        e("s_add_u32 s28, s28, 4096")
    e("s_waitcnt vmcnt(0)")
    for r in range(1, 8):
        e(f"v_add_f32 v64, v64, v{64 + r}")
    e("v_cvt_pk_bf16_f32 v64, v64, v64")
    e("v_lshrrev_b32 v5, 1, v5")
    e("s_lshl_b32 s28, s27, 11")
    e("s_lshl_b32 s29, s24, 10")
    e("s_add_u32 s28, s28, s29")
    e("s_lshl_b32 s29, s26, 7")
    e("s_add_u32 s28, s28, s29")
    e("buffer_store_short v64, v5, s[16:19], s28 offen")
    lab("K4_END")
    e("s_endpgm")
    kernel_desc(L, 128, 128)
    return f"; @launch kernel={L} grid=(128,1,1) block=(256,1,1) lds=20480"


LAUNCHES = []


def main():
    LAUNCHES.append(k1())
    LAUNCHES.append(k2())
    LAUNCHES.append(k3())
    LAUNCHES.append(k4())
    head = open(f"cdna_kernels/{NAME}.s.ref").read().split("; Override launch")[0]
    txt = head + "\n".join(LAUNCHES) + "\n"
    txt += '.amdgcn_target "amdgcn-amd-amdhsa--gfx950"\n.text\n'
    txt += "\n".join(out) + "\n"
    txt += '.section .rodata,"a"\n' + "\n".join(descs) + "\n"
    path = sys.argv[1] if len(sys.argv) > 1 else f"cdna_kernels/{NAME}.s"
    open(path, "w").write(txt)


if __name__ == "__main__":
    main()
```

```python
import sys

NAME = "concat_heads__compressed_kv_cla__sliding_block_cached__decode"

KA = dict(A_x=0, A_ckv=8, A_wq=16, A_wuk=24, A_wuv=32, A_wo=40, B_x=48, B_k=56, B_v=64,
          B_wq=72, B_wo=80, out=88, dbg=96, ws=104)
SZ = dict(A_x=2048, A_ckv=16777216, A_wq=4194304, A_wuk=4194304, A_wuv=4194304, A_wo=4194304,
          B_x=2048, B_k=134217728, B_v=134217728, B_wq=4194304, B_wo=4194304, out=4096, dbg=256,
          ws=536870912)

QA_HI = 0x00000
QA_LO = 0x10000
QB = 0x20000
ASTAT = 0x30000
BPART = 0x40000
BSTAT = 0x60000
CTX = 0x70000
OPART = 0x80000
APART = 0x100000

SCALE_BITS = 0x3DB504F3
LOG2E_BITS = 0x3FB8AA3B

out = []
import os
DEBUG = bool(os.environ.get('DEBUG'))
PROF = bool(os.environ.get('PROF'))
PROFBASE = 0x800000


def prof_start():
    if PROF:
        e("s_memrealtime s[90:91]")


def prof_mark(slot, t=21):
    if PROF:
        e("s_memrealtime s[92:93]")
        e("s_waitcnt lgkmcnt(0)")
        e("s_sub_u32 s92, s92, s90")
        e(f"v_mov_b32 v{t}, s92")
        e("s_lshl_b32 s94, s2, 6")
        e(f"s_add_u32 s94, s94, {PROFBASE + prof_kernel[0] * 0x10000 + slot * 4}")
        e(f"v_lshrrev_b32 v{t+1}, 6, v0")
        e(f"v_lshlrev_b32 v{t+1}, 4, v{t+1}")
        e(f"buffer_store_dword v{t}, v{t+1}, s[20:23], s94 offen")


prof_kernel = [0]


def e(s):
    out.append("    " + s)


def lab(s):
    out.append(s + ":")


def srd(dst, name):
    e(f"s_load_dwordx2 s[{dst}:{dst+1}], s[0:1], {KA[name]}")


def srd_fin(dst, name):
    e(f"s_mov_b32 s{dst+2}, {SZ[name]}")
    e(f"s_mov_b32 s{dst+3}, 0x20000")


def vr(a, n):
    return f"v[{a}:{a+n-1}]"


def ar(a, n):
    return f"a[{a}:{a+n-1}]"


def kernel_header(label):
    out.append(f".globl {label}")
    out.append(".p2align 8")
    out.append(f".type {label},@function")
    lab(label)


descs = []


def kernel_desc(label, vgpr, accum, sgpr=102):
    descs.append(f""".p2align 6
.amdhsa_kernel {label}
  .amdhsa_next_free_vgpr {vgpr}
  .amdhsa_next_free_sgpr {sgpr}
  .amdhsa_accum_offset {accum}
  .amdhsa_group_segment_fixed_size 0
  .amdhsa_kernarg_size 112
  .amdhsa_user_sgpr_count 2
  .amdhsa_user_sgpr_kernarg_segment_ptr 1
  .amdhsa_system_sgpr_workgroup_id_x 1
.end_amdhsa_kernel""")


def unpack2(dlo, dhi, src):
    e(f"v_lshlrev_b32 v{dlo}, 16, v{src}")
    e(f"v_and_b32 v{dhi}, 0xffff0000, v{src}")


def gemv_rows(nrows, wbase, xbase0, xbase1, acc, tmp, xt, vm_after):
    for i in range(nrows):
        e(f"s_waitcnt vmcnt({nrows - 1 - i + vm_after})")
        if i % 2 == 0:
            e(f"v_lshlrev_b32 v{xt}, 16, v{xbase0 + i // 2}")
            e(f"v_lshlrev_b32 v{xt+1}, 16, v{xbase1 + i // 2}")
        else:
            e(f"v_and_b32 v{xt}, 0xffff0000, v{xbase0 + i // 2}")
            e(f"v_and_b32 v{xt+1}, 0xffff0000, v{xbase1 + i // 2}")
        for k in range(4):
            unpack2(tmp + 2 * k, tmp + 2 * k + 1, wbase + 4 * i + k)
        for k in range(8):
            e(f"v_fmac_f32 v{acc + k}, v{tmp + k}, v{xt}")
            e(f"v_fmac_f32 v{acc + 8 + k}, v{tmp + k}, v{xt+1}")


def k1():
    L = "k1_kernel"
    kernel_header(L)
    e("s_cmp_ge_u32 s2, 192")
    e("s_cbranch_scc1 K1_END")
    e("s_cmp_ge_u32 s2, 128")
    e("s_cbranch_scc1 K1_B")
    srd(8, "A_x"); srd(12, "A_wq"); srd(16, "A_wuk"); srd(20, "ws")
    e("s_and_b32 s24, s2, 31")
    e("s_lshr_b32 s25, s2, 5")
    e("v_and_b32 v1, 15, v0")
    e("v_lshrrev_b32 v2, 4, v0")
    e("v_lshlrev_b32 v3, 18, v2")
    e("v_lshl_add_u32 v3, v1, 4, v3")
    e("v_lshlrev_b32 v4, 6, v2")
    e("v_lshlrev_b32 v5, 13, v2")
    e("v_lshl_add_u32 v5, v1, 4, v5")
    e("s_lshl_b32 s26, s24, 8")
    e("s_waitcnt lgkmcnt(0)")
    srd_fin(8, "A_x"); srd_fin(12, "A_wq"); srd_fin(16, "A_wuk"); srd_fin(20, "ws")
    for b in range(2):
        for k in range(4):
            e(f"buffer_load_dwordx4 {vr(8 + 16 * b + 4 * k, 4)}, v4, s[8:11], 0 offen offset:{1024 * b + 16 * k}")
    e("s_mov_b32 s27, s26")
    for i in range(32):
        e(f"buffer_load_dwordx4 {vr(40 + 4 * i, 4)}, v3, s[12:15], s27 offen nt")
        e("s_add_u32 s27, s27, 8192")
    e("s_lshl_b32 s27, s25, 20")
    e("s_add_u32 s27, s27, s26")
    for i in range(8):
        e(f"buffer_load_dwordx4 {vr(168 + 4 * i, 4)}, v5, s[16:19], s27 offen nt")
        e("s_add_u32 s27, s27, 0x20000")
    for k in range(16):
        e(f"v_mov_b32 v{200 + k}, 0")
    gemv_rows(32, 40, 8, 24, 200, 218, 216, 8)
    e("v_lshlrev_b32 v6, 10, v2")
    e("v_lshl_add_u32 v6, v1, 5, v6")
    e(f"ds_write_b128 v6, {vr(200, 4)}")
    e(f"ds_write_b128 v6, {vr(204, 4)} offset:16")
    e(f"ds_write_b128 v6, {vr(208, 4)} offset:512")
    e(f"ds_write_b128 v6, {vr(212, 4)} offset:528")
    e("s_waitcnt lgkmcnt(0)")
    e("s_barrier")
    e("v_lshlrev_b32 v6, 2, v0")
    for g in range(16):
        e(f"ds_read_b32 v{8 + g}, v6 offset:{1024 * g}")
    e("s_waitcnt lgkmcnt(0)")
    for g in range(1, 16):
        e(f"v_add_f32 v8, v8, v{8 + g}")
    e("v_cvt_pk_bf16_f32 v8, v8, v8")
    e("v_lshlrev_b32 v6, 1, v0")
    e("ds_write_b16 v6, v8 offset:16384")
    e("s_waitcnt lgkmcnt(0)")
    e("s_barrier")
    e("v_lshlrev_b32 v6, 4, v1")
    e(f"ds_read_b128 {vr(8, 4)}, v6 offset:16384")
    e(f"ds_read_b128 {vr(12, 4)}, v6 offset:16640")
    e("s_waitcnt vmcnt(0) lgkmcnt(0)")
    for k in range(4):
        for i in range(8):
            for b in range(2):
                d = 24 + 2 * i + b
                c = "0" if k == 0 else f"v{d}"
                e(f"v_dot2_f32_bf16 v{d}, v{168 + 4 * i + k}, v{8 + 4 * b + k}, {c}")
    e("s_nop 3")
    for sh in (8, 4, 2, 1):
        for d in range(24, 40):
            e(f"v_add_f32_dpp v{d}, v{d}, v{d} row_ror:{sh} row_mask:0xf bank_mask:0xf")
        e("s_nop 1")
    e("v_lshlrev_b32 v6, 2, v2")
    for i in range(8):
        for b in range(2):
            e(f"ds_write_b32 v6, v{24 + 2 * i + b} offset:{16896 + 512 * b + 64 * i}")
    e("s_waitcnt lgkmcnt(0)")
    e("s_barrier")
    e("v_cmp_gt_u32 vcc, 32, v0")
    e("s_and_saveexec_b64 s[28:29], vcc")
    e("s_cbranch_execz K1_END")
    e("v_lshlrev_b32 v6, 5, v0")
    e(f"ds_read_b128 {vr(8, 4)}, v6 offset:16896")
    e(f"ds_read_b128 {vr(12, 4)}, v6 offset:16912")
    e("s_waitcnt lgkmcnt(0)")
    for k in range(4):
        a, b_ = 8 + 2 * k, 9 + 2 * k
        e(f"v_cvt_pk_bf16_f32 v{16 + k}, v{a}, v{b_}")
        unpack2(24, 25, 16 + k)
        e(f"v_sub_f32 v24, v{a}, v24")
        e(f"v_sub_f32 v25, v{b_}, v25")
        e(f"v_cvt_pk_bf16_f32 v{20 + k}, v24, v25")
    e("v_lshrrev_b32 v6, 4, v0")
    e("v_and_b32 v7, 15, v0")
    e("v_lshrrev_b32 v24, 1, v7")
    e("v_and_b32 v25, 1, v7")
    e("v_lshlrev_b32 v6, 15, v6")
    e("v_lshl_add_u32 v6, v24, 10, v6")
    e("v_lshl_add_u32 v6, v25, 9, v6")
    e("s_lshl_b32 s27, s25, 13")
    e("s_lshl_b32 s28, s24, 4")
    e("s_add_u32 s27, s27, s28")
    e(f"buffer_store_dwordx4 {vr(16, 4)}, v6, s[20:23], s27 offen")
    e(f"s_add_u32 s27, s27, {QA_LO}")
    e(f"buffer_store_dwordx4 {vr(20, 4)}, v6, s[20:23], s27 offen")
    e("s_branch K1_END")
    lab("K1_B")
    srd(8, "B_x"); srd(12, "B_wq"); srd(20, "ws")
    e("s_sub_u32 s3, s2, 128")
    e("s_and_b32 s24, s3, 31")
    e("s_lshr_b32 s25, s3, 5")
    e("v_and_b32 v1, 7, v0")
    e("v_lshrrev_b32 v2, 3, v0")
    e("v_lshlrev_b32 v3, 17, v2")
    e("v_lshl_add_u32 v3, v1, 4, v3")
    e("v_lshlrev_b32 v4, 5, v2")
    e("s_lshl_b32 s26, s24, 8")
    e("s_lshl_b32 s27, s25, 7")
    e("s_add_u32 s26, s26, s27")
    e("s_waitcnt lgkmcnt(0)")
    srd_fin(8, "B_x"); srd_fin(12, "B_wq"); srd_fin(20, "ws")
    for b in range(2):
        for k in range(2):
            e(f"buffer_load_dwordx4 {vr(8 + 8 * b + 4 * k, 4)}, v4, s[8:11], 0 offen offset:{1024 * b + 16 * k}")
    e("s_mov_b32 s27, s26")
    for i in range(16):
        e(f"buffer_load_dwordx4 {vr(40 + 4 * i, 4)}, v3, s[12:15], s27 offen nt")
        e("s_add_u32 s27, s27, 8192")
    for k in range(16):
        e(f"v_mov_b32 v{200 + k}, 0")
    gemv_rows(16, 40, 8, 16, 200, 218, 216, 0)
    e("v_lshlrev_b32 v6, 9, v2")
    e("v_lshl_add_u32 v6, v1, 5, v6")
    e(f"ds_write_b128 v6, {vr(200, 4)}")
    e(f"ds_write_b128 v6, {vr(204, 4)} offset:16")
    e(f"ds_write_b128 v6, {vr(208, 4)} offset:256")
    e(f"ds_write_b128 v6, {vr(212, 4)} offset:272")
    e("s_waitcnt lgkmcnt(0)")
    e("s_barrier")
    e("v_cmp_gt_u32 vcc, 128, v0")
    e("s_and_saveexec_b64 s[28:29], vcc")
    e("s_cbranch_execz K1_END")
    e("v_lshlrev_b32 v6, 2, v0")
    for g in range(32):
        e(f"ds_read_b32 v{8 + g}, v6 offset:{512 * g}")
    e("s_waitcnt lgkmcnt(0)")
    for g in range(1, 32):
        e(f"v_add_f32 v8, v8, v{8 + g}")
    e("v_cvt_pk_bf16_f32 v8, v8, v8")
    e("v_lshrrev_b32 v6, 6, v0")
    e("v_and_b32 v7, 63, v0")
    e("v_lshlrev_b32 v6, 13, v6")
    e("v_lshl_add_u32 v6, v7, 1, v6")
    e(f"s_add_u32 s27, s26, {QB}")
    e("buffer_store_short v8, v6, s[20:23], s27 offen")
    lab("K1_END")
    e("s_endpgm")
    kernel_desc(L, 232, 232)
    return f"; @launch kernel={L} grid=(192,1,1) block=(256,1,1) lds=18432"


TILE = 0
PX = 131072
MX = 139264
LX = 139776
BO = 140288
BS = BO + 8192
K2_LDS = BS + 128


def fsw(r):
    return ((r & 3) << 2) | ((r >> 2) & 3)


def bloads(K, V, soff):
    for (base, srdn) in ((K, 12), (V, 16)):
        for i in range(8):
            va = 6 if i < 4 else 7
            e(f"buffer_load_dwordx4 {vr(base + 4 * i, 4)}, v{va}, s[{srdn}:{srdn+3}], s{soff} offen offset:{(i % 4) * 1024} nt")


def round_scale(a, b, t):
    e(f"v_cvt_pk_bf16_f32 v{t}, v{a}, v{b}")
    unpack2(a, b, t)
    e(f"v_mul_f32 v{a}, s34, v{a}")
    e(f"v_mul_f32 v{b}, s34, v{b}")
    e(f"v_cvt_pk_bf16_f32 v{t}, v{a}, v{b}")
    unpack2(a, b, t)
    e(f"v_mul_f32 v{a}, s35, v{a}")
    e(f"v_mul_f32 v{b}, s35, v{b}")


def bcompute(K, V):
    for k in range(4):
        for i in range(8):
            c = "0" if k == 0 else f"v{18+i}"
            e(f"v_dot2_f32_bf16 v{18+i}, v{K + 4*i + k}, v{2+k}, {c}")
    for sh in (8, 4, 2, 1):
        for i in range(8):
            e(f"v_add_f32_dpp v{18+i}, v{18+i}, v{18+i} row_ror:{sh} row_mask:0xf bank_mask:0xf")
    for i in range(0, 8, 2):
        round_scale(18 + i, 19 + i, 26)
    e("v_max3_f32 v26, v18, v19, v20")
    e("v_max3_f32 v26, v26, v21, v22")
    e("v_max3_f32 v26, v26, v23, v24")
    e("v_max3_f32 v26, v26, v25, v8")
    e("v_sub_f32 v27, v8, v26")
    e("v_exp_f32 v27, v27")
    e("v_mov_b32 v8, v26")
    for i in range(8):
        e(f"v_sub_f32 v{18+i}, v{18+i}, v26")
    for i in range(8):
        e(f"v_exp_f32 v{18+i}, v{18+i}")
    e("v_mul_f32 v9, v9, v27")
    for j in range(8):
        e(f"v_mul_f32 v{10+j}, v{10+j}, v27")
    for i in range(8):
        e(f"v_add_f32 v9, v9, v{18+i}")
    for i in range(8):
        for k in range(4):
            unpack2(34 + 2 * k, 35 + 2 * k, V + 4 * i + k)
        for j in range(8):
            e(f"v_fmac_f32 v{10+j}, v{34+j}, v{18+i}")


def dma_tile():
    for i in range(32):
        if i % 4 == 0:
            e(f"s_add_u32 m0, s41, {i * 1024}")
            e(f"s_add_u32 s42, s40, {i * 1024}")
        e(f"v_xor_b32 v11, {fsw(i & 15) * 16}, v16")
        e(f"buffer_load_dwordx4 v11, s[8:11], s42 offen offset:{(i % 4) * 1024} nt lds")


def a_tile(first):
    for s in range(8):
        e(f"ds_read_b128 {vr(64 + 4 * s, 4)}, v{24 + s}")
    for s in range(32):
        e(f"s_waitcnt lgkmcnt({min(7, 31 - s)})")
        f = vr(64 + 4 * (s % 8), 4)
        c = "0" if s == 0 else vr(48, 16)
        e(f"v_mfma_f32_32x32x16_bf16 {vr(48, 16)}, {f}, {ar(4 * s, 4)}, {c}")
        e(f"v_mfma_f32_32x32x16_bf16 {vr(48, 16)}, {f}, {ar(128 + 4 * s, 4)}, {vr(48, 16)}")
        if s + 8 < 32:
            e(f"ds_read_b128 {f}, v{24 + (s % 8)} offset:{((s + 8) >> 3) * 256}")
    e("s_nop 15")
    if DEBUG and first:
        e("s_cmp_lg_u32 s24, 0")
        e("s_cbranch_scc1 K2_DBG_SKIP2")
        e("v_lshlrev_b32 v64, 6, v0")
        e(f"s_mov_b32 s27, {0x700000}")
        for q in range(4):
            e(f"buffer_store_dwordx4 {vr(48+4*q,4)}, v64, s[20:23], s27 offen offset:{16*q}")
        e("s_waitcnt vmcnt(0)")
        lab("K2_DBG_SKIP2")
    for i in range(0, 16, 2):
        round_scale(48 + i, 49 + i, 11)
    e("v_max3_f32 v12, v48, v49, v50")
    for i in range(51, 63, 2):
        e(f"v_max3_f32 v12, v12, v{i}, v{i+1}")
    e("v_max_f32 v12, v12, v63")
    e("v_mov_b32 v13, v12")
    e("s_nop 1")
    e("v_permlane32_swap_b32 v12, v13")
    e("s_nop 1")
    e("v_max_f32 v12, v12, v13")
    e("ds_write_b32 v17, v12")
    e("s_waitcnt lgkmcnt(0)")
    e("s_barrier")
    for w in range(4):
        e(f"ds_read_b32 v{12 + w}, v18 offset:{128 * w}")
    e("s_waitcnt lgkmcnt(0)")
    e("v_max3_f32 v12, v12, v13, v14")
    e("v_max3_f32 v12, v12, v15, v8")
    e("v_sub_f32 v10, v8, v12")
    e("v_exp_f32 v10, v10")
    e("v_mov_b32 v8, v12")
    for i in range(16):
        e(f"v_sub_f32 v{48+i}, v{48+i}, v12")
    for i in range(16):
        e(f"v_exp_f32 v{48+i}, v{48+i}")
    e("v_mul_f32 v9, v9, v10")
    for i in range(16):
        e(f"v_add_f32 v9, v9, v{48+i}")
    for i in range(8):
        e(f"v_cvt_pk_bf16_f32 v{96+i}, v{48+2*i}, v{49+2*i}")
    e(f"ds_write_b128 v19, {vr(96, 4)}")
    e(f"ds_write_b128 v19, {vr(100, 4)} offset:1024")
    e("s_waitcnt lgkmcnt(0)")
    e("s_barrier")
    for tu in range(8):
        e(f"ds_read_b128 {vr(64 + 4 * tu, 4)}, v20 offset:{(tu >> 1) * 2048 + (tu & 1) * 1024}")
    if not first:
        for i in range(64):
            e(f"v_mul_f32 v{192+i}, v{192+i}, v10")

    def trreads(tu):
        t, u = tu >> 1, tu & 1
        bufb = 96 + 16 * (tu & 1)
        for cc in range(4):
            for v in range(2):
                a = 32 + 8 * (t >> 1) + 2 * cc + v
                off = (32 * (t & 1) + 16 * u + 8 * v) * 1024
                e(f"ds_read_b64_tr_b16 {vr(bufb + 4 * cc + 2 * v, 2)}, v{a} offset:{off}")
    trreads(0)
    for tu in range(8):
        if tu + 1 < 8:
            trreads(tu + 1)
            e("s_waitcnt lgkmcnt(8)")
        else:
            e("s_waitcnt lgkmcnt(0)")
        bufb = 96 + 16 * (tu & 1)
        for cc in range(4):
            acc = vr(192 + 16 * cc, 16)
            c = "0" if (first and tu == 0) else acc
            e(f"v_mfma_f32_32x32x16_bf16 {acc}, {vr(bufb + 4 * cc, 4)}, {vr(64 + 4 * tu, 4)}, {c}")


def k2():
    L = "k2_kernel"
    kernel_header(L)
    e("s_cmp_ge_u32 s2, 256")
    e("s_cbranch_scc1 K2_END")
    prof_kernel[0] = 1
    prof_start()
    srd(8, "A_ckv"); srd(12, "B_k"); srd(16, "B_v"); srd(20, "ws")
    e("s_and_b32 s3, s2, 7")
    e("s_lshr_b32 s4, s2, 3")
    e("s_lshr_b32 s5, s3, 2")
    e("s_lshl_b32 s24, s4, 1")
    e("s_or_b32 s24, s24, s5")
    e("s_add_u32 s25, s3, s4")
    e("s_and_b32 s25, s25, 3")
    e("v_and_b32 v1, 63, v0")
    e("v_lshrrev_b32 v2, 6, v0")
    e("s_nop 0")
    e("v_readfirstlane_b32 s26, v2")
    e(f"s_mov_b32 s34, {SCALE_BITS:#x}")
    e(f"s_mov_b32 s35, {LOG2E_BITS:#x}")
    e("v_lshlrev_b32 v16, 4, v1")
    e("s_lshl_b32 s27, s26, 13")
    e("v_add_u32 v6, s27, v16")
    e("v_add_u32 v7, 4096, v6")
    e("v_and_b32 v8, 15, v1")
    e("v_lshlrev_b32 v8, 4, v8")
    e("s_lshl_b32 s27, s24, 8")
    e(f"s_add_u32 s27, s27, {QB}")
    e("s_lshl_b32 s30, s24, 21")
    e("s_add_u32 s30, s30, 1572864")
    e("s_waitcnt lgkmcnt(0)")
    srd_fin(8, "A_ckv"); srd_fin(12, "B_k"); srd_fin(16, "B_v"); srd_fin(20, "ws")
    e(f"buffer_load_dwordx4 {vr(2, 4)}, v8, s[20:23], s27 offen")
    e("s_cmp_lg_u32 s25, 0")
    e("s_cbranch_scc1 K2_BONLY")
    e("s_lshr_b32 s36, s24, 5")
    e("s_and_b32 s37, s24, 31")
    e("s_lshl_b32 s27, s36, 15")
    for part in range(2):
        for s in range(32):
            if s % 4 == 0:
                e(f"s_add_u32 s28, s27, {part * QA_LO + s * 1024}")
            e(f"buffer_load_dwordx4 {ar(128 * part + 4 * s, 4)}, v16, s[20:23], s28 offen offset:{(s % 4) * 1024}")
    e("s_lshl_b32 s40, s36, 23")
    e("s_lshl_b32 s27, s37, 18")
    e("s_add_u32 s40, s40, s27")
    e("s_lshl_b32 s41, s26, 15")
    e("s_add_u32 s40, s40, s41")
    dma_tile()
    e("s_add_u32 s31, s30, 491520")
    bloads(128, 160, 31)
    e("v_and_b32 v48, 31, v1")
    e("v_lshrrev_b32 v49, 5, v1")
    e("v_and_b32 v50, 3, v1")
    e("v_lshlrev_b32 v50, 2, v50")
    e("v_bfe_u32 v51, v1, 2, 2")
    e("v_or_b32 v50, v50, v51")
    e("v_xor_b32 v50, v50, v49")
    e("v_lshlrev_b32 v50, 4, v50")
    e("v_lshlrev_b32 v51, 10, v48")
    e("v_add_u32 v51, s41, v51")
    for k in range(8):
        e(f"v_xor_b32 v52, {32 * k}, v50")
        e(f"v_add_u32 v{24 + k}, v51, v52")
    e("v_lshrrev_b32 v52, 4, v1")
    e("v_lshrrev_b32 v53, 5, v1")
    e("v_bfe_u32 v54, v1, 2, 2")
    e("v_and_b32 v55, 3, v1")
    e("v_and_b32 v56, 1, v52")
    e("v_lshlrev_b32 v56, 1, v56")
    e("v_lshrrev_b32 v57, 1, v55")
    e("v_add_u32 v56, v56, v57")
    e("v_lshl_or_b32 v57, v54, 2, v53")
    e("v_xor_b32 v56, v56, v57")
    e("v_lshlrev_b32 v56, 4, v56")
    e("v_and_b32 v57, 1, v55")
    e("v_lshl_add_u32 v56, v57, 3, v56")
    e("v_lshl_add_u32 v57, v53, 2, v54")
    e("v_lshl_add_u32 v56, v57, 10, v56")
    e("s_lshl_b32 s27, s26, 8")
    e("v_add_u32 v56, s27, v56")
    for cc in range(4):
        for v in range(2):
            e(f"v_xor_b32 v{32 + 2 * cc + v}, {64 * cc + 32 * v}, v56")
            e(f"v_add_u32 v{40 + 2 * cc + v}, 0x10000, v{32 + 2 * cc + v}")
    e("v_lshlrev_b32 v18, 2, v48")
    e(f"v_add_u32 v18, {MX}, v18")
    e("s_lshl_b32 s27, s26, 7")
    e("v_add_u32 v17, s27, v18")
    e(f"v_add_u32 v20, {PX}, v16")
    e("s_lshl_b32 s27, s26, 11")
    e("v_add_u32 v19, s27, v20")
    e("v_mov_b32 v8, 0xff800000")
    e("v_mov_b32 v9, 0")
    e("s_waitcnt vmcnt(16)")
    e("s_barrier")
    prof_mark(0)
    if DEBUG:
        e("s_cmp_lg_u32 s24, 0")
        e("s_cbranch_scc1 K2_DBG_SKIP")
        e("v_add_u32 v64, s41, v16")
        for i in range(32):
            e(f"ds_read_b128 v[68:71], v64 offset:{i*1024}")
            e("s_waitcnt lgkmcnt(0)")
            e(f"s_mov_b32 s27, {0x600000 + i*1024}")
            e(f"buffer_store_dwordx4 v[68:71], v64, s[20:23], s27 offen")
            e("s_waitcnt vmcnt(0)")
        lab("K2_DBG_SKIP")
    a_tile(True)
    e("s_barrier")
    prof_mark(1)
    e("s_add_u32 s40, s40, 0x20000")
    dma_tile()
    e("s_waitcnt vmcnt(0)")
    e("s_barrier")
    a_tile(False)
    e("v_mov_b32 v13, v9")
    e("s_nop 1")
    e("v_permlane32_swap_b32 v9, v13")
    e("s_nop 1")
    e("v_add_f32 v9, v9, v13")
    e(f"ds_write_b32 v17, v9 offset:{LX - MX}")
    e("v_and_b32 v11, 31, v1")
    e("v_lshrrev_b32 v12, 5, v1")
    e("v_lshlrev_b32 v14, 11, v11")
    e("v_lshl_add_u32 v14, v12, 4, v14")
    e("s_lshl_b32 s27, s36, 5")
    e("s_add_u32 s27, s27, s37")
    e("s_lshl_b32 s27, s27, 16")
    e("s_lshl_b32 s28, s26, 9")
    e("s_add_u32 s27, s27, s28")
    e(f"s_add_u32 s27, s27, {APART}")
    e("s_nop 7")
    for cc in range(4):
        for q in range(4):
            e(f"buffer_store_dwordx4 {vr(192 + 16 * cc + 4 * q, 4)}, v14, s[20:23], s27 offen offset:{cc * 128 + q * 32}")
    e("s_waitcnt lgkmcnt(0)")
    e("s_barrier")
    e("s_cmp_lg_u32 s26, 0")
    e("s_cbranch_scc1 K2_ASTAT_DONE")
    for w in range(4):
        e(f"ds_read_b32 v{12 + w}, v18 offset:{LX - MX + 128 * w}")
    e("s_waitcnt lgkmcnt(0)")
    e("v_add_f32 v12, v12, v13")
    e("v_add_f32 v14, v14, v15")
    e("v_add_f32 v9, v12, v14")
    e("v_lshlrev_b32 v14, 8, v11")
    e("s_lshl_b32 s27, s36, 13")
    e("s_lshl_b32 s28, s37, 3")
    e("s_add_u32 s27, s27, s28")
    e(f"s_add_u32 s27, s27, {ASTAT}")
    e(f"buffer_store_dwordx2 v[8:9], v14, s[20:23], s27 offen")
    lab("K2_ASTAT_DONE")
    prof_mark(2)
    e("v_mov_b32 v8, 0xff800000")
    for j in range(9, 18):
        e(f"v_mov_b32 v{j}, 0")
    bcompute(128, 160)
    e("s_branch K2_BFIN")
    lab("K2_BONLY")
    e("s_sub_u32 s27, s25, 1")
    e("s_mul_i32 s27, s27, 163840")
    e("s_add_u32 s31, s30, s27")
    bloads(128, 160, 31)
    e("v_mov_b32 v8, 0xff800000")
    for j in range(9, 18):
        e(f"v_mov_b32 v{j}, 0")
    for u in range(5):
        if u < 4:
            e("s_add_u32 s31, s31, 32768")
            if (u + 1) & 1:
                bloads(192, 224, 31)
            else:
                bloads(128, 160, 31)
            e("s_waitcnt vmcnt(16)")
        else:
            e("s_waitcnt vmcnt(0)")
        if u < 3:
            prof_mark(u)
        if u & 1:
            bcompute(192, 224)
        else:
            bcompute(128, 160)
    lab("K2_BFIN")
    prof_mark(3)
    e("v_lshrrev_b32 v18, 4, v1")
    e("s_lshl_b32 s27, s26, 2")
    e("v_add_u32 v18, s27, v18")
    e("v_and_b32 v19, 15, v1")
    e("v_lshlrev_b32 v20, 9, v18")
    e("v_lshl_add_u32 v20, v19, 5, v20")
    e(f"v_add_u32 v20, {BO}, v20")
    e(f"ds_write_b128 v20, {vr(10, 4)}")
    e(f"ds_write_b128 v20, {vr(14, 4)} offset:16")
    e("v_lshlrev_b32 v21, 3, v18")
    e(f"v_add_u32 v21, {BS}, v21")
    e("ds_write_b64 v21, v[8:9]")
    e("s_waitcnt lgkmcnt(0)")
    e("s_barrier")
    e("s_cmp_ge_u32 s26, 2")
    e("s_cbranch_scc1 K2_END")
    e(f"v_mov_b32 v21, {BS}")
    for s in range(16):
        e(f"ds_read_b64 {vr(64 + 2 * s, 2)}, v21 offset:{8 * s}")
    e("v_lshlrev_b32 v20, 2, v0")
    e(f"v_add_u32 v20, {BO}, v20")
    for s in range(16):
        e(f"ds_read_b32 v{96 + s}, v20 offset:{512 * s}")
    e("s_waitcnt lgkmcnt(0)")
    e("v_max3_f32 v8, v64, v66, v68")
    for s in range(3, 15, 2):
        e(f"v_max3_f32 v8, v8, v{64 + 2 * s}, v{66 + 2 * s}")
    e("v_max_f32 v8, v8, v94")
    for s in range(16):
        e(f"v_sub_f32 v{64 + 2 * s}, v{64 + 2 * s}, v8")
    for s in range(16):
        e(f"v_exp_f32 v{64 + 2 * s}, v{64 + 2 * s}")
    e("s_nop 0")
    e("v_mul_f32 v9, v64, v65")
    e("v_mul_f32 v10, v64, v96")
    for s in range(1, 16):
        e(f"v_fmac_f32 v9, v{64 + 2 * s}, v{65 + 2 * s}")
        e(f"v_fmac_f32 v10, v{64 + 2 * s}, v{96 + s}")
    e("s_lshl_b32 s27, s24, 2")
    e("s_add_u32 s27, s27, s25")
    e("s_lshl_b32 s28, s27, 9")
    e(f"s_add_u32 s28, s28, {BPART}")
    e("v_lshlrev_b32 v20, 2, v0")
    e("buffer_store_dword v10, v20, s[20:23], s28 offen")
    e("s_lshl_b32 s28, s27, 3")
    e(f"s_add_u32 s28, s28, {BSTAT}")
    e("v_cmp_eq_u32 vcc, 0, v0")
    e("s_and_saveexec_b64 s[38:39], vcc")
    e("s_cbranch_execz K2_END")
    e("v_mov_b32 v20, 0")
    e("buffer_store_dwordx2 v[8:9], v20, s[20:23], s28 offen")
    lab("K2_END")
    e("s_endpgm")
    kernel_desc(L, 512, 256)
    return f"; @launch kernel={L} grid=(256,1,1) block=(256,1,1) lds={K2_LDS}"


def k3():
    L = "k3_kernel"
    kernel_header(L)
    e("s_cmp_ge_u32 s2, 256")
    e("s_cbranch_scc1 K3_END")
    srd(12, "A_wuv"); srd(20, "ws")
    e("s_lshr_b32 s24, s2, 6")
    e("s_and_b32 s25, s2, 63")
    e("s_and_b32 s26, s2, 31")
    e("s_bfe_u32 s27, s2, 0x10005")
    e("v_lshrrev_b32 v1, 2, v0")
    e("v_and_b32 v2, 3, v0")
    e("v_lshlrev_b32 v3, 16, v1")
    e("v_lshl_add_u32 v3, v2, 4, v3")
    e("v_lshlrev_b32 v4, 3, v0")
    e("s_waitcnt lgkmcnt(0)")
    srd_fin(12, "A_wuv"); srd_fin(20, "ws")
    e("s_lshl_b32 s28, s25, 8")
    e(f"s_add_u32 s28, s28, {ASTAT}")
    e("s_add_u32 s30, s20, s28")
    e("s_addc_u32 s31, s21, 0")
    for k in range(4):
        e(f"s_load_dwordx16 s[{36 + 16 * k}:{51 + 16 * k}], s[30:31], {64 * k}")
    e("s_lshl_b32 s28, s27, 21")
    e("s_lshl_b32 s29, s26, 11")
    e("s_add_u32 s28, s28, s29")
    e(f"s_add_u32 s28, s28, {APART}")
    for s in range(32):
        e(f"buffer_load_dwordx2 {vr(64 + 2 * s, 2)}, v4, s[20:23], s28 offen")
        e("s_add_u32 s28, s28, 0x10000")
    e("s_lshl_b32 s28, s26, 8")
    e("s_lshl_b32 s29, s24, 6")
    e("s_add_u32 s28, s28, s29")
    for i in range(8):
        e(f"buffer_load_dwordx4 {vr(128 + 4 * i, 4)}, v3, s[12:15], s28 offen nt")
        e("s_add_u32 s28, s28, 8192")
    e("s_waitcnt lgkmcnt(0)")
    e("v_mov_b32 v5, s36")
    for s in range(1, 32):
        e(f"v_max_f32 v5, s{36 + 2 * s}, v5")
    for s in range(32):
        e(f"v_sub_f32 v{8 + s}, s{36 + 2 * s}, v5")
    for s in range(32):
        e(f"v_exp_f32 v{8 + s}, v{8 + s}")
    e("s_nop 0")
    e("v_mul_f32 v6, s37, v8")
    for s in range(1, 32):
        e(f"v_fmac_f32 v6, s{37 + 2 * s}, v{8 + s}")
    e("v_rcp_f32 v6, v6")
    e("v_mov_b32 v40, 0")
    e("v_mov_b32 v41, 0")
    for s in range(32):
        e(f"s_waitcnt vmcnt({31 - s + 8})")
        e(f"v_fmac_f32 v40, v{8 + s}, v{64 + 2 * s}")
        e(f"v_fmac_f32 v41, v{8 + s}, v{65 + 2 * s}")
    e("v_mul_f32 v40, v40, v6")
    e("v_mul_f32 v41, v41, v6")
    e("ds_write_b64 v4, v[40:41]")
    e("s_waitcnt lgkmcnt(0)")
    e("s_barrier")
    e("v_lshlrev_b32 v5, 5, v1")
    e(f"ds_read_b128 {vr(8, 4)}, v5")
    e(f"ds_read_b128 {vr(12, 4)}, v5 offset:16")
    for k in range(8):
        e(f"v_mov_b32 v{40 + k}, 0")
    e("s_waitcnt vmcnt(0) lgkmcnt(0)")
    for i in range(8):
        for k in range(4):
            unpack2(48 + 2 * k, 49 + 2 * k, 128 + 4 * i + k)
        for k in range(8):
            e(f"v_fmac_f32 v{40 + k}, v{48 + k}, v{8 + i}")
    e("v_lshlrev_b32 v5, 7, v1")
    e("v_lshl_add_u32 v5, v2, 5, v5")
    e(f"ds_write_b128 v5, {vr(40, 4)} offset:2048")
    e(f"ds_write_b128 v5, {vr(44, 4)} offset:2064")
    e("s_waitcnt lgkmcnt(0)")
    e("s_barrier")
    e("v_cmp_gt_u32 vcc, 32, v0")
    e("s_and_saveexec_b64 s[32:33], vcc")
    e("s_cbranch_execz K3_END")
    e("v_lshlrev_b32 v5, 2, v0")
    for g in range(64):
        e(f"ds_read_b32 v{64 + g}, v5 offset:{2048 + 128 * g}")
    e("s_waitcnt lgkmcnt(0)")
    for g in range(32):
        e(f"v_add_f32 v{64 + g}, v{64 + g}, v{96 + g}")
    for g in range(16):
        e(f"v_add_f32 v{64 + g}, v{64 + g}, v{80 + g}")
    for g in range(8):
        e(f"v_add_f32 v{64 + g}, v{64 + g}, v{72 + g}")
    for g in range(4):
        e(f"v_add_f32 v{64 + g}, v{64 + g}, v{68 + g}")
    e("v_add_f32 v64, v64, v66")
    e("v_add_f32 v65, v65, v67")
    e("v_add_f32 v64, v64, v65")
    e("v_cvt_pk_bf16_f32 v64, v64, v64")
    e("s_lshl_b32 s28, s25, 8")
    e("s_lshl_b32 s29, s24, 6")
    e("s_add_u32 s28, s28, s29")
    e(f"s_add_u32 s28, s28, {CTX}")
    e("v_lshlrev_b32 v5, 1, v0")
    e("buffer_store_short v64, v5, s[20:23], s28 offen")
    lab("K3_END")
    e("s_endpgm")
    kernel_desc(L, 160, 160)
    return f"; @launch kernel={L} grid=(256,1,1) block=(256,1,1) lds=10240"


def k4():
    L = "k4_kernel"
    kernel_header(L)
    e("s_cmp_ge_u32 s2, 128")
    e("s_cbranch_scc1 K4_END")
    srd(20, "ws"); srd(16, "out"); srd(8, "dbg")
    e("s_lshr_b32 s24, s2, 6")
    e("s_bfe_u32 s25, s2, 0x30003")
    e("s_and_b32 s26, s2, 7")
    e("s_cmp_lg_u32 s24, 0")
    e("s_cbranch_scc1 K4_LB")
    srd(12, "A_wo")
    e("s_branch K4_LD")
    lab("K4_LB")
    srd(12, "B_wo")
    lab("K4_LD")
    e("v_lshrrev_b32 v1, 3, v0")
    e("v_and_b32 v2, 7, v0")
    e("v_lshlrev_b32 v3, 14, v1")
    e("v_lshl_add_u32 v3, v2, 4, v3")
    e("v_lshrrev_b32 v4, 7, v0")
    e("v_and_b32 v5, 127, v0")
    e("s_waitcnt lgkmcnt(0)")
    srd_fin(12, "A_wo"); srd_fin(20, "ws"); srd_fin(16, "out"); srd_fin(8, "dbg")
    e("s_lshl_b32 s28, s25, 19")
    e("s_lshl_b32 s29, s26, 7")
    e("s_add_u32 s28, s28, s29")
    for i in range(16):
        if i and i % 4 == 0:
            e("s_add_u32 s28, s28, 4096")
        e(f"buffer_load_dwordx4 {vr(64 + 4 * i, 4)}, v3, s[12:15], s28 offen offset:{(i % 4) * 1024} nt")
    e("v_lshlrev_b32 v7, 2, v0")
    e("v_lshlrev_b32 v6, 11, v4")
    e("v_lshl_add_u32 v7, v5, 2, v6")
    e("s_cmp_lg_u32 s24, 0")
    e("s_cbranch_scc1 K4_VB")
    e("v_lshlrev_b32 v6, 13, v4")
    e("v_lshl_add_u32 v6, v5, 1, v6")
    e("s_lshl_b32 s29, s25, 10")
    e(f"s_add_u32 s29, s29, {CTX}")
    for hh in range(4):
        e(f"buffer_load_ushort v{8 + hh}, v6, s[20:23], s29 offen offset:{256 * hh}")
    e("s_waitcnt vmcnt(0)")
    for hh in range(4):
        e(f"v_lshlrev_b32 v{8 + hh}, 16, v{8 + hh}")
        e(f"ds_write_b32 v7, v{8 + hh} offset:{512 * hh}")
    e("s_branch K4_VD")
    lab("K4_VB")
    e("v_lshlrev_b32 v6, 10, v4")
    e("s_lshl_b32 s29, s25, 7")
    e(f"s_add_u32 s29, s29, {BSTAT}")
    for hh in range(4):
        e(f"buffer_load_dwordx4 {vr(8 + 8 * hh, 4)}, v6, s[20:23], s29 offen offset:{32 * hh}")
        e(f"buffer_load_dwordx4 {vr(12 + 8 * hh, 4)}, v6, s[20:23], s29 offen offset:{32 * hh + 16}")
    e("v_lshlrev_b32 v6, 16, v4")
    e("v_lshl_add_u32 v6, v5, 2, v6")
    e("s_lshl_b32 s29, s25, 13")
    e(f"s_add_u32 s29, s29, {BPART}")
    for hh in range(4):
        for r in range(4):
            if hh >= 2 and r == 0 and hh == 2:
                e("s_add_u32 s29, s29, 4096")
            e(f"buffer_load_dword v{40 + 4 * hh + r}, v6, s[20:23], s29 offen offset:{(hh % 2) * 2048 + 512 * r}")
    e("s_waitcnt vmcnt(0)")
    for hh in range(4):
        b0 = 8 + 8 * hh
        e(f"v_max3_f32 v56, v{b0}, v{b0 + 2}, v{b0 + 4}")
        e(f"v_max_f32 v56, v56, v{b0 + 6}")
        for r in range(4):
            e(f"v_sub_f32 v{b0 + 2 * r}, v{b0 + 2 * r}, v56")
        for r in range(4):
            e(f"v_exp_f32 v{b0 + 2 * r}, v{b0 + 2 * r}")
        e("s_nop 0")
        e(f"v_mul_f32 v57, v{b0}, v{b0 + 1}")
        e(f"v_mul_f32 v58, v{b0}, v{40 + 4 * hh}")
        for r in range(1, 4):
            e(f"v_fmac_f32 v57, v{b0 + 2 * r}, v{b0 + 2 * r + 1}")
            e(f"v_fmac_f32 v58, v{b0 + 2 * r}, v{40 + 4 * hh + r}")
        e("v_rcp_f32 v57, v57")
        e("s_nop 0")
        e("v_mul_f32 v58, v58, v57")
        e("v_cvt_pk_bf16_f32 v58, v58, v58")
        e("v_lshlrev_b32 v58, 16, v58")
        e(f"ds_write_b32 v7, v58 offset:{512 * hh}")
    lab("K4_VD")
    e("s_waitcnt lgkmcnt(0)")
    e("s_barrier")
    e("v_lshlrev_b32 v6, 6, v1")
    for b in range(2):
        for k in range(4):
            e(f"ds_read_b128 {vr(8 + 16 * b + 4 * k, 4)}, v6 offset:{2048 * b + 16 * k}")
    for k in range(16):
        e(f"v_mov_b32 v{40 + k}, 0")
    e("s_waitcnt vmcnt(0) lgkmcnt(0)")
    for i in range(16):
        for k in range(4):
            unpack2(56 + 2 * k, 57 + 2 * k, 64 + 4 * i + k)
        for k in range(8):
            e(f"v_fmac_f32 v{40 + k}, v{56 + k}, v{8 + i}")
            e(f"v_fmac_f32 v{48 + k}, v{56 + k}, v{24 + i}")
    e("v_lshlrev_b32 v6, 9, v1")
    e("v_lshl_add_u32 v6, v2, 5, v6")
    e(f"ds_write_b128 v6, {vr(40, 4)} offset:4096")
    e(f"ds_write_b128 v6, {vr(44, 4)} offset:4112")
    e(f"ds_write_b128 v6, {vr(48, 4)} offset:4352")
    e(f"ds_write_b128 v6, {vr(52, 4)} offset:4368")
    e("s_waitcnt lgkmcnt(0)")
    e("s_barrier")
    e("v_lshrrev_b32 v4, 6, v0")
    e("s_nop 0")
    e("v_readfirstlane_b32 s27, v4")
    e("s_cmp_ge_u32 s27, 2")
    e("s_cbranch_scc1 K4_END")
    e("v_lshlrev_b32 v6, 2, v0")
    for g in range(32):
        e(f"ds_read_b32 v{64 + g}, v6 offset:{4096 + 512 * g}")
    e("s_waitcnt lgkmcnt(0)")
    for n in (16, 8, 4, 2, 1):
        for g in range(n):
            e(f"v_add_f32 v{64 + g}, v{64 + g}, v{64 + n + g}")
    e("v_and_b32 v5, 63, v0")
    e("v_lshlrev_b32 v5, 2, v5")
    e("s_lshl_b32 s28, s24, 15")
    e("s_lshl_b32 s29, s27, 11")
    e("s_add_u32 s28, s28, s29")
    e("s_lshl_b32 s29, s26, 8")
    e("s_add_u32 s28, s28, s29")
    e(f"s_add_u32 s28, s28, {OPART}")
    e("s_lshl_b32 s29, s25, 12")
    e("s_add_u32 s29, s29, s28")
    e("buffer_store_dword v64, v5, s[20:23], s29 offen sc0 sc1")
    e("s_waitcnt vmcnt(0)")
    e("s_lshl_b32 s30, s24, 3")
    e("s_add_u32 s30, s30, s26")
    e("s_lshl_b32 s30, s30, 1")
    e("s_add_u32 s30, s30, s27")
    e("s_lshl_b32 s30, s30, 2")
    e("v_mov_b32 v8, 1")
    e("v_mov_b32 v9, 0")
    e("s_mov_b64 s[32:33], exec")
    e("s_mov_b64 exec, 1")
    e("buffer_atomic_add v8, v9, s[8:11], s30 offen sc0 sc1")
    e("s_waitcnt vmcnt(0)")
    e("s_mov_b64 exec, s[32:33]")
    e("v_readfirstlane_b32 s31, v8")
    e("s_cmp_lg_u32 s31, 7")
    e("s_cbranch_scc1 K4_END")
    for r in range(8):
        e(f"buffer_load_dword v{64 + r}, v5, s[20:23], s28 offen sc0 sc1")
        e("s_add_u32 s28, s28, 4096")
    e("s_waitcnt vmcnt(0)")
    for r in range(1, 8):
        e(f"v_add_f32 v64, v64, v{64 + r}")
    e("v_cvt_pk_bf16_f32 v64, v64, v64")
    e("v_lshrrev_b32 v5, 1, v5")
    e("s_lshl_b32 s28, s27, 11")
    e("s_lshl_b32 s29, s24, 10")
    e("s_add_u32 s28, s28, s29")
    e("s_lshl_b32 s29, s26, 7")
    e("s_add_u32 s28, s28, s29")
    e("buffer_store_short v64, v5, s[16:19], s28 offen")
    lab("K4_END")
    e("s_endpgm")
    kernel_desc(L, 128, 128)
    return f"; @launch kernel={L} grid=(128,1,1) block=(256,1,1) lds=20480"


LAUNCHES = []


def main():
    LAUNCHES.append(k1())
    LAUNCHES.append(k2())
    LAUNCHES.append(k3())
    LAUNCHES.append(k4())
    head = open(f"cdna_kernels/{NAME}.s.ref").read().split("; Override launch")[0]
    txt = head + "\n".join(LAUNCHES) + "\n"
    txt += '.amdgcn_target "amdgcn-amd-amdhsa--gfx950"\n.text\n'
    txt += "\n".join(out) + "\n"
    txt += '.section .rodata,"a"\n' + "\n".join(descs) + "\n"
    path = sys.argv[1] if len(sys.argv) > 1 else f"cdna_kernels/{NAME}.s"
    open(path, "w").write(txt)


if __name__ == "__main__":
    main()
```

```python
import sys

NAME = "concat_heads__compressed_kv_cla__sliding_block_cached__decode"

KA = dict(A_x=0, A_ckv=8, A_wq=16, A_wuk=24, A_wuv=32, A_wo=40, B_x=48, B_k=56, B_v=64,
          B_wq=72, B_wo=80, out=88, dbg=96, ws=104)
SZ = dict(A_x=2048, A_ckv=16777216, A_wq=4194304, A_wuk=4194304, A_wuv=4194304, A_wo=4194304,
          B_x=2048, B_k=134217728, B_v=134217728, B_wq=4194304, B_wo=4194304, out=4096, dbg=256,
          ws=536870912)

QA_HI = 0x00000
QA_LO = 0x10000
QB = 0x20000
ASTAT = 0x30000
BPART = 0x40000
BSTAT = 0x60000
CTX = 0x70000
OPART = 0x80000
APART = 0x100000

SCALE_BITS = 0x3DB504F3
LOG2E_BITS = 0x3FB8AA3B

out = []
import os
DEBUG = bool(os.environ.get('DEBUG'))
PROF = bool(os.environ.get('PROF'))
PROFBASE = 0x800000


def prof_start():
    if PROF:
        e("s_memrealtime s[90:91]")


def prof_mark(slot, t=21):
    if PROF:
        e("s_memrealtime s[92:93]")
        e("s_waitcnt lgkmcnt(0)")
        e("s_sub_u32 s92, s92, s90")
        e(f"v_mov_b32 v{t}, s92")
        e("s_lshl_b32 s94, s2, 6")
        e(f"s_add_u32 s94, s94, {PROFBASE + prof_kernel[0] * 0x10000 + slot * 4}")
        e(f"v_lshrrev_b32 v{t+1}, 6, v0")
        e(f"v_lshlrev_b32 v{t+1}, 4, v{t+1}")
        e(f"buffer_store_dword v{t}, v{t+1}, s[20:23], s94 offen")


prof_kernel = [0]


def e(s):
    out.append("    " + s)


def lab(s):
    out.append(s + ":")


def srd(dst, name):
    e(f"s_load_dwordx2 s[{dst}:{dst+1}], s[0:1], {KA[name]}")


def srd_fin(dst, name):
    e(f"s_mov_b32 s{dst+2}, {SZ[name]}")
    e(f"s_mov_b32 s{dst+3}, 0x20000")


def vr(a, n):
    return f"v[{a}:{a+n-1}]"


def ar(a, n):
    return f"a[{a}:{a+n-1}]"


def kernel_header(label):
    out.append(f".globl {label}")
    out.append(".p2align 8")
    out.append(f".type {label},@function")
    lab(label)


descs = []


def kernel_desc(label, vgpr, accum, sgpr=102):
    descs.append(f""".p2align 6
.amdhsa_kernel {label}
  .amdhsa_next_free_vgpr {vgpr}
  .amdhsa_next_free_sgpr {sgpr}
  .amdhsa_accum_offset {accum}
  .amdhsa_group_segment_fixed_size 0
  .amdhsa_kernarg_size 112
  .amdhsa_user_sgpr_count 2
  .amdhsa_user_sgpr_kernarg_segment_ptr 1
  .amdhsa_system_sgpr_workgroup_id_x 1
.end_amdhsa_kernel""")


def unpack2(dlo, dhi, src):
    e(f"v_lshlrev_b32 v{dlo}, 16, v{src}")
    e(f"v_and_b32 v{dhi}, 0xffff0000, v{src}")


def gemv_rows(nrows, wbase, xbase0, xbase1, acc, tmp, xt, vm_after):
    for i in range(nrows):
        e(f"s_waitcnt vmcnt({nrows - 1 - i + vm_after})")
        if i % 2 == 0:
            e(f"v_lshlrev_b32 v{xt}, 16, v{xbase0 + i // 2}")
            e(f"v_lshlrev_b32 v{xt+1}, 16, v{xbase1 + i // 2}")
        else:
            e(f"v_and_b32 v{xt}, 0xffff0000, v{xbase0 + i // 2}")
            e(f"v_and_b32 v{xt+1}, 0xffff0000, v{xbase1 + i // 2}")
        for k in range(4):
            unpack2(tmp + 2 * k, tmp + 2 * k + 1, wbase + 4 * i + k)
        for k in range(8):
            e(f"v_fmac_f32 v{acc + k}, v{tmp + k}, v{xt}")
            e(f"v_fmac_f32 v{acc + 8 + k}, v{tmp + k}, v{xt+1}")


def k1():
    L = "k1_kernel"
    kernel_header(L)
    e("s_cmp_ge_u32 s2, 192")
    e("s_cbranch_scc1 K1_END")
    e("s_cmp_ge_u32 s2, 128")
    e("s_cbranch_scc1 K1_B")
    srd(8, "A_x"); srd(12, "A_wq"); srd(16, "A_wuk"); srd(20, "ws")
    e("s_and_b32 s24, s2, 31")
    e("s_lshr_b32 s25, s2, 5")
    e("v_and_b32 v1, 15, v0")
    e("v_lshrrev_b32 v2, 4, v0")
    e("v_lshlrev_b32 v3, 18, v2")
    e("v_lshl_add_u32 v3, v1, 4, v3")
    e("v_lshlrev_b32 v4, 6, v2")
    e("v_lshlrev_b32 v5, 13, v2")
    e("v_lshl_add_u32 v5, v1, 4, v5")
    e("s_lshl_b32 s26, s24, 8")
    e("s_waitcnt lgkmcnt(0)")
    srd_fin(8, "A_x"); srd_fin(12, "A_wq"); srd_fin(16, "A_wuk"); srd_fin(20, "ws")
    for b in range(2):
        for k in range(4):
            e(f"buffer_load_dwordx4 {vr(8 + 16 * b + 4 * k, 4)}, v4, s[8:11], 0 offen offset:{1024 * b + 16 * k}")
    e("s_mov_b32 s27, s26")
    for i in range(32):
        e(f"buffer_load_dwordx4 {vr(40 + 4 * i, 4)}, v3, s[12:15], s27 offen nt")
        e("s_add_u32 s27, s27, 8192")
    e("s_lshl_b32 s27, s25, 20")
    e("s_add_u32 s27, s27, s26")
    for i in range(8):
        e(f"buffer_load_dwordx4 {vr(168 + 4 * i, 4)}, v5, s[16:19], s27 offen nt")
        e("s_add_u32 s27, s27, 0x20000")
    for k in range(16):
        e(f"v_mov_b32 v{200 + k}, 0")
    gemv_rows(32, 40, 8, 24, 200, 218, 216, 8)
    e("v_lshlrev_b32 v6, 10, v2")
    e("v_lshl_add_u32 v6, v1, 5, v6")
    e(f"ds_write_b128 v6, {vr(200, 4)}")
    e(f"ds_write_b128 v6, {vr(204, 4)} offset:16")
    e(f"ds_write_b128 v6, {vr(208, 4)} offset:512")
    e(f"ds_write_b128 v6, {vr(212, 4)} offset:528")
    e("s_waitcnt lgkmcnt(0)")
    e("s_barrier")
    e("v_lshlrev_b32 v6, 2, v0")
    for g in range(16):
        e(f"ds_read_b32 v{8 + g}, v6 offset:{1024 * g}")
    e("s_waitcnt lgkmcnt(0)")
    for g in range(1, 16):
        e(f"v_add_f32 v8, v8, v{8 + g}")
    e("v_cvt_pk_bf16_f32 v8, v8, v8")
    e("v_lshlrev_b32 v6, 1, v0")
    e("ds_write_b16 v6, v8 offset:16384")
    e("s_waitcnt lgkmcnt(0)")
    e("s_barrier")
    e("v_lshlrev_b32 v6, 4, v1")
    e(f"ds_read_b128 {vr(8, 4)}, v6 offset:16384")
    e(f"ds_read_b128 {vr(12, 4)}, v6 offset:16640")
    e("s_waitcnt vmcnt(0) lgkmcnt(0)")
    for k in range(4):
        for i in range(8):
            for b in range(2):
                d = 24 + 2 * i + b
                c = "0" if k == 0 else f"v{d}"
                e(f"v_dot2_f32_bf16 v{d}, v{168 + 4 * i + k}, v{8 + 4 * b + k}, {c}")
    e("s_nop 3")
    for sh in (8, 4, 2, 1):
        for d in range(24, 40):
            e(f"v_add_f32_dpp v{d}, v{d}, v{d} row_ror:{sh} row_mask:0xf bank_mask:0xf")
        e("s_nop 1")
    e("v_lshlrev_b32 v6, 2, v2")
    for i in range(8):
        for b in range(2):
            e(f"ds_write_b32 v6, v{24 + 2 * i + b} offset:{16896 + 512 * b + 64 * i}")
    e("s_waitcnt lgkmcnt(0)")
    e("s_barrier")
    e("v_cmp_gt_u32 vcc, 32, v0")
    e("s_and_saveexec_b64 s[28:29], vcc")
    e("s_cbranch_execz K1_END")
    e("v_lshlrev_b32 v6, 5, v0")
    e(f"ds_read_b128 {vr(8, 4)}, v6 offset:16896")
    e(f"ds_read_b128 {vr(12, 4)}, v6 offset:16912")
    e("s_waitcnt lgkmcnt(0)")
    for k in range(4):
        a, b_ = 8 + 2 * k, 9 + 2 * k
        e(f"v_cvt_pk_bf16_f32 v{16 + k}, v{a}, v{b_}")
        unpack2(24, 25, 16 + k)
        e(f"v_sub_f32 v24, v{a}, v24")
        e(f"v_sub_f32 v25, v{b_}, v25")
        e(f"v_cvt_pk_bf16_f32 v{20 + k}, v24, v25")
    e("v_lshrrev_b32 v6, 4, v0")
    e("v_and_b32 v7, 15, v0")
    e("v_lshrrev_b32 v24, 1, v7")
    e("v_and_b32 v25, 1, v7")
    e("v_lshlrev_b32 v6, 15, v6")
    e("v_lshl_add_u32 v6, v24, 10, v6")
    e("v_lshl_add_u32 v6, v25, 9, v6")
    e("s_lshl_b32 s27, s25, 13")
    e("s_lshl_b32 s28, s24, 4")
    e("s_add_u32 s27, s27, s28")
    e(f"buffer_store_dwordx4 {vr(16, 4)}, v6, s[20:23], s27 offen")
    e(f"s_add_u32 s27, s27, {QA_LO}")
    e(f"buffer_store_dwordx4 {vr(20, 4)}, v6, s[20:23], s27 offen")
    e("s_branch K1_END")
    lab("K1_B")
    srd(8, "B_x"); srd(12, "B_wq"); srd(20, "ws")
    e("s_sub_u32 s3, s2, 128")
    e("s_and_b32 s24, s3, 31")
    e("s_lshr_b32 s25, s3, 5")
    e("v_and_b32 v1, 7, v0")
    e("v_lshrrev_b32 v2, 3, v0")
    e("v_lshlrev_b32 v3, 17, v2")
    e("v_lshl_add_u32 v3, v1, 4, v3")
    e("v_lshlrev_b32 v4, 5, v2")
    e("s_lshl_b32 s26, s24, 8")
    e("s_lshl_b32 s27, s25, 7")
    e("s_add_u32 s26, s26, s27")
    e("s_waitcnt lgkmcnt(0)")
    srd_fin(8, "B_x"); srd_fin(12, "B_wq"); srd_fin(20, "ws")
    for b in range(2):
        for k in range(2):
            e(f"buffer_load_dwordx4 {vr(8 + 8 * b + 4 * k, 4)}, v4, s[8:11], 0 offen offset:{1024 * b + 16 * k}")
    e("s_mov_b32 s27, s26")
    for i in range(16):
        e(f"buffer_load_dwordx4 {vr(40 + 4 * i, 4)}, v3, s[12:15], s27 offen nt")
        e("s_add_u32 s27, s27, 8192")
    for k in range(16):
        e(f"v_mov_b32 v{200 + k}, 0")
    gemv_rows(16, 40, 8, 16, 200, 218, 216, 0)
    e("v_lshlrev_b32 v6, 9, v2")
    e("v_lshl_add_u32 v6, v1, 5, v6")
    e(f"ds_write_b128 v6, {vr(200, 4)}")
    e(f"ds_write_b128 v6, {vr(204, 4)} offset:16")
    e(f"ds_write_b128 v6, {vr(208, 4)} offset:256")
    e(f"ds_write_b128 v6, {vr(212, 4)} offset:272")
    e("s_waitcnt lgkmcnt(0)")
    e("s_barrier")
    e("v_cmp_gt_u32 vcc, 128, v0")
    e("s_and_saveexec_b64 s[28:29], vcc")
    e("s_cbranch_execz K1_END")
    e("v_lshlrev_b32 v6, 2, v0")
    for g in range(32):
        e(f"ds_read_b32 v{8 + g}, v6 offset:{512 * g}")
    e("s_waitcnt lgkmcnt(0)")
    for g in range(1, 32):
        e(f"v_add_f32 v8, v8, v{8 + g}")
    e("v_cvt_pk_bf16_f32 v8, v8, v8")
    e("v_lshrrev_b32 v6, 6, v0")
    e("v_and_b32 v7, 63, v0")
    e("v_lshlrev_b32 v6, 13, v6")
    e("v_lshl_add_u32 v6, v7, 1, v6")
    e(f"s_add_u32 s27, s26, {QB}")
    e("buffer_store_short v8, v6, s[20:23], s27 offen")
    lab("K1_END")
    e("s_endpgm")
    kernel_desc(L, 232, 232)
    return f"; @launch kernel={L} grid=(192,1,1) block=(256,1,1) lds=18432"


MX = 131072
LX = 131584
PX = 132096
BO = 140288
RS = PX
BS = BO + 8192
KM_LDS = BS + 128
C3 = 132
C4 = 136
C5 = 168
C6 = 200
SC = " sc0 sc1"


def fsw(r):
    return ((r & 3) << 2) | ((r >> 2) & 3)


def bloads(K, V, soff):
    for (base, srdn) in ((K, 12), (V, 16)):
        for i in range(8):
            va = 6 if i < 4 else 7
            e(f"buffer_load_dwordx4 {vr(base + 4 * i, 4)}, v{va}, s[{srdn}:{srdn+3}], s{soff} offen offset:{(i % 4) * 1024} nt")


def round_scale(a, b, t):
    e(f"v_cvt_pk_bf16_f32 v{t}, v{a}, v{b}")
    unpack2(a, b, t)
    e(f"v_mul_f32 v{a}, s34, v{a}")
    e(f"v_mul_f32 v{b}, s34, v{b}")
    e(f"v_cvt_pk_bf16_f32 v{t}, v{a}, v{b}")
    unpack2(a, b, t)
    e(f"v_mul_f32 v{a}, s35, v{a}")
    e(f"v_mul_f32 v{b}, s35, v{b}")


def bcompute(K, V):
    for k in range(4):
        for i in range(8):
            c = "0" if k == 0 else f"v{18+i}"
            e(f"v_dot2_f32_bf16 v{18+i}, v{K + 4*i + k}, v{2+k}, {c}")
    for sh in (8, 4, 2, 1):
        for i in range(8):
            e(f"v_add_f32_dpp v{18+i}, v{18+i}, v{18+i} row_ror:{sh} row_mask:0xf bank_mask:0xf")
    for i in range(0, 8, 2):
        round_scale(18 + i, 19 + i, 26)
    e("v_max3_f32 v26, v18, v19, v20")
    e("v_max3_f32 v26, v26, v21, v22")
    e("v_max3_f32 v26, v26, v23, v24")
    e("v_max3_f32 v26, v26, v25, v8")
    e("v_sub_f32 v27, v8, v26")
    e("v_exp_f32 v27, v27")
    e("v_mov_b32 v8, v26")
    for i in range(8):
        e(f"v_sub_f32 v{18+i}, v{18+i}, v26")
    for i in range(8):
        e(f"v_exp_f32 v{18+i}, v{18+i}")
    e("v_mul_f32 v9, v9, v27")
    for j in range(8):
        e(f"v_mul_f32 v{10+j}, v{10+j}, v27")
    for i in range(8):
        e(f"v_add_f32 v9, v9, v{18+i}")
    for i in range(8):
        for k in range(4):
            unpack2(34 + 2 * k, 35 + 2 * k, V + 4 * i + k)
        for j in range(8):
            e(f"v_fmac_f32 v{10+j}, v{34+j}, v{18+i}")


def dma_tile():
    for i in range(32):
        if i % 4 == 0:
            e(f"s_add_u32 m0, s41, {i * 1024}")
            e(f"s_add_u32 s42, s40, {i * 1024}")
        e(f"v_xor_b32 v11, {fsw(i & 15) * 16}, v16")
        e(f"buffer_load_dwordx4 v11, s[8:11], s42 offen offset:{(i % 4) * 1024} nt lds")


npoll = [0]


def poll(off, target, soff=None):
    n = npoll[0]
    npoll[0] += 1
    e("s_cmp_lg_u32 s26, 0")
    e(f"s_cbranch_scc1 POLL_DONE{n}")
    e("v_mov_b32 v22, 0")
    e("s_mov_b32 s44, 0x40000")
    if soff is None:
        e(f"s_mov_b32 s45, {off}")
        soff = 45
    lab(f"POLL{n}")
    e(f"buffer_load_dword v21, v22, s[48:51], s{soff} offen{SC}")
    e("s_waitcnt vmcnt(0)")
    e("v_readfirstlane_b32 s43, v21")
    e(f"s_cmp_ge_u32 s43, {target}")
    e(f"s_cbranch_scc1 POLL_DONE{n}")
    e("s_sleep 4")
    e("s_sub_u32 s44, s44, 1")
    e("s_cmp_lg_u32 s44, 0")
    e(f"s_cbranch_scc1 POLL{n}")
    lab(f"POLL_DONE{n}")
    e("s_barrier")


def signal(soffs):
    n = npoll[0]
    npoll[0] += 1
    e("s_waitcnt vmcnt(0)")
    e("s_barrier")
    e("s_cmp_lg_u32 s26, 0")
    e(f"s_cbranch_scc1 SIG_DONE{n}")
    e("v_mov_b32 v21, 1")
    e("v_mov_b32 v22, 0")
    e("s_mov_b64 s[46:47], exec")
    e("s_mov_b64 exec, 1")
    for so in soffs:
        e(f"buffer_atomic_add v21, v22, s[48:51], s{so} offen sc1")
    e("s_mov_b64 exec, s[46:47]")
    lab(f"SIG_DONE{n}")


def a_tile(first):
    seq = [(j, k) for j in range(4) for k in range(8)]

    def sread(n):
        j, k = seq[n]
        t = 22 + (n & 1)
        e(f"v_add_u32 v{t}, v{24 + j}, v{28 + k}")
        e(f"ds_read_b128 {vr(72 + 4 * (n % 8), 4)}, v{t}")
    for n in range(8):
        sread(n)
    for n in range(32):
        j, k = seq[n]
        e(f"s_waitcnt lgkmcnt({min(7, 31 - n)})")
        f = vr(72 + 4 * (n % 8), 4)
        acc = ar(64 + 16 * j, 16)
        c = "0" if k == 0 else acc
        e(f"v_mfma_f32_32x32x16_bf16 {acc}, {f}, {ar(4 * k, 4)}, {c}")
        e(f"v_mfma_f32_32x32x16_bf16 {acc}, {f}, {ar(32 + 4 * k, 4)}, {acc}")
        if n + 8 < 32:
            sread(n + 8)
    e("s_nop 15")
    for i in range(16):
        e(f"v_accvgpr_read_b32 v{56 + i}, a{64 + i}")
    for j in range(1, 4):
        for q in range(4):
            e(f"ds_write_b128 v36, {ar(64 + 16 * j + 4 * q, 4)} offset:{1024 * q}")
        e("s_waitcnt lgkmcnt(0)")
        e("s_barrier")
        for q in range(4):
            e(f"ds_read_b128 {vr(72 + 4 * q, 4)}, v{36 + j} offset:{1024 * q}")
        e("s_waitcnt lgkmcnt(0)")
        if j < 3:
            e("s_barrier")
        for i in range(16):
            e(f"v_add_f32 v{56 + i}, v{56 + i}, v{72 + i}")
    for i in range(0, 16, 2):
        round_scale(56 + i, 57 + i, 11)
    e("v_max3_f32 v12, v56, v57, v58")
    for i in range(59, 71, 2):
        e(f"v_max3_f32 v12, v12, v{i}, v{i+1}")
    e("v_max_f32 v12, v12, v71")
    e("v_mov_b32 v13, v12")
    e("s_nop 1")
    e("v_permlane32_swap_b32 v12, v13")
    e("s_nop 1")
    e("v_max_f32 v12, v12, v13")
    e("ds_write_b32 v17, v12")
    e("s_waitcnt lgkmcnt(0)")
    e("s_barrier")
    for w in range(4):
        e(f"ds_read_b32 v{12 + w}, v18 offset:{128 * w}")
    e("s_waitcnt lgkmcnt(0)")
    e("v_max3_f32 v12, v12, v13, v14")
    e("v_max3_f32 v12, v12, v15, v8")
    e("v_sub_f32 v10, v8, v12")
    e("v_exp_f32 v10, v10")
    e("v_mov_b32 v8, v12")
    for i in range(16):
        e(f"v_sub_f32 v{56+i}, v{56+i}, v12")
    for i in range(16):
        e(f"v_exp_f32 v{56+i}, v{56+i}")
    e("v_mul_f32 v9, v9, v10")
    for i in range(16):
        e(f"v_add_f32 v9, v9, v{56+i}")
    for i in range(8):
        e(f"v_cvt_pk_bf16_f32 v{96+i}, v{56+2*i}, v{57+2*i}")
    e(f"ds_write_b128 v19, {vr(96, 4)}")
    e(f"ds_write_b128 v19, {vr(100, 4)} offset:1024")
    e("s_waitcnt lgkmcnt(0)")
    e("s_barrier")
    for tu in range(8):
        e(f"ds_read_b128 {vr(64 + 4 * tu, 4)}, v20 offset:{(tu >> 1) * 2048 + (tu & 1) * 1024}")
    if not first:
        for i in range(64):
            e(f"v_mul_f32 v{192+i}, v{192+i}, v10")

    def trreads(tu):
        t, u = tu >> 1, tu & 1
        bufb = 96 + 16 * (tu & 1)
        for cc in range(4):
            for v in range(2):
                a = 40 + 8 * (t >> 1) + 2 * cc + v
                off = (32 * (t & 1) + 16 * u + 8 * v) * 1024
                e(f"ds_read_b64_tr_b16 {vr(bufb + 4 * cc + 2 * v, 2)}, v{a} offset:{off}")
    trreads(0)
    for tu in range(8):
        if tu + 1 < 8:
            trreads(tu + 1)
            e("s_waitcnt lgkmcnt(8)")
        else:
            e("s_waitcnt lgkmcnt(0)")
        bufb = 96 + 16 * (tu & 1)
        for cc in range(4):
            acc = vr(192 + 16 * cc, 16)
            c = "0" if (first and tu == 0) else acc
            e(f"v_mfma_f32_32x32x16_bf16 {acc}, {vr(bufb + 4 * cc, 4)}, {vr(64 + 4 * tu, 4)}, {c}")


def km():
    L = "km_kernel"
    kernel_header(L)
    e("s_cmp_ge_u32 s2, 256")
    e("s_cbranch_scc1 KM_END")
    prof_kernel[0] = 1
    prof_start()
    srd(8, "A_ckv"); srd(12, "B_k"); srd(16, "B_v"); srd(20, "ws"); srd(48, "dbg")
    e("s_and_b32 s3, s2, 7")
    e("s_lshr_b32 s4, s2, 3")
    e("s_lshr_b32 s5, s3, 2")
    e("s_lshl_b32 s24, s4, 1")
    e("s_or_b32 s24, s24, s5")
    e("s_add_u32 s25, s3, s4")
    e("s_and_b32 s25, s25, 3")
    e("v_and_b32 v1, 63, v0")
    e("v_lshrrev_b32 v2, 6, v0")
    e("s_nop 0")
    e("v_readfirstlane_b32 s26, v2")
    e(f"s_mov_b32 s34, {SCALE_BITS:#x}")
    e(f"s_mov_b32 s35, {LOG2E_BITS:#x}")
    e("v_lshlrev_b32 v16, 4, v1")
    e("s_lshl_b32 s27, s26, 13")
    e("v_add_u32 v6, s27, v16")
    e("v_add_u32 v7, 4096, v6")
    e("v_and_b32 v8, 15, v1")
    e("v_lshlrev_b32 v8, 4, v8")
    e("s_lshl_b32 s27, s24, 8")
    e(f"s_add_u32 s27, s27, {QB}")
    e("s_lshl_b32 s30, s24, 21")
    e("s_add_u32 s30, s30, 1572864")
    e("s_waitcnt lgkmcnt(0)")
    srd_fin(8, "A_ckv"); srd_fin(12, "B_k"); srd_fin(16, "B_v"); srd_fin(20, "ws"); srd_fin(48, "dbg")
    e(f"buffer_load_dwordx4 {vr(2, 4)}, v8, s[20:23], s27 offen")
    e("s_cmp_lg_u32 s25, 0")
    e("s_cbranch_scc1 KM_BONLY")
    e("s_lshr_b32 s36, s24, 5")
    e("s_and_b32 s37, s24, 31")
    e("s_lshl_b32 s40, s36, 23")
    e("s_lshl_b32 s27, s37, 18")
    e("s_add_u32 s40, s40, s27")
    e("s_lshl_b32 s41, s26, 15")
    e("s_add_u32 s40, s40, s41")
    e("s_lshl_b32 s27, s36, 15")
    e("s_lshl_b32 s28, s26, 13")
    e("s_add_u32 s27, s27, s28")
    for part in range(2):
        for s in range(8):
            if s % 4 == 0:
                e(f"s_add_u32 s28, s27, {part * QA_LO + s * 1024}")
            e(f"buffer_load_dwordx4 {ar(32 * part + 4 * s, 4)}, v16, s[20:23], s28 offen offset:{(s % 4) * 1024}")
    dma_tile()
    e("s_add_u32 s31, s30, 491520")
    bloads(128, 160, 31)
    e("v_and_b32 v56, 31, v1")
    e("v_lshrrev_b32 v57, 5, v1")
    e("v_and_b32 v58, 3, v1")
    e("v_lshlrev_b32 v58, 2, v58")
    e("v_bfe_u32 v59, v1, 2, 2")
    e("v_or_b32 v58, v58, v59")
    e("v_xor_b32 v58, v58, v57")
    e("v_lshlrev_b32 v58, 4, v58")
    for k in range(8):
        e(f"v_xor_b32 v{28 + k}, {32 * k}, v58")
    e("v_lshlrev_b32 v59, 10, v56")
    e("s_lshl_b32 s27, s26, 8")
    e("v_add_u32 v59, s27, v59")
    for j in range(4):
        e(f"s_add_u32 s27, s26, {j}")
        e("s_and_b32 s27, s27, 3")
        e("s_lshl_b32 s27, s27, 15")
        e(f"v_add_u32 v{24 + j}, s27, v59")
        e(f"s_sub_u32 s27, s26, {j}")
        e("s_and_b32 s27, s27, 3")
        e("s_lshl_b32 s27, s27, 12")
        e(f"s_add_u32 s27, s27, {RS}")
        e(f"v_add_u32 v{36 + j}, s27, v16")
    e("v_lshrrev_b32 v60, 4, v1")
    e("v_lshrrev_b32 v61, 5, v1")
    e("v_bfe_u32 v62, v1, 2, 2")
    e("v_and_b32 v63, 3, v1")
    e("v_and_b32 v64, 1, v60")
    e("v_lshlrev_b32 v64, 1, v64")
    e("v_lshrrev_b32 v65, 1, v63")
    e("v_add_u32 v64, v64, v65")
    e("v_lshl_or_b32 v65, v62, 2, v61")
    e("v_xor_b32 v64, v64, v65")
    e("v_lshlrev_b32 v64, 4, v64")
    e("v_and_b32 v65, 1, v63")
    e("v_lshl_add_u32 v64, v65, 3, v64")
    e("v_lshl_add_u32 v65, v61, 2, v62")
    e("v_lshl_add_u32 v64, v65, 10, v64")
    e("s_lshl_b32 s27, s26, 8")
    e("v_add_u32 v64, s27, v64")
    for cc in range(4):
        for v in range(2):
            e(f"v_xor_b32 v{40 + 2 * cc + v}, {64 * cc + 32 * v}, v64")
            e(f"v_add_u32 v{48 + 2 * cc + v}, 0x10000, v{40 + 2 * cc + v}")
    e("v_lshlrev_b32 v18, 2, v56")
    e(f"v_add_u32 v18, {MX}, v18")
    e("s_lshl_b32 s27, s26, 7")
    e("v_add_u32 v17, s27, v18")
    e(f"v_add_u32 v20, {PX}, v16")
    e("s_lshl_b32 s27, s26, 11")
    e("v_add_u32 v19, s27, v20")
    e("v_mov_b32 v8, 0xff800000")
    e("v_mov_b32 v9, 0")
    e("s_waitcnt vmcnt(16)")
    e("s_barrier")
    prof_mark(0)
    a_tile(True)
    e("s_barrier")
    prof_mark(1)
    e("s_add_u32 s40, s40, 0x20000")
    dma_tile()
    e("s_waitcnt vmcnt(0)")
    e("s_barrier")
    a_tile(False)
    e("v_mov_b32 v13, v9")
    e("s_nop 1")
    e("v_permlane32_swap_b32 v9, v13")
    e("s_nop 1")
    e("v_add_f32 v9, v9, v13")
    e(f"ds_write_b32 v17, v9 offset:{LX - MX}")
    e("v_and_b32 v11, 31, v1")
    e("v_lshrrev_b32 v12, 5, v1")
    e("v_lshlrev_b32 v14, 11, v11")
    e("v_lshl_add_u32 v14, v12, 4, v14")
    e("s_lshl_b32 s27, s36, 5")
    e("s_add_u32 s27, s27, s37")
    e("s_lshl_b32 s27, s27, 16")
    e("s_lshl_b32 s28, s26, 9")
    e("s_add_u32 s27, s27, s28")
    e(f"s_add_u32 s27, s27, {APART}")
    e("s_nop 7")
    for cc in range(4):
        for q in range(4):
            e(f"buffer_store_dwordx4 {vr(192 + 16 * cc + 4 * q, 4)}, v14, s[20:23], s27 offen offset:{cc * 128 + q * 32}{SC}")
    e("s_waitcnt lgkmcnt(0)")
    e("s_barrier")
    e("s_cmp_lg_u32 s26, 0")
    e("s_cbranch_scc1 KM_ASTAT_DONE")
    for w in range(4):
        e(f"ds_read_b32 v{12 + w}, v18 offset:{LX - MX + 128 * w}")
    e("s_waitcnt lgkmcnt(0)")
    e("v_add_f32 v12, v12, v13")
    e("v_add_f32 v14, v14, v15")
    e("v_add_f32 v9, v12, v14")
    e("v_lshlrev_b32 v14, 8, v11")
    e("s_lshl_b32 s27, s36, 13")
    e("s_lshl_b32 s28, s37, 3")
    e("s_add_u32 s27, s27, s28")
    e(f"s_add_u32 s27, s27, {ASTAT}")
    e(f"buffer_store_dwordx2 v[8:9], v14, s[20:23], s27 offen{SC}")
    lab("KM_ASTAT_DONE")
    e(f"s_mov_b32 s27, {C3}")
    signal([27])
    prof_mark(2)
    e("v_mov_b32 v8, 0xff800000")
    for j in range(9, 18):
        e(f"v_mov_b32 v{j}, 0")
    bcompute(128, 160)
    e("s_branch KM_BFIN")
    lab("KM_BONLY")
    e("s_sub_u32 s27, s25, 1")
    e("s_mul_i32 s27, s27, 163840")
    e("s_add_u32 s31, s30, s27")
    bloads(128, 160, 31)
    e("v_mov_b32 v8, 0xff800000")
    for j in range(9, 18):
        e(f"v_mov_b32 v{j}, 0")
    for u in range(5):
        if u < 4:
            e("s_add_u32 s31, s31, 32768")
            if (u + 1) & 1:
                bloads(192, 224, 31)
            else:
                bloads(128, 160, 31)
            e("s_waitcnt vmcnt(16)")
        else:
            e("s_waitcnt vmcnt(0)")
        if u < 3:
            prof_mark(u)
        if u & 1:
            bcompute(192, 224)
        else:
            bcompute(128, 160)
    lab("KM_BFIN")
    srd(12, "A_wuv")
    e("s_lshr_b32 s52, s2, 6")
    e("s_and_b32 s53, s2, 63")
    e("s_and_b32 s54, s2, 31")
    e("s_bfe_u32 s55, s2, 0x10005")
    e("s_bfe_u32 s56, s2, 0x10006")
    e("s_bfe_u32 s57, s2, 0x30003")
    e("s_and_b32 s58, s2, 7")
    e("s_cmp_lg_u32 s56, 0")
    e("s_cbranch_scc1 KM_LB")
    srd(16, "A_wo")
    e("s_branch KM_LD")
    lab("KM_LB")
    srd(16, "B_wo")
    lab("KM_LD")
    e("v_lshrrev_b32 v44, 2, v0")
    e("v_and_b32 v45, 3, v0")
    e("v_lshlrev_b32 v46, 16, v44")
    e("v_lshl_add_u32 v46, v45, 4, v46")
    e("v_lshrrev_b32 v47, 3, v0")
    e("v_and_b32 v48, 7, v0")
    e("v_lshlrev_b32 v49, 14, v47")
    e("v_lshl_add_u32 v49, v48, 4, v49")
    e("s_waitcnt lgkmcnt(0)")
    srd_fin(12, "A_wuv"); srd_fin(16, "A_wo")
    e("s_lshl_b32 s28, s54, 8")
    e("s_lshl_b32 s29, s52, 6")
    e("s_add_u32 s28, s28, s29")
    for i in range(8):
        e(f"buffer_load_dwordx4 {vr(128 + 4 * i, 4)}, v46, s[12:15], s28 offen nt")
        e("s_add_u32 s28, s28, 8192")
    e("s_cmp_ge_u32 s2, 128")
    e("s_cbranch_scc1 KM_NOP4W")
    e("s_lshl_b32 s28, s57, 19")
    e("s_lshl_b32 s29, s58, 7")
    e("s_add_u32 s28, s28, s29")
    for i in range(16):
        if i and i % 4 == 0:
            e("s_add_u32 s28, s28, 4096")
        e(f"buffer_load_dwordx4 {vr(160 + 4 * i, 4)}, v49, s[16:19], s28 offen offset:{(i % 4) * 1024} nt")
    lab("KM_NOP4W")
    prof_mark(3)
    e("v_lshrrev_b32 v18, 4, v1")
    e("s_lshl_b32 s27, s26, 2")
    e("v_add_u32 v18, s27, v18")
    e("v_and_b32 v19, 15, v1")
    e("v_lshlrev_b32 v20, 9, v18")
    e("v_lshl_add_u32 v20, v19, 5, v20")
    e(f"v_add_u32 v20, {BO}, v20")
    e(f"ds_write_b128 v20, {vr(10, 4)}")
    e(f"ds_write_b128 v20, {vr(14, 4)} offset:16")
    e("v_lshlrev_b32 v21, 3, v18")
    e(f"v_add_u32 v21, {BS}, v21")
    e("ds_write_b64 v21, v[8:9]")
    e("s_waitcnt lgkmcnt(0)")
    e("s_barrier")
    e("s_cmp_ge_u32 s26, 2")
    e("s_cbranch_scc1 KM_BDONE")
    e(f"v_mov_b32 v21, {BS}")
    for s in range(16):
        e(f"ds_read_b64 {vr(64 + 2 * s, 2)}, v21 offset:{8 * s}")
    e("v_lshlrev_b32 v20, 2, v0")
    e(f"v_add_u32 v20, {BO}, v20")
    for s in range(16):
        e(f"ds_read_b32 v{96 + s}, v20 offset:{512 * s}")
    e("s_waitcnt lgkmcnt(0)")
    e("v_max3_f32 v8, v64, v66, v68")
    for s in range(3, 15, 2):
        e(f"v_max3_f32 v8, v8, v{64 + 2 * s}, v{66 + 2 * s}")
    e("v_max_f32 v8, v8, v94")
    for s in range(16):
        e(f"v_sub_f32 v{64 + 2 * s}, v{64 + 2 * s}, v8")
    for s in range(16):
        e(f"v_exp_f32 v{64 + 2 * s}, v{64 + 2 * s}")
    e("s_nop 0")
    e("v_mul_f32 v9, v64, v65")
    e("v_mul_f32 v10, v64, v96")
    for s in range(1, 16):
        e(f"v_fmac_f32 v9, v{64 + 2 * s}, v{65 + 2 * s}")
        e(f"v_fmac_f32 v10, v{64 + 2 * s}, v{96 + s}")
    e("s_lshl_b32 s27, s24, 2")
    e("s_add_u32 s27, s27, s25")
    e("s_lshl_b32 s28, s27, 9")
    e(f"s_add_u32 s28, s28, {BPART}")
    e("v_lshlrev_b32 v20, 2, v0")
    e(f"buffer_store_dword v10, v20, s[20:23], s28 offen{SC}")
    e("s_lshl_b32 s28, s27, 3")
    e(f"s_add_u32 s28, s28, {BSTAT}")
    e("v_mov_b32 v20, 0")
    e(f"buffer_store_dwordx2 v[8:9], v20, s[20:23], s28 offen{SC}")
    lab("KM_BDONE")
    e("s_bfe_u32 s27, s24, 0x30002")
    e("s_lshl_b32 s27, s27, 2")
    e(f"s_add_u32 s27, s27, {C5}")
    signal([27])
    poll(C3, 64)
    e("v_lshlrev_b32 v4, 3, v0")
    e("v_mov_b32 v5, 0")
    e("s_lshl_b32 s28, s53, 8")
    e(f"s_add_u32 s28, s28, {ASTAT}")
    for k in range(16):
        e(f"buffer_load_dwordx4 {vr(224 - 0 + 0 + 0, 4) if False else vr(64 + 4 * k, 4)}, v5, s[20:23], s28 offen offset:{16 * k}{SC}")
    e("s_lshl_b32 s28, s55, 21")
    e("s_lshl_b32 s29, s54, 11")
    e("s_add_u32 s28, s28, s29")
    e(f"s_add_u32 s28, s28, {APART}")
    for s in range(32):
        e(f"buffer_load_dwordx2 {ar(2 * s, 2)}, v4, s[20:23], s28 offen{SC}")
        e("s_add_u32 s28, s28, 0x10000")
    e("s_waitcnt vmcnt(32)")
    e("v_max3_f32 v5, v64, v66, v68")
    for s in range(3, 31, 2):
        e(f"v_max3_f32 v5, v5, v{64 + 2 * s}, v{66 + 2 * s}")
    e("v_max_f32 v5, v5, v126")
    for s in range(32):
        e(f"v_sub_f32 v{64 + 2 * s}, v{64 + 2 * s}, v5")
    for s in range(32):
        e(f"v_exp_f32 v{64 + 2 * s}, v{64 + 2 * s}")
    e("s_nop 0")
    e("v_mul_f32 v6, v64, v65")
    for s in range(1, 32):
        e(f"v_fmac_f32 v6, v{64 + 2 * s}, v{65 + 2 * s}")
    e("v_rcp_f32 v6, v6")
    e("v_mov_b32 v40, 0")
    e("v_mov_b32 v41, 0")
    for s in range(32):
        e(f"s_waitcnt vmcnt({31 - s})")
        e(f"v_accvgpr_read_b32 v42, a{2 * s}")
        e(f"v_accvgpr_read_b32 v43, a{2 * s + 1}")
        e(f"v_fmac_f32 v40, v{64 + 2 * s}, v42")
        e(f"v_fmac_f32 v41, v{64 + 2 * s}, v43")
    e("v_mul_f32 v40, v40, v6")
    e("v_mul_f32 v41, v41, v6")
    e("ds_write_b64 v4, v[40:41]")
    e("s_waitcnt lgkmcnt(0)")
    e("s_barrier")
    e("v_lshlrev_b32 v5, 5, v44")
    e(f"ds_read_b128 {vr(8, 4)}, v5")
    e(f"ds_read_b128 {vr(12, 4)}, v5 offset:16")
    for k in range(8):
        e(f"v_mov_b32 v{24 + k}, 0")
    e("s_waitcnt lgkmcnt(0)")
    for i in range(8):
        for k in range(4):
            unpack2(32 + 2 * k, 33 + 2 * k, 128 + 4 * i + k)
        for k in range(8):
            e(f"v_fmac_f32 v{24 + k}, v{32 + k}, v{8 + i}")
    e("v_lshlrev_b32 v5, 7, v44")
    e("v_lshl_add_u32 v5, v45, 5, v5")
    e(f"ds_write_b128 v5, {vr(24, 4)} offset:2048")
    e(f"ds_write_b128 v5, {vr(28, 4)} offset:2064")
    e("s_waitcnt lgkmcnt(0)")
    e("s_barrier")
    e("s_cmp_lg_u32 s26, 0")
    e("s_cbranch_scc1 KM_P3DONE")
    e("v_and_b32 v5, 31, v1")
    e("v_lshrrev_b32 v6, 5, v1")
    e("v_lshlrev_b32 v5, 2, v5")
    e("v_lshl_add_u32 v5, v6, 12, v5")
    for g in range(32):
        e(f"ds_read_b32 v{64 + g}, v5 offset:{2048 + 128 * g}")
    e("s_waitcnt lgkmcnt(0)")
    for n in (16, 8, 4, 2, 1):
        for g in range(n):
            e(f"v_add_f32 v{64 + g}, v{64 + g}, v{64 + n + g}")
    e("v_mov_b32 v65, v64")
    e("s_nop 1")
    e("v_permlane32_swap_b32 v64, v65")
    e("s_nop 1")
    e("v_add_f32 v64, v64, v65")
    e("v_cvt_pk_bf16_f32 v64, v64, v64")
    e("s_lshl_b32 s28, s53, 8")
    e("s_lshl_b32 s29, s52, 6")
    e("s_add_u32 s28, s28, s29")
    e(f"s_add_u32 s28, s28, {CTX}")
    e("v_and_b32 v5, 31, v1")
    e("v_lshlrev_b32 v5, 1, v5")
    e(f"buffer_store_short v64, v5, s[20:23], s28 offen{SC}")
    lab("KM_P3DONE")
    e("s_lshr_b32 s27, s54, 2")
    e("s_lshl_b32 s27, s27, 2")
    e(f"s_add_u32 s27, s27, {C4}")
    signal([27])
    e("s_cmp_ge_u32 s2, 128")
    e("s_cbranch_scc1 KM_END")
    srd(8, "out")
    e("s_lshl_b32 s27, s57, 2")
    e("s_mul_i32 s28, s56, 32")
    e("s_add_u32 s27, s27, s28")
    e(f"s_add_u32 s27, s27, {C4}")
    poll(None, 32, soff=27)
    e("v_lshrrev_b32 v4, 7, v0")
    e("v_and_b32 v5, 127, v0")
    e("v_lshlrev_b32 v6, 11, v4")
    e("v_lshl_add_u32 v7, v5, 2, v6")
    e("s_waitcnt lgkmcnt(0)")
    srd_fin(8, "out")
    e("s_cmp_lg_u32 s56, 0")
    e("s_cbranch_scc1 KM_VB")
    e("v_lshlrev_b32 v6, 13, v4")
    e("v_lshl_add_u32 v6, v5, 1, v6")
    e("s_lshl_b32 s29, s57, 10")
    e(f"s_add_u32 s29, s29, {CTX}")
    for hh in range(4):
        e(f"buffer_load_ushort v{8 + hh}, v6, s[20:23], s29 offen offset:{256 * hh}{SC}")
    e("s_waitcnt vmcnt(0)")
    for hh in range(4):
        e(f"v_lshlrev_b32 v{8 + hh}, 16, v{8 + hh}")
        e(f"ds_write_b32 v7, v{8 + hh} offset:{512 * hh}")
    e("s_branch KM_VD")
    lab("KM_VB")
    e("v_lshlrev_b32 v6, 10, v4")
    e("s_lshl_b32 s29, s57, 7")
    e(f"s_add_u32 s29, s29, {BSTAT}")
    for hh in range(4):
        e(f"buffer_load_dwordx4 {vr(8 + 8 * hh, 4)}, v6, s[20:23], s29 offen offset:{32 * hh}{SC}")
        e(f"buffer_load_dwordx4 {vr(12 + 8 * hh, 4)}, v6, s[20:23], s29 offen offset:{32 * hh + 16}{SC}")
    e("v_lshlrev_b32 v6, 16, v4")
    e("v_lshl_add_u32 v6, v5, 2, v6")
    e("s_lshl_b32 s29, s57, 13")
    e(f"s_add_u32 s29, s29, {BPART}")
    for hh in range(4):
        for r in range(4):
            if hh == 2 and r == 0:
                e("s_add_u32 s29, s29, 4096")
            e(f"buffer_load_dword v{64 + 4 * hh + r}, v6, s[20:23], s29 offen offset:{(hh % 2) * 2048 + 512 * r}{SC}")
    e("s_waitcnt vmcnt(0)")
    for hh in range(4):
        b0 = 8 + 8 * hh
        e(f"v_max3_f32 v56, v{b0}, v{b0 + 2}, v{b0 + 4}")
        e(f"v_max_f32 v56, v56, v{b0 + 6}")
        for r in range(4):
            e(f"v_sub_f32 v{b0 + 2 * r}, v{b0 + 2 * r}, v56")
        for r in range(4):
            e(f"v_exp_f32 v{b0 + 2 * r}, v{b0 + 2 * r}")
        e("s_nop 0")
        e(f"v_mul_f32 v57, v{b0}, v{b0 + 1}")
        e(f"v_mul_f32 v58, v{b0}, v{64 + 4 * hh}")
        for r in range(1, 4):
            e(f"v_fmac_f32 v57, v{b0 + 2 * r}, v{b0 + 2 * r + 1}")
            e(f"v_fmac_f32 v58, v{b0 + 2 * r}, v{64 + 4 * hh + r}")
        e("v_rcp_f32 v57, v57")
        e("s_nop 0")
        e("v_mul_f32 v58, v58, v57")
        e("v_cvt_pk_bf16_f32 v58, v58, v58")
        e("v_lshlrev_b32 v58, 16, v58")
        e(f"ds_write_b32 v7, v58 offset:{512 * hh}")
    lab("KM_VD")
    e("s_waitcnt lgkmcnt(0)")
    e("s_barrier")
    e("v_lshlrev_b32 v6, 6, v47")
    for b in range(2):
        for k in range(4):
            e(f"ds_read_b128 {vr(8 + 16 * b + 4 * k, 4)}, v6 offset:{2048 * b + 16 * k}")
    for k in range(16):
        e(f"v_mov_b32 v{64 + k}, 0")
    e("s_waitcnt vmcnt(0) lgkmcnt(0)")
    for i in range(16):
        for k in range(4):
            unpack2(56 + 2 * k, 57 + 2 * k, 160 + 4 * i + k)
        for k in range(8):
            e(f"v_fmac_f32 v{64 + k}, v{56 + k}, v{8 + i}")
            e(f"v_fmac_f32 v{72 + k}, v{56 + k}, v{24 + i}")
    e("v_lshlrev_b32 v6, 9, v47")
    e("v_lshl_add_u32 v6, v48, 5, v6")
    e(f"ds_write_b128 v6, {vr(64, 4)} offset:4096")
    e(f"ds_write_b128 v6, {vr(68, 4)} offset:4112")
    e(f"ds_write_b128 v6, {vr(72, 4)} offset:4352")
    e(f"ds_write_b128 v6, {vr(76, 4)} offset:4368")
    e("s_waitcnt lgkmcnt(0)")
    e("s_barrier")
    e("s_cmp_ge_u32 s26, 2")
    e("s_cbranch_scc1 KM_END")
    e("v_lshlrev_b32 v6, 2, v0")
    for g in range(32):
        e(f"ds_read_b32 v{64 + g}, v6 offset:{4096 + 512 * g}")
    e("s_waitcnt lgkmcnt(0)")
    for n in (16, 8, 4, 2, 1):
        for g in range(n):
            e(f"v_add_f32 v{64 + g}, v{64 + g}, v{64 + n + g}")
    e("v_lshlrev_b32 v5, 2, v1")
    e("s_lshl_b32 s28, s56, 15")
    e("s_lshl_b32 s29, s26, 11")
    e("s_add_u32 s28, s28, s29")
    e("s_lshl_b32 s29, s58, 8")
    e("s_add_u32 s28, s28, s29")
    e(f"s_add_u32 s28, s28, {OPART}")
    e("s_lshl_b32 s29, s57, 12")
    e("s_add_u32 s29, s29, s28")
    e(f"buffer_store_dword v64, v5, s[20:23], s29 offen{SC}")
    e("s_waitcnt vmcnt(0)")
    e("s_lshl_b32 s30, s56, 3")
    e("s_add_u32 s30, s30, s58")
    e("s_lshl_b32 s30, s30, 1")
    e("s_add_u32 s30, s30, s26")
    e("s_and_b32 s31, s30, 3")
    e("s_lshl_b32 s31, s31, 3")
    e("s_lshr_b32 s30, s30, 2")
    e("s_lshl_b32 s30, s30, 2")
    e(f"s_add_u32 s30, s30, {C6}")
    e("s_lshl_b32 s32, 1, s31")
    e("v_mov_b32 v8, s32")
    e("v_mov_b32 v9, 0")
    e("s_mov_b64 s[46:47], exec")
    e("s_mov_b64 exec, 1")
    e("buffer_atomic_add v8, v9, s[48:51], s30 offen sc0 sc1")
    e("s_waitcnt vmcnt(0)")
    e("s_mov_b64 exec, s[46:47]")
    e("v_readfirstlane_b32 s32, v8")
    e("s_lshr_b32 s32, s32, s31")
    e("s_and_b32 s32, s32, 0xff")
    e("s_cmp_lg_u32 s32, 7")
    e("s_cbranch_scc1 KM_END")
    for r in range(8):
        e(f"buffer_load_dword v{64 + r}, v5, s[20:23], s28 offen{SC}")
        e("s_add_u32 s28, s28, 4096")
    e("s_waitcnt vmcnt(0)")
    for r in range(1, 8):
        e(f"v_add_f32 v64, v64, v{64 + r}")
    e("v_cvt_pk_bf16_f32 v64, v64, v64")
    e("v_lshrrev_b32 v5, 1, v5")
    e("s_lshl_b32 s28, s26, 11")
    e("s_lshl_b32 s29, s56, 10")
    e("s_add_u32 s28, s28, s29")
    e("s_lshl_b32 s29, s58, 7")
    e("s_add_u32 s28, s28, s29")
    e("buffer_store_short v64, v5, s[8:11], s28 offen")
    lab("KM_END")
    e("s_endpgm")
    kernel_desc(L, 384, 256)
    return f"; @launch kernel={L} grid=(256,1,1) block=(256,1,1) lds={KM_LDS}"


LAUNCHES = []


def main():
    LAUNCHES.append(k1())
    LAUNCHES.append(km())
    head = open(f"cdna_kernels/{NAME}.s.ref").read().split("; Override launch")[0]
    txt = head + "\n".join(LAUNCHES) + "\n"
    txt += '.amdgcn_target "amdgcn-amd-amdhsa--gfx950"\n.text\n'
    txt += "\n".join(out) + "\n"
    txt += '.section .rodata,"a"\n' + "\n".join(descs) + "\n"
    path = sys.argv[1] if len(sys.argv) > 1 else f"cdna_kernels/{NAME}.s"
    open(path, "w").write(txt)


if __name__ == "__main__":
    main()
```

```python
import sys

NAME = "concat_heads__compressed_kv_cla__sliding_block_cached__decode"

KA = dict(A_x=0, A_ckv=8, A_wq=16, A_wuk=24, A_wuv=32, A_wo=40, B_x=48, B_k=56, B_v=64,
          B_wq=72, B_wo=80, out=88, dbg=96, ws=104)
SZ = dict(A_x=2048, A_ckv=16777216, A_wq=4194304, A_wuk=4194304, A_wuv=4194304, A_wo=4194304,
          B_x=2048, B_k=134217728, B_v=134217728, B_wq=4194304, B_wo=4194304, out=4096, dbg=256,
          ws=536870912)

QA_HI = 0x00000
QA_LO = 0x10000
QB = 0x20000
ASTAT = 0x30000
BPART = 0x40000
BSTAT = 0x60000
CTX = 0x70000
OPART = 0x80000
APART = 0x100000

SCALE_BITS = 0x3DB504F3
LOG2E_BITS = 0x3FB8AA3B

out = []
import os
DEBUG = bool(os.environ.get('DEBUG'))
PROF = bool(os.environ.get('PROF'))
PROFBASE = 0x800000


def prof_start():
    if PROF:
        e("s_memrealtime s[90:91]")


def prof_mark(slot, t=21):
    if PROF:
        e("s_memrealtime s[92:93]")
        e("s_waitcnt lgkmcnt(0)")
        e("s_sub_u32 s92, s92, s90")
        e(f"v_mov_b32 v{t}, s92")
        e("s_lshl_b32 s94, s2, 7")
        e(f"s_add_u32 s94, s94, {PROFBASE + prof_kernel[0] * 0x10000 + slot * 4}")
        e(f"v_lshrrev_b32 v{t+1}, 6, v0")
        e(f"v_lshlrev_b32 v{t+1}, 5, v{t+1}")
        e(f"buffer_store_dword v{t}, v{t+1}, s[20:23], s94 offen")


prof_kernel = [0]


def e(s):
    out.append("    " + s)


def lab(s):
    out.append(s + ":")


def srd(dst, name):
    e(f"s_load_dwordx2 s[{dst}:{dst+1}], s[0:1], {KA[name]}")


def srd_fin(dst, name):
    e(f"s_mov_b32 s{dst+2}, {SZ[name]}")
    e(f"s_mov_b32 s{dst+3}, 0x20000")


def vr(a, n):
    return f"v[{a}:{a+n-1}]"


def ar(a, n):
    return f"a[{a}:{a+n-1}]"


def kernel_header(label):
    out.append(f".globl {label}")
    out.append(".p2align 8")
    out.append(f".type {label},@function")
    lab(label)


descs = []


def kernel_desc(label, vgpr, accum, sgpr=102):
    descs.append(f""".p2align 6
.amdhsa_kernel {label}
  .amdhsa_next_free_vgpr {vgpr}
  .amdhsa_next_free_sgpr {sgpr}
  .amdhsa_accum_offset {accum}
  .amdhsa_group_segment_fixed_size 0
  .amdhsa_kernarg_size 112
  .amdhsa_user_sgpr_count 2
  .amdhsa_user_sgpr_kernarg_segment_ptr 1
  .amdhsa_system_sgpr_workgroup_id_x 1
.end_amdhsa_kernel""")


def unpack2(dlo, dhi, src):
    e(f"v_lshlrev_b32 v{dlo}, 16, v{src}")
    e(f"v_and_b32 v{dhi}, 0xffff0000, v{src}")


def gemv_rows(nrows, wbase, xbase0, xbase1, acc, tmp, xt, vm_after):
    for i in range(nrows):
        e(f"s_waitcnt vmcnt({nrows - 1 - i + vm_after})")
        if i % 2 == 0:
            e(f"v_lshlrev_b32 v{xt}, 16, v{xbase0 + i // 2}")
            e(f"v_lshlrev_b32 v{xt+1}, 16, v{xbase1 + i // 2}")
        else:
            e(f"v_and_b32 v{xt}, 0xffff0000, v{xbase0 + i // 2}")
            e(f"v_and_b32 v{xt+1}, 0xffff0000, v{xbase1 + i // 2}")
        for k in range(4):
            unpack2(tmp + 2 * k, tmp + 2 * k + 1, wbase + 4 * i + k)
        for k in range(8):
            e(f"v_fmac_f32 v{acc + k}, v{tmp + k}, v{xt}")
            e(f"v_fmac_f32 v{acc + 8 + k}, v{tmp + k}, v{xt+1}")


def k1():
    L = "k1_kernel"
    kernel_header(L)
    e("s_cmp_ge_u32 s2, 192")
    e("s_cbranch_scc1 K1_END")
    e("s_cmp_ge_u32 s2, 128")
    e("s_cbranch_scc1 K1_B")
    srd(8, "A_x"); srd(12, "A_wq"); srd(16, "A_wuk"); srd(20, "ws")
    e("s_and_b32 s24, s2, 31")
    e("s_lshr_b32 s25, s2, 5")
    e("v_and_b32 v1, 15, v0")
    e("v_lshrrev_b32 v2, 4, v0")
    e("v_lshlrev_b32 v3, 18, v2")
    e("v_lshl_add_u32 v3, v1, 4, v3")
    e("v_lshlrev_b32 v4, 6, v2")
    e("v_lshlrev_b32 v5, 13, v2")
    e("v_lshl_add_u32 v5, v1, 4, v5")
    e("s_lshl_b32 s26, s24, 8")
    e("s_waitcnt lgkmcnt(0)")
    srd_fin(8, "A_x"); srd_fin(12, "A_wq"); srd_fin(16, "A_wuk"); srd_fin(20, "ws")
    for b in range(2):
        for k in range(4):
            e(f"buffer_load_dwordx4 {vr(8 + 16 * b + 4 * k, 4)}, v4, s[8:11], 0 offen offset:{1024 * b + 16 * k}")
    e("s_mov_b32 s27, s26")
    for i in range(32):
        e(f"buffer_load_dwordx4 {vr(40 + 4 * i, 4)}, v3, s[12:15], s27 offen nt")
        e("s_add_u32 s27, s27, 8192")
    e("s_lshl_b32 s27, s25, 20")
    e("s_add_u32 s27, s27, s26")
    for i in range(8):
        e(f"buffer_load_dwordx4 {vr(168 + 4 * i, 4)}, v5, s[16:19], s27 offen nt")
        e("s_add_u32 s27, s27, 0x20000")
    for k in range(16):
        e(f"v_mov_b32 v{200 + k}, 0")
    gemv_rows(32, 40, 8, 24, 200, 218, 216, 8)
    e("v_lshlrev_b32 v6, 10, v2")
    e("v_lshl_add_u32 v6, v1, 5, v6")
    e(f"ds_write_b128 v6, {vr(200, 4)}")
    e(f"ds_write_b128 v6, {vr(204, 4)} offset:16")
    e(f"ds_write_b128 v6, {vr(208, 4)} offset:512")
    e(f"ds_write_b128 v6, {vr(212, 4)} offset:528")
    e("s_waitcnt lgkmcnt(0)")
    e("s_barrier")
    e("v_lshlrev_b32 v6, 2, v0")
    for g in range(16):
        e(f"ds_read_b32 v{8 + g}, v6 offset:{1024 * g}")
    e("s_waitcnt lgkmcnt(0)")
    for g in range(1, 16):
        e(f"v_add_f32 v8, v8, v{8 + g}")
    e("v_cvt_pk_bf16_f32 v8, v8, v8")
    e("v_lshlrev_b32 v6, 1, v0")
    e("ds_write_b16 v6, v8 offset:16384")
    e("s_waitcnt lgkmcnt(0)")
    e("s_barrier")
    e("v_lshlrev_b32 v6, 4, v1")
    e(f"ds_read_b128 {vr(8, 4)}, v6 offset:16384")
    e(f"ds_read_b128 {vr(12, 4)}, v6 offset:16640")
    e("s_waitcnt vmcnt(0) lgkmcnt(0)")
    for k in range(4):
        for i in range(8):
            for b in range(2):
                d = 24 + 2 * i + b
                c = "0" if k == 0 else f"v{d}"
                e(f"v_dot2_f32_bf16 v{d}, v{168 + 4 * i + k}, v{8 + 4 * b + k}, {c}")
    e("s_nop 3")
    for sh in (8, 4, 2, 1):
        for d in range(24, 40):
            e(f"v_add_f32_dpp v{d}, v{d}, v{d} row_ror:{sh} row_mask:0xf bank_mask:0xf")
        e("s_nop 1")
    e("v_lshlrev_b32 v6, 2, v2")
    for i in range(8):
        for b in range(2):
            e(f"ds_write_b32 v6, v{24 + 2 * i + b} offset:{16896 + 512 * b + 64 * i}")
    e("s_waitcnt lgkmcnt(0)")
    e("s_barrier")
    e("v_cmp_gt_u32 vcc, 32, v0")
    e("s_and_saveexec_b64 s[28:29], vcc")
    e("s_cbranch_execz K1_END")
    e("v_lshlrev_b32 v6, 5, v0")
    e(f"ds_read_b128 {vr(8, 4)}, v6 offset:16896")
    e(f"ds_read_b128 {vr(12, 4)}, v6 offset:16912")
    e("s_waitcnt lgkmcnt(0)")
    for k in range(4):
        a, b_ = 8 + 2 * k, 9 + 2 * k
        e(f"v_cvt_pk_bf16_f32 v{16 + k}, v{a}, v{b_}")
        unpack2(24, 25, 16 + k)
        e(f"v_sub_f32 v24, v{a}, v24")
        e(f"v_sub_f32 v25, v{b_}, v25")
        e(f"v_cvt_pk_bf16_f32 v{20 + k}, v24, v25")
    e("v_lshrrev_b32 v6, 4, v0")
    e("v_and_b32 v7, 15, v0")
    e("v_lshrrev_b32 v24, 1, v7")
    e("v_and_b32 v25, 1, v7")
    e("v_lshlrev_b32 v6, 15, v6")
    e("v_lshl_add_u32 v6, v24, 10, v6")
    e("v_lshl_add_u32 v6, v25, 9, v6")
    e("s_lshl_b32 s27, s25, 13")
    e("s_lshl_b32 s28, s24, 4")
    e("s_add_u32 s27, s27, s28")
    e(f"buffer_store_dwordx4 {vr(16, 4)}, v6, s[20:23], s27 offen")
    e(f"s_add_u32 s27, s27, {QA_LO}")
    e(f"buffer_store_dwordx4 {vr(20, 4)}, v6, s[20:23], s27 offen")
    e("s_branch K1_END")
    lab("K1_B")
    srd(8, "B_x"); srd(12, "B_wq"); srd(20, "ws")
    e("s_sub_u32 s3, s2, 128")
    e("s_and_b32 s24, s3, 31")
    e("s_lshr_b32 s25, s3, 5")
    e("v_and_b32 v1, 7, v0")
    e("v_lshrrev_b32 v2, 3, v0")
    e("v_lshlrev_b32 v3, 17, v2")
    e("v_lshl_add_u32 v3, v1, 4, v3")
    e("v_lshlrev_b32 v4, 5, v2")
    e("s_lshl_b32 s26, s24, 8")
    e("s_lshl_b32 s27, s25, 7")
    e("s_add_u32 s26, s26, s27")
    e("s_waitcnt lgkmcnt(0)")
    srd_fin(8, "B_x"); srd_fin(12, "B_wq"); srd_fin(20, "ws")
    for b in range(2):
        for k in range(2):
            e(f"buffer_load_dwordx4 {vr(8 + 8 * b + 4 * k, 4)}, v4, s[8:11], 0 offen offset:{1024 * b + 16 * k}")
    e("s_mov_b32 s27, s26")
    for i in range(16):
        e(f"buffer_load_dwordx4 {vr(40 + 4 * i, 4)}, v3, s[12:15], s27 offen nt")
        e("s_add_u32 s27, s27, 8192")
    for k in range(16):
        e(f"v_mov_b32 v{200 + k}, 0")
    gemv_rows(16, 40, 8, 16, 200, 218, 216, 0)
    e("v_lshlrev_b32 v6, 9, v2")
    e("v_lshl_add_u32 v6, v1, 5, v6")
    e(f"ds_write_b128 v6, {vr(200, 4)}")
    e(f"ds_write_b128 v6, {vr(204, 4)} offset:16")
    e(f"ds_write_b128 v6, {vr(208, 4)} offset:256")
    e(f"ds_write_b128 v6, {vr(212, 4)} offset:272")
    e("s_waitcnt lgkmcnt(0)")
    e("s_barrier")
    e("v_cmp_gt_u32 vcc, 128, v0")
    e("s_and_saveexec_b64 s[28:29], vcc")
    e("s_cbranch_execz K1_END")
    e("v_lshlrev_b32 v6, 2, v0")
    for g in range(32):
        e(f"ds_read_b32 v{8 + g}, v6 offset:{512 * g}")
    e("s_waitcnt lgkmcnt(0)")
    for g in range(1, 32):
        e(f"v_add_f32 v8, v8, v{8 + g}")
    e("v_cvt_pk_bf16_f32 v8, v8, v8")
    e("v_lshrrev_b32 v6, 6, v0")
    e("v_and_b32 v7, 63, v0")
    e("v_lshlrev_b32 v6, 13, v6")
    e("v_lshl_add_u32 v6, v7, 1, v6")
    e(f"s_add_u32 s27, s26, {QB}")
    e("buffer_store_short v8, v6, s[20:23], s27 offen")
    lab("K1_END")
    e("s_endpgm")
    kernel_desc(L, 232, 232)
    return f"; @launch kernel={L} grid=(192,1,1) block=(256,1,1) lds=18432"


MX = 131072
LX = 131584
PX = 132096
BO = 140288
RS = PX
BS = BO + 8192
KM_LDS = BS + 128
C3 = 132
C4 = 136
C5 = 168
C6 = 200
SC = " sc1"


def fsw(r):
    return ((r & 3) << 2) | ((r >> 2) & 3)


def bloads(K, V, soff):
    for (base, srdn) in ((K, 12), (V, 16)):
        for i in range(8):
            va = 6 if i < 4 else 7
            e(f"buffer_load_dwordx4 {vr(base + 4 * i, 4)}, v{va}, s[{srdn}:{srdn+3}], s{soff} offen offset:{(i % 4) * 1024} nt")


def round_scale(a, b, t):
    e(f"v_cvt_pk_bf16_f32 v{t}, v{a}, v{b}")
    unpack2(a, b, t)
    e(f"v_mul_f32 v{a}, s34, v{a}")
    e(f"v_mul_f32 v{b}, s34, v{b}")
    e(f"v_cvt_pk_bf16_f32 v{t}, v{a}, v{b}")
    unpack2(a, b, t)
    e(f"v_mul_f32 v{a}, s35, v{a}")
    e(f"v_mul_f32 v{b}, s35, v{b}")


def bcompute(K, V):
    for k in range(4):
        for i in range(8):
            c = "0" if k == 0 else f"v{18+i}"
            e(f"v_dot2_f32_bf16 v{18+i}, v{K + 4*i + k}, v{2+k}, {c}")
    for sh in (8, 4, 2, 1):
        for i in range(8):
            e(f"v_add_f32_dpp v{18+i}, v{18+i}, v{18+i} row_ror:{sh} row_mask:0xf bank_mask:0xf")
    for i in range(0, 8, 2):
        round_scale(18 + i, 19 + i, 26)
    e("v_max3_f32 v26, v18, v19, v20")
    e("v_max3_f32 v26, v26, v21, v22")
    e("v_max3_f32 v26, v26, v23, v24")
    e("v_max3_f32 v26, v26, v25, v8")
    e("v_sub_f32 v27, v8, v26")
    e("v_exp_f32 v27, v27")
    e("v_mov_b32 v8, v26")
    for i in range(8):
        e(f"v_sub_f32 v{18+i}, v{18+i}, v26")
    for i in range(8):
        e(f"v_exp_f32 v{18+i}, v{18+i}")
    e("v_mul_f32 v9, v9, v27")
    for j in range(8):
        e(f"v_mul_f32 v{10+j}, v{10+j}, v27")
    for i in range(8):
        e(f"v_add_f32 v9, v9, v{18+i}")
    for i in range(8):
        for k in range(4):
            unpack2(34 + 2 * k, 35 + 2 * k, V + 4 * i + k)
        for j in range(8):
            e(f"v_fmac_f32 v{10+j}, v{34+j}, v{18+i}")


def dma_tile():
    for i in range(32):
        if i % 4 == 0:
            e(f"s_add_u32 m0, s41, {i * 1024}")
            e(f"s_add_u32 s42, s40, {i * 1024}")
        e(f"v_xor_b32 v11, {fsw(i & 15) * 16}, v16")
        e(f"buffer_load_dwordx4 v11, s[8:11], s42 offen offset:{(i % 4) * 1024} nt lds")


npoll = [0]


def poll(off, target, soff=None):
    n = npoll[0]
    npoll[0] += 1
    e("s_cmp_lg_u32 s26, 0")
    e(f"s_cbranch_scc1 POLL_DONE{n}")
    e("v_mov_b32 v22, 0")
    e("s_mov_b32 s44, 0x40000")
    if soff is None:
        e(f"s_mov_b32 s45, {off}")
        soff = 45
    lab(f"POLL{n}")
    e(f"buffer_load_dword v21, v22, s[48:51], s{soff} offen{SC}")
    e("s_waitcnt vmcnt(0)")
    e("v_readfirstlane_b32 s43, v21")
    e(f"s_cmp_ge_u32 s43, {target}")
    e(f"s_cbranch_scc1 POLL_DONE{n}")
    e("s_sleep 4")
    e("s_sub_u32 s44, s44, 1")
    e("s_cmp_lg_u32 s44, 0")
    e(f"s_cbranch_scc1 POLL{n}")
    lab(f"POLL_DONE{n}")
    e("s_barrier")


def signal(soffs):
    n = npoll[0]
    npoll[0] += 1
    e("s_waitcnt vmcnt(0)")
    e("s_barrier")
    e("s_cmp_lg_u32 s26, 0")
    e(f"s_cbranch_scc1 SIG_DONE{n}")
    e("v_mov_b32 v21, 1")
    e("v_mov_b32 v22, 0")
    e("s_mov_b64 s[46:47], exec")
    e("s_mov_b64 exec, 1")
    for so in soffs:
        e(f"buffer_atomic_add v21, v22, s[48:51], s{so} offen sc1")
    e("s_mov_b64 exec, s[46:47]")
    lab(f"SIG_DONE{n}")


def a_tile(first):
    seq = [(j, k) for j in range(4) for k in range(8)]

    def sread(n):
        j, k = seq[n]
        t = 22 + (n & 1)
        e(f"v_add_u32 v{t}, v{24 + j}, v{28 + k}")
        e(f"ds_read_b128 {vr(72 + 4 * (n % 8), 4)}, v{t}")
    for n in range(8):
        sread(n)
    for n in range(32):
        j, k = seq[n]
        e(f"s_waitcnt lgkmcnt({min(7, 31 - n)})")
        f = vr(72 + 4 * (n % 8), 4)
        acc = ar(64 + 16 * j, 16)
        c = "0" if k == 0 else acc
        e(f"v_mfma_f32_32x32x16_bf16 {acc}, {f}, {ar(4 * k, 4)}, {c}")
        e(f"v_mfma_f32_32x32x16_bf16 {acc}, {f}, {ar(32 + 4 * k, 4)}, {acc}")
        if n + 8 < 32:
            sread(n + 8)
    e("s_nop 15")
    for i in range(16):
        e(f"v_accvgpr_read_b32 v{56 + i}, a{64 + i}")
    for j in range(1, 4):
        for q in range(4):
            e(f"ds_write_b128 v36, {ar(64 + 16 * j + 4 * q, 4)} offset:{1024 * q}")
        e("s_waitcnt lgkmcnt(0)")
        e("s_barrier")
        for q in range(4):
            e(f"ds_read_b128 {vr(72 + 4 * q, 4)}, v{36 + j} offset:{1024 * q}")
        e("s_waitcnt lgkmcnt(0)")
        if j < 3:
            e("s_barrier")
        for i in range(16):
            e(f"v_add_f32 v{56 + i}, v{56 + i}, v{72 + i}")
    for i in range(0, 16, 2):
        round_scale(56 + i, 57 + i, 11)
    e("v_max3_f32 v12, v56, v57, v58")
    for i in range(59, 71, 2):
        e(f"v_max3_f32 v12, v12, v{i}, v{i+1}")
    e("v_max_f32 v12, v12, v71")
    e("v_mov_b32 v13, v12")
    e("s_nop 1")
    e("v_permlane32_swap_b32 v12, v13")
    e("s_nop 1")
    e("v_max_f32 v12, v12, v13")
    e("ds_write_b32 v17, v12")
    e("s_waitcnt lgkmcnt(0)")
    e("s_barrier")
    for w in range(4):
        e(f"ds_read_b32 v{12 + w}, v18 offset:{128 * w}")
    e("s_waitcnt lgkmcnt(0)")
    e("v_max3_f32 v12, v12, v13, v14")
    e("v_max3_f32 v12, v12, v15, v8")
    e("v_sub_f32 v10, v8, v12")
    e("v_exp_f32 v10, v10")
    e("v_mov_b32 v8, v12")
    for i in range(16):
        e(f"v_sub_f32 v{56+i}, v{56+i}, v12")
    for i in range(16):
        e(f"v_exp_f32 v{56+i}, v{56+i}")
    e("v_mul_f32 v9, v9, v10")
    for i in range(16):
        e(f"v_add_f32 v9, v9, v{56+i}")
    for i in range(8):
        e(f"v_cvt_pk_bf16_f32 v{96+i}, v{56+2*i}, v{57+2*i}")
    e(f"ds_write_b128 v19, {vr(96, 4)}")
    e(f"ds_write_b128 v19, {vr(100, 4)} offset:1024")
    e("s_waitcnt lgkmcnt(0)")
    e("s_barrier")
    for tu in range(8):
        e(f"ds_read_b128 {vr(64 + 4 * tu, 4)}, v20 offset:{(tu >> 1) * 2048 + (tu & 1) * 1024}")
    if not first:
        for i in range(64):
            e(f"v_mul_f32 v{192+i}, v{192+i}, v10")

    def trreads(tu):
        t, u = tu >> 1, tu & 1
        bufb = 96 + 16 * (tu & 1)
        for cc in range(4):
            for v in range(2):
                a = 40 + 8 * (t >> 1) + 2 * cc + v
                off = (32 * (t & 1) + 16 * u + 8 * v) * 1024
                e(f"ds_read_b64_tr_b16 {vr(bufb + 4 * cc + 2 * v, 2)}, v{a} offset:{off}")
    trreads(0)
    for tu in range(8):
        if tu + 1 < 8:
            trreads(tu + 1)
            e("s_waitcnt lgkmcnt(8)")
        else:
            e("s_waitcnt lgkmcnt(0)")
        bufb = 96 + 16 * (tu & 1)
        for cc in range(4):
            acc = vr(192 + 16 * cc, 16)
            c = "0" if (first and tu == 0) else acc
            e(f"v_mfma_f32_32x32x16_bf16 {acc}, {vr(bufb + 4 * cc, 4)}, {vr(64 + 4 * tu, 4)}, {c}")


def km():
    L = "km_kernel"
    kernel_header(L)
    e("s_cmp_ge_u32 s2, 256")
    e("s_cbranch_scc1 KM_END")
    prof_kernel[0] = 1
    prof_start()
    srd(8, "A_ckv"); srd(12, "B_k"); srd(16, "B_v"); srd(20, "ws"); srd(48, "dbg")
    e("s_and_b32 s3, s2, 7")
    e("s_lshr_b32 s4, s2, 3")
    e("s_lshr_b32 s5, s3, 2")
    e("s_lshl_b32 s24, s4, 1")
    e("s_or_b32 s24, s24, s5")
    e("s_add_u32 s25, s3, s4")
    e("s_and_b32 s25, s25, 3")
    e("v_and_b32 v1, 63, v0")
    e("v_lshrrev_b32 v2, 6, v0")
    e("s_nop 0")
    e("v_readfirstlane_b32 s26, v2")
    e(f"s_mov_b32 s34, {SCALE_BITS:#x}")
    e(f"s_mov_b32 s35, {LOG2E_BITS:#x}")
    e("v_lshlrev_b32 v16, 4, v1")
    e("s_lshl_b32 s27, s26, 13")
    e("v_add_u32 v6, s27, v16")
    e("v_add_u32 v7, 4096, v6")
    e("v_and_b32 v8, 15, v1")
    e("v_lshlrev_b32 v8, 4, v8")
    e("s_lshl_b32 s27, s24, 8")
    e(f"s_add_u32 s27, s27, {QB}")
    e("s_lshl_b32 s30, s24, 21")
    e("s_add_u32 s30, s30, 1572864")
    e("s_waitcnt lgkmcnt(0)")
    srd_fin(8, "A_ckv"); srd_fin(12, "B_k"); srd_fin(16, "B_v"); srd_fin(20, "ws"); srd_fin(48, "dbg")
    e(f"buffer_load_dwordx4 {vr(2, 4)}, v8, s[20:23], s27 offen")
    e("s_cmp_lg_u32 s25, 0")
    e("s_cbranch_scc1 KM_BONLY")
    e("s_lshr_b32 s36, s24, 5")
    e("s_and_b32 s37, s24, 31")
    e("s_lshl_b32 s40, s36, 23")
    e("s_lshl_b32 s27, s37, 18")
    e("s_add_u32 s40, s40, s27")
    e("s_lshl_b32 s41, s26, 15")
    e("s_add_u32 s40, s40, s41")
    e("s_lshl_b32 s27, s36, 15")
    e("s_lshl_b32 s28, s26, 13")
    e("s_add_u32 s27, s27, s28")
    for part in range(2):
        for s in range(8):
            if s % 4 == 0:
                e(f"s_add_u32 s28, s27, {part * QA_LO + s * 1024}")
            e(f"buffer_load_dwordx4 {ar(32 * part + 4 * s, 4)}, v16, s[20:23], s28 offen offset:{(s % 4) * 1024}")
    dma_tile()
    e("s_add_u32 s40, s40, 0x20000")
    for i in range(32):
        if i % 4 == 0:
            e(f"s_add_u32 s42, s40, {i * 1024}")
        e(f"buffer_load_dwordx4 {ar(128 + 4 * i, 4)}, v16, s[8:11], s42 offen offset:{(i % 4) * 1024} nt")
    e("v_and_b32 v56, 31, v1")
    e("v_lshrrev_b32 v57, 5, v1")
    e("v_and_b32 v58, 3, v1")
    e("v_lshlrev_b32 v58, 2, v58")
    e("v_bfe_u32 v59, v1, 2, 2")
    e("v_or_b32 v58, v58, v59")
    e("v_xor_b32 v58, v58, v57")
    e("v_lshlrev_b32 v58, 4, v58")
    for k in range(8):
        e(f"v_xor_b32 v{28 + k}, {32 * k}, v58")
    e("v_lshlrev_b32 v59, 10, v56")
    e("s_lshl_b32 s27, s26, 8")
    e("v_add_u32 v59, s27, v59")
    for j in range(4):
        e(f"s_add_u32 s27, s26, {j}")
        e("s_and_b32 s27, s27, 3")
        e("s_lshl_b32 s27, s27, 15")
        e(f"v_add_u32 v{24 + j}, s27, v59")
        e(f"s_sub_u32 s27, s26, {j}")
        e("s_and_b32 s27, s27, 3")
        e("s_lshl_b32 s27, s27, 12")
        e(f"s_add_u32 s27, s27, {RS}")
        e(f"v_add_u32 v{36 + j}, s27, v16")
    e("v_lshrrev_b32 v60, 4, v1")
    e("v_lshrrev_b32 v61, 5, v1")
    e("v_bfe_u32 v62, v1, 2, 2")
    e("v_and_b32 v63, 3, v1")
    e("v_and_b32 v64, 1, v60")
    e("v_lshlrev_b32 v64, 1, v64")
    e("v_lshrrev_b32 v65, 1, v63")
    e("v_add_u32 v64, v64, v65")
    e("v_lshl_or_b32 v65, v62, 2, v61")
    e("v_xor_b32 v64, v64, v65")
    e("v_lshlrev_b32 v64, 4, v64")
    e("v_and_b32 v65, 1, v63")
    e("v_lshl_add_u32 v64, v65, 3, v64")
    e("v_lshl_add_u32 v65, v61, 2, v62")
    e("v_lshl_add_u32 v64, v65, 10, v64")
    e("s_lshl_b32 s27, s26, 8")
    e("v_add_u32 v64, s27, v64")
    for cc in range(4):
        for v in range(2):
            e(f"v_xor_b32 v{40 + 2 * cc + v}, {64 * cc + 32 * v}, v64")
            e(f"v_add_u32 v{48 + 2 * cc + v}, 0x10000, v{40 + 2 * cc + v}")
    e("v_lshlrev_b32 v18, 2, v56")
    e(f"v_add_u32 v18, {MX}, v18")
    e("s_lshl_b32 s27, s26, 7")
    e("v_add_u32 v17, s27, v18")
    e(f"v_add_u32 v20, {PX}, v16")
    e("s_lshl_b32 s27, s26, 11")
    e("v_add_u32 v19, s27, v20")
    e("v_mov_b32 v8, 0xff800000")
    e("v_mov_b32 v9, 0")
    e("s_waitcnt vmcnt(32)")
    e("s_barrier")
    prof_mark(0)
    a_tile(True)
    e("s_waitcnt vmcnt(0)")
    e("s_barrier")
    prof_mark(1)
    e("v_add_u32 v12, s41, v16")
    for i in range(32):
        e(f"v_xor_b32 v{13 + (i & 1)}, {fsw(i & 15) * 16}, v12")
        e(f"ds_write_b128 v{13 + (i & 1)}, {ar(128 + 4 * i, 4)} offset:{i * 1024}")
    e("s_waitcnt lgkmcnt(0)")
    e("s_barrier")
    a_tile(False)
    e("v_mov_b32 v13, v9")
    e("s_nop 1")
    e("v_permlane32_swap_b32 v9, v13")
    e("s_nop 1")
    e("v_add_f32 v9, v9, v13")
    e(f"ds_write_b32 v17, v9 offset:{LX - MX}")
    e("s_nop 7")
    e("s_barrier")
    e("v_and_b32 v11, 31, v1")
    e("v_lshrrev_b32 v12, 5, v1")
    e("s_movk_i32 s27, 2064")
    e("v_mul_lo_u32 v14, v11, s27")
    e("v_lshl_add_u32 v14, v12, 4, v14")
    e("s_lshl_b32 s28, s26, 9")
    e("v_add_u32 v14, s28, v14")
    for cc in range(4):
        for q in range(4):
            e(f"ds_write_b128 v14, {vr(192 + 16 * cc + 4 * q, 4)} offset:{cc * 128 + q * 32}")
    e("s_waitcnt lgkmcnt(0)")
    e("s_barrier")
    e("s_mul_i32 s28, s26, 16512")
    e("v_add_u32 v14, s28, v16")
    for i in range(8):
        for hf in range(2):
            e(f"ds_read_b128 {vr(192 + 8 * i + 4 * hf, 4)}, v14 offset:{2064 * i + 1024 * hf}")
    e("s_lshl_b32 s27, s36, 5")
    e("s_add_u32 s27, s27, s37")
    e("s_lshl_b32 s27, s27, 16")
    e("s_lshl_b32 s28, s26, 14")
    e("s_add_u32 s27, s27, s28")
    e(f"s_add_u32 s27, s27, {APART}")
    for i in range(8):
        for hf in range(2):
            n = 2 * i + hf
            if n and n % 4 == 0:
                e("s_add_u32 s27, s27, 4096")
            e(f"s_waitcnt lgkmcnt({15 - n})")
            e(f"buffer_store_dwordx4 {vr(192 + 8 * i + 4 * hf, 4)}, v16, s[20:23], s27 offen offset:{(n % 4) * 1024}{SC}")
    e("s_cmp_lg_u32 s26, 0")
    e("s_cbranch_scc1 KM_ASTAT_DONE")
    for w in range(4):
        e(f"ds_read_b32 v{12 + w}, v18 offset:{LX - MX + 128 * w}")
    e("s_waitcnt lgkmcnt(0)")
    e("v_add_f32 v12, v12, v13")
    e("v_add_f32 v14, v14, v15")
    e("v_add_f32 v9, v12, v14")
    e("v_lshlrev_b32 v14, 8, v11")
    e("s_lshl_b32 s27, s36, 13")
    e("s_lshl_b32 s28, s37, 3")
    e("s_add_u32 s27, s27, s28")
    e(f"s_add_u32 s27, s27, {ASTAT}")
    e(f"buffer_store_dwordx2 v[8:9], v14, s[20:23], s27 offen{SC}")
    lab("KM_ASTAT_DONE")
    e(f"s_mov_b32 s27, {C3}")
    signal([27])
    prof_mark(2)
    e("s_branch KM_BFIN")
    lab("KM_BONLY")
    e("s_sub_u32 s27, s25, 1")
    e("s_mul_i32 s27, s27, 163840")
    e("s_add_u32 s31, s30, s27")
    e("v_mov_b32 v8, 0xff800000")
    for j in range(9, 18):
        e(f"v_mov_b32 v{j}, 0")
    e("s_cmp_eq_u32 s25, 1")
    e("s_cbranch_scc1 KM_B6")
    e("s_add_u32 s31, s31, 32768")
    bloads(192, 224, 31)
    e("s_branch KM_B5")
    lab("KM_B6")
    bloads(128, 160, 31)
    e("s_add_u32 s31, s31, 32768")
    bloads(192, 224, 31)
    e("s_waitcnt vmcnt(16)")
    bcompute(128, 160)
    lab("KM_B5")
    for u in range(1, 6):
        if u < 5:
            e("s_add_u32 s31, s31, 32768")
            if (u + 1) & 1:
                bloads(192, 224, 31)
            else:
                bloads(128, 160, 31)
            e("s_waitcnt vmcnt(16)")
        else:
            e("s_waitcnt vmcnt(0)")
        if u < 4:
            prof_mark(u - 1)
        if u & 1:
            bcompute(192, 224)
        else:
            bcompute(128, 160)
    lab("KM_BFIN")
    srd(12, "A_wuv")
    e("s_lshr_b32 s52, s2, 6")
    e("s_and_b32 s53, s2, 63")
    e("s_and_b32 s54, s2, 31")
    e("s_bfe_u32 s55, s2, 0x10005")
    e("s_bfe_u32 s56, s2, 0x10006")
    e("s_bfe_u32 s57, s2, 0x30003")
    e("s_and_b32 s58, s2, 7")
    e("s_cmp_lg_u32 s56, 0")
    e("s_cbranch_scc1 KM_LB")
    srd(16, "A_wo")
    e("s_branch KM_LD")
    lab("KM_LB")
    srd(16, "B_wo")
    lab("KM_LD")
    e("v_lshrrev_b32 v44, 2, v0")
    e("v_and_b32 v45, 3, v0")
    e("v_lshlrev_b32 v46, 16, v44")
    e("v_lshl_add_u32 v46, v45, 4, v46")
    e("v_lshrrev_b32 v47, 3, v0")
    e("v_and_b32 v48, 7, v0")
    e("v_lshlrev_b32 v49, 14, v47")
    e("v_lshl_add_u32 v49, v48, 4, v49")
    e("s_waitcnt lgkmcnt(0)")
    srd_fin(12, "A_wuv"); srd_fin(16, "A_wo")
    e("s_lshl_b32 s28, s54, 8")
    e("s_lshl_b32 s29, s52, 6")
    e("s_add_u32 s28, s28, s29")
    for i in range(8):
        e(f"buffer_load_dwordx4 {vr(128 + 4 * i, 4)}, v46, s[12:15], s28 offen nt")
        e("s_add_u32 s28, s28, 8192")
    e("s_cmp_ge_u32 s2, 128")
    e("s_cbranch_scc1 KM_NOP4W")
    e("s_lshl_b32 s28, s57, 19")
    e("s_lshl_b32 s29, s58, 7")
    e("s_add_u32 s28, s28, s29")
    for i in range(16):
        if i and i % 4 == 0:
            e("s_add_u32 s28, s28, 4096")
        e(f"buffer_load_dwordx4 {vr(160 + 4 * i, 4)}, v49, s[16:19], s28 offen offset:{(i % 4) * 1024} nt")
    lab("KM_NOP4W")
    prof_mark(3)
    e("s_cmp_eq_u32 s25, 0")
    e("s_cbranch_scc1 KM_NOB")
    e("v_lshrrev_b32 v18, 4, v1")
    e("s_lshl_b32 s27, s26, 2")
    e("v_add_u32 v18, s27, v18")
    e("v_and_b32 v19, 15, v1")
    e("v_lshlrev_b32 v20, 9, v18")
    e("v_lshl_add_u32 v20, v19, 5, v20")
    e(f"v_add_u32 v20, {BO}, v20")
    e(f"ds_write_b128 v20, {vr(10, 4)}")
    e(f"ds_write_b128 v20, {vr(14, 4)} offset:16")
    e("v_lshlrev_b32 v21, 3, v18")
    e(f"v_add_u32 v21, {BS}, v21")
    e("ds_write_b64 v21, v[8:9]")
    e("s_waitcnt lgkmcnt(0)")
    e("s_barrier")
    e("s_cmp_ge_u32 s26, 2")
    e("s_cbranch_scc1 KM_BDONE")
    e(f"v_mov_b32 v21, {BS}")
    for s in range(16):
        e(f"ds_read_b64 {vr(64 + 2 * s, 2)}, v21 offset:{8 * s}")
    e("v_lshlrev_b32 v20, 2, v0")
    e(f"v_add_u32 v20, {BO}, v20")
    for s in range(16):
        e(f"ds_read_b32 v{96 + s}, v20 offset:{512 * s}")
    e("s_waitcnt lgkmcnt(0)")
    e("v_max3_f32 v8, v64, v66, v68")
    for s in range(3, 15, 2):
        e(f"v_max3_f32 v8, v8, v{64 + 2 * s}, v{66 + 2 * s}")
    e("v_max_f32 v8, v8, v94")
    for s in range(16):
        e(f"v_sub_f32 v{64 + 2 * s}, v{64 + 2 * s}, v8")
    for s in range(16):
        e(f"v_exp_f32 v{64 + 2 * s}, v{64 + 2 * s}")
    e("s_nop 0")
    e("v_mul_f32 v9, v64, v65")
    e("v_mul_f32 v10, v64, v96")
    for s in range(1, 16):
        e(f"v_fmac_f32 v9, v{64 + 2 * s}, v{65 + 2 * s}")
        e(f"v_fmac_f32 v10, v{64 + 2 * s}, v{96 + s}")
    e("s_lshl_b32 s27, s24, 2")
    e("s_add_u32 s27, s27, s25")
    e("s_lshl_b32 s28, s27, 9")
    e(f"s_add_u32 s28, s28, {BPART}")
    e("v_lshlrev_b32 v20, 2, v0")
    e(f"buffer_store_dword v10, v20, s[20:23], s28 offen{SC}")
    e("s_lshl_b32 s28, s27, 3")
    e(f"s_add_u32 s28, s28, {BSTAT}")
    e("v_mov_b32 v20, 0")
    e(f"buffer_store_dwordx2 v[8:9], v20, s[20:23], s28 offen{SC}")
    lab("KM_BDONE")
    e("s_bfe_u32 s27, s24, 0x30002")
    e("s_lshl_b32 s27, s27, 2")
    e(f"s_add_u32 s27, s27, {C5}")
    signal([27])
    lab("KM_NOB")
    prof_mark(4)
    poll(C3, 64)
    prof_mark(5)
    e("v_lshlrev_b32 v4, 3, v0")
    e("v_mov_b32 v5, 0")
    e("s_lshl_b32 s28, s53, 8")
    e(f"s_add_u32 s28, s28, {ASTAT}")
    for k in range(16):
        e(f"buffer_load_dwordx4 {vr(224 - 0 + 0 + 0, 4) if False else vr(64 + 4 * k, 4)}, v5, s[20:23], s28 offen offset:{16 * k}{SC}")
    e("s_lshl_b32 s28, s55, 21")
    e("s_lshl_b32 s29, s54, 11")
    e("s_add_u32 s28, s28, s29")
    e(f"s_add_u32 s28, s28, {APART}")
    for s in range(32):
        e(f"buffer_load_dwordx2 {ar(2 * s, 2)}, v4, s[20:23], s28 offen{SC}")
        e("s_add_u32 s28, s28, 0x10000")
    e("s_waitcnt vmcnt(32)")
    e("v_max3_f32 v5, v64, v66, v68")
    for s in range(3, 31, 2):
        e(f"v_max3_f32 v5, v5, v{64 + 2 * s}, v{66 + 2 * s}")
    e("v_max_f32 v5, v5, v126")
    for s in range(32):
        e(f"v_sub_f32 v{64 + 2 * s}, v{64 + 2 * s}, v5")
    for s in range(32):
        e(f"v_exp_f32 v{64 + 2 * s}, v{64 + 2 * s}")
    e("s_nop 0")
    e("v_mul_f32 v6, v64, v65")
    for s in range(1, 32):
        e(f"v_fmac_f32 v6, v{64 + 2 * s}, v{65 + 2 * s}")
    e("v_rcp_f32 v6, v6")
    e("v_mov_b32 v40, 0")
    e("v_mov_b32 v41, 0")
    for s in range(32):
        e(f"s_waitcnt vmcnt({31 - s})")
        e(f"v_accvgpr_read_b32 v42, a{2 * s}")
        e(f"v_accvgpr_read_b32 v43, a{2 * s + 1}")
        e(f"v_fmac_f32 v40, v{64 + 2 * s}, v42")
        e(f"v_fmac_f32 v41, v{64 + 2 * s}, v43")
    e("v_mul_f32 v40, v40, v6")
    e("v_mul_f32 v41, v41, v6")
    e("ds_write_b64 v4, v[40:41]")
    e("s_waitcnt lgkmcnt(0)")
    e("s_barrier")
    e("v_lshlrev_b32 v5, 5, v44")
    e(f"ds_read_b128 {vr(8, 4)}, v5")
    e(f"ds_read_b128 {vr(12, 4)}, v5 offset:16")
    for k in range(8):
        e(f"v_mov_b32 v{24 + k}, 0")
    e("s_waitcnt lgkmcnt(0)")
    for i in range(8):
        for k in range(4):
            unpack2(32 + 2 * k, 33 + 2 * k, 128 + 4 * i + k)
        for k in range(8):
            e(f"v_fmac_f32 v{24 + k}, v{32 + k}, v{8 + i}")
    e("v_lshlrev_b32 v5, 7, v44")
    e("v_lshl_add_u32 v5, v45, 5, v5")
    e(f"ds_write_b128 v5, {vr(24, 4)} offset:2048")
    e(f"ds_write_b128 v5, {vr(28, 4)} offset:2064")
    e("s_waitcnt lgkmcnt(0)")
    e("s_barrier")
    e("s_cmp_lg_u32 s26, 0")
    e("s_cbranch_scc1 KM_P3DONE")
    e("v_and_b32 v5, 31, v1")
    e("v_lshrrev_b32 v6, 5, v1")
    e("v_lshlrev_b32 v5, 2, v5")
    e("v_lshl_add_u32 v5, v6, 12, v5")
    for g in range(32):
        e(f"ds_read_b32 v{64 + g}, v5 offset:{2048 + 128 * g}")
    e("s_waitcnt lgkmcnt(0)")
    for n in (16, 8, 4, 2, 1):
        for g in range(n):
            e(f"v_add_f32 v{64 + g}, v{64 + g}, v{64 + n + g}")
    e("v_mov_b32 v65, v64")
    e("s_nop 1")
    e("v_permlane32_swap_b32 v64, v65")
    e("s_nop 1")
    e("v_add_f32 v64, v64, v65")
    e("v_cvt_pk_bf16_f32 v64, v64, v64")
    e("s_lshl_b32 s28, s53, 8")
    e("s_lshl_b32 s29, s52, 6")
    e("s_add_u32 s28, s28, s29")
    e(f"s_add_u32 s28, s28, {CTX}")
    e("v_and_b32 v5, 31, v1")
    e("v_lshlrev_b32 v5, 1, v5")
    e(f"buffer_store_short v64, v5, s[20:23], s28 offen{SC}")
    lab("KM_P3DONE")
    e("s_lshr_b32 s27, s54, 2")
    e("s_lshl_b32 s27, s27, 2")
    e(f"s_add_u32 s27, s27, {C4}")
    signal([27])
    e("s_cmp_ge_u32 s2, 128")
    e("s_cbranch_scc1 KM_END")
    srd(8, "out")
    e("s_lshl_b32 s27, s57, 2")
    e("s_mul_i32 s28, s56, 32")
    e("s_add_u32 s27, s27, s28")
    e(f"s_add_u32 s27, s27, {C4}")
    prof_mark(6)
    e("s_lshl_b32 s59, s56, 3")
    e("s_sub_u32 s59, 32, s59")
    poll(None, "s59", soff=27)
    prof_mark(7)
    e("v_lshrrev_b32 v4, 7, v0")
    e("v_and_b32 v5, 127, v0")
    e("v_lshlrev_b32 v6, 11, v4")
    e("v_lshl_add_u32 v7, v5, 2, v6")
    e("s_waitcnt lgkmcnt(0)")
    srd_fin(8, "out")
    e("s_cmp_lg_u32 s56, 0")
    e("s_cbranch_scc1 KM_VB")
    e("v_lshlrev_b32 v6, 13, v4")
    e("v_lshl_add_u32 v6, v5, 1, v6")
    e("s_lshl_b32 s29, s57, 10")
    e(f"s_add_u32 s29, s29, {CTX}")
    for hh in range(4):
        e(f"buffer_load_ushort v{8 + hh}, v6, s[20:23], s29 offen offset:{256 * hh}{SC}")
    e("s_waitcnt vmcnt(0)")
    for hh in range(4):
        e(f"v_lshlrev_b32 v{8 + hh}, 16, v{8 + hh}")
        e(f"ds_write_b32 v7, v{8 + hh} offset:{512 * hh}")
    e("s_branch KM_VD")
    lab("KM_VB")
    e("v_lshlrev_b32 v6, 10, v4")
    e("s_lshl_b32 s29, s57, 7")
    e(f"s_add_u32 s29, s29, {BSTAT}")
    for hh in range(4):
        e(f"buffer_load_dwordx2 {vr(10 + 8 * hh, 2)}, v6, s[20:23], s29 offen offset:{32 * hh + 8}{SC}")
        e(f"buffer_load_dwordx4 {vr(12 + 8 * hh, 4)}, v6, s[20:23], s29 offen offset:{32 * hh + 16}{SC}")
    e("v_lshlrev_b32 v6, 16, v4")
    e("v_lshl_add_u32 v6, v5, 2, v6")
    e("s_lshl_b32 s29, s57, 13")
    e(f"s_add_u32 s29, s29, {BPART}")
    for hh in range(4):
        for r in range(1, 4):
            if hh == 2 and r == 1:
                e("s_add_u32 s29, s29, 4096")
            e(f"buffer_load_dword v{64 + 4 * hh + r}, v6, s[20:23], s29 offen offset:{(hh % 2) * 2048 + 512 * r}{SC}")
    e("s_waitcnt vmcnt(0)")
    for hh in range(4):
        b0 = 8 + 8 * hh
        e(f"v_max3_f32 v56, v{b0 + 2}, v{b0 + 4}, v{b0 + 6}")
        for r in range(1, 4):
            e(f"v_sub_f32 v{b0 + 2 * r}, v{b0 + 2 * r}, v56")
        for r in range(1, 4):
            e(f"v_exp_f32 v{b0 + 2 * r}, v{b0 + 2 * r}")
        e("s_nop 0")
        e(f"v_mul_f32 v57, v{b0 + 2}, v{b0 + 3}")
        e(f"v_mul_f32 v58, v{b0 + 2}, v{64 + 4 * hh + 1}")
        for r in range(2, 4):
            e(f"v_fmac_f32 v57, v{b0 + 2 * r}, v{b0 + 2 * r + 1}")
            e(f"v_fmac_f32 v58, v{b0 + 2 * r}, v{64 + 4 * hh + r}")
        e("v_rcp_f32 v57, v57")
        e("s_nop 0")
        e("v_mul_f32 v58, v58, v57")
        e("v_cvt_pk_bf16_f32 v58, v58, v58")
        e("v_lshlrev_b32 v58, 16, v58")
        e(f"ds_write_b32 v7, v58 offset:{512 * hh}")
    lab("KM_VD")
    e("s_waitcnt lgkmcnt(0)")
    e("s_barrier")
    e("v_lshlrev_b32 v6, 6, v47")
    for b in range(2):
        for k in range(4):
            e(f"ds_read_b128 {vr(8 + 16 * b + 4 * k, 4)}, v6 offset:{2048 * b + 16 * k}")
    for k in range(16):
        e(f"v_mov_b32 v{64 + k}, 0")
    e("s_waitcnt vmcnt(0) lgkmcnt(0)")
    for i in range(16):
        for k in range(4):
            unpack2(56 + 2 * k, 57 + 2 * k, 160 + 4 * i + k)
        for k in range(8):
            e(f"v_fmac_f32 v{64 + k}, v{56 + k}, v{8 + i}")
            e(f"v_fmac_f32 v{72 + k}, v{56 + k}, v{24 + i}")
    e("v_lshlrev_b32 v6, 9, v47")
    e("v_lshl_add_u32 v6, v48, 5, v6")
    e(f"ds_write_b128 v6, {vr(64, 4)} offset:4096")
    e(f"ds_write_b128 v6, {vr(68, 4)} offset:4112")
    e(f"ds_write_b128 v6, {vr(72, 4)} offset:4352")
    e(f"ds_write_b128 v6, {vr(76, 4)} offset:4368")
    e("s_waitcnt lgkmcnt(0)")
    e("s_barrier")
    e("s_cmp_ge_u32 s26, 2")
    e("s_cbranch_scc1 KM_END")
    e("v_lshlrev_b32 v6, 2, v0")
    for g in range(32):
        e(f"ds_read_b32 v{64 + g}, v6 offset:{4096 + 512 * g}")
    e("s_waitcnt lgkmcnt(0)")
    for n in (16, 8, 4, 2, 1):
        for g in range(n):
            e(f"v_add_f32 v{64 + g}, v{64 + g}, v{64 + n + g}")
    e("v_lshlrev_b32 v5, 2, v1")
    e("s_lshl_b32 s28, s56, 15")
    e("s_lshl_b32 s29, s26, 11")
    e("s_add_u32 s28, s28, s29")
    e("s_lshl_b32 s29, s58, 8")
    e("s_add_u32 s28, s28, s29")
    e(f"s_add_u32 s28, s28, {OPART}")
    e("s_lshl_b32 s29, s57, 12")
    e("s_add_u32 s29, s29, s28")
    e(f"buffer_store_dword v64, v5, s[20:23], s29 offen{SC}")
    e("s_waitcnt vmcnt(0)")
    e("s_lshl_b32 s30, s56, 3")
    e("s_add_u32 s30, s30, s58")
    e("s_lshl_b32 s30, s30, 1")
    e("s_add_u32 s30, s30, s26")
    e("s_and_b32 s31, s30, 3")
    e("s_lshl_b32 s31, s31, 3")
    e("s_lshr_b32 s30, s30, 2")
    e("s_lshl_b32 s30, s30, 2")
    e(f"s_add_u32 s30, s30, {C6}")
    e("s_lshl_b32 s32, 1, s31")
    e("v_mov_b32 v8, s32")
    e("v_mov_b32 v9, 0")
    e("s_mov_b64 s[46:47], exec")
    e("s_mov_b64 exec, 1")
    e("buffer_atomic_add v8, v9, s[48:51], s30 offen sc0 sc1")
    e("s_waitcnt vmcnt(0)")
    e("s_mov_b64 exec, s[46:47]")
    e("v_readfirstlane_b32 s32, v8")
    e("s_lshr_b32 s32, s32, s31")
    e("s_and_b32 s32, s32, 0xff")
    e("s_cmp_lg_u32 s32, 7")
    e("s_cbranch_scc1 KM_END")
    for r in range(8):
        e(f"buffer_load_dword v{64 + r}, v5, s[20:23], s28 offen{SC}")
        e("s_add_u32 s28, s28, 4096")
    e("s_waitcnt vmcnt(0)")
    for r in range(1, 8):
        e(f"v_add_f32 v64, v64, v{64 + r}")
    e("v_cvt_pk_bf16_f32 v64, v64, v64")
    e("v_lshrrev_b32 v5, 1, v5")
    e("s_lshl_b32 s28, s26, 11")
    e("s_lshl_b32 s29, s56, 10")
    e("s_add_u32 s28, s28, s29")
    e("s_lshl_b32 s29, s58, 7")
    e("s_add_u32 s28, s28, s29")
    e("buffer_store_short v64, v5, s[8:11], s28 offen")
    lab("KM_END")
    e("s_endpgm")
    kernel_desc(L, 512, 256)
    return f"; @launch kernel={L} grid=(256,1,1) block=(256,1,1) lds={KM_LDS}"


LAUNCHES = []


def main():
    LAUNCHES.append(k1())
    LAUNCHES.append(km())
    head = open(f"cdna_kernels/{NAME}.s.ref").read().split("; Override launch")[0]
    txt = head + "\n".join(LAUNCHES) + "\n"
    txt += '.amdgcn_target "amdgcn-amd-amdhsa--gfx950"\n.text\n'
    txt += "\n".join(out) + "\n"
    txt += '.section .rodata,"a"\n' + "\n".join(descs) + "\n"
    path = sys.argv[1] if len(sys.argv) > 1 else f"cdna_kernels/{NAME}.s"
    open(path, "w").write(txt)


if __name__ == "__main__":
    main()
```

```python
import sys

NAME = "concat_heads__compressed_kv_cla__sliding_block_cached__decode"

KA = dict(A_x=0, A_ckv=8, A_wq=16, A_wuk=24, A_wuv=32, A_wo=40, B_x=48, B_k=56, B_v=64,
          B_wq=72, B_wo=80, out=88, dbg=96, ws=104)
SZ = dict(A_x=2048, A_ckv=16777216, A_wq=4194304, A_wuk=4194304, A_wuv=4194304, A_wo=4194304,
          B_x=2048, B_k=134217728, B_v=134217728, B_wq=4194304, B_wo=4194304, out=4096, dbg=256,
          ws=536870912)

QA_HI = 0x00000
QA_LO = 0x10000
QB = 0x20000
ASTAT = 0x30000
BPART = 0x40000
BSTAT = 0x60000
CTX = 0x70000
OPART = 0x80000
APART = 0x100000

SCALE_BITS = 0x3DB504F3
LOG2E_BITS = 0x3FB8AA3B

out = []
import os
DEBUG = bool(os.environ.get('DEBUG'))
PROF = bool(os.environ.get('PROF'))
PROFBASE = 0x800000


def prof_start():
    if PROF:
        e("s_memrealtime s[90:91]")


def prof_mark(slot, t=21):
    if PROF:
        e("s_memrealtime s[92:93]")
        e("s_waitcnt lgkmcnt(0)")
        e("s_sub_u32 s92, s92, s90")
        e(f"v_mov_b32 v{t}, s92")
        e("s_lshl_b32 s94, s2, 7")
        e(f"s_add_u32 s94, s94, {PROFBASE + prof_kernel[0] * 0x10000 + slot * 4}")
        e(f"v_lshrrev_b32 v{t+1}, 6, v0")
        e(f"v_lshlrev_b32 v{t+1}, 5, v{t+1}")
        e(f"buffer_store_dword v{t}, v{t+1}, s[20:23], s94 offen")


prof_kernel = [0]


def e(s):
    out.append("    " + s)


def lab(s):
    out.append(s + ":")


def srd(dst, name):
    e(f"s_load_dwordx2 s[{dst}:{dst+1}], s[0:1], {KA[name]}")


def srd_fin(dst, name):
    e(f"s_mov_b32 s{dst+2}, {SZ[name]}")
    e(f"s_mov_b32 s{dst+3}, 0x20000")


def vr(a, n):
    return f"v[{a}:{a+n-1}]"


def ar(a, n):
    return f"a[{a}:{a+n-1}]"


def kernel_header(label):
    out.append(f".globl {label}")
    out.append(".p2align 8")
    out.append(f".type {label},@function")
    lab(label)


descs = []


def kernel_desc(label, vgpr, accum, sgpr=102):
    descs.append(f""".p2align 6
.amdhsa_kernel {label}
  .amdhsa_next_free_vgpr {vgpr}
  .amdhsa_next_free_sgpr {sgpr}
  .amdhsa_accum_offset {accum}
  .amdhsa_group_segment_fixed_size 0
  .amdhsa_kernarg_size 112
  .amdhsa_user_sgpr_count 2
  .amdhsa_user_sgpr_kernarg_segment_ptr 1
  .amdhsa_system_sgpr_workgroup_id_x 1
.end_amdhsa_kernel""")


def unpack2(dlo, dhi, src):
    e(f"v_lshlrev_b32 v{dlo}, 16, v{src}")
    e(f"v_and_b32 v{dhi}, 0xffff0000, v{src}")


def gemv_rows(nrows, wbase, xbase0, xbase1, acc, tmp, xt, vm_after):
    for i in range(nrows):
        e(f"s_waitcnt vmcnt({nrows - 1 - i + vm_after})")
        if i % 2 == 0:
            e(f"v_lshlrev_b32 v{xt}, 16, v{xbase0 + i // 2}")
            e(f"v_lshlrev_b32 v{xt+1}, 16, v{xbase1 + i // 2}")
        else:
            e(f"v_and_b32 v{xt}, 0xffff0000, v{xbase0 + i // 2}")
            e(f"v_and_b32 v{xt+1}, 0xffff0000, v{xbase1 + i // 2}")
        for k in range(4):
            unpack2(tmp + 2 * k, tmp + 2 * k + 1, wbase + 4 * i + k)
        for k in range(8):
            e(f"v_fmac_f32 v{acc + k}, v{tmp + k}, v{xt}")
            e(f"v_fmac_f32 v{acc + 8 + k}, v{tmp + k}, v{xt+1}")


def k1():
    L = "k1_kernel"
    kernel_header(L)
    e("s_cmp_ge_u32 s2, 192")
    e("s_cbranch_scc1 K1_END")
    e("s_cmp_ge_u32 s2, 128")
    e("s_cbranch_scc1 K1_B")
    srd(8, "A_x"); srd(12, "A_wq"); srd(16, "A_wuk"); srd(20, "ws")
    e("s_and_b32 s24, s2, 31")
    e("s_lshr_b32 s25, s2, 5")
    e("v_and_b32 v1, 15, v0")
    e("v_lshrrev_b32 v2, 4, v0")
    e("v_lshlrev_b32 v3, 18, v2")
    e("v_lshl_add_u32 v3, v1, 4, v3")
    e("v_lshlrev_b32 v4, 6, v2")
    e("v_lshlrev_b32 v5, 13, v2")
    e("v_lshl_add_u32 v5, v1, 4, v5")
    e("s_lshl_b32 s26, s24, 8")
    e("s_waitcnt lgkmcnt(0)")
    srd_fin(8, "A_x"); srd_fin(12, "A_wq"); srd_fin(16, "A_wuk"); srd_fin(20, "ws")
    for b in range(2):
        for k in range(4):
            e(f"buffer_load_dwordx4 {vr(8 + 16 * b + 4 * k, 4)}, v4, s[8:11], 0 offen offset:{1024 * b + 16 * k}")
    e("s_mov_b32 s27, s26")
    for i in range(32):
        e(f"buffer_load_dwordx4 {vr(40 + 4 * i, 4)}, v3, s[12:15], s27 offen nt")
        e("s_add_u32 s27, s27, 8192")
    e("s_lshl_b32 s27, s25, 20")
    e("s_add_u32 s27, s27, s26")
    for i in range(8):
        e(f"buffer_load_dwordx4 {vr(168 + 4 * i, 4)}, v5, s[16:19], s27 offen nt")
        e("s_add_u32 s27, s27, 0x20000")
    for k in range(16):
        e(f"v_mov_b32 v{200 + k}, 0")
    gemv_rows(32, 40, 8, 24, 200, 218, 216, 8)
    e("v_lshlrev_b32 v6, 10, v2")
    e("v_lshl_add_u32 v6, v1, 5, v6")
    e(f"ds_write_b128 v6, {vr(200, 4)}")
    e(f"ds_write_b128 v6, {vr(204, 4)} offset:16")
    e(f"ds_write_b128 v6, {vr(208, 4)} offset:512")
    e(f"ds_write_b128 v6, {vr(212, 4)} offset:528")
    e("s_waitcnt lgkmcnt(0)")
    e("s_barrier")
    e("v_lshlrev_b32 v6, 2, v0")
    for g in range(16):
        e(f"ds_read_b32 v{8 + g}, v6 offset:{1024 * g}")
    e("s_waitcnt lgkmcnt(0)")
    for g in range(1, 16):
        e(f"v_add_f32 v8, v8, v{8 + g}")
    e("v_cvt_pk_bf16_f32 v8, v8, v8")
    e("v_lshlrev_b32 v6, 1, v0")
    e("ds_write_b16 v6, v8 offset:16384")
    e("s_waitcnt lgkmcnt(0)")
    e("s_barrier")
    e("v_lshlrev_b32 v6, 4, v1")
    e(f"ds_read_b128 {vr(8, 4)}, v6 offset:16384")
    e(f"ds_read_b128 {vr(12, 4)}, v6 offset:16640")
    e("s_waitcnt vmcnt(0) lgkmcnt(0)")
    for k in range(4):
        for i in range(8):
            for b in range(2):
                d = 24 + 2 * i + b
                c = "0" if k == 0 else f"v{d}"
                e(f"v_dot2_f32_bf16 v{d}, v{168 + 4 * i + k}, v{8 + 4 * b + k}, {c}")
    e("s_nop 3")
    for sh in (8, 4, 2, 1):
        for d in range(24, 40):
            e(f"v_add_f32_dpp v{d}, v{d}, v{d} row_ror:{sh} row_mask:0xf bank_mask:0xf")
        e("s_nop 1")
    e("v_lshlrev_b32 v6, 2, v2")
    for i in range(8):
        for b in range(2):
            e(f"ds_write_b32 v6, v{24 + 2 * i + b} offset:{16896 + 512 * b + 64 * i}")
    e("s_waitcnt lgkmcnt(0)")
    e("s_barrier")
    e("v_cmp_gt_u32 vcc, 32, v0")
    e("s_and_saveexec_b64 s[28:29], vcc")
    e("s_cbranch_execz K1_END")
    e("v_lshlrev_b32 v6, 5, v0")
    e(f"ds_read_b128 {vr(8, 4)}, v6 offset:16896")
    e(f"ds_read_b128 {vr(12, 4)}, v6 offset:16912")
    e("s_waitcnt lgkmcnt(0)")
    for k in range(4):
        a, b_ = 8 + 2 * k, 9 + 2 * k
        e(f"v_cvt_pk_bf16_f32 v{16 + k}, v{a}, v{b_}")
        unpack2(24, 25, 16 + k)
        e(f"v_sub_f32 v24, v{a}, v24")
        e(f"v_sub_f32 v25, v{b_}, v25")
        e(f"v_cvt_pk_bf16_f32 v{20 + k}, v24, v25")
    e("v_lshrrev_b32 v6, 4, v0")
    e("v_and_b32 v7, 15, v0")
    e("v_lshrrev_b32 v24, 1, v7")
    e("v_and_b32 v25, 1, v7")
    e("v_lshlrev_b32 v6, 15, v6")
    e("v_lshl_add_u32 v6, v24, 10, v6")
    e("v_lshl_add_u32 v6, v25, 9, v6")
    e("s_lshl_b32 s27, s25, 13")
    e("s_lshl_b32 s28, s24, 4")
    e("s_add_u32 s27, s27, s28")
    e(f"buffer_store_dwordx4 {vr(16, 4)}, v6, s[20:23], s27 offen")
    e(f"s_add_u32 s27, s27, {QA_LO}")
    e(f"buffer_store_dwordx4 {vr(20, 4)}, v6, s[20:23], s27 offen")
    e("s_branch K1_END")
    lab("K1_B")
    srd(8, "B_x"); srd(12, "B_wq"); srd(20, "ws")
    e("s_sub_u32 s3, s2, 128")
    e("s_and_b32 s24, s3, 31")
    e("s_lshr_b32 s25, s3, 5")
    e("v_and_b32 v1, 7, v0")
    e("v_lshrrev_b32 v2, 3, v0")
    e("v_lshlrev_b32 v3, 17, v2")
    e("v_lshl_add_u32 v3, v1, 4, v3")
    e("v_lshlrev_b32 v4, 5, v2")
    e("s_lshl_b32 s26, s24, 8")
    e("s_lshl_b32 s27, s25, 7")
    e("s_add_u32 s26, s26, s27")
    e("s_waitcnt lgkmcnt(0)")
    srd_fin(8, "B_x"); srd_fin(12, "B_wq"); srd_fin(20, "ws")
    for b in range(2):
        for k in range(2):
            e(f"buffer_load_dwordx4 {vr(8 + 8 * b + 4 * k, 4)}, v4, s[8:11], 0 offen offset:{1024 * b + 16 * k}")
    e("s_mov_b32 s27, s26")
    for i in range(16):
        e(f"buffer_load_dwordx4 {vr(40 + 4 * i, 4)}, v3, s[12:15], s27 offen nt")
        e("s_add_u32 s27, s27, 8192")
    for k in range(16):
        e(f"v_mov_b32 v{200 + k}, 0")
    gemv_rows(16, 40, 8, 16, 200, 218, 216, 0)
    e("v_lshlrev_b32 v6, 9, v2")
    e("v_lshl_add_u32 v6, v1, 5, v6")
    e(f"ds_write_b128 v6, {vr(200, 4)}")
    e(f"ds_write_b128 v6, {vr(204, 4)} offset:16")
    e(f"ds_write_b128 v6, {vr(208, 4)} offset:256")
    e(f"ds_write_b128 v6, {vr(212, 4)} offset:272")
    e("s_waitcnt lgkmcnt(0)")
    e("s_barrier")
    e("v_cmp_gt_u32 vcc, 128, v0")
    e("s_and_saveexec_b64 s[28:29], vcc")
    e("s_cbranch_execz K1_END")
    e("v_lshlrev_b32 v6, 2, v0")
    for g in range(32):
        e(f"ds_read_b32 v{8 + g}, v6 offset:{512 * g}")
    e("s_waitcnt lgkmcnt(0)")
    for g in range(1, 32):
        e(f"v_add_f32 v8, v8, v{8 + g}")
    e("v_cvt_pk_bf16_f32 v8, v8, v8")
    e("v_lshrrev_b32 v6, 6, v0")
    e("v_and_b32 v7, 63, v0")
    e("v_lshlrev_b32 v6, 13, v6")
    e("v_lshl_add_u32 v6, v7, 1, v6")
    e(f"s_add_u32 s27, s26, {QB}")
    e("buffer_store_short v8, v6, s[20:23], s27 offen")
    lab("K1_END")
    e("s_endpgm")
    kernel_desc(L, 232, 232)
    return f"; @launch kernel={L} grid=(192,1,1) block=(256,1,1) lds=18432"


MX = 131072
LX = 131584
PX = 132096
BO = 140288
RS = PX
BS = BO + 8192
KM_LDS = BS + 128
C3 = 132
C4 = 136
C5 = 168
C6 = 200
SC = " sc1"


def fsw(r):
    return ((r & 3) << 2) | ((r >> 2) & 3)


def bloads(K, V, soff):
    for (base, srdn) in ((K, 12), (V, 16)):
        for i in range(8):
            va = 6 if i < 4 else 7
            e(f"buffer_load_dwordx4 {vr(base + 4 * i, 4)}, v{va}, s[{srdn}:{srdn+3}], s{soff} offen offset:{(i % 4) * 1024} nt")


def round_scale(a, b, t):
    e(f"v_cvt_pk_bf16_f32 v{t}, v{a}, v{b}")
    unpack2(a, b, t)
    e(f"v_mul_f32 v{a}, s34, v{a}")
    e(f"v_mul_f32 v{b}, s34, v{b}")
    e(f"v_cvt_pk_bf16_f32 v{t}, v{a}, v{b}")
    unpack2(a, b, t)
    e(f"v_mul_f32 v{a}, s35, v{a}")
    e(f"v_mul_f32 v{b}, s35, v{b}")


def bcompute(K, V):
    for k in range(4):
        for i in range(8):
            c = "0" if k == 0 else f"v{18+i}"
            e(f"v_dot2_f32_bf16 v{18+i}, v{K + 4*i + k}, v{2+k}, {c}")
    for sh in (8, 4, 2, 1):
        for i in range(8):
            e(f"v_add_f32_dpp v{18+i}, v{18+i}, v{18+i} row_ror:{sh} row_mask:0xf bank_mask:0xf")
    for i in range(0, 8, 2):
        round_scale(18 + i, 19 + i, 26)
    e("v_max3_f32 v26, v18, v19, v20")
    e("v_max3_f32 v26, v26, v21, v22")
    e("v_max3_f32 v26, v26, v23, v24")
    e("v_max3_f32 v26, v26, v25, v8")
    e("v_sub_f32 v27, v8, v26")
    e("v_exp_f32 v27, v27")
    e("v_mov_b32 v8, v26")
    for i in range(8):
        e(f"v_sub_f32 v{18+i}, v{18+i}, v26")
    for i in range(8):
        e(f"v_exp_f32 v{18+i}, v{18+i}")
    e("v_mul_f32 v9, v9, v27")
    for j in range(8):
        e(f"v_mul_f32 v{10+j}, v{10+j}, v27")
    for i in range(8):
        e(f"v_add_f32 v9, v9, v{18+i}")
    for i in range(8):
        for k in range(4):
            unpack2(34 + 2 * k, 35 + 2 * k, V + 4 * i + k)
        for j in range(8):
            e(f"v_fmac_f32 v{10+j}, v{34+j}, v{18+i}")


def dma_tile():
    for i in range(32):
        if i % 4 == 0:
            e(f"s_add_u32 m0, s41, {i * 1024}")
            e(f"s_add_u32 s42, s40, {i * 1024}")
        e(f"v_xor_b32 v11, {fsw(i & 15) * 16}, v16")
        e(f"buffer_load_dwordx4 v11, s[8:11], s42 offen offset:{(i % 4) * 1024} nt lds")


npoll = [0]


def poll(off, target, soff=None):
    n = npoll[0]
    npoll[0] += 1
    e("s_cmp_lg_u32 s26, 0")
    e(f"s_cbranch_scc1 POLL_DONE{n}")
    e("v_mov_b32 v22, 0")
    e("s_mov_b32 s44, 0x40000")
    if soff is None:
        e(f"s_mov_b32 s45, {off}")
        soff = 45
    lab(f"POLL{n}")
    e(f"buffer_load_dword v21, v22, s[48:51], s{soff} offen{SC}")
    e("s_waitcnt vmcnt(0)")
    e("v_readfirstlane_b32 s43, v21")
    e(f"s_cmp_ge_u32 s43, {target}")
    e(f"s_cbranch_scc1 POLL_DONE{n}")
    e("s_sleep 4")
    e("s_sub_u32 s44, s44, 1")
    e("s_cmp_lg_u32 s44, 0")
    e(f"s_cbranch_scc1 POLL{n}")
    lab(f"POLL_DONE{n}")
    e("s_barrier")


def signal(soffs):
    n = npoll[0]
    npoll[0] += 1
    e("s_waitcnt vmcnt(0)")
    e("s_barrier")
    e("s_cmp_lg_u32 s26, 0")
    e(f"s_cbranch_scc1 SIG_DONE{n}")
    e("v_mov_b32 v21, 1")
    e("v_mov_b32 v22, 0")
    e("s_mov_b64 s[46:47], exec")
    e("s_mov_b64 exec, 1")
    for so in soffs:
        e(f"buffer_atomic_add v21, v22, s[48:51], s{so} offen sc1")
    e("s_mov_b64 exec, s[46:47]")
    lab(f"SIG_DONE{n}")


def a_tile(first):
    seq = [(j, k) for j in range(4) for k in range(8)]

    def sread(n):
        j, k = seq[n]
        t = 22 + (n & 1)
        e(f"v_add_u32 v{t}, v{24 + j}, v{28 + k}")
        e(f"ds_read_b128 {vr(72 + 4 * (n % 8), 4)}, v{t}")
    for n in range(8):
        sread(n)
    for n in range(32):
        j, k = seq[n]
        e(f"s_waitcnt lgkmcnt({min(7, 31 - n)})")
        f = vr(72 + 4 * (n % 8), 4)
        acc = ar(64 + 16 * j, 16)
        c = "0" if k == 0 else acc
        e(f"v_mfma_f32_32x32x16_bf16 {acc}, {f}, {ar(4 * k, 4)}, {c}")
        e(f"v_mfma_f32_32x32x16_bf16 {acc}, {f}, {ar(32 + 4 * k, 4)}, {acc}")
        if n + 8 < 32:
            sread(n + 8)
    e("s_nop 15")
    for i in range(16):
        e(f"v_accvgpr_read_b32 v{56 + i}, a{64 + i}")
    for j in range(1, 4):
        for q in range(4):
            e(f"ds_write_b128 v36, {ar(64 + 16 * j + 4 * q, 4)} offset:{1024 * q}")
        e("s_waitcnt lgkmcnt(0)")
        e("s_barrier")
        for q in range(4):
            e(f"ds_read_b128 {vr(72 + 4 * q, 4)}, v{36 + j} offset:{1024 * q}")
        e("s_waitcnt lgkmcnt(0)")
        if j < 3:
            e("s_barrier")
        for i in range(16):
            e(f"v_add_f32 v{56 + i}, v{56 + i}, v{72 + i}")
    for i in range(0, 16, 2):
        round_scale(56 + i, 57 + i, 11)
    e("v_max3_f32 v12, v56, v57, v58")
    for i in range(59, 71, 2):
        e(f"v_max3_f32 v12, v12, v{i}, v{i+1}")
    e("v_max_f32 v12, v12, v71")
    e("v_mov_b32 v13, v12")
    e("s_nop 1")
    e("v_permlane32_swap_b32 v12, v13")
    e("s_nop 1")
    e("v_max_f32 v12, v12, v13")
    e("ds_write_b32 v17, v12")
    e("s_waitcnt lgkmcnt(0)")
    e("s_barrier")
    for w in range(4):
        e(f"ds_read_b32 v{12 + w}, v18 offset:{128 * w}")
    e("s_waitcnt lgkmcnt(0)")
    e("v_max3_f32 v12, v12, v13, v14")
    e("v_max3_f32 v12, v12, v15, v8")
    e("v_sub_f32 v10, v8, v12")
    e("v_exp_f32 v10, v10")
    e("v_mov_b32 v8, v12")
    for i in range(16):
        e(f"v_sub_f32 v{56+i}, v{56+i}, v12")
    for i in range(16):
        e(f"v_exp_f32 v{56+i}, v{56+i}")
    e("v_mul_f32 v9, v9, v10")
    for i in range(16):
        e(f"v_add_f32 v9, v9, v{56+i}")
    for i in range(8):
        e(f"v_cvt_pk_bf16_f32 v{96+i}, v{56+2*i}, v{57+2*i}")
    e(f"ds_write_b128 v19, {vr(96, 4)}")
    e(f"ds_write_b128 v19, {vr(100, 4)} offset:1024")
    e("s_waitcnt lgkmcnt(0)")
    e("s_barrier")
    for tu in range(8):
        e(f"ds_read_b128 {vr(64 + 4 * tu, 4)}, v20 offset:{(tu >> 1) * 2048 + (tu & 1) * 1024}")
    if not first:
        for i in range(64):
            e(f"v_mul_f32 v{192+i}, v{192+i}, v10")

    def trreads(tu):
        t, u = tu >> 1, tu & 1
        bufb = 96 + 16 * (tu & 1)
        for cc in range(4):
            for v in range(2):
                a = 40 + 8 * (t >> 1) + 2 * cc + v
                off = (32 * (t & 1) + 16 * u + 8 * v) * 1024
                e(f"ds_read_b64_tr_b16 {vr(bufb + 4 * cc + 2 * v, 2)}, v{a} offset:{off}")
    trreads(0)
    for tu in range(8):
        if tu + 1 < 8:
            trreads(tu + 1)
            e("s_waitcnt lgkmcnt(8)")
        else:
            e("s_waitcnt lgkmcnt(0)")
        bufb = 96 + 16 * (tu & 1)
        for cc in range(4):
            acc = vr(192 + 16 * cc, 16)
            c = "0" if (first and tu == 0) else acc
            e(f"v_mfma_f32_32x32x16_bf16 {acc}, {vr(bufb + 4 * cc, 4)}, {vr(64 + 4 * tu, 4)}, {c}")


def km():
    L = "km_kernel"
    kernel_header(L)
    e("s_cmp_ge_u32 s2, 256")
    e("s_cbranch_scc1 KM_END")
    prof_kernel[0] = 1
    prof_start()
    srd(8, "A_ckv"); srd(12, "B_k"); srd(16, "B_v"); srd(20, "ws"); srd(48, "dbg")
    e("s_and_b32 s3, s2, 7")
    e("s_lshr_b32 s4, s2, 3")
    e("s_lshr_b32 s5, s3, 2")
    e("s_lshl_b32 s24, s4, 1")
    e("s_or_b32 s24, s24, s5")
    e("s_add_u32 s25, s3, s4")
    e("s_and_b32 s25, s25, 3")
    e("v_and_b32 v1, 63, v0")
    e("v_lshrrev_b32 v2, 6, v0")
    e("s_nop 0")
    e("v_readfirstlane_b32 s26, v2")
    e(f"s_mov_b32 s34, {SCALE_BITS:#x}")
    e(f"s_mov_b32 s35, {LOG2E_BITS:#x}")
    e("v_lshlrev_b32 v16, 4, v1")
    e("s_lshl_b32 s27, s26, 13")
    e("v_add_u32 v6, s27, v16")
    e("v_add_u32 v7, 4096, v6")
    e("v_and_b32 v8, 15, v1")
    e("v_lshlrev_b32 v8, 4, v8")
    e("s_lshl_b32 s27, s24, 8")
    e(f"s_add_u32 s27, s27, {QB}")
    e("s_lshl_b32 s30, s24, 21")
    e("s_add_u32 s30, s30, 1572864")
    e("s_waitcnt lgkmcnt(0)")
    srd_fin(8, "A_ckv"); srd_fin(12, "B_k"); srd_fin(16, "B_v"); srd_fin(20, "ws"); srd_fin(48, "dbg")
    e(f"buffer_load_dwordx4 {vr(2, 4)}, v8, s[20:23], s27 offen")
    e("s_cmp_lg_u32 s25, 0")
    e("s_cbranch_scc1 KM_BONLY")
    e("s_lshr_b32 s36, s24, 5")
    e("s_and_b32 s37, s24, 31")
    e("s_lshl_b32 s40, s36, 23")
    e("s_lshl_b32 s27, s37, 18")
    e("s_add_u32 s40, s40, s27")
    e("s_lshl_b32 s41, s26, 15")
    e("s_add_u32 s40, s40, s41")
    e("s_lshl_b32 s27, s36, 15")
    e("s_lshl_b32 s28, s26, 13")
    e("s_add_u32 s27, s27, s28")
    for part in range(2):
        for s in range(8):
            if s % 4 == 0:
                e(f"s_add_u32 s28, s27, {part * QA_LO + s * 1024}")
            e(f"buffer_load_dwordx4 {ar(32 * part + 4 * s, 4)}, v16, s[20:23], s28 offen offset:{(s % 4) * 1024}")
    dma_tile()
    e("s_add_u32 s40, s40, 0x20000")
    for i in range(32):
        if i % 4 == 0:
            e(f"s_add_u32 s42, s40, {i * 1024}")
        e(f"buffer_load_dwordx4 {ar(128 + 4 * i, 4)}, v16, s[8:11], s42 offen offset:{(i % 4) * 1024} nt")
    e("v_and_b32 v56, 31, v1")
    e("v_lshrrev_b32 v57, 5, v1")
    e("v_and_b32 v58, 3, v1")
    e("v_lshlrev_b32 v58, 2, v58")
    e("v_bfe_u32 v59, v1, 2, 2")
    e("v_or_b32 v58, v58, v59")
    e("v_xor_b32 v58, v58, v57")
    e("v_lshlrev_b32 v58, 4, v58")
    for k in range(8):
        e(f"v_xor_b32 v{28 + k}, {32 * k}, v58")
    e("v_lshlrev_b32 v59, 10, v56")
    e("s_lshl_b32 s27, s26, 8")
    e("v_add_u32 v59, s27, v59")
    for j in range(4):
        e(f"s_add_u32 s27, s26, {j}")
        e("s_and_b32 s27, s27, 3")
        e("s_lshl_b32 s27, s27, 15")
        e(f"v_add_u32 v{24 + j}, s27, v59")
        e(f"s_sub_u32 s27, s26, {j}")
        e("s_and_b32 s27, s27, 3")
        e("s_lshl_b32 s27, s27, 12")
        e(f"s_add_u32 s27, s27, {RS}")
        e(f"v_add_u32 v{36 + j}, s27, v16")
    e("v_lshrrev_b32 v60, 4, v1")
    e("v_lshrrev_b32 v61, 5, v1")
    e("v_bfe_u32 v62, v1, 2, 2")
    e("v_and_b32 v63, 3, v1")
    e("v_and_b32 v64, 1, v60")
    e("v_lshlrev_b32 v64, 1, v64")
    e("v_lshrrev_b32 v65, 1, v63")
    e("v_add_u32 v64, v64, v65")
    e("v_lshl_or_b32 v65, v62, 2, v61")
    e("v_xor_b32 v64, v64, v65")
    e("v_lshlrev_b32 v64, 4, v64")
    e("v_and_b32 v65, 1, v63")
    e("v_lshl_add_u32 v64, v65, 3, v64")
    e("v_lshl_add_u32 v65, v61, 2, v62")
    e("v_lshl_add_u32 v64, v65, 10, v64")
    e("s_lshl_b32 s27, s26, 8")
    e("v_add_u32 v64, s27, v64")
    for cc in range(4):
        for v in range(2):
            e(f"v_xor_b32 v{40 + 2 * cc + v}, {64 * cc + 32 * v}, v64")
            e(f"v_add_u32 v{48 + 2 * cc + v}, 0x10000, v{40 + 2 * cc + v}")
    e("v_lshlrev_b32 v18, 2, v56")
    e(f"v_add_u32 v18, {MX}, v18")
    e("s_lshl_b32 s27, s26, 7")
    e("v_add_u32 v17, s27, v18")
    e(f"v_add_u32 v20, {PX}, v16")
    e("s_lshl_b32 s27, s26, 11")
    e("v_add_u32 v19, s27, v20")
    e("v_mov_b32 v8, 0xff800000")
    e("v_mov_b32 v9, 0")
    e("s_waitcnt vmcnt(32)")
    e("s_barrier")
    prof_mark(0)
    a_tile(True)
    e("s_waitcnt vmcnt(0)")
    e("s_barrier")
    prof_mark(1)
    e("v_add_u32 v12, s41, v16")
    for i in range(32):
        e(f"v_xor_b32 v{13 + (i & 1)}, {fsw(i & 15) * 16}, v12")
        e(f"ds_write_b128 v{13 + (i & 1)}, {ar(128 + 4 * i, 4)} offset:{i * 1024}")
    e("s_waitcnt lgkmcnt(0)")
    e("s_barrier")
    a_tile(False)
    e("v_mov_b32 v13, v9")
    e("s_nop 1")
    e("v_permlane32_swap_b32 v9, v13")
    e("s_nop 1")
    e("v_add_f32 v9, v9, v13")
    e(f"ds_write_b32 v17, v9 offset:{LX - MX}")
    e("s_nop 7")
    e("s_barrier")
    e("v_and_b32 v11, 31, v1")
    e("v_lshrrev_b32 v12, 5, v1")
    e("s_movk_i32 s27, 2064")
    e("v_mul_lo_u32 v14, v11, s27")
    e("v_lshl_add_u32 v14, v12, 4, v14")
    e("s_lshl_b32 s28, s26, 9")
    e("v_add_u32 v14, s28, v14")
    for cc in range(4):
        for q in range(4):
            e(f"ds_write_b128 v14, {vr(192 + 16 * cc + 4 * q, 4)} offset:{cc * 128 + q * 32}")
    e("s_waitcnt lgkmcnt(0)")
    e("s_barrier")
    e("s_mul_i32 s28, s26, 16512")
    e("v_add_u32 v14, s28, v16")
    for i in range(8):
        for hf in range(2):
            e(f"ds_read_b128 {vr(192 + 8 * i + 4 * hf, 4)}, v14 offset:{2064 * i + 1024 * hf}")
    e("s_lshl_b32 s27, s36, 5")
    e("s_add_u32 s27, s27, s37")
    e("s_lshl_b32 s27, s27, 16")
    e("s_lshl_b32 s28, s26, 14")
    e("s_add_u32 s27, s27, s28")
    e(f"s_add_u32 s27, s27, {APART}")
    for i in range(8):
        for hf in range(2):
            n = 2 * i + hf
            if n and n % 4 == 0:
                e("s_add_u32 s27, s27, 4096")
            e(f"s_waitcnt lgkmcnt({15 - n})")
            e(f"buffer_store_dwordx4 {vr(192 + 8 * i + 4 * hf, 4)}, v16, s[20:23], s27 offen offset:{(n % 4) * 1024}")
    e("s_cmp_lg_u32 s26, 0")
    e("s_cbranch_scc1 KM_ASTAT_DONE")
    for w in range(4):
        e(f"ds_read_b32 v{12 + w}, v18 offset:{LX - MX + 128 * w}")
    e("s_waitcnt lgkmcnt(0)")
    e("v_add_f32 v12, v12, v13")
    e("v_add_f32 v14, v14, v15")
    e("v_add_f32 v9, v12, v14")
    e("v_lshlrev_b32 v14, 8, v11")
    e("s_lshl_b32 s27, s36, 13")
    e("s_lshl_b32 s28, s37, 3")
    e("s_add_u32 s27, s27, s28")
    e(f"s_add_u32 s27, s27, {ASTAT}")
    e(f"buffer_store_dwordx2 v[8:9], v14, s[20:23], s27 offen")
    lab("KM_ASTAT_DONE")
    prof_mark(2)
    e("s_branch KM_END")
    lab("KM_BONLY")
    e("s_sub_u32 s27, s25, 1")
    e("s_mul_i32 s27, s27, 163840")
    e("s_add_u32 s31, s30, s27")
    e("v_mov_b32 v8, 0xff800000")
    for j in range(9, 18):
        e(f"v_mov_b32 v{j}, 0")
    e("s_cmp_eq_u32 s25, 1")
    e("s_cbranch_scc1 KM_B6")
    e("s_add_u32 s31, s31, 32768")
    bloads(192, 224, 31)
    e("s_branch KM_B5")
    lab("KM_B6")
    bloads(128, 160, 31)
    e("s_add_u32 s31, s31, 32768")
    bloads(192, 224, 31)
    e("s_waitcnt vmcnt(16)")
    bcompute(128, 160)
    lab("KM_B5")
    for u in range(1, 6):
        if u < 5:
            e("s_add_u32 s31, s31, 32768")
            if (u + 1) & 1:
                bloads(192, 224, 31)
            else:
                bloads(128, 160, 31)
            e("s_waitcnt vmcnt(16)")
        else:
            e("s_waitcnt vmcnt(0)")
        if u < 4:
            prof_mark(u - 1)
        if u & 1:
            bcompute(192, 224)
        else:
            bcompute(128, 160)
    lab("KM_BFIN")
    prof_mark(3)
    e("v_lshrrev_b32 v18, 4, v1")
    e("s_lshl_b32 s27, s26, 2")
    e("v_add_u32 v18, s27, v18")
    e("v_and_b32 v19, 15, v1")
    e("v_lshlrev_b32 v20, 9, v18")
    e("v_lshl_add_u32 v20, v19, 5, v20")
    e(f"v_add_u32 v20, {BO}, v20")
    e(f"ds_write_b128 v20, {vr(10, 4)}")
    e(f"ds_write_b128 v20, {vr(14, 4)} offset:16")
    e("v_lshlrev_b32 v21, 3, v18")
    e(f"v_add_u32 v21, {BS}, v21")
    e("ds_write_b64 v21, v[8:9]")
    e("s_waitcnt lgkmcnt(0)")
    e("s_barrier")
    e("s_cmp_ge_u32 s26, 2")
    e("s_cbranch_scc1 KM_BDONE")
    e(f"v_mov_b32 v21, {BS}")
    for s in range(16):
        e(f"ds_read_b64 {vr(64 + 2 * s, 2)}, v21 offset:{8 * s}")
    e("v_lshlrev_b32 v20, 2, v0")
    e(f"v_add_u32 v20, {BO}, v20")
    for s in range(16):
        e(f"ds_read_b32 v{96 + s}, v20 offset:{512 * s}")
    e("s_waitcnt lgkmcnt(0)")
    e("v_max3_f32 v8, v64, v66, v68")
    for s in range(3, 15, 2):
        e(f"v_max3_f32 v8, v8, v{64 + 2 * s}, v{66 + 2 * s}")
    e("v_max_f32 v8, v8, v94")
    for s in range(16):
        e(f"v_sub_f32 v{64 + 2 * s}, v{64 + 2 * s}, v8")
    for s in range(16):
        e(f"v_exp_f32 v{64 + 2 * s}, v{64 + 2 * s}")
    e("s_nop 0")
    e("v_mul_f32 v9, v64, v65")
    e("v_mul_f32 v10, v64, v96")
    for s in range(1, 16):
        e(f"v_fmac_f32 v9, v{64 + 2 * s}, v{65 + 2 * s}")
        e(f"v_fmac_f32 v10, v{64 + 2 * s}, v{96 + s}")
    e("s_lshl_b32 s27, s24, 2")
    e("s_add_u32 s27, s27, s25")
    e("s_lshl_b32 s28, s27, 9")
    e(f"s_add_u32 s28, s28, {BPART}")
    e("v_lshlrev_b32 v20, 2, v0")
    e(f"buffer_store_dword v10, v20, s[20:23], s28 offen")
    e("s_lshl_b32 s28, s27, 3")
    e(f"s_add_u32 s28, s28, {BSTAT}")
    e("v_mov_b32 v20, 0")
    e(f"buffer_store_dwordx2 v[8:9], v20, s[20:23], s28 offen")
    lab("KM_BDONE")
    lab("KM_END")
    e("s_endpgm")
    kernel_desc(L, 512, 256)
    return f"; @launch kernel={L} grid=(256,1,1) block=(256,1,1) lds={KM_LDS}"


def k34():
    L = "k34_kernel"
    kernel_header(L)
    e("s_cmp_ge_u32 s2, 256")
    e("s_cbranch_scc1 K34_END")
    prof_kernel[0] = 2
    prof_start()
    srd(20, "ws"); srd(48, "dbg")
    e("v_and_b32 v1, 63, v0")
    e("v_lshrrev_b32 v2, 6, v0")
    e("s_nop 0")
    e("v_readfirstlane_b32 s26, v2")
    srd(12, "A_wuv")
    e("s_lshr_b32 s52, s2, 6")
    e("s_and_b32 s53, s2, 63")
    e("s_and_b32 s54, s2, 31")
    e("s_bfe_u32 s55, s2, 0x10005")
    e("s_bfe_u32 s56, s2, 0x10006")
    e("s_bfe_u32 s57, s2, 0x30003")
    e("s_and_b32 s58, s2, 7")
    e("s_cmp_lg_u32 s56, 0")
    e("s_cbranch_scc1 KM_LB")
    srd(16, "A_wo")
    e("s_branch KM_LD")
    lab("KM_LB")
    srd(16, "B_wo")
    lab("KM_LD")
    e("v_lshrrev_b32 v44, 2, v0")
    e("v_and_b32 v45, 3, v0")
    e("v_lshlrev_b32 v46, 16, v44")
    e("v_lshl_add_u32 v46, v45, 4, v46")
    e("v_lshrrev_b32 v47, 3, v0")
    e("v_and_b32 v48, 7, v0")
    e("v_lshlrev_b32 v49, 14, v47")
    e("v_lshl_add_u32 v49, v48, 4, v49")
    e("s_waitcnt lgkmcnt(0)")
    srd_fin(12, "A_wuv"); srd_fin(16, "A_wo"); srd_fin(20, "ws"); srd_fin(48, "dbg")
    e("s_lshl_b32 s28, s54, 8")
    e("s_lshl_b32 s29, s52, 6")
    e("s_add_u32 s28, s28, s29")
    for i in range(8):
        e(f"buffer_load_dwordx4 {vr(128 + 4 * i, 4)}, v46, s[12:15], s28 offen nt")
        e("s_add_u32 s28, s28, 8192")
    e("s_cmp_ge_u32 s2, 128")
    e("s_cbranch_scc1 KM_NOP4W")
    e("s_lshl_b32 s28, s57, 19")
    e("s_lshl_b32 s29, s58, 7")
    e("s_add_u32 s28, s28, s29")
    for i in range(16):
        if i and i % 4 == 0:
            e("s_add_u32 s28, s28, 4096")
        e(f"buffer_load_dwordx4 {vr(160 + 4 * i, 4)}, v49, s[16:19], s28 offen offset:{(i % 4) * 1024} nt")
    lab("KM_NOP4W")
    e("v_lshlrev_b32 v4, 3, v0")
    e("v_mov_b32 v5, 0")
    e("s_lshl_b32 s28, s53, 8")
    e(f"s_add_u32 s28, s28, {ASTAT}")
    for k in range(16):
        e(f"buffer_load_dwordx4 {vr(224 - 0 + 0 + 0, 4) if False else vr(64 + 4 * k, 4)}, v5, s[20:23], s28 offen offset:{16 * k}")
    e("s_lshl_b32 s28, s55, 21")
    e("s_lshl_b32 s29, s54, 11")
    e("s_add_u32 s28, s28, s29")
    e(f"s_add_u32 s28, s28, {APART}")
    for s in range(32):
        e(f"buffer_load_dwordx2 {ar(2 * s, 2)}, v4, s[20:23], s28 offen")
        e("s_add_u32 s28, s28, 0x10000")
    e("s_waitcnt vmcnt(32)")
    e("v_max3_f32 v5, v64, v66, v68")
    for s in range(3, 31, 2):
        e(f"v_max3_f32 v5, v5, v{64 + 2 * s}, v{66 + 2 * s}")
    e("v_max_f32 v5, v5, v126")
    for s in range(32):
        e(f"v_sub_f32 v{64 + 2 * s}, v{64 + 2 * s}, v5")
    for s in range(32):
        e(f"v_exp_f32 v{64 + 2 * s}, v{64 + 2 * s}")
    e("s_nop 0")
    e("v_mul_f32 v6, v64, v65")
    for s in range(1, 32):
        e(f"v_fmac_f32 v6, v{64 + 2 * s}, v{65 + 2 * s}")
    e("v_rcp_f32 v6, v6")
    e("v_mov_b32 v40, 0")
    e("v_mov_b32 v41, 0")
    for s in range(32):
        e(f"s_waitcnt vmcnt({31 - s})")
        e(f"v_accvgpr_read_b32 v42, a{2 * s}")
        e(f"v_accvgpr_read_b32 v43, a{2 * s + 1}")
        e(f"v_fmac_f32 v40, v{64 + 2 * s}, v42")
        e(f"v_fmac_f32 v41, v{64 + 2 * s}, v43")
    e("v_mul_f32 v40, v40, v6")
    e("v_mul_f32 v41, v41, v6")
    e("ds_write_b64 v4, v[40:41]")
    e("s_waitcnt lgkmcnt(0)")
    e("s_barrier")
    e("v_lshlrev_b32 v5, 5, v44")
    e(f"ds_read_b128 {vr(8, 4)}, v5")
    e(f"ds_read_b128 {vr(12, 4)}, v5 offset:16")
    for k in range(8):
        e(f"v_mov_b32 v{24 + k}, 0")
    e("s_waitcnt lgkmcnt(0)")
    for i in range(8):
        for k in range(4):
            unpack2(32 + 2 * k, 33 + 2 * k, 128 + 4 * i + k)
        for k in range(8):
            e(f"v_fmac_f32 v{24 + k}, v{32 + k}, v{8 + i}")
    e("v_lshlrev_b32 v5, 7, v44")
    e("v_lshl_add_u32 v5, v45, 5, v5")
    e(f"ds_write_b128 v5, {vr(24, 4)} offset:2048")
    e(f"ds_write_b128 v5, {vr(28, 4)} offset:2064")
    e("s_waitcnt lgkmcnt(0)")
    e("s_barrier")
    e("s_cmp_lg_u32 s26, 0")
    e("s_cbranch_scc1 KM_P3DONE")
    e("v_and_b32 v5, 31, v1")
    e("v_lshrrev_b32 v6, 5, v1")
    e("v_lshlrev_b32 v5, 2, v5")
    e("v_lshl_add_u32 v5, v6, 12, v5")
    for g in range(32):
        e(f"ds_read_b32 v{64 + g}, v5 offset:{2048 + 128 * g}")
    e("s_waitcnt lgkmcnt(0)")
    for n in (16, 8, 4, 2, 1):
        for g in range(n):
            e(f"v_add_f32 v{64 + g}, v{64 + g}, v{64 + n + g}")
    e("v_mov_b32 v65, v64")
    e("s_nop 1")
    e("v_permlane32_swap_b32 v64, v65")
    e("s_nop 1")
    e("v_add_f32 v64, v64, v65")
    e("v_cvt_pk_bf16_f32 v64, v64, v64")
    e("s_lshl_b32 s28, s53, 8")
    e("s_lshl_b32 s29, s52, 6")
    e("s_add_u32 s28, s28, s29")
    e(f"s_add_u32 s28, s28, {CTX}")
    e("v_and_b32 v5, 31, v1")
    e("v_lshlrev_b32 v5, 1, v5")
    e(f"buffer_store_short v64, v5, s[20:23], s28 offen{SC}")
    lab("KM_P3DONE")
    e("s_lshr_b32 s27, s54, 2")
    e("s_lshl_b32 s27, s27, 2")
    e(f"s_add_u32 s27, s27, {C4}")
    signal([27])
    e("s_cmp_ge_u32 s2, 128")
    e("s_cbranch_scc1 K34_END")
    srd(8, "out")
    e("s_lshl_b32 s27, s57, 2")
    e("s_mul_i32 s28, s56, 32")
    e("s_add_u32 s27, s27, s28")
    e(f"s_add_u32 s27, s27, {C4}")
    prof_mark(1)
    e("s_mov_b32 s59, 32")
    e("s_cmp_lg_u32 s56, 0")
    e("s_cselect_b32 s59, 0, s59")
    poll(None, "s59", soff=27)
    prof_mark(2)
    e("v_lshrrev_b32 v4, 7, v0")
    e("v_and_b32 v5, 127, v0")
    e("v_lshlrev_b32 v6, 11, v4")
    e("v_lshl_add_u32 v7, v5, 2, v6")
    e("s_waitcnt lgkmcnt(0)")
    srd_fin(8, "out")
    e("s_cmp_lg_u32 s56, 0")
    e("s_cbranch_scc1 KM_VB")
    e("v_lshlrev_b32 v6, 13, v4")
    e("v_lshl_add_u32 v6, v5, 1, v6")
    e("s_lshl_b32 s29, s57, 10")
    e(f"s_add_u32 s29, s29, {CTX}")
    for hh in range(4):
        e(f"buffer_load_ushort v{8 + hh}, v6, s[20:23], s29 offen offset:{256 * hh}{SC}")
    e("s_waitcnt vmcnt(0)")
    for hh in range(4):
        e(f"v_lshlrev_b32 v{8 + hh}, 16, v{8 + hh}")
        e(f"ds_write_b32 v7, v{8 + hh} offset:{512 * hh}")
    e("s_branch KM_VD")
    lab("KM_VB")
    e("v_lshlrev_b32 v6, 10, v4")
    e("s_lshl_b32 s29, s57, 7")
    e(f"s_add_u32 s29, s29, {BSTAT}")
    for hh in range(4):
        e(f"buffer_load_dwordx2 {vr(10 + 8 * hh, 2)}, v6, s[20:23], s29 offen offset:{32 * hh + 8}{SC}")
        e(f"buffer_load_dwordx4 {vr(12 + 8 * hh, 4)}, v6, s[20:23], s29 offen offset:{32 * hh + 16}{SC}")
    e("v_lshlrev_b32 v6, 16, v4")
    e("v_lshl_add_u32 v6, v5, 2, v6")
    e("s_lshl_b32 s29, s57, 13")
    e(f"s_add_u32 s29, s29, {BPART}")
    for hh in range(4):
        for r in range(1, 4):
            if hh == 2 and r == 1:
                e("s_add_u32 s29, s29, 4096")
            e(f"buffer_load_dword v{64 + 4 * hh + r}, v6, s[20:23], s29 offen offset:{(hh % 2) * 2048 + 512 * r}{SC}")
    e("s_waitcnt vmcnt(0)")
    for hh in range(4):
        b0 = 8 + 8 * hh
        e(f"v_max3_f32 v56, v{b0 + 2}, v{b0 + 4}, v{b0 + 6}")
        for r in range(1, 4):
            e(f"v_sub_f32 v{b0 + 2 * r}, v{b0 + 2 * r}, v56")
        for r in range(1, 4):
            e(f"v_exp_f32 v{b0 + 2 * r}, v{b0 + 2 * r}")
        e("s_nop 0")
        e(f"v_mul_f32 v57, v{b0 + 2}, v{b0 + 3}")
        e(f"v_mul_f32 v58, v{b0 + 2}, v{64 + 4 * hh + 1}")
        for r in range(2, 4):
            e(f"v_fmac_f32 v57, v{b0 + 2 * r}, v{b0 + 2 * r + 1}")
            e(f"v_fmac_f32 v58, v{b0 + 2 * r}, v{64 + 4 * hh + r}")
        e("v_rcp_f32 v57, v57")
        e("s_nop 0")
        e("v_mul_f32 v58, v58, v57")
        e("v_cvt_pk_bf16_f32 v58, v58, v58")
        e("v_lshlrev_b32 v58, 16, v58")
        e(f"ds_write_b32 v7, v58 offset:{512 * hh}")
    lab("KM_VD")
    e("s_waitcnt lgkmcnt(0)")
    e("s_barrier")
    e("v_lshlrev_b32 v6, 6, v47")
    for b in range(2):
        for k in range(4):
            e(f"ds_read_b128 {vr(8 + 16 * b + 4 * k, 4)}, v6 offset:{2048 * b + 16 * k}")
    for k in range(16):
        e(f"v_mov_b32 v{64 + k}, 0")
    e("s_waitcnt vmcnt(0) lgkmcnt(0)")
    for i in range(16):
        for k in range(4):
            unpack2(56 + 2 * k, 57 + 2 * k, 160 + 4 * i + k)
        for k in range(8):
            e(f"v_fmac_f32 v{64 + k}, v{56 + k}, v{8 + i}")
            e(f"v_fmac_f32 v{72 + k}, v{56 + k}, v{24 + i}")
    e("v_lshlrev_b32 v6, 9, v47")
    e("v_lshl_add_u32 v6, v48, 5, v6")
    e(f"ds_write_b128 v6, {vr(64, 4)} offset:4096")
    e(f"ds_write_b128 v6, {vr(68, 4)} offset:4112")
    e(f"ds_write_b128 v6, {vr(72, 4)} offset:4352")
    e(f"ds_write_b128 v6, {vr(76, 4)} offset:4368")
    e("s_waitcnt lgkmcnt(0)")
    e("s_barrier")
    e("s_cmp_ge_u32 s26, 2")
    e("s_cbranch_scc1 K34_END")
    e("v_lshlrev_b32 v6, 2, v0")
    for g in range(32):
        e(f"ds_read_b32 v{64 + g}, v6 offset:{4096 + 512 * g}")
    e("s_waitcnt lgkmcnt(0)")
    for n in (16, 8, 4, 2, 1):
        for g in range(n):
            e(f"v_add_f32 v{64 + g}, v{64 + g}, v{64 + n + g}")
    e("v_lshlrev_b32 v5, 2, v1")
    e("s_lshl_b32 s28, s56, 15")
    e("s_lshl_b32 s29, s26, 11")
    e("s_add_u32 s28, s28, s29")
    e("s_lshl_b32 s29, s58, 8")
    e("s_add_u32 s28, s28, s29")
    e(f"s_add_u32 s28, s28, {OPART}")
    e("s_lshl_b32 s29, s57, 12")
    e("s_add_u32 s29, s29, s28")
    e(f"buffer_store_dword v64, v5, s[20:23], s29 offen{SC}")
    e("s_waitcnt vmcnt(0)")
    e("s_lshl_b32 s30, s56, 3")
    e("s_add_u32 s30, s30, s58")
    e("s_lshl_b32 s30, s30, 1")
    e("s_add_u32 s30, s30, s26")
    e("s_and_b32 s31, s30, 3")
    e("s_lshl_b32 s31, s31, 3")
    e("s_lshr_b32 s30, s30, 2")
    e("s_lshl_b32 s30, s30, 2")
    e(f"s_add_u32 s30, s30, {C6}")
    e("s_lshl_b32 s32, 1, s31")
    e("v_mov_b32 v8, s32")
    e("v_mov_b32 v9, 0")
    e("s_mov_b64 s[46:47], exec")
    e("s_mov_b64 exec, 1")
    e("buffer_atomic_add v8, v9, s[48:51], s30 offen sc0 sc1")
    e("s_waitcnt vmcnt(0)")
    e("s_mov_b64 exec, s[46:47]")
    e("v_readfirstlane_b32 s32, v8")
    e("s_lshr_b32 s32, s32, s31")
    e("s_and_b32 s32, s32, 0xff")
    e("s_cmp_lg_u32 s32, 7")
    e("s_cbranch_scc1 K34_END")
    for r in range(8):
        e(f"buffer_load_dword v{64 + r}, v5, s[20:23], s28 offen{SC}")
        e("s_add_u32 s28, s28, 4096")
    e("s_waitcnt vmcnt(0)")
    for r in range(1, 8):
        e(f"v_add_f32 v64, v64, v{64 + r}")
    e("v_cvt_pk_bf16_f32 v64, v64, v64")
    e("v_lshrrev_b32 v5, 1, v5")
    e("s_lshl_b32 s28, s26, 11")
    e("s_lshl_b32 s29, s56, 10")
    e("s_add_u32 s28, s28, s29")
    e("s_lshl_b32 s29, s58, 7")
    e("s_add_u32 s28, s28, s29")
    e("buffer_store_short v64, v5, s[8:11], s28 offen")
    lab("K34_END")
    e("s_endpgm")
    kernel_desc(L, 320, 256)
    return f"; @launch kernel={L} grid=(256,1,1) block=(256,1,1) lds=20480"


LAUNCHES = []


def main():
    LAUNCHES.append(k1())
    LAUNCHES.append(km())
    LAUNCHES.append(k34())
    head = open(f"cdna_kernels/{NAME}.s.ref").read().split("; Override launch")[0]
    txt = head + "\n".join(LAUNCHES) + "\n"
    txt += '.amdgcn_target "amdgcn-amd-amdhsa--gfx950"\n.text\n'
    txt += "\n".join(out) + "\n"
    txt += '.section .rodata,"a"\n' + "\n".join(descs) + "\n"
    path = sys.argv[1] if len(sys.argv) > 1 else f"cdna_kernels/{NAME}.s"
    open(path, "w").write(txt)


if __name__ == "__main__":
    main()
```

```python
import sys

NAME = "concat_heads__compressed_kv_cla__sliding_block_cached__decode"

KA = dict(A_x=0, A_ckv=8, A_wq=16, A_wuk=24, A_wuv=32, A_wo=40, B_x=48, B_k=56, B_v=64,
          B_wq=72, B_wo=80, out=88, dbg=96, ws=104)
SZ = dict(A_x=2048, A_ckv=16777216, A_wq=4194304, A_wuk=4194304, A_wuv=4194304, A_wo=4194304,
          B_x=2048, B_k=134217728, B_v=134217728, B_wq=4194304, B_wo=4194304, out=4096, dbg=256,
          ws=536870912)

QA_HI = 0x00000
QA_LO = 0x10000
QB = 0x20000
ASTAT = 0x30000
BPART = 0x40000
BSTAT = 0x60000
CTX = 0x70000
OPART = 0x80000
APART = 0x100000

SCALE_BITS = 0x3DB504F3
LOG2E_BITS = 0x3FB8AA3B

out = []
import os
DEBUG = bool(os.environ.get('DEBUG'))
PROF = bool(os.environ.get('PROF'))
PROFBASE = 0x800000


def prof_start():
    if PROF:
        e("s_memrealtime s[90:91]")


def prof_mark(slot, t=21):
    if PROF:
        e("s_memrealtime s[92:93]")
        e("s_waitcnt lgkmcnt(0)")
        e("s_sub_u32 s92, s92, s90")
        e(f"v_mov_b32 v{t}, s92")
        e("s_lshl_b32 s94, s2, 7")
        e(f"s_add_u32 s94, s94, {PROFBASE + prof_kernel[0] * 0x10000 + slot * 4}")
        e(f"v_lshrrev_b32 v{t+1}, 6, v0")
        e(f"v_lshlrev_b32 v{t+1}, 5, v{t+1}")
        e(f"buffer_store_dword v{t}, v{t+1}, s[20:23], s94 offen")


prof_kernel = [0]


def e(s):
    out.append("    " + s)


def lab(s):
    out.append(s + ":")


def srd(dst, name):
    e(f"s_load_dwordx2 s[{dst}:{dst+1}], s[0:1], {KA[name]}")


def srd_fin(dst, name):
    e(f"s_mov_b32 s{dst+2}, {SZ[name]}")
    e(f"s_mov_b32 s{dst+3}, 0x20000")


def vr(a, n):
    return f"v[{a}:{a+n-1}]"


def ar(a, n):
    return f"a[{a}:{a+n-1}]"


def kernel_header(label):
    out.append(f".globl {label}")
    out.append(".p2align 8")
    out.append(f".type {label},@function")
    lab(label)


descs = []


def kernel_desc(label, vgpr, accum, sgpr=102):
    descs.append(f""".p2align 6
.amdhsa_kernel {label}
  .amdhsa_next_free_vgpr {vgpr}
  .amdhsa_next_free_sgpr {sgpr}
  .amdhsa_accum_offset {accum}
  .amdhsa_group_segment_fixed_size 0
  .amdhsa_kernarg_size 112
  .amdhsa_user_sgpr_count 2
  .amdhsa_user_sgpr_kernarg_segment_ptr 1
  .amdhsa_system_sgpr_workgroup_id_x 1
.end_amdhsa_kernel""")


def unpack2(dlo, dhi, src):
    e(f"v_lshlrev_b32 v{dlo}, 16, v{src}")
    e(f"v_and_b32 v{dhi}, 0xffff0000, v{src}")


def gemv_rows(nrows, wbase, xbase0, xbase1, acc, tmp, xt, vm_after):
    for i in range(nrows):
        e(f"s_waitcnt vmcnt({nrows - 1 - i + vm_after})")
        if i % 2 == 0:
            e(f"v_lshlrev_b32 v{xt}, 16, v{xbase0 + i // 2}")
            e(f"v_lshlrev_b32 v{xt+1}, 16, v{xbase1 + i // 2}")
        else:
            e(f"v_and_b32 v{xt}, 0xffff0000, v{xbase0 + i // 2}")
            e(f"v_and_b32 v{xt+1}, 0xffff0000, v{xbase1 + i // 2}")
        for k in range(4):
            unpack2(tmp + 2 * k, tmp + 2 * k + 1, wbase + 4 * i + k)
        for k in range(8):
            e(f"v_fmac_f32 v{acc + k}, v{tmp + k}, v{xt}")
            e(f"v_fmac_f32 v{acc + 8 + k}, v{tmp + k}, v{xt+1}")


def k1():
    L = "k1_kernel"
    kernel_header(L)
    e("s_cmp_ge_u32 s2, 192")
    e("s_cbranch_scc1 K1_END")
    e("s_cmp_ge_u32 s2, 128")
    e("s_cbranch_scc1 K1_B")
    srd(8, "A_x"); srd(12, "A_wq"); srd(16, "A_wuk"); srd(20, "ws")
    e("s_and_b32 s24, s2, 31")
    e("s_lshr_b32 s25, s2, 5")
    e("v_and_b32 v1, 15, v0")
    e("v_lshrrev_b32 v2, 4, v0")
    e("v_lshlrev_b32 v3, 18, v2")
    e("v_lshl_add_u32 v3, v1, 4, v3")
    e("v_lshlrev_b32 v4, 6, v2")
    e("v_lshlrev_b32 v5, 13, v2")
    e("v_lshl_add_u32 v5, v1, 4, v5")
    e("s_lshl_b32 s26, s24, 8")
    e("s_waitcnt lgkmcnt(0)")
    srd_fin(8, "A_x"); srd_fin(12, "A_wq"); srd_fin(16, "A_wuk"); srd_fin(20, "ws")
    for b in range(2):
        for k in range(4):
            e(f"buffer_load_dwordx4 {vr(8 + 16 * b + 4 * k, 4)}, v4, s[8:11], 0 offen offset:{1024 * b + 16 * k}")
    e("s_mov_b32 s27, s26")
    for i in range(32):
        e(f"buffer_load_dwordx4 {vr(40 + 4 * i, 4)}, v3, s[12:15], s27 offen nt")
        e("s_add_u32 s27, s27, 8192")
    e("s_lshl_b32 s27, s25, 20")
    e("s_add_u32 s27, s27, s26")
    for i in range(8):
        e(f"buffer_load_dwordx4 {vr(168 + 4 * i, 4)}, v5, s[16:19], s27 offen nt")
        e("s_add_u32 s27, s27, 0x20000")
    for k in range(16):
        e(f"v_mov_b32 v{200 + k}, 0")
    gemv_rows(32, 40, 8, 24, 200, 218, 216, 8)
    e("v_lshlrev_b32 v6, 10, v2")
    e("v_lshl_add_u32 v6, v1, 5, v6")
    e(f"ds_write_b128 v6, {vr(200, 4)}")
    e(f"ds_write_b128 v6, {vr(204, 4)} offset:16")
    e(f"ds_write_b128 v6, {vr(208, 4)} offset:512")
    e(f"ds_write_b128 v6, {vr(212, 4)} offset:528")
    e("s_waitcnt lgkmcnt(0)")
    e("s_barrier")
    e("v_lshlrev_b32 v6, 2, v0")
    for g in range(16):
        e(f"ds_read_b32 v{8 + g}, v6 offset:{1024 * g}")
    e("s_waitcnt lgkmcnt(0)")
    for g in range(1, 16):
        e(f"v_add_f32 v8, v8, v{8 + g}")
    e("v_cvt_pk_bf16_f32 v8, v8, v8")
    e("v_lshlrev_b32 v6, 1, v0")
    e("ds_write_b16 v6, v8 offset:16384")
    e("s_waitcnt lgkmcnt(0)")
    e("s_barrier")
    e("v_lshlrev_b32 v6, 4, v1")
    e(f"ds_read_b128 {vr(8, 4)}, v6 offset:16384")
    e(f"ds_read_b128 {vr(12, 4)}, v6 offset:16640")
    e("s_waitcnt vmcnt(0) lgkmcnt(0)")
    for k in range(4):
        for i in range(8):
            for b in range(2):
                d = 24 + 2 * i + b
                c = "0" if k == 0 else f"v{d}"
                e(f"v_dot2_f32_bf16 v{d}, v{168 + 4 * i + k}, v{8 + 4 * b + k}, {c}")
    e("s_nop 3")
    for sh in (8, 4, 2, 1):
        for d in range(24, 40):
            e(f"v_add_f32_dpp v{d}, v{d}, v{d} row_ror:{sh} row_mask:0xf bank_mask:0xf")
        e("s_nop 1")
    e("v_lshlrev_b32 v6, 2, v2")
    for i in range(8):
        for b in range(2):
            e(f"ds_write_b32 v6, v{24 + 2 * i + b} offset:{16896 + 512 * b + 64 * i}")
    e("s_waitcnt lgkmcnt(0)")
    e("s_barrier")
    e("v_cmp_gt_u32 vcc, 32, v0")
    e("s_and_saveexec_b64 s[28:29], vcc")
    e("s_cbranch_execz K1_END")
    e("v_lshlrev_b32 v6, 5, v0")
    e(f"ds_read_b128 {vr(8, 4)}, v6 offset:16896")
    e(f"ds_read_b128 {vr(12, 4)}, v6 offset:16912")
    e("s_waitcnt lgkmcnt(0)")
    for k in range(4):
        a, b_ = 8 + 2 * k, 9 + 2 * k
        e(f"v_cvt_pk_bf16_f32 v{16 + k}, v{a}, v{b_}")
        unpack2(24, 25, 16 + k)
        e(f"v_sub_f32 v24, v{a}, v24")
        e(f"v_sub_f32 v25, v{b_}, v25")
        e(f"v_cvt_pk_bf16_f32 v{20 + k}, v24, v25")
    e("v_lshrrev_b32 v6, 4, v0")
    e("v_and_b32 v7, 15, v0")
    e("v_lshrrev_b32 v24, 1, v7")
    e("v_and_b32 v25, 1, v7")
    e("v_lshlrev_b32 v6, 15, v6")
    e("v_lshl_add_u32 v6, v24, 10, v6")
    e("v_lshl_add_u32 v6, v25, 9, v6")
    e("s_lshl_b32 s27, s25, 13")
    e("s_lshl_b32 s28, s24, 4")
    e("s_add_u32 s27, s27, s28")
    e(f"buffer_store_dwordx4 {vr(16, 4)}, v6, s[20:23], s27 offen")
    e(f"s_add_u32 s27, s27, {QA_LO}")
    e(f"buffer_store_dwordx4 {vr(20, 4)}, v6, s[20:23], s27 offen")
    e("s_branch K1_END")
    lab("K1_B")
    srd(8, "B_x"); srd(12, "B_wq"); srd(20, "ws")
    e("s_sub_u32 s3, s2, 128")
    e("s_and_b32 s24, s3, 31")
    e("s_lshr_b32 s25, s3, 5")
    e("v_and_b32 v1, 7, v0")
    e("v_lshrrev_b32 v2, 3, v0")
    e("v_lshlrev_b32 v3, 17, v2")
    e("v_lshl_add_u32 v3, v1, 4, v3")
    e("v_lshlrev_b32 v4, 5, v2")
    e("s_lshl_b32 s26, s24, 8")
    e("s_lshl_b32 s27, s25, 7")
    e("s_add_u32 s26, s26, s27")
    e("s_waitcnt lgkmcnt(0)")
    srd_fin(8, "B_x"); srd_fin(12, "B_wq"); srd_fin(20, "ws")
    for b in range(2):
        for k in range(2):
            e(f"buffer_load_dwordx4 {vr(8 + 8 * b + 4 * k, 4)}, v4, s[8:11], 0 offen offset:{1024 * b + 16 * k}")
    e("s_mov_b32 s27, s26")
    for i in range(16):
        e(f"buffer_load_dwordx4 {vr(40 + 4 * i, 4)}, v3, s[12:15], s27 offen nt")
        e("s_add_u32 s27, s27, 8192")
    for k in range(16):
        e(f"v_mov_b32 v{200 + k}, 0")
    gemv_rows(16, 40, 8, 16, 200, 218, 216, 0)
    e("v_lshlrev_b32 v6, 9, v2")
    e("v_lshl_add_u32 v6, v1, 5, v6")
    e(f"ds_write_b128 v6, {vr(200, 4)}")
    e(f"ds_write_b128 v6, {vr(204, 4)} offset:16")
    e(f"ds_write_b128 v6, {vr(208, 4)} offset:256")
    e(f"ds_write_b128 v6, {vr(212, 4)} offset:272")
    e("s_waitcnt lgkmcnt(0)")
    e("s_barrier")
    e("v_cmp_gt_u32 vcc, 128, v0")
    e("s_and_saveexec_b64 s[28:29], vcc")
    e("s_cbranch_execz K1_END")
    e("v_lshlrev_b32 v6, 2, v0")
    for g in range(32):
        e(f"ds_read_b32 v{8 + g}, v6 offset:{512 * g}")
    e("s_waitcnt lgkmcnt(0)")
    for g in range(1, 32):
        e(f"v_add_f32 v8, v8, v{8 + g}")
    e("v_cvt_pk_bf16_f32 v8, v8, v8")
    e("v_lshrrev_b32 v6, 6, v0")
    e("v_and_b32 v7, 63, v0")
    e("v_lshlrev_b32 v6, 13, v6")
    e("v_lshl_add_u32 v6, v7, 1, v6")
    e(f"s_add_u32 s27, s26, {QB}")
    e("buffer_store_short v8, v6, s[20:23], s27 offen")
    lab("K1_END")
    e("s_endpgm")
    kernel_desc(L, 232, 232)
    return f"; @launch kernel={L} grid=(192,1,1) block=(256,1,1) lds=18432"


MX = 131072
LX = 131584
PX = 132096
BO = 140288
RS = PX
BS = BO + 8192
KM_LDS = BS + 128
C3 = 132
C4 = 136
C5 = 168
C6 = 200
SC = " sc1"


def fsw(r):
    return ((r & 3) << 2) | ((r >> 2) & 3)


def bloads(K, V, soff):
    for (base, srdn) in ((K, 12), (V, 16)):
        for i in range(8):
            va = 6 if i < 4 else 7
            e(f"buffer_load_dwordx4 {vr(base + 4 * i, 4)}, v{va}, s[{srdn}:{srdn+3}], s{soff} offen offset:{(i % 4) * 1024} nt")


def round_scale(a, b, t):
    e(f"v_cvt_pk_bf16_f32 v{t}, v{a}, v{b}")
    unpack2(a, b, t)
    e(f"v_mul_f32 v{a}, s34, v{a}")
    e(f"v_mul_f32 v{b}, s34, v{b}")
    e(f"v_cvt_pk_bf16_f32 v{t}, v{a}, v{b}")
    unpack2(a, b, t)
    e(f"v_mul_f32 v{a}, s35, v{a}")
    e(f"v_mul_f32 v{b}, s35, v{b}")


def bcompute(K, V):
    for k in range(4):
        for i in range(8):
            c = "0" if k == 0 else f"v{18+i}"
            e(f"v_dot2_f32_bf16 v{18+i}, v{K + 4*i + k}, v{2+k}, {c}")
    for sh in (8, 4, 2, 1):
        for i in range(8):
            e(f"v_add_f32_dpp v{18+i}, v{18+i}, v{18+i} row_ror:{sh} row_mask:0xf bank_mask:0xf")
    for i in range(0, 8, 2):
        round_scale(18 + i, 19 + i, 26)
    e("v_max3_f32 v26, v18, v19, v20")
    e("v_max3_f32 v26, v26, v21, v22")
    e("v_max3_f32 v26, v26, v23, v24")
    e("v_max3_f32 v26, v26, v25, v8")
    e("v_sub_f32 v27, v8, v26")
    e("v_exp_f32 v27, v27")
    e("v_mov_b32 v8, v26")
    for i in range(8):
        e(f"v_sub_f32 v{18+i}, v{18+i}, v26")
    for i in range(8):
        e(f"v_exp_f32 v{18+i}, v{18+i}")
    e("v_mul_f32 v9, v9, v27")
    for j in range(8):
        e(f"v_mul_f32 v{10+j}, v{10+j}, v27")
    for i in range(8):
        e(f"v_add_f32 v9, v9, v{18+i}")
    for i in range(8):
        for k in range(4):
            unpack2(34 + 2 * k, 35 + 2 * k, V + 4 * i + k)
        for j in range(8):
            e(f"v_fmac_f32 v{10+j}, v{34+j}, v{18+i}")


def dma_tile():
    for i in range(32):
        if i % 4 == 0:
            e(f"s_add_u32 m0, s41, {i * 1024}")
            e(f"s_add_u32 s42, s40, {i * 1024}")
        e(f"v_xor_b32 v11, {fsw(i & 15) * 16}, v16")
        e(f"buffer_load_dwordx4 v11, s[8:11], s42 offen offset:{(i % 4) * 1024} nt lds")


npoll = [0]


def poll(off, target, soff=None):
    n = npoll[0]
    npoll[0] += 1
    e("s_cmp_lg_u32 s26, 0")
    e(f"s_cbranch_scc1 POLL_DONE{n}")
    e("v_mov_b32 v22, 0")
    e("s_mov_b32 s44, 0x40000")
    if soff is None:
        e(f"s_mov_b32 s45, {off}")
        soff = 45
    lab(f"POLL{n}")
    e(f"buffer_load_dword v21, v22, s[48:51], s{soff} offen{SC}")
    e("s_waitcnt vmcnt(0)")
    e("v_readfirstlane_b32 s43, v21")
    e(f"s_cmp_ge_u32 s43, {target}")
    e(f"s_cbranch_scc1 POLL_DONE{n}")
    e("s_sleep 4")
    e("s_sub_u32 s44, s44, 1")
    e("s_cmp_lg_u32 s44, 0")
    e(f"s_cbranch_scc1 POLL{n}")
    lab(f"POLL_DONE{n}")
    e("s_barrier")


def signal(soffs):
    n = npoll[0]
    npoll[0] += 1
    e("s_waitcnt vmcnt(0)")
    e("s_barrier")
    e("s_cmp_lg_u32 s26, 0")
    e(f"s_cbranch_scc1 SIG_DONE{n}")
    e("v_mov_b32 v21, 1")
    e("v_mov_b32 v22, 0")
    e("s_mov_b64 s[46:47], exec")
    e("s_mov_b64 exec, 1")
    for so in soffs:
        e(f"buffer_atomic_add v21, v22, s[48:51], s{so} offen sc1")
    e("s_mov_b64 exec, s[46:47]")
    lab(f"SIG_DONE{n}")


def a_tile(first):
    seq = [(j, k) for j in range(4) for k in range(8)]

    def sread(n):
        j, k = seq[n]
        t = 22 + (n & 1)
        e(f"v_add_u32 v{t}, v{24 + j}, v{28 + k}")
        e(f"ds_read_b128 {vr(72 + 4 * (n % 8), 4)}, v{t}")
    for n in range(8):
        sread(n)
    for n in range(32):
        j, k = seq[n]
        e(f"s_waitcnt lgkmcnt({min(7, 31 - n)})")
        f = vr(72 + 4 * (n % 8), 4)
        acc = ar(64 + 16 * j, 16)
        c = "0" if k == 0 else acc
        e(f"v_mfma_f32_32x32x16_bf16 {acc}, {f}, {ar(4 * k, 4)}, {c}")
        e(f"v_mfma_f32_32x32x16_bf16 {acc}, {f}, {ar(32 + 4 * k, 4)}, {acc}")
        if n + 8 < 32:
            sread(n + 8)
    e("s_nop 15")
    for i in range(16):
        e(f"v_accvgpr_read_b32 v{56 + i}, a{64 + i}")
    for j in range(1, 4):
        for q in range(4):
            e(f"ds_write_b128 v36, {ar(64 + 16 * j + 4 * q, 4)} offset:{1024 * q}")
        e("s_waitcnt lgkmcnt(0)")
        e("s_barrier")
        for q in range(4):
            e(f"ds_read_b128 {vr(72 + 4 * q, 4)}, v{36 + j} offset:{1024 * q}")
        e("s_waitcnt lgkmcnt(0)")
        if j < 3:
            e("s_barrier")
        for i in range(16):
            e(f"v_add_f32 v{56 + i}, v{56 + i}, v{72 + i}")
    for i in range(0, 16, 2):
        round_scale(56 + i, 57 + i, 11)
    e("v_max3_f32 v12, v56, v57, v58")
    for i in range(59, 71, 2):
        e(f"v_max3_f32 v12, v12, v{i}, v{i+1}")
    e("v_max_f32 v12, v12, v71")
    e("v_mov_b32 v13, v12")
    e("s_nop 1")
    e("v_permlane32_swap_b32 v12, v13")
    e("s_nop 1")
    e("v_max_f32 v12, v12, v13")
    e("ds_write_b32 v17, v12")
    e("s_waitcnt lgkmcnt(0)")
    e("s_barrier")
    for w in range(4):
        e(f"ds_read_b32 v{12 + w}, v18 offset:{128 * w}")
    e("s_waitcnt lgkmcnt(0)")
    e("v_max3_f32 v12, v12, v13, v14")
    e("v_max3_f32 v12, v12, v15, v8")
    e("v_sub_f32 v10, v8, v12")
    e("v_exp_f32 v10, v10")
    e("v_mov_b32 v8, v12")
    for i in range(16):
        e(f"v_sub_f32 v{56+i}, v{56+i}, v12")
    for i in range(16):
        e(f"v_exp_f32 v{56+i}, v{56+i}")
    e("v_mul_f32 v9, v9, v10")
    for i in range(16):
        e(f"v_add_f32 v9, v9, v{56+i}")
    for i in range(8):
        e(f"v_cvt_pk_bf16_f32 v{96+i}, v{56+2*i}, v{57+2*i}")
    e(f"ds_write_b128 v19, {vr(96, 4)}")
    e(f"ds_write_b128 v19, {vr(100, 4)} offset:1024")
    e("s_waitcnt lgkmcnt(0)")
    e("s_barrier")
    for tu in range(8):
        e(f"ds_read_b128 {vr(64 + 4 * tu, 4)}, v20 offset:{(tu >> 1) * 2048 + (tu & 1) * 1024}")
    if not first:
        for i in range(64):
            e(f"v_mul_f32 v{192+i}, v{192+i}, v10")

    def trreads(tu):
        t, u = tu >> 1, tu & 1
        bufb = 96 + 16 * (tu & 1)
        for cc in range(4):
            for v in range(2):
                a = 40 + 8 * (t >> 1) + 2 * cc + v
                off = (32 * (t & 1) + 16 * u + 8 * v) * 1024
                e(f"ds_read_b64_tr_b16 {vr(bufb + 4 * cc + 2 * v, 2)}, v{a} offset:{off}")
    trreads(0)
    for tu in range(8):
        if tu + 1 < 8:
            trreads(tu + 1)
            e("s_waitcnt lgkmcnt(8)")
        else:
            e("s_waitcnt lgkmcnt(0)")
        bufb = 96 + 16 * (tu & 1)
        for cc in range(4):
            acc = vr(192 + 16 * cc, 16)
            c = "0" if (first and tu == 0) else acc
            e(f"v_mfma_f32_32x32x16_bf16 {acc}, {vr(bufb + 4 * cc, 4)}, {vr(64 + 4 * tu, 4)}, {c}")


def km():
    L = "km_kernel"
    kernel_header(L)
    e("s_cmp_ge_u32 s2, 256")
    e("s_cbranch_scc1 KM_END")
    prof_kernel[0] = 1
    prof_start()
    srd(8, "A_ckv"); srd(12, "B_k"); srd(16, "B_v"); srd(20, "ws"); srd(48, "dbg")
    e("s_and_b32 s3, s2, 7")
    e("s_lshr_b32 s4, s2, 3")
    e("s_lshr_b32 s5, s3, 2")
    e("s_lshl_b32 s24, s4, 1")
    e("s_or_b32 s24, s24, s5")
    e("s_add_u32 s25, s3, s4")
    e("s_and_b32 s25, s25, 3")
    e("v_and_b32 v1, 63, v0")
    e("v_lshrrev_b32 v2, 6, v0")
    e("s_nop 0")
    e("v_readfirstlane_b32 s26, v2")
    e(f"s_mov_b32 s34, {SCALE_BITS:#x}")
    e(f"s_mov_b32 s35, {LOG2E_BITS:#x}")
    e("v_lshlrev_b32 v16, 4, v1")
    e("s_lshl_b32 s27, s26, 13")
    e("v_add_u32 v6, s27, v16")
    e("v_add_u32 v7, 4096, v6")
    e("v_and_b32 v8, 15, v1")
    e("v_lshlrev_b32 v8, 4, v8")
    e("s_lshl_b32 s27, s24, 8")
    e(f"s_add_u32 s27, s27, {QB}")
    e("s_lshl_b32 s30, s24, 21")
    e("s_add_u32 s30, s30, 1572864")
    e("s_waitcnt lgkmcnt(0)")
    srd_fin(8, "A_ckv"); srd_fin(12, "B_k"); srd_fin(16, "B_v"); srd_fin(20, "ws"); srd_fin(48, "dbg")
    e(f"buffer_load_dwordx4 {vr(2, 4)}, v8, s[20:23], s27 offen")
    e("s_cmp_lg_u32 s25, 0")
    e("s_cbranch_scc1 KM_BONLY")
    e("s_lshr_b32 s36, s24, 5")
    e("s_and_b32 s37, s24, 31")
    e("s_lshl_b32 s40, s36, 23")
    e("s_lshl_b32 s27, s37, 18")
    e("s_add_u32 s40, s40, s27")
    e("s_lshl_b32 s41, s26, 15")
    e("s_add_u32 s40, s40, s41")
    e("s_lshl_b32 s27, s36, 15")
    e("s_lshl_b32 s28, s26, 13")
    e("s_add_u32 s27, s27, s28")
    for part in range(2):
        for s in range(8):
            if s % 4 == 0:
                e(f"s_add_u32 s28, s27, {part * QA_LO + s * 1024}")
            e(f"buffer_load_dwordx4 {ar(32 * part + 4 * s, 4)}, v16, s[20:23], s28 offen offset:{(s % 4) * 1024}")
    dma_tile()
    e("s_add_u32 s40, s40, 0x20000")
    for i in range(32):
        if i % 4 == 0:
            e(f"s_add_u32 s42, s40, {i * 1024}")
        e(f"buffer_load_dwordx4 {ar(128 + 4 * i, 4)}, v16, s[8:11], s42 offen offset:{(i % 4) * 1024} nt")
    e("v_and_b32 v56, 31, v1")
    e("v_lshrrev_b32 v57, 5, v1")
    e("v_and_b32 v58, 3, v1")
    e("v_lshlrev_b32 v58, 2, v58")
    e("v_bfe_u32 v59, v1, 2, 2")
    e("v_or_b32 v58, v58, v59")
    e("v_xor_b32 v58, v58, v57")
    e("v_lshlrev_b32 v58, 4, v58")
    for k in range(8):
        e(f"v_xor_b32 v{28 + k}, {32 * k}, v58")
    e("v_lshlrev_b32 v59, 10, v56")
    e("s_lshl_b32 s27, s26, 8")
    e("v_add_u32 v59, s27, v59")
    for j in range(4):
        e(f"s_add_u32 s27, s26, {j}")
        e("s_and_b32 s27, s27, 3")
        e("s_lshl_b32 s27, s27, 15")
        e(f"v_add_u32 v{24 + j}, s27, v59")
        e(f"s_sub_u32 s27, s26, {j}")
        e("s_and_b32 s27, s27, 3")
        e("s_lshl_b32 s27, s27, 12")
        e(f"s_add_u32 s27, s27, {RS}")
        e(f"v_add_u32 v{36 + j}, s27, v16")
    e("v_lshrrev_b32 v60, 4, v1")
    e("v_lshrrev_b32 v61, 5, v1")
    e("v_bfe_u32 v62, v1, 2, 2")
    e("v_and_b32 v63, 3, v1")
    e("v_and_b32 v64, 1, v60")
    e("v_lshlrev_b32 v64, 1, v64")
    e("v_lshrrev_b32 v65, 1, v63")
    e("v_add_u32 v64, v64, v65")
    e("v_lshl_or_b32 v65, v62, 2, v61")
    e("v_xor_b32 v64, v64, v65")
    e("v_lshlrev_b32 v64, 4, v64")
    e("v_and_b32 v65, 1, v63")
    e("v_lshl_add_u32 v64, v65, 3, v64")
    e("v_lshl_add_u32 v65, v61, 2, v62")
    e("v_lshl_add_u32 v64, v65, 10, v64")
    e("s_lshl_b32 s27, s26, 8")
    e("v_add_u32 v64, s27, v64")
    for cc in range(4):
        for v in range(2):
            e(f"v_xor_b32 v{40 + 2 * cc + v}, {64 * cc + 32 * v}, v64")
            e(f"v_add_u32 v{48 + 2 * cc + v}, 0x10000, v{40 + 2 * cc + v}")
    e("v_lshlrev_b32 v18, 2, v56")
    e(f"v_add_u32 v18, {MX}, v18")
    e("s_lshl_b32 s27, s26, 7")
    e("v_add_u32 v17, s27, v18")
    e(f"v_add_u32 v20, {PX}, v16")
    e("s_lshl_b32 s27, s26, 11")
    e("v_add_u32 v19, s27, v20")
    e("v_mov_b32 v8, 0xff800000")
    e("v_mov_b32 v9, 0")
    e("s_waitcnt vmcnt(32)")
    e("s_barrier")
    prof_mark(0)
    a_tile(True)
    e("s_waitcnt vmcnt(0)")
    e("s_barrier")
    prof_mark(1)
    e("v_add_u32 v12, s41, v16")
    for i in range(32):
        e(f"v_xor_b32 v{13 + (i & 1)}, {fsw(i & 15) * 16}, v12")
        e(f"ds_write_b128 v{13 + (i & 1)}, {ar(128 + 4 * i, 4)} offset:{i * 1024}")
    e("s_waitcnt lgkmcnt(0)")
    e("s_barrier")
    a_tile(False)
    e("v_mov_b32 v13, v9")
    e("s_nop 1")
    e("v_permlane32_swap_b32 v9, v13")
    e("s_nop 1")
    e("v_add_f32 v9, v9, v13")
    e(f"ds_write_b32 v17, v9 offset:{LX - MX}")
    e("s_nop 7")
    e("s_barrier")
    e("v_and_b32 v11, 31, v1")
    e("v_lshrrev_b32 v12, 5, v1")
    e("s_movk_i32 s27, 2064")
    e("v_mul_lo_u32 v14, v11, s27")
    e("v_lshl_add_u32 v14, v12, 4, v14")
    e("s_lshl_b32 s28, s26, 9")
    e("v_add_u32 v14, s28, v14")
    for cc in range(4):
        for q in range(4):
            e(f"ds_write_b128 v14, {vr(192 + 16 * cc + 4 * q, 4)} offset:{cc * 128 + q * 32}")
    e("s_waitcnt lgkmcnt(0)")
    e("s_barrier")
    e("s_mul_i32 s28, s26, 16512")
    e("v_add_u32 v14, s28, v16")
    for i in range(8):
        for hf in range(2):
            e(f"ds_read_b128 {vr(192 + 8 * i + 4 * hf, 4)}, v14 offset:{2064 * i + 1024 * hf}")
    e("s_lshl_b32 s27, s36, 5")
    e("s_add_u32 s27, s27, s37")
    e("s_lshl_b32 s27, s27, 16")
    e("s_lshl_b32 s28, s26, 14")
    e("s_add_u32 s27, s27, s28")
    e(f"s_add_u32 s27, s27, {APART}")
    for i in range(8):
        for hf in range(2):
            n = 2 * i + hf
            if n and n % 4 == 0:
                e("s_add_u32 s27, s27, 4096")
            e(f"s_waitcnt lgkmcnt({15 - n})")
            e(f"buffer_store_dwordx4 {vr(192 + 8 * i + 4 * hf, 4)}, v16, s[20:23], s27 offen offset:{(n % 4) * 1024}")
    e("s_cmp_lg_u32 s26, 0")
    e("s_cbranch_scc1 KM_ASTAT_DONE")
    for w in range(4):
        e(f"ds_read_b32 v{12 + w}, v18 offset:{LX - MX + 128 * w}")
    e("s_waitcnt lgkmcnt(0)")
    e("v_add_f32 v12, v12, v13")
    e("v_add_f32 v14, v14, v15")
    e("v_add_f32 v9, v12, v14")
    e("v_lshlrev_b32 v14, 8, v11")
    e("s_lshl_b32 s27, s36, 13")
    e("s_lshl_b32 s28, s37, 3")
    e("s_add_u32 s27, s27, s28")
    e(f"s_add_u32 s27, s27, {ASTAT}")
    e(f"buffer_store_dwordx2 v[8:9], v14, s[20:23], s27 offen")
    lab("KM_ASTAT_DONE")
    prof_mark(2)
    e("s_branch KM_END")
    lab("KM_BONLY")
    e("s_sub_u32 s27, s25, 1")
    e("s_mul_i32 s27, s27, 163840")
    e("s_add_u32 s31, s30, s27")
    e("v_mov_b32 v8, 0xff800000")
    for j in range(9, 18):
        e(f"v_mov_b32 v{j}, 0")
    e("s_cmp_eq_u32 s25, 1")
    e("s_cbranch_scc1 KM_B6")
    e("s_add_u32 s31, s31, 32768")
    bloads(192, 224, 31)
    e("s_waitcnt vmcnt(0)")
    e("s_branch KM_B5")
    lab("KM_B6")
    bloads(128, 160, 31)
    e("s_waitcnt vmcnt(0)")
    e("s_add_u32 s31, s31, 32768")
    bloads(192, 224, 31)
    bcompute(128, 160)
    lab("KM_B5")
    for u in range(1, 6):
        if u < 5:
            e("s_add_u32 s31, s31, 32768")
            if (u + 1) & 1:
                bloads(192, 224, 31)
            else:
                bloads(128, 160, 31)
            e("s_waitcnt vmcnt(16)")
        else:
            e("s_waitcnt vmcnt(0)")
        if u < 4:
            prof_mark(u - 1)
        if u & 1:
            bcompute(192, 224)
        else:
            bcompute(128, 160)
    lab("KM_BFIN")
    prof_mark(3)
    e("v_lshrrev_b32 v18, 4, v1")
    e("s_lshl_b32 s27, s26, 2")
    e("v_add_u32 v18, s27, v18")
    e("v_and_b32 v19, 15, v1")
    e("v_lshlrev_b32 v20, 9, v18")
    e("v_lshl_add_u32 v20, v19, 5, v20")
    e(f"v_add_u32 v20, {BO}, v20")
    e(f"ds_write_b128 v20, {vr(10, 4)}")
    e(f"ds_write_b128 v20, {vr(14, 4)} offset:16")
    e("v_lshlrev_b32 v21, 3, v18")
    e(f"v_add_u32 v21, {BS}, v21")
    e("ds_write_b64 v21, v[8:9]")
    e("s_waitcnt lgkmcnt(0)")
    e("s_barrier")
    e("s_cmp_ge_u32 s26, 2")
    e("s_cbranch_scc1 KM_BDONE")
    e(f"v_mov_b32 v21, {BS}")
    for s in range(16):
        e(f"ds_read_b64 {vr(64 + 2 * s, 2)}, v21 offset:{8 * s}")
    e("v_lshlrev_b32 v20, 2, v0")
    e(f"v_add_u32 v20, {BO}, v20")
    for s in range(16):
        e(f"ds_read_b32 v{96 + s}, v20 offset:{512 * s}")
    e("s_waitcnt lgkmcnt(0)")
    e("v_max3_f32 v8, v64, v66, v68")
    for s in range(3, 15, 2):
        e(f"v_max3_f32 v8, v8, v{64 + 2 * s}, v{66 + 2 * s}")
    e("v_max_f32 v8, v8, v94")
    for s in range(16):
        e(f"v_sub_f32 v{64 + 2 * s}, v{64 + 2 * s}, v8")
    for s in range(16):
        e(f"v_exp_f32 v{64 + 2 * s}, v{64 + 2 * s}")
    e("s_nop 0")
    e("v_mul_f32 v9, v64, v65")
    e("v_mul_f32 v10, v64, v96")
    for s in range(1, 16):
        e(f"v_fmac_f32 v9, v{64 + 2 * s}, v{65 + 2 * s}")
        e(f"v_fmac_f32 v10, v{64 + 2 * s}, v{96 + s}")
    e("s_lshl_b32 s27, s24, 2")
    e("s_add_u32 s27, s27, s25")
    e("s_lshl_b32 s28, s27, 9")
    e(f"s_add_u32 s28, s28, {BPART}")
    e("v_lshlrev_b32 v20, 2, v0")
    e(f"buffer_store_dword v10, v20, s[20:23], s28 offen")
    e("s_lshl_b32 s28, s27, 3")
    e(f"s_add_u32 s28, s28, {BSTAT}")
    e("v_mov_b32 v20, 0")
    e(f"buffer_store_dwordx2 v[8:9], v20, s[20:23], s28 offen")
    lab("KM_BDONE")
    lab("KM_END")
    e("s_endpgm")
    kernel_desc(L, 512, 256)
    return f"; @launch kernel={L} grid=(256,1,1) block=(256,1,1) lds={KM_LDS}"


OPA = 0x600000


def k3():
    L = "k3_kernel"
    kernel_header(L)
    e("s_cmp_ge_u32 s2, 512")
    e("s_cbranch_scc1 K3_END")
    srd(20, "ws")
    e("v_and_b32 v1, 63, v0")
    e("v_lshrrev_b32 v2, 6, v0")
    e("s_nop 0")
    e("v_readfirstlane_b32 s26, v2")
    e("s_bfe_u32 s52, s2, 0x20006")
    e("s_and_b32 s53, s2, 63")
    e("s_and_b32 s54, s2, 31")
    e("s_bfe_u32 s55, s2, 0x10005")
    e("s_lshr_b32 s56, s2, 8")
    e("s_cmp_lg_u32 s56, 0")
    e("s_cbranch_scc1 K3_LB")
    srd(16, "A_wo"); srd(12, "A_wuv")
    e("s_branch K3_LD")
    lab("K3_LB")
    srd(16, "B_wo")
    lab("K3_LD")
    e("v_lshrrev_b32 v44, 2, v0")
    e("v_and_b32 v45, 3, v0")
    e("v_lshlrev_b32 v46, 16, v44")
    e("v_lshl_add_u32 v46, v45, 4, v46")
    e("v_lshlrev_b32 v16, 4, v1")
    e("s_waitcnt lgkmcnt(0)")
    srd_fin(16, "A_wo"); srd_fin(20, "ws")
    e("s_lshl_b32 s28, s54, 17")
    e("s_lshl_b32 s29, s52, 15")
    e("s_add_u32 s28, s28, s29")
    e("s_lshl_b32 s29, s26, 13")
    e("s_add_u32 s28, s28, s29")
    for i in range(8):
        if i == 4:
            e("s_add_u32 s28, s28, 4096")
        e(f"buffer_load_dwordx4 {vr(160 + 4 * i, 4)}, v16, s[16:19], s28 offen offset:{(i % 4) * 1024} nt")
    e("s_cmp_lg_u32 s56, 0")
    e("s_cbranch_scc1 K3_B")
    srd_fin(12, "A_wuv")
    e("s_lshl_b32 s28, s54, 8")
    e("s_lshl_b32 s29, s52, 6")
    e("s_add_u32 s28, s28, s29")
    for i in range(8):
        e(f"buffer_load_dwordx4 {vr(128 + 4 * i, 4)}, v46, s[12:15], s28 offen nt")
        e("s_add_u32 s28, s28, 8192")
    e("v_lshlrev_b32 v4, 3, v0")
    e("v_mov_b32 v5, 0")
    e("s_lshl_b32 s28, s53, 8")
    e(f"s_add_u32 s28, s28, {ASTAT}")
    for k in range(16):
        e(f"buffer_load_dwordx4 {vr(64 + 4 * k, 4)}, v5, s[20:23], s28 offen offset:{16 * k}")
    e("s_lshl_b32 s28, s55, 21")
    e("s_lshl_b32 s29, s54, 11")
    e("s_add_u32 s28, s28, s29")
    e(f"s_add_u32 s28, s28, {APART}")
    for s in range(32):
        e(f"buffer_load_dwordx2 {vr(192 + 2 * s, 2)}, v4, s[20:23], s28 offen")
        e("s_add_u32 s28, s28, 0x10000")
    e("s_waitcnt vmcnt(32)")
    e("v_max3_f32 v5, v64, v66, v68")
    for s in range(3, 31, 2):
        e(f"v_max3_f32 v5, v5, v{64 + 2 * s}, v{66 + 2 * s}")
    e("v_max_f32 v5, v5, v126")
    for s in range(32):
        e(f"v_sub_f32 v{64 + 2 * s}, v{64 + 2 * s}, v5")
    for s in range(32):
        e(f"v_exp_f32 v{64 + 2 * s}, v{64 + 2 * s}")
    e("s_nop 0")
    e("v_mul_f32 v6, v64, v65")
    for s in range(1, 32):
        e(f"v_fmac_f32 v6, v{64 + 2 * s}, v{65 + 2 * s}")
    e("v_rcp_f32 v6, v6")
    e("v_mov_b32 v40, 0")
    e("v_mov_b32 v41, 0")
    for s in range(32):
        e(f"s_waitcnt vmcnt({31 - s})")
        e(f"v_fmac_f32 v40, v{64 + 2 * s}, v{192 + 2 * s}")
        e(f"v_fmac_f32 v41, v{64 + 2 * s}, v{193 + 2 * s}")
    e("v_mul_f32 v40, v40, v6")
    e("v_mul_f32 v41, v41, v6")
    e("ds_write_b64 v4, v[40:41]")
    e("s_waitcnt lgkmcnt(0)")
    e("s_barrier")
    e("v_lshlrev_b32 v5, 5, v44")
    e(f"ds_read_b128 {vr(8, 4)}, v5")
    e(f"ds_read_b128 {vr(12, 4)}, v5 offset:16")
    for k in range(8):
        e(f"v_mov_b32 v{24 + k}, 0")
    e("s_waitcnt lgkmcnt(0)")
    for i in range(8):
        for k in range(4):
            unpack2(32 + 2 * k, 33 + 2 * k, 128 + 4 * i + k)
        for k in range(8):
            e(f"v_fmac_f32 v{24 + k}, v{32 + k}, v{8 + i}")
    e("v_lshlrev_b32 v5, 7, v44")
    e("v_lshl_add_u32 v5, v45, 5, v5")
    e(f"ds_write_b128 v5, {vr(24, 4)} offset:2048")
    e(f"ds_write_b128 v5, {vr(28, 4)} offset:2064")
    e("s_waitcnt lgkmcnt(0)")
    e("s_barrier")
    e("v_and_b32 v5, 31, v1")
    e("v_lshrrev_b32 v6, 5, v1")
    e("v_lshlrev_b32 v5, 2, v5")
    e("v_lshl_add_u32 v5, v6, 12, v5")
    for g in range(32):
        e(f"ds_read_b32 v{64 + g}, v5 offset:{2048 + 128 * g}")
    e("s_waitcnt lgkmcnt(0)")
    for n in (16, 8, 4, 2, 1):
        for g in range(n):
            e(f"v_add_f32 v{64 + g}, v{64 + g}, v{64 + n + g}")
    e("v_mov_b32 v65, v64")
    e("s_nop 1")
    e("v_permlane32_swap_b32 v64, v65")
    e("s_nop 1")
    e("v_add_f32 v64, v64, v65")
    e("v_cvt_pk_bf16_f32 v64, v64, v64")
    e("v_lshlrev_b32 v64, 16, v64")
    e("s_branch K3_OUT")
    lab("K3_B")
    e("v_mov_b32 v5, 0")
    e("s_lshl_b32 s28, s53, 5")
    e(f"s_add_u32 s28, s28, {BSTAT}")
    e(f"buffer_load_dwordx2 v[10:11], v5, s[20:23], s28 offen offset:8")
    e(f"buffer_load_dwordx4 v[12:15], v5, s[20:23], s28 offen offset:16")
    e("v_and_b32 v5, 31, v1")
    e("v_lshlrev_b32 v5, 2, v5")
    e("s_lshl_b32 s28, s53, 11")
    e("s_lshl_b32 s29, s52, 7")
    e("s_add_u32 s28, s28, s29")
    e(f"s_add_u32 s28, s28, {BPART}")
    for r in range(1, 4):
        e(f"buffer_load_dword v{64 + r}, v5, s[20:23], s28 offen offset:{512 * r}")
    e("s_waitcnt vmcnt(0)")
    e("v_max3_f32 v56, v10, v12, v14")
    for r in range(1, 4):
        e(f"v_sub_f32 v{8 + 2 * r}, v{8 + 2 * r}, v56")
    for r in range(1, 4):
        e(f"v_exp_f32 v{8 + 2 * r}, v{8 + 2 * r}")
    e("s_nop 0")
    e("v_mul_f32 v57, v10, v11")
    e("v_mul_f32 v58, v10, v65")
    for r in range(2, 4):
        e(f"v_fmac_f32 v57, v{8 + 2 * r}, v{9 + 2 * r}")
        e(f"v_fmac_f32 v58, v{8 + 2 * r}, v{64 + r}")
    e("v_rcp_f32 v57, v57")
    e("s_nop 0")
    e("v_mul_f32 v58, v58, v57")
    e("v_cvt_pk_bf16_f32 v58, v58, v58")
    e("v_lshlrev_b32 v64, 16, v58")
    lab("K3_OUT")
    e("s_lshl_b32 s30, s26, 3")
    for k in range(8):
        e(f"v_mov_b32 v{24 + k}, 0")
    e("s_waitcnt vmcnt(0)")
    for i in range(8):
        e(f"s_add_u32 s31, s30, {i}")
        e(f"v_readlane_b32 s{60 + i}, v64, s31")
    for i in range(8):
        for k in range(4):
            unpack2(32 + 2 * k, 33 + 2 * k, 160 + 4 * i + k)
        for k in range(8):
            e(f"v_fmac_f32 v{24 + k}, s{60 + i}, v{32 + k}")
    e("s_barrier")
    e("v_lshlrev_b32 v5, 5, v1")
    e("s_lshl_b32 s30, s26, 11")
    e("v_add_u32 v5, s30, v5")
    e(f"ds_write_b128 v5, {vr(24, 4)}")
    e(f"ds_write_b128 v5, {vr(28, 4)} offset:16")
    e("s_waitcnt lgkmcnt(0)")
    e("s_barrier")
    e("v_lshlrev_b32 v5, 3, v0")
    for w in range(4):
        e(f"ds_read_b64 {vr(8 + 2 * w, 2)}, v5 offset:{2048 * w}")
    e("s_waitcnt lgkmcnt(0)")
    e("v_add_f32 v8, v8, v10")
    e("v_add_f32 v9, v9, v11")
    e("v_add_f32 v12, v12, v14")
    e("v_add_f32 v13, v13, v15")
    e("v_add_f32 v8, v8, v12")
    e("v_add_f32 v9, v9, v13")
    e("s_lshl_b32 s28, s56, 19")
    e("s_lshl_b32 s29, s55, 18")
    e("s_add_u32 s28, s28, s29")
    e("s_lshl_b32 s29, s54, 13")
    e("s_add_u32 s28, s28, s29")
    e("s_lshl_b32 s29, s52, 11")
    e("s_add_u32 s28, s28, s29")
    e(f"s_add_u32 s28, s28, {OPA}")
    e("buffer_store_dwordx2 v[8:9], v5, s[20:23], s28 offen")
    lab("K3_END")
    e("s_endpgm")
    kernel_desc(L, 256, 256)
    return f"; @launch kernel={L} grid=(512,1,1) block=(256,1,1) lds=10240"


def k4():
    L = "k4_kernel"
    kernel_header(L)
    e("s_cmp_ge_u32 s2, 32")
    e("s_cbranch_scc1 K4_END")
    srd(20, "ws"); srd(8, "out")
    e("s_lshr_b32 s24, s2, 3")
    e("s_and_b32 s25, s2, 7")
    e("v_and_b32 v1, 15, v0")
    e("v_lshrrev_b32 v2, 4, v0")
    e("v_lshlrev_b32 v3, 14, v2")
    e("v_lshl_add_u32 v3, v1, 4, v3")
    e("s_lshl_b32 s26, s24, 18")
    e("s_lshl_b32 s27, s25, 8")
    e("s_add_u32 s26, s26, s27")
    e(f"s_add_u32 s26, s26, {OPA}")
    e("s_waitcnt lgkmcnt(0)")
    srd_fin(20, "ws"); srd_fin(8, "out")
    for i in range(8):
        if i % 2 == 0 and i:
            e("s_add_u32 s26, s26, 4096")
        e(f"buffer_load_dwordx4 {vr(8 + 4 * i, 4)}, v3, s[20:23], s26 offen offset:{(i % 2) * 2048}")
    e("s_waitcnt vmcnt(0)")
    for n in (4, 2, 1):
        for i in range(n):
            for k in range(4):
                e(f"v_add_f32 v{8 + 4 * i + k}, v{8 + 4 * i + k}, v{8 + 4 * (i + n) + k}")
    e("v_lshlrev_b32 v4, 4, v0")
    e(f"ds_write_b128 v4, {vr(8, 4)}")
    e("s_waitcnt lgkmcnt(0)")
    e("s_barrier")
    e("v_cmp_gt_u32 vcc, 64, v0")
    e("s_and_saveexec_b64 s[28:29], vcc")
    e("s_cbranch_execz K4_END")
    e("v_lshlrev_b32 v4, 2, v0")
    for g in range(16):
        e(f"ds_read_b32 v{8 + g}, v4 offset:{256 * g}")
    e("s_waitcnt lgkmcnt(0)")
    for n in (8, 4, 2, 1):
        for g in range(n):
            e(f"v_add_f32 v{8 + g}, v{8 + g}, v{8 + n + g}")
    e("v_cvt_pk_bf16_f32 v8, v8, v8")
    e("s_and_b32 s26, s24, 1")
    e("s_lshl_b32 s26, s26, 11")
    e("s_lshr_b32 s27, s24, 1")
    e("s_lshl_b32 s27, s27, 10")
    e("s_add_u32 s26, s26, s27")
    e("s_lshl_b32 s27, s25, 7")
    e("s_add_u32 s26, s26, s27")
    e("v_lshlrev_b32 v4, 1, v0")
    e("buffer_store_short v8, v4, s[8:11], s26 offen")
    lab("K4_END")
    e("s_endpgm")
    kernel_desc(L, 48, 48)
    return f"; @launch kernel={L} grid=(32,1,1) block=(256,1,1) lds=4096"


LAUNCHES = []


def main():
    LAUNCHES.append(k1())
    LAUNCHES.append(km())
    LAUNCHES.append(k3())
    LAUNCHES.append(k4())
    head = open(f"cdna_kernels/{NAME}.s.ref").read().split("; Override launch")[0]
    txt = head + "\n".join(LAUNCHES) + "\n"
    txt += '.amdgcn_target "amdgcn-amd-amdhsa--gfx950"\n.text\n'
    txt += "\n".join(out) + "\n"
    txt += '.section .rodata,"a"\n' + "\n".join(descs) + "\n"
    path = sys.argv[1] if len(sys.argv) > 1 else f"cdna_kernels/{NAME}.s"
    open(path, "w").write(txt)


if __name__ == "__main__":
    main()
```

```python
import sys

NAME = "concat_heads__compressed_kv_cla__sliding_block_cached__decode"

KA = dict(A_x=0, A_ckv=8, A_wq=16, A_wuk=24, A_wuv=32, A_wo=40, B_x=48, B_k=56, B_v=64,
          B_wq=72, B_wo=80, out=88, dbg=96, ws=104)
SZ = dict(A_x=2048, A_ckv=16777216, A_wq=4194304, A_wuk=4194304, A_wuv=4194304, A_wo=4194304,
          B_x=2048, B_k=134217728, B_v=134217728, B_wq=4194304, B_wo=4194304, out=4096, dbg=256,
          ws=536870912)

QA_HI = 0x00000
QA_LO = 0x10000
QB = 0x20000
ASTAT = 0x30000
BPART = 0x40000
BSTAT = 0x60000
CTX = 0x70000
OPART = 0x80000
APART = 0x100000

SCALE_BITS = 0x3DB504F3
LOG2E_BITS = 0x3FB8AA3B

out = []
import os
DEBUG = bool(os.environ.get('DEBUG'))
PROF = bool(os.environ.get('PROF'))
HIONLY = bool(os.environ.get('HIONLY'))
PROFBASE = 0x800000


def prof_start():
    if PROF:
        e("s_memrealtime s[90:91]")


def prof_mark(slot, t=21):
    if PROF:
        e("s_memrealtime s[92:93]")
        e("s_waitcnt lgkmcnt(0)")
        e("s_sub_u32 s92, s92, s90")
        e(f"v_mov_b32 v{t}, s92")
        e("s_lshl_b32 s94, s2, 7")
        e(f"s_add_u32 s94, s94, {PROFBASE + prof_kernel[0] * 0x10000 + slot * 4}")
        e(f"v_lshrrev_b32 v{t+1}, 6, v0")
        e(f"v_lshlrev_b32 v{t+1}, 5, v{t+1}")
        e(f"buffer_store_dword v{t}, v{t+1}, s[20:23], s94 offen")


prof_kernel = [0]


def e(s):
    out.append("    " + s)


def lab(s):
    out.append(s + ":")


def srd(dst, name):
    e(f"s_load_dwordx2 s[{dst}:{dst+1}], s[0:1], {KA[name]}")


def srd_fin(dst, name):
    e(f"s_mov_b32 s{dst+2}, {SZ[name]}")
    e(f"s_mov_b32 s{dst+3}, 0x20000")


def vr(a, n):
    return f"v[{a}:{a+n-1}]"


def ar(a, n):
    return f"a[{a}:{a+n-1}]"


def kernel_header(label):
    out.append(f".globl {label}")
    out.append(".p2align 8")
    out.append(f".type {label},@function")
    lab(label)


descs = []


def kernel_desc(label, vgpr, accum, sgpr=102):
    descs.append(f""".p2align 6
.amdhsa_kernel {label}
  .amdhsa_next_free_vgpr {vgpr}
  .amdhsa_next_free_sgpr {sgpr}
  .amdhsa_accum_offset {accum}
  .amdhsa_group_segment_fixed_size 0
  .amdhsa_kernarg_size 112
  .amdhsa_user_sgpr_count 2
  .amdhsa_user_sgpr_kernarg_segment_ptr 1
  .amdhsa_system_sgpr_workgroup_id_x 1
.end_amdhsa_kernel""")


def unpack2(dlo, dhi, src):
    e(f"v_lshlrev_b32 v{dlo}, 16, v{src}")
    e(f"v_and_b32 v{dhi}, 0xffff0000, v{src}")


def gemv_rows(nrows, wbase, xbase0, xbase1, acc, tmp, xt, vm_after):
    for i in range(nrows):
        e(f"s_waitcnt vmcnt({nrows - 1 - i + vm_after})")
        if i % 2 == 0:
            e(f"v_lshlrev_b32 v{xt}, 16, v{xbase0 + i // 2}")
            e(f"v_lshlrev_b32 v{xt+1}, 16, v{xbase1 + i // 2}")
        else:
            e(f"v_and_b32 v{xt}, 0xffff0000, v{xbase0 + i // 2}")
            e(f"v_and_b32 v{xt+1}, 0xffff0000, v{xbase1 + i // 2}")
        for k in range(4):
            unpack2(tmp + 2 * k, tmp + 2 * k + 1, wbase + 4 * i + k)
        for k in range(8):
            e(f"v_fmac_f32 v{acc + k}, v{tmp + k}, v{xt}")
            e(f"v_fmac_f32 v{acc + 8 + k}, v{tmp + k}, v{xt+1}")


def k1():
    L = "k1_kernel"
    kernel_header(L)
    e("s_cmp_ge_u32 s2, 192")
    e("s_cbranch_scc1 K1_END")
    e("s_cmp_ge_u32 s2, 128")
    e("s_cbranch_scc1 K1_B")
    srd(8, "A_x"); srd(12, "A_wq"); srd(16, "A_wuk"); srd(20, "ws")
    e("s_and_b32 s24, s2, 31")
    e("s_lshr_b32 s25, s2, 5")
    e("v_and_b32 v1, 15, v0")
    e("v_lshrrev_b32 v2, 4, v0")
    e("v_lshlrev_b32 v3, 18, v2")
    e("v_lshl_add_u32 v3, v1, 4, v3")
    e("v_lshlrev_b32 v4, 6, v2")
    e("v_lshlrev_b32 v5, 13, v2")
    e("v_lshl_add_u32 v5, v1, 4, v5")
    e("s_lshl_b32 s26, s24, 8")
    e("s_waitcnt lgkmcnt(0)")
    srd_fin(8, "A_x"); srd_fin(12, "A_wq"); srd_fin(16, "A_wuk"); srd_fin(20, "ws")
    for b in range(2):
        for k in range(4):
            e(f"buffer_load_dwordx4 {vr(8 + 16 * b + 4 * k, 4)}, v4, s[8:11], 0 offen offset:{1024 * b + 16 * k}")
    e("s_mov_b32 s27, s26")
    for i in range(32):
        e(f"buffer_load_dwordx4 {vr(40 + 4 * i, 4)}, v3, s[12:15], s27 offen nt")
        e("s_add_u32 s27, s27, 8192")
    e("s_lshl_b32 s27, s25, 20")
    e("s_add_u32 s27, s27, s26")
    for i in range(8):
        e(f"buffer_load_dwordx4 {vr(168 + 4 * i, 4)}, v5, s[16:19], s27 offen nt")
        e("s_add_u32 s27, s27, 0x20000")
    for k in range(16):
        e(f"v_mov_b32 v{200 + k}, 0")
    gemv_rows(32, 40, 8, 24, 200, 218, 216, 8)
    e("v_lshlrev_b32 v6, 10, v2")
    e("v_lshl_add_u32 v6, v1, 5, v6")
    e(f"ds_write_b128 v6, {vr(200, 4)}")
    e(f"ds_write_b128 v6, {vr(204, 4)} offset:16")
    e(f"ds_write_b128 v6, {vr(208, 4)} offset:512")
    e(f"ds_write_b128 v6, {vr(212, 4)} offset:528")
    e("s_waitcnt lgkmcnt(0)")
    e("s_barrier")
    e("v_lshlrev_b32 v6, 2, v0")
    for g in range(16):
        e(f"ds_read_b32 v{8 + g}, v6 offset:{1024 * g}")
    e("s_waitcnt lgkmcnt(0)")
    for g in range(1, 16):
        e(f"v_add_f32 v8, v8, v{8 + g}")
    e("v_cvt_pk_bf16_f32 v8, v8, v8")
    e("v_lshlrev_b32 v6, 1, v0")
    e("ds_write_b16 v6, v8 offset:16384")
    e("s_waitcnt lgkmcnt(0)")
    e("s_barrier")
    e("v_lshlrev_b32 v6, 4, v1")
    e(f"ds_read_b128 {vr(8, 4)}, v6 offset:16384")
    e(f"ds_read_b128 {vr(12, 4)}, v6 offset:16640")
    e("s_waitcnt vmcnt(0) lgkmcnt(0)")
    for k in range(4):
        for i in range(8):
            for b in range(2):
                d = 24 + 2 * i + b
                c = "0" if k == 0 else f"v{d}"
                e(f"v_dot2_f32_bf16 v{d}, v{168 + 4 * i + k}, v{8 + 4 * b + k}, {c}")
    e("s_nop 3")
    for sh in (8, 4, 2, 1):
        for d in range(24, 40):
            e(f"v_add_f32_dpp v{d}, v{d}, v{d} row_ror:{sh} row_mask:0xf bank_mask:0xf")
        e("s_nop 1")
    e("v_lshlrev_b32 v6, 2, v2")
    for i in range(8):
        for b in range(2):
            e(f"ds_write_b32 v6, v{24 + 2 * i + b} offset:{16896 + 512 * b + 64 * i}")
    e("s_waitcnt lgkmcnt(0)")
    e("s_barrier")
    e("v_cmp_gt_u32 vcc, 32, v0")
    e("s_and_saveexec_b64 s[28:29], vcc")
    e("s_cbranch_execz K1_END")
    e("v_lshlrev_b32 v6, 5, v0")
    e(f"ds_read_b128 {vr(8, 4)}, v6 offset:16896")
    e(f"ds_read_b128 {vr(12, 4)}, v6 offset:16912")
    e("s_waitcnt lgkmcnt(0)")
    for k in range(4):
        a, b_ = 8 + 2 * k, 9 + 2 * k
        e(f"v_cvt_pk_bf16_f32 v{16 + k}, v{a}, v{b_}")
        unpack2(24, 25, 16 + k)
        e(f"v_sub_f32 v24, v{a}, v24")
        e(f"v_sub_f32 v25, v{b_}, v25")
        e(f"v_cvt_pk_bf16_f32 v{20 + k}, v24, v25")
    e("v_lshrrev_b32 v6, 4, v0")
    e("v_and_b32 v7, 15, v0")
    e("v_lshrrev_b32 v24, 1, v7")
    e("v_and_b32 v25, 1, v7")
    e("v_lshlrev_b32 v6, 15, v6")
    e("v_lshl_add_u32 v6, v24, 10, v6")
    e("v_lshl_add_u32 v6, v25, 9, v6")
    e("s_lshl_b32 s27, s25, 13")
    e("s_lshl_b32 s28, s24, 4")
    e("s_add_u32 s27, s27, s28")
    e(f"buffer_store_dwordx4 {vr(16, 4)}, v6, s[20:23], s27 offen")
    e(f"s_add_u32 s27, s27, {QA_LO}")
    e(f"buffer_store_dwordx4 {vr(20, 4)}, v6, s[20:23], s27 offen")
    e("s_branch K1_END")
    lab("K1_B")
    srd(8, "B_x"); srd(12, "B_wq"); srd(20, "ws")
    e("s_sub_u32 s3, s2, 128")
    e("s_and_b32 s24, s3, 31")
    e("s_lshr_b32 s25, s3, 5")
    e("v_and_b32 v1, 7, v0")
    e("v_lshrrev_b32 v2, 3, v0")
    e("v_lshlrev_b32 v3, 17, v2")
    e("v_lshl_add_u32 v3, v1, 4, v3")
    e("v_lshlrev_b32 v4, 5, v2")
    e("s_lshl_b32 s26, s24, 8")
    e("s_lshl_b32 s27, s25, 7")
    e("s_add_u32 s26, s26, s27")
    e("s_waitcnt lgkmcnt(0)")
    srd_fin(8, "B_x"); srd_fin(12, "B_wq"); srd_fin(20, "ws")
    for b in range(2):
        for k in range(2):
            e(f"buffer_load_dwordx4 {vr(8 + 8 * b + 4 * k, 4)}, v4, s[8:11], 0 offen offset:{1024 * b + 16 * k}")
    e("s_mov_b32 s27, s26")
    for i in range(16):
        e(f"buffer_load_dwordx4 {vr(40 + 4 * i, 4)}, v3, s[12:15], s27 offen nt")
        e("s_add_u32 s27, s27, 8192")
    for k in range(16):
        e(f"v_mov_b32 v{200 + k}, 0")
    gemv_rows(16, 40, 8, 16, 200, 218, 216, 0)
    e("v_lshlrev_b32 v6, 9, v2")
    e("v_lshl_add_u32 v6, v1, 5, v6")
    e(f"ds_write_b128 v6, {vr(200, 4)}")
    e(f"ds_write_b128 v6, {vr(204, 4)} offset:16")
    e(f"ds_write_b128 v6, {vr(208, 4)} offset:256")
    e(f"ds_write_b128 v6, {vr(212, 4)} offset:272")
    e("s_waitcnt lgkmcnt(0)")
    e("s_barrier")
    e("v_cmp_gt_u32 vcc, 128, v0")
    e("s_and_saveexec_b64 s[28:29], vcc")
    e("s_cbranch_execz K1_END")
    e("v_lshlrev_b32 v6, 2, v0")
    for g in range(32):
        e(f"ds_read_b32 v{8 + g}, v6 offset:{512 * g}")
    e("s_waitcnt lgkmcnt(0)")
    for g in range(1, 32):
        e(f"v_add_f32 v8, v8, v{8 + g}")
    e("v_cvt_pk_bf16_f32 v8, v8, v8")
    e("v_lshrrev_b32 v6, 6, v0")
    e("v_and_b32 v7, 63, v0")
    e("v_lshlrev_b32 v6, 13, v6")
    e("v_lshl_add_u32 v6, v7, 1, v6")
    e(f"s_add_u32 s27, s26, {QB}")
    e("buffer_store_short v8, v6, s[20:23], s27 offen")
    lab("K1_END")
    e("s_endpgm")
    kernel_desc(L, 232, 232)
    return f"; @launch kernel={L} grid=(192,1,1) block=(256,1,1) lds=18432"


MX = 131072
LX = 131584
PX = 132096
BO = 140288
RS = PX
BS = BO + 8192
KM_LDS = BS + 128
C3 = 132
C4 = 136
C5 = 168
C6 = 200
SC = " sc1"


def fsw(r):
    return ((r & 3) << 2) | ((r >> 2) & 3)


def bloads(K, V, soff):
    for (base, srdn) in ((K, 12), (V, 16)):
        for i in range(8):
            va = 6 if i < 4 else 7
            e(f"buffer_load_dwordx4 {vr(base + 4 * i, 4)}, v{va}, s[{srdn}:{srdn+3}], s{soff} offen offset:{(i % 4) * 1024} nt")


def round_scale(a, b, t):
    e(f"v_cvt_pk_bf16_f32 v{t}, v{a}, v{b}")
    unpack2(a, b, t)
    e(f"v_mul_f32 v{a}, s34, v{a}")
    e(f"v_mul_f32 v{b}, s34, v{b}")
    e(f"v_cvt_pk_bf16_f32 v{t}, v{a}, v{b}")
    unpack2(a, b, t)
    e(f"v_mul_f32 v{a}, s35, v{a}")
    e(f"v_mul_f32 v{b}, s35, v{b}")


def bscore(K):
    for k in range(4):
        for i in range(8):
            c = "0" if k == 0 else f"v{18+i}"
            e(f"v_dot2_f32_bf16 v{18+i}, v{K + 4*i + k}, v{2+k}, {c}")
    for sh in (8, 4, 2, 1):
        for i in range(8):
            e(f"v_add_f32_dpp v{18+i}, v{18+i}, v{18+i} row_ror:{sh} row_mask:0xf bank_mask:0xf")
    for i in range(0, 8, 2):
        round_scale(18 + i, 19 + i, 26)
    e("v_max3_f32 v26, v18, v19, v20")
    e("v_max3_f32 v26, v26, v21, v22")
    e("v_max3_f32 v26, v26, v23, v24")
    e("v_max3_f32 v26, v26, v25, v8")
    e("v_sub_f32 v27, v8, v26")
    e("v_exp_f32 v27, v27")
    e("v_mov_b32 v8, v26")
    for i in range(8):
        e(f"v_sub_f32 v{18+i}, v{18+i}, v26")
    for i in range(8):
        e(f"v_exp_f32 v{18+i}, v{18+i}")
    e("v_mul_f32 v9, v9, v27")
    for j in range(8):
        e(f"v_mul_f32 v{10+j}, v{10+j}, v27")
    for i in range(8):
        e(f"v_add_f32 v9, v9, v{18+i}")


def bpv(V):
    for i in range(8):
        for k in range(4):
            unpack2(34 + 2 * k, 35 + 2 * k, V + 4 * i + k)
        for j in range(8):
            e(f"v_fmac_f32 v{10+j}, v{34+j}, v{18+i}")


def bload1(base, srdn, soff):
    for i in range(8):
        va = 6 if i < 4 else 7
        e(f"buffer_load_dwordx4 {vr(base + 4 * i, 4)}, v{va}, s[{srdn}:{srdn+3}], s{soff} offen offset:{(i % 4) * 1024} nt")


def bsched(nunits, ahead):
    bufs = [(128, 160), (192, 224)]
    n = 2 * nunits
    issued = 0
    for c in range(n):
        while issued < n and issued <= c + min(ahead(c), 3):
            u, isv = issued >> 1, issued & 1
            if not isv:
                e("s_add_u32 s31, s31, 32768")
                e("s_mov_b32 s33, s31") if False else None
            e(f"s_mov_b32 s{60 + (u & 1)}, s31") if not isv else None
            bload1(bufs[u & 1][isv], 16 if isv else 12, 60 + (u & 1))
            issued += 1
        e(f"s_waitcnt vmcnt({8 * (issued - 1 - c)})")
        u, isv = c >> 1, c & 1
        if isv:
            bpv(bufs[u & 1][1])
        else:
            if u < 3:
                prof_mark(u)
            bscore(bufs[u & 1][0])


def dma_tile():
    for i in range(32):
        if i % 4 == 0:
            e(f"s_add_u32 m0, s41, {i * 1024}")
            e(f"s_add_u32 s42, s40, {i * 1024}")
        e(f"v_xor_b32 v11, {fsw(i & 15) * 16}, v16")
        e(f"buffer_load_dwordx4 v11, s[8:11], s42 offen offset:{(i % 4) * 1024} nt lds")


npoll = [0]


def poll(off, target, soff=None):
    n = npoll[0]
    npoll[0] += 1
    e("s_cmp_lg_u32 s26, 0")
    e(f"s_cbranch_scc1 POLL_DONE{n}")
    e("v_mov_b32 v22, 0")
    e("s_mov_b32 s44, 0x40000")
    if soff is None:
        e(f"s_mov_b32 s45, {off}")
        soff = 45
    lab(f"POLL{n}")
    e(f"buffer_load_dword v21, v22, s[48:51], s{soff} offen{SC}")
    e("s_waitcnt vmcnt(0)")
    e("v_readfirstlane_b32 s43, v21")
    e(f"s_cmp_ge_u32 s43, {target}")
    e(f"s_cbranch_scc1 POLL_DONE{n}")
    e("s_sleep 4")
    e("s_sub_u32 s44, s44, 1")
    e("s_cmp_lg_u32 s44, 0")
    e(f"s_cbranch_scc1 POLL{n}")
    lab(f"POLL_DONE{n}")
    e("s_barrier")


def signal(soffs):
    n = npoll[0]
    npoll[0] += 1
    e("s_waitcnt vmcnt(0)")
    e("s_barrier")
    e("s_cmp_lg_u32 s26, 0")
    e(f"s_cbranch_scc1 SIG_DONE{n}")
    e("v_mov_b32 v21, 1")
    e("v_mov_b32 v22, 0")
    e("s_mov_b64 s[46:47], exec")
    e("s_mov_b64 exec, 1")
    for so in soffs:
        e(f"buffer_atomic_add v21, v22, s[48:51], s{so} offen sc1")
    e("s_mov_b64 exec, s[46:47]")
    lab(f"SIG_DONE{n}")


filler = []


def fill(n=1):
    for _ in range(n):
        if filler:
            for ins in filler.pop(0):
                e(ins)


def tile_loads(defer=False):
    for i in range(32):
        g = []
        if i % 4 == 0:
            g.append(f"s_add_u32 s42, s40, {i * 1024}")
        g.append(f"buffer_load_dwordx4 {ar(128 + 4 * i, 4)}, v16, s[8:11], s42 offen offset:{(i % 4) * 1024} nt")
        filler.append(g)
    if not defer:
        fill(32)


def tile_to_lds():
    e("v_add_u32 v12, s41, v16")
    for i in range(32):
        e(f"v_xor_b32 v{13 + (i & 1)}, {fsw(i & 15) * 16}, v12")
        e(f"s_waitcnt vmcnt({31 - i})")
        e(f"ds_write_b128 v{13 + (i & 1)}, {ar(128 + 4 * i, 4)} offset:{i * 1024}")
    e("s_waitcnt lgkmcnt(0)")


def a_tile(first):
    seq = [(j, k) for j in range(4) for k in range(8)]

    def sread(n):
        j, k = seq[n]
        t = 22 + (n & 1)
        e(f"v_add_u32 v{t}, v{24 + j}, v{28 + k}")
        e(f"ds_read_b128 {vr(72 + 4 * (n % 8), 4)}, v{t}")
    for n in range(8):
        sread(n)
    for n in range(32):
        j, k = seq[n]
        e(f"s_waitcnt lgkmcnt({min(7, 31 - n)})")
        f = vr(72 + 4 * (n % 8), 4)
        acc = ar(64 + 16 * j, 16)
        c = "0" if k == 0 else acc
        e(f"v_mfma_f32_32x32x16_bf16 {acc}, {f}, {ar(4 * k, 4)}, {c}")
        if not HIONLY:
            e(f"v_mfma_f32_32x32x16_bf16 {acc}, {f}, {ar(32 + 4 * k, 4)}, {acc}")
        if n + 8 < 32:
            sread(n + 8)
        if n % 2 == 1:
            fill(1)
    e("s_nop 15")
    for i in range(16):
        e(f"v_accvgpr_read_b32 v{56 + i}, a{64 + i}")
    for j in range(1, 4):
        for q in range(4):
            e(f"ds_write_b128 v36, {ar(64 + 16 * j + 4 * q, 4)} offset:{1024 * q}")
        e("s_waitcnt lgkmcnt(0)")
        e("s_barrier")
        for q in range(4):
            e(f"ds_read_b128 {vr(72 + 4 * q, 4)}, v{36 + j} offset:{1024 * q}")
        e("s_waitcnt lgkmcnt(0)")
        if j < 3:
            e("s_barrier")
        fill(1)
        for i in range(16):
            e(f"v_add_f32 v{56 + i}, v{56 + i}, v{72 + i}")
    for i in range(0, 16, 2):
        round_scale(56 + i, 57 + i, 11)
        if i % 4 == 0:
            fill(1)
    e("v_max3_f32 v12, v56, v57, v58")
    for i in range(59, 71, 2):
        e(f"v_max3_f32 v12, v12, v{i}, v{i+1}")
    e("v_max_f32 v12, v12, v71")
    e("v_mov_b32 v13, v12")
    e("s_nop 1")
    e("v_permlane32_swap_b32 v12, v13")
    e("s_nop 1")
    e("v_max_f32 v12, v12, v13")
    e("ds_write_b32 v17, v12")
    e("s_waitcnt lgkmcnt(0)")
    e("s_barrier")
    for w in range(4):
        e(f"ds_read_b32 v{12 + w}, v18 offset:{128 * w}")
    e("s_waitcnt lgkmcnt(0)")
    e("v_max3_f32 v12, v12, v13, v14")
    e("v_max3_f32 v12, v12, v15, v8")
    e("v_sub_f32 v10, v8, v12")
    e("v_exp_f32 v10, v10")
    e("v_mov_b32 v8, v12")
    for i in range(16):
        e(f"v_sub_f32 v{56+i}, v{56+i}, v12")
    for i in range(16):
        e(f"v_exp_f32 v{56+i}, v{56+i}")
    e("v_mul_f32 v9, v9, v10")
    for i in range(16):
        e(f"v_add_f32 v9, v9, v{56+i}")
    for i in range(8):
        e(f"v_cvt_pk_bf16_f32 v{96+i}, v{56+2*i}, v{57+2*i}")
    e(f"ds_write_b128 v19, {vr(96, 4)}")
    e(f"ds_write_b128 v19, {vr(100, 4)} offset:1024")
    e("s_waitcnt lgkmcnt(0)")
    e("s_barrier")
    for tu in range(8):
        e(f"ds_read_b128 {vr(64 + 4 * tu, 4)}, v20 offset:{(tu >> 1) * 2048 + (tu & 1) * 1024}")
    if not first:
        for i in range(64):
            e(f"v_mul_f32 v{192+i}, v{192+i}, v10")

    def trreads(tu):
        t, u = tu >> 1, tu & 1
        bufb = 96 + 16 * (tu & 1)
        for cc in range(4):
            for v in range(2):
                a = 40 + 8 * (t >> 1) + 2 * cc + v
                off = (32 * (t & 1) + 16 * u + 8 * v) * 1024
                e(f"ds_read_b64_tr_b16 {vr(bufb + 4 * cc + 2 * v, 2)}, v{a} offset:{off}")
    trreads(0)
    for tu in range(8):
        if tu + 1 < 8:
            trreads(tu + 1)
            e("s_waitcnt lgkmcnt(8)")
        else:
            e("s_waitcnt lgkmcnt(0)")
        bufb = 96 + 16 * (tu & 1)
        for cc in range(4):
            acc = vr(192 + 16 * cc, 16)
            c = "0" if (first and tu == 0) else acc
            e(f"v_mfma_f32_32x32x16_bf16 {acc}, {vr(bufb + 4 * cc, 4)}, {vr(64 + 4 * tu, 4)}, {c}")
        fill(1)
    fill(99)


def km():
    L = "km_kernel"
    kernel_header(L)
    e("s_cmp_ge_u32 s2, 256")
    e("s_cbranch_scc1 KM_END")
    prof_kernel[0] = 1
    prof_start()
    srd(8, "A_ckv"); srd(12, "B_k"); srd(16, "B_v"); srd(20, "ws"); srd(48, "dbg")
    e("s_and_b32 s3, s2, 7")
    e("s_lshr_b32 s4, s2, 3")
    e("s_lshr_b32 s5, s3, 2")
    e("s_lshl_b32 s24, s4, 1")
    e("s_or_b32 s24, s24, s5")
    e("s_add_u32 s25, s3, s4")
    e("s_and_b32 s25, s25, 3")
    e("v_and_b32 v1, 63, v0")
    e("v_lshrrev_b32 v2, 6, v0")
    e("s_nop 0")
    e("v_readfirstlane_b32 s26, v2")
    e(f"s_mov_b32 s34, {SCALE_BITS:#x}")
    e(f"s_mov_b32 s35, {LOG2E_BITS:#x}")
    e("v_lshlrev_b32 v16, 4, v1")
    e("s_lshl_b32 s27, s26, 13")
    e("v_add_u32 v6, s27, v16")
    e("v_add_u32 v7, 4096, v6")
    e("v_and_b32 v8, 15, v1")
    e("v_lshlrev_b32 v8, 4, v8")
    e("s_lshl_b32 s27, s24, 8")
    e(f"s_add_u32 s27, s27, {QB}")
    e("s_lshl_b32 s30, s24, 21")
    e("s_add_u32 s30, s30, 1572864")
    e("s_waitcnt lgkmcnt(0)")
    srd_fin(8, "A_ckv"); srd_fin(12, "B_k"); srd_fin(16, "B_v"); srd_fin(20, "ws"); srd_fin(48, "dbg")
    e(f"buffer_load_dwordx4 {vr(2, 4)}, v8, s[20:23], s27 offen")
    e("s_cmp_lg_u32 s25, 0")
    e("s_cbranch_scc1 KM_BONLY")
    e("s_lshr_b32 s36, s24, 5")
    e("s_and_b32 s37, s24, 31")
    e("s_lshl_b32 s40, s36, 23")
    e("s_lshl_b32 s27, s37, 18")
    e("s_add_u32 s40, s40, s27")
    e("s_lshl_b32 s41, s26, 15")
    e("s_add_u32 s40, s40, s41")
    e("s_lshl_b32 s27, s36, 15")
    e("s_lshl_b32 s28, s26, 13")
    e("s_add_u32 s27, s27, s28")
    for part in range(1 if HIONLY else 2):
        for s in range(8):
            if s % 4 == 0:
                e(f"s_add_u32 s28, s27, {part * QA_LO + s * 1024}")
            e(f"buffer_load_dwordx4 {ar(32 * part + 4 * s, 4)}, v16, s[20:23], s28 offen offset:{(s % 4) * 1024}")
    tile_loads()
    e("v_and_b32 v56, 31, v1")
    e("v_lshrrev_b32 v57, 5, v1")
    e("v_and_b32 v58, 3, v1")
    e("v_lshlrev_b32 v58, 2, v58")
    e("v_bfe_u32 v59, v1, 2, 2")
    e("v_or_b32 v58, v58, v59")
    e("v_xor_b32 v58, v58, v57")
    e("v_lshlrev_b32 v58, 4, v58")
    for k in range(8):
        e(f"v_xor_b32 v{28 + k}, {32 * k}, v58")
    e("v_lshlrev_b32 v59, 10, v56")
    e("s_lshl_b32 s27, s26, 8")
    e("v_add_u32 v59, s27, v59")
    for j in range(4):
        e(f"s_add_u32 s27, s26, {j}")
        e("s_and_b32 s27, s27, 3")
        e("s_lshl_b32 s27, s27, 15")
        e(f"v_add_u32 v{24 + j}, s27, v59")
        e(f"s_sub_u32 s27, s26, {j}")
        e("s_and_b32 s27, s27, 3")
        e("s_lshl_b32 s27, s27, 12")
        e(f"s_add_u32 s27, s27, {RS}")
        e(f"v_add_u32 v{36 + j}, s27, v16")
    e("v_lshrrev_b32 v60, 4, v1")
    e("v_lshrrev_b32 v61, 5, v1")
    e("v_bfe_u32 v62, v1, 2, 2")
    e("v_and_b32 v63, 3, v1")
    e("v_and_b32 v64, 1, v60")
    e("v_lshlrev_b32 v64, 1, v64")
    e("v_lshrrev_b32 v65, 1, v63")
    e("v_add_u32 v64, v64, v65")
    e("v_lshl_or_b32 v65, v62, 2, v61")
    e("v_xor_b32 v64, v64, v65")
    e("v_lshlrev_b32 v64, 4, v64")
    e("v_and_b32 v65, 1, v63")
    e("v_lshl_add_u32 v64, v65, 3, v64")
    e("v_lshl_add_u32 v65, v61, 2, v62")
    e("v_lshl_add_u32 v64, v65, 10, v64")
    e("s_lshl_b32 s27, s26, 8")
    e("v_add_u32 v64, s27, v64")
    for cc in range(4):
        for v in range(2):
            e(f"v_xor_b32 v{40 + 2 * cc + v}, {64 * cc + 32 * v}, v64")
            e(f"v_add_u32 v{48 + 2 * cc + v}, 0x10000, v{40 + 2 * cc + v}")
    e("v_lshlrev_b32 v18, 2, v56")
    e(f"v_add_u32 v18, {MX}, v18")
    e("s_lshl_b32 s27, s26, 7")
    e("v_add_u32 v17, s27, v18")
    e(f"v_add_u32 v20, {PX}, v16")
    e("s_lshl_b32 s27, s26, 11")
    e("v_add_u32 v19, s27, v20")
    e("v_mov_b32 v8, 0xff800000")
    e("v_mov_b32 v9, 0")
    tile_to_lds()
    e("s_add_u32 s40, s40, 0x20000")
    tile_loads(defer=True)
    e("s_barrier")
    prof_mark(0)
    a_tile(True)
    e("s_barrier")
    prof_mark(1)
    tile_to_lds()
    e("s_barrier")
    a_tile(False)
    e("v_mov_b32 v13, v9")
    e("s_nop 1")
    e("v_permlane32_swap_b32 v9, v13")
    e("s_nop 1")
    e("v_add_f32 v9, v9, v13")
    e(f"ds_write_b32 v17, v9 offset:{LX - MX}")
    e("s_nop 7")
    e("s_barrier")
    e("v_and_b32 v11, 31, v1")
    e("v_lshrrev_b32 v12, 5, v1")
    e("s_movk_i32 s27, 2064")
    e("v_mul_lo_u32 v14, v11, s27")
    e("v_lshl_add_u32 v14, v12, 4, v14")
    e("s_lshl_b32 s28, s26, 9")
    e("v_add_u32 v14, s28, v14")
    for cc in range(4):
        for q in range(4):
            e(f"ds_write_b128 v14, {vr(192 + 16 * cc + 4 * q, 4)} offset:{cc * 128 + q * 32}")
    e("s_waitcnt lgkmcnt(0)")
    e("s_barrier")
    e("s_mul_i32 s28, s26, 16512")
    e("v_add_u32 v14, s28, v16")
    for i in range(8):
        for hf in range(2):
            e(f"ds_read_b128 {vr(192 + 8 * i + 4 * hf, 4)}, v14 offset:{2064 * i + 1024 * hf}")
    e("s_lshl_b32 s27, s36, 5")
    e("s_add_u32 s27, s27, s37")
    e("s_lshl_b32 s27, s27, 16")
    e("s_lshl_b32 s28, s26, 14")
    e("s_add_u32 s27, s27, s28")
    e(f"s_add_u32 s27, s27, {APART}")
    for i in range(8):
        for hf in range(2):
            n = 2 * i + hf
            if n and n % 4 == 0:
                e("s_add_u32 s27, s27, 4096")
            e(f"s_waitcnt lgkmcnt({15 - n})")
            e(f"buffer_store_dwordx4 {vr(192 + 8 * i + 4 * hf, 4)}, v16, s[20:23], s27 offen offset:{(n % 4) * 1024}")
    e("s_cmp_lg_u32 s26, 0")
    e("s_cbranch_scc1 KM_ASTAT_DONE")
    for w in range(4):
        e(f"ds_read_b32 v{12 + w}, v18 offset:{LX - MX + 128 * w}")
    e("s_waitcnt lgkmcnt(0)")
    e("v_add_f32 v12, v12, v13")
    e("v_add_f32 v14, v14, v15")
    e("v_add_f32 v9, v12, v14")
    e("v_lshlrev_b32 v14, 8, v11")
    e("s_lshl_b32 s27, s36, 13")
    e("s_lshl_b32 s28, s37, 3")
    e("s_add_u32 s27, s27, s28")
    e(f"s_add_u32 s27, s27, {ASTAT}")
    e(f"buffer_store_dwordx2 v[8:9], v14, s[20:23], s27 offen")
    lab("KM_ASTAT_DONE")
    prof_mark(2)
    e("s_branch KM_END")
    lab("KM_BONLY")
    e("s_sub_u32 s27, s25, 1")
    e("s_mul_i32 s27, s27, 163840")
    e("s_add_u32 s31, s30, s27")
    e("v_mov_b32 v8, 0xff800000")
    for j in range(9, 18):
        e(f"v_mov_b32 v{j}, 0")
    D1 = int(os.environ.get("D1", "2"))
    A1 = int(os.environ.get("A1", "0"))
    e("s_cmp_eq_u32 s25, 1")
    e("s_cbranch_scc0 KM_B5")
    e("s_sub_u32 s31, s31, 32768")
    bsched(6, lambda c: A1 if c < D1 else 3)
    e("s_branch KM_BFIN")
    lab("KM_B5")
    bsched(5, lambda c: A1 if c < D1 else 3)
    lab("KM_BFIN")
    prof_mark(3)
    e("v_lshrrev_b32 v18, 4, v1")
    e("s_lshl_b32 s27, s26, 2")
    e("v_add_u32 v18, s27, v18")
    e("v_and_b32 v19, 15, v1")
    e("v_lshlrev_b32 v20, 9, v18")
    e("v_lshl_add_u32 v20, v19, 5, v20")
    e(f"v_add_u32 v20, {BO}, v20")
    e(f"ds_write_b128 v20, {vr(10, 4)}")
    e(f"ds_write_b128 v20, {vr(14, 4)} offset:16")
    e("v_lshlrev_b32 v21, 3, v18")
    e(f"v_add_u32 v21, {BS}, v21")
    e("ds_write_b64 v21, v[8:9]")
    e("s_waitcnt lgkmcnt(0)")
    e("s_barrier")
    e("s_cmp_ge_u32 s26, 2")
    e("s_cbranch_scc1 KM_BDONE")
    e(f"v_mov_b32 v21, {BS}")
    for s in range(16):
        e(f"ds_read_b64 {vr(64 + 2 * s, 2)}, v21 offset:{8 * s}")
    e("v_lshlrev_b32 v20, 2, v0")
    e(f"v_add_u32 v20, {BO}, v20")
    for s in range(16):
        e(f"ds_read_b32 v{96 + s}, v20 offset:{512 * s}")
    e("s_waitcnt lgkmcnt(0)")
    e("v_max3_f32 v8, v64, v66, v68")
    for s in range(3, 15, 2):
        e(f"v_max3_f32 v8, v8, v{64 + 2 * s}, v{66 + 2 * s}")
    e("v_max_f32 v8, v8, v94")
    for s in range(16):
        e(f"v_sub_f32 v{64 + 2 * s}, v{64 + 2 * s}, v8")
    for s in range(16):
        e(f"v_exp_f32 v{64 + 2 * s}, v{64 + 2 * s}")
    e("s_nop 0")
    e("v_mul_f32 v9, v64, v65")
    e("v_mul_f32 v10, v64, v96")
    for s in range(1, 16):
        e(f"v_fmac_f32 v9, v{64 + 2 * s}, v{65 + 2 * s}")
        e(f"v_fmac_f32 v10, v{64 + 2 * s}, v{96 + s}")
    e("s_lshl_b32 s27, s24, 2")
    e("s_add_u32 s27, s27, s25")
    e("s_lshl_b32 s28, s27, 9")
    e(f"s_add_u32 s28, s28, {BPART}")
    e("v_lshlrev_b32 v20, 2, v0")
    e(f"buffer_store_dword v10, v20, s[20:23], s28 offen")
    e("s_lshl_b32 s28, s27, 3")
    e(f"s_add_u32 s28, s28, {BSTAT}")
    e("v_mov_b32 v20, 0")
    e(f"buffer_store_dwordx2 v[8:9], v20, s[20:23], s28 offen")
    lab("KM_BDONE")
    lab("KM_END")
    e("s_endpgm")
    kernel_desc(L, 512, 256)
    return f"; @launch kernel={L} grid=(256,1,1) block=(256,1,1) lds={KM_LDS}"


OPA = 0x600000


def k3():
    L = "k3_kernel"
    kernel_header(L)
    e("s_cmp_ge_u32 s2, 512")
    e("s_cbranch_scc1 K3_END")
    srd(20, "ws")
    e("v_and_b32 v1, 63, v0")
    e("v_lshrrev_b32 v2, 6, v0")
    e("s_nop 0")
    e("v_readfirstlane_b32 s26, v2")
    e("s_bfe_u32 s52, s2, 0x20006")
    e("s_and_b32 s53, s2, 63")
    e("s_and_b32 s54, s2, 31")
    e("s_bfe_u32 s55, s2, 0x10005")
    e("s_lshr_b32 s56, s2, 8")
    e("s_cmp_lg_u32 s56, 0")
    e("s_cbranch_scc1 K3_LB")
    srd(16, "A_wo"); srd(12, "A_wuv")
    e("s_branch K3_LD")
    lab("K3_LB")
    srd(16, "B_wo")
    lab("K3_LD")
    e("v_lshrrev_b32 v44, 2, v0")
    e("v_and_b32 v45, 3, v0")
    e("v_lshlrev_b32 v46, 16, v44")
    e("v_lshl_add_u32 v46, v45, 4, v46")
    e("v_lshlrev_b32 v16, 4, v1")
    e("s_waitcnt lgkmcnt(0)")
    srd_fin(16, "A_wo"); srd_fin(20, "ws")
    e("s_lshl_b32 s28, s54, 17")
    e("s_lshl_b32 s29, s52, 15")
    e("s_add_u32 s28, s28, s29")
    e("s_lshl_b32 s29, s26, 13")
    e("s_add_u32 s28, s28, s29")
    for i in range(8):
        if i == 4:
            e("s_add_u32 s28, s28, 4096")
        e(f"buffer_load_dwordx4 {vr(160 + 4 * i, 4)}, v16, s[16:19], s28 offen offset:{(i % 4) * 1024} nt")
    e("s_cmp_lg_u32 s56, 0")
    e("s_cbranch_scc1 K3_B")
    srd_fin(12, "A_wuv")
    e("s_lshl_b32 s28, s54, 8")
    e("s_lshl_b32 s29, s52, 6")
    e("s_add_u32 s28, s28, s29")
    for i in range(8):
        e(f"buffer_load_dwordx4 {vr(128 + 4 * i, 4)}, v46, s[12:15], s28 offen nt")
        e("s_add_u32 s28, s28, 8192")
    e("v_lshlrev_b32 v4, 3, v0")
    e("v_mov_b32 v5, 0")
    e("s_lshl_b32 s28, s53, 8")
    e(f"s_add_u32 s28, s28, {ASTAT}")
    for k in range(16):
        e(f"buffer_load_dwordx4 {vr(64 + 4 * k, 4)}, v5, s[20:23], s28 offen offset:{16 * k}")
    e("s_lshl_b32 s28, s55, 21")
    e("s_lshl_b32 s29, s54, 11")
    e("s_add_u32 s28, s28, s29")
    e(f"s_add_u32 s28, s28, {APART}")
    for s in range(32):
        e(f"buffer_load_dwordx2 {vr(192 + 2 * s, 2)}, v4, s[20:23], s28 offen")
        e("s_add_u32 s28, s28, 0x10000")
    e("s_waitcnt vmcnt(32)")
    e("v_max3_f32 v5, v64, v66, v68")
    for s in range(3, 31, 2):
        e(f"v_max3_f32 v5, v5, v{64 + 2 * s}, v{66 + 2 * s}")
    e("v_max_f32 v5, v5, v126")
    for s in range(32):
        e(f"v_sub_f32 v{64 + 2 * s}, v{64 + 2 * s}, v5")
    for s in range(32):
        e(f"v_exp_f32 v{64 + 2 * s}, v{64 + 2 * s}")
    e("s_nop 0")
    e("v_mul_f32 v6, v64, v65")
    for s in range(1, 32):
        e(f"v_fmac_f32 v6, v{64 + 2 * s}, v{65 + 2 * s}")
    e("v_rcp_f32 v6, v6")
    e("v_mov_b32 v40, 0")
    e("v_mov_b32 v41, 0")
    for s in range(32):
        e(f"s_waitcnt vmcnt({31 - s})")
        e(f"v_fmac_f32 v40, v{64 + 2 * s}, v{192 + 2 * s}")
        e(f"v_fmac_f32 v41, v{64 + 2 * s}, v{193 + 2 * s}")
    e("v_mul_f32 v40, v40, v6")
    e("v_mul_f32 v41, v41, v6")
    e("ds_write_b64 v4, v[40:41]")
    e("s_waitcnt lgkmcnt(0)")
    e("s_barrier")
    e("v_lshlrev_b32 v5, 5, v44")
    e(f"ds_read_b128 {vr(8, 4)}, v5")
    e(f"ds_read_b128 {vr(12, 4)}, v5 offset:16")
    for k in range(8):
        e(f"v_mov_b32 v{24 + k}, 0")
    e("s_waitcnt lgkmcnt(0)")
    for i in range(8):
        for k in range(4):
            unpack2(32 + 2 * k, 33 + 2 * k, 128 + 4 * i + k)
        for k in range(8):
            e(f"v_fmac_f32 v{24 + k}, v{32 + k}, v{8 + i}")
    e("v_lshlrev_b32 v5, 7, v44")
    e("v_lshl_add_u32 v5, v45, 5, v5")
    e(f"ds_write_b128 v5, {vr(24, 4)} offset:2048")
    e(f"ds_write_b128 v5, {vr(28, 4)} offset:2064")
    e("s_waitcnt lgkmcnt(0)")
    e("s_barrier")
    e("v_and_b32 v5, 31, v1")
    e("v_lshrrev_b32 v6, 5, v1")
    e("v_lshlrev_b32 v5, 2, v5")
    e("v_lshl_add_u32 v5, v6, 12, v5")
    for g in range(32):
        e(f"ds_read_b32 v{64 + g}, v5 offset:{2048 + 128 * g}")
    e("s_waitcnt lgkmcnt(0)")
    for n in (16, 8, 4, 2, 1):
        for g in range(n):
            e(f"v_add_f32 v{64 + g}, v{64 + g}, v{64 + n + g}")
    e("v_mov_b32 v65, v64")
    e("s_nop 1")
    e("v_permlane32_swap_b32 v64, v65")
    e("s_nop 1")
    e("v_add_f32 v64, v64, v65")
    e("v_cvt_pk_bf16_f32 v64, v64, v64")
    e("v_lshlrev_b32 v64, 16, v64")
    e("s_branch K3_OUT")
    lab("K3_B")
    e("v_mov_b32 v5, 0")
    e("s_lshl_b32 s28, s53, 5")
    e(f"s_add_u32 s28, s28, {BSTAT}")
    e(f"buffer_load_dwordx2 v[10:11], v5, s[20:23], s28 offen offset:8")
    e(f"buffer_load_dwordx4 v[12:15], v5, s[20:23], s28 offen offset:16")
    e("v_and_b32 v5, 31, v1")
    e("v_lshlrev_b32 v5, 2, v5")
    e("s_lshl_b32 s28, s53, 11")
    e("s_lshl_b32 s29, s52, 7")
    e("s_add_u32 s28, s28, s29")
    e(f"s_add_u32 s28, s28, {BPART}")
    for r in range(1, 4):
        e(f"buffer_load_dword v{64 + r}, v5, s[20:23], s28 offen offset:{512 * r}")
    e("s_waitcnt vmcnt(0)")
    e("v_max3_f32 v56, v10, v12, v14")
    for r in range(1, 4):
        e(f"v_sub_f32 v{8 + 2 * r}, v{8 + 2 * r}, v56")
    for r in range(1, 4):
        e(f"v_exp_f32 v{8 + 2 * r}, v{8 + 2 * r}")
    e("s_nop 0")
    e("v_mul_f32 v57, v10, v11")
    e("v_mul_f32 v58, v10, v65")
    for r in range(2, 4):
        e(f"v_fmac_f32 v57, v{8 + 2 * r}, v{9 + 2 * r}")
        e(f"v_fmac_f32 v58, v{8 + 2 * r}, v{64 + r}")
    e("v_rcp_f32 v57, v57")
    e("s_nop 0")
    e("v_mul_f32 v58, v58, v57")
    e("v_cvt_pk_bf16_f32 v58, v58, v58")
    e("v_lshlrev_b32 v64, 16, v58")
    lab("K3_OUT")
    e("s_lshl_b32 s30, s26, 3")
    for k in range(8):
        e(f"v_mov_b32 v{24 + k}, 0")
    e("s_waitcnt vmcnt(0)")
    for i in range(8):
        e(f"s_add_u32 s31, s30, {i}")
        e(f"v_readlane_b32 s{60 + i}, v64, s31")
    for i in range(8):
        for k in range(4):
            unpack2(32 + 2 * k, 33 + 2 * k, 160 + 4 * i + k)
        for k in range(8):
            e(f"v_fmac_f32 v{24 + k}, s{60 + i}, v{32 + k}")
    e("s_barrier")
    e("v_lshlrev_b32 v5, 5, v1")
    e("s_lshl_b32 s30, s26, 11")
    e("v_add_u32 v5, s30, v5")
    e(f"ds_write_b128 v5, {vr(24, 4)}")
    e(f"ds_write_b128 v5, {vr(28, 4)} offset:16")
    e("s_waitcnt lgkmcnt(0)")
    e("s_barrier")
    e("v_lshlrev_b32 v5, 3, v0")
    for w in range(4):
        e(f"ds_read_b64 {vr(8 + 2 * w, 2)}, v5 offset:{2048 * w}")
    e("s_waitcnt lgkmcnt(0)")
    e("v_add_f32 v8, v8, v10")
    e("v_add_f32 v9, v9, v11")
    e("v_add_f32 v12, v12, v14")
    e("v_add_f32 v13, v13, v15")
    e("v_add_f32 v8, v8, v12")
    e("v_add_f32 v9, v9, v13")
    e("s_lshl_b32 s28, s56, 19")
    e("s_lshl_b32 s29, s55, 18")
    e("s_add_u32 s28, s28, s29")
    e("s_lshl_b32 s29, s54, 13")
    e("s_add_u32 s28, s28, s29")
    e("s_lshl_b32 s29, s52, 11")
    e("s_add_u32 s28, s28, s29")
    e(f"s_add_u32 s28, s28, {OPA}")
    e("buffer_store_dwordx2 v[8:9], v5, s[20:23], s28 offen")
    lab("K3_END")
    e("s_endpgm")
    kernel_desc(L, 256, 256)
    return f"; @launch kernel={L} grid=(512,1,1) block=(256,1,1) lds=10240"


def k4():
    L = "k4_kernel"
    kernel_header(L)
    e("s_cmp_ge_u32 s2, 32")
    e("s_cbranch_scc1 K4_END")
    srd(20, "ws"); srd(8, "out")
    e("s_lshr_b32 s24, s2, 3")
    e("s_and_b32 s25, s2, 7")
    e("v_and_b32 v1, 15, v0")
    e("v_lshrrev_b32 v2, 4, v0")
    e("v_lshlrev_b32 v3, 14, v2")
    e("v_lshl_add_u32 v3, v1, 4, v3")
    e("s_lshl_b32 s26, s24, 18")
    e("s_lshl_b32 s27, s25, 8")
    e("s_add_u32 s26, s26, s27")
    e(f"s_add_u32 s26, s26, {OPA}")
    e("s_waitcnt lgkmcnt(0)")
    srd_fin(20, "ws"); srd_fin(8, "out")
    for i in range(8):
        if i % 2 == 0 and i:
            e("s_add_u32 s26, s26, 4096")
        e(f"buffer_load_dwordx4 {vr(8 + 4 * i, 4)}, v3, s[20:23], s26 offen offset:{(i % 2) * 2048}")
    e("s_waitcnt vmcnt(0)")
    for n in (4, 2, 1):
        for i in range(n):
            for k in range(4):
                e(f"v_add_f32 v{8 + 4 * i + k}, v{8 + 4 * i + k}, v{8 + 4 * (i + n) + k}")
    e("v_lshlrev_b32 v4, 4, v0")
    e(f"ds_write_b128 v4, {vr(8, 4)}")
    e("s_waitcnt lgkmcnt(0)")
    e("s_barrier")
    e("v_cmp_gt_u32 vcc, 64, v0")
    e("s_and_saveexec_b64 s[28:29], vcc")
    e("s_cbranch_execz K4_END")
    e("v_lshlrev_b32 v4, 2, v0")
    for g in range(16):
        e(f"ds_read_b32 v{8 + g}, v4 offset:{256 * g}")
    e("s_waitcnt lgkmcnt(0)")
    for n in (8, 4, 2, 1):
        for g in range(n):
            e(f"v_add_f32 v{8 + g}, v{8 + g}, v{8 + n + g}")
    e("v_cvt_pk_bf16_f32 v8, v8, v8")
    e("s_and_b32 s26, s24, 1")
    e("s_lshl_b32 s26, s26, 11")
    e("s_lshr_b32 s27, s24, 1")
    e("s_lshl_b32 s27, s27, 10")
    e("s_add_u32 s26, s26, s27")
    e("s_lshl_b32 s27, s25, 7")
    e("s_add_u32 s26, s26, s27")
    e("v_lshlrev_b32 v4, 1, v0")
    e("buffer_store_short v8, v4, s[8:11], s26 offen")
    lab("K4_END")
    e("s_endpgm")
    kernel_desc(L, 48, 48)
    return f"; @launch kernel={L} grid=(32,1,1) block=(256,1,1) lds=4096"


LAUNCHES = []


def main():
    LAUNCHES.append(k1())
    LAUNCHES.append(km())
    LAUNCHES.append(k3())
    LAUNCHES.append(k4())
    head = open(f"cdna_kernels/{NAME}.s.ref").read().split("; Override launch")[0]
    txt = head + "\n".join(LAUNCHES) + "\n"
    txt += '.amdgcn_target "amdgcn-amd-amdhsa--gfx950"\n.text\n'
    txt += "\n".join(out) + "\n"
    txt += '.section .rodata,"a"\n' + "\n".join(descs) + "\n"
    path = sys.argv[1] if len(sys.argv) > 1 else f"cdna_kernels/{NAME}.s"
    open(path, "w").write(txt)


if __name__ == "__main__":
    main()
```

```python
import sys

NAME = "concat_heads__compressed_kv_cla__sliding_block_cached__decode"

KA = dict(A_x=0, A_ckv=8, A_wq=16, A_wuk=24, A_wuv=32, A_wo=40, B_x=48, B_k=56, B_v=64,
          B_wq=72, B_wo=80, out=88, dbg=96, ws=104)
SZ = dict(A_x=2048, A_ckv=16777216, A_wq=4194304, A_wuk=4194304, A_wuv=4194304, A_wo=4194304,
          B_x=2048, B_k=134217728, B_v=134217728, B_wq=4194304, B_wo=4194304, out=4096, dbg=256,
          ws=536870912)

QA_HI = 0x00000
QA_LO = 0x10000
QB = 0x20000
ASTAT = 0x30000
BPART = 0x40000
BSTAT = 0x60000
CTX = 0x70000
OPART = 0x80000
APART = 0x100000

SCALE_BITS = 0x3DB504F3
LOG2E_BITS = 0x3FB8AA3B

out = []
import os
DEBUG = bool(os.environ.get('DEBUG'))
PROF = bool(os.environ.get('PROF'))
HIONLY = bool(os.environ.get('HIONLY'))
PROFBASE = 0xC00000


def prof_start():
    if PROF:
        e("s_memrealtime s[90:91]")


def prof_mark(slot, t=21):
    if PROF:
        e("s_memrealtime s[92:93]")
        e("s_waitcnt lgkmcnt(0)")
        e("s_sub_u32 s92, s92, s90")
        e(f"v_mov_b32 v{t}, s92")
        e("s_lshl_b32 s94, s2, 7")
        e(f"s_add_u32 s94, s94, {PROFBASE + prof_kernel[0] * 0x10000 + slot * 4}")
        e(f"v_lshrrev_b32 v{t+1}, 6, v0")
        e(f"v_lshlrev_b32 v{t+1}, 5, v{t+1}")
        e(f"buffer_store_dword v{t}, v{t+1}, s[20:23], s94 offen")


prof_kernel = [0]


def e(s):
    out.append("    " + s)


def lab(s):
    out.append(s + ":")


def srd(dst, name):
    e(f"s_load_dwordx2 s[{dst}:{dst+1}], s[0:1], {KA[name]}")


def srd_fin(dst, name):
    e(f"s_mov_b32 s{dst+2}, {SZ[name]}")
    e(f"s_mov_b32 s{dst+3}, 0x20000")


def vr(a, n):
    return f"v[{a}:{a+n-1}]"


def ar(a, n):
    return f"a[{a}:{a+n-1}]"


def kernel_header(label):
    out.append(f".globl {label}")
    out.append(".p2align 8")
    out.append(f".type {label},@function")
    lab(label)


descs = []


def kernel_desc(label, vgpr, accum, sgpr=102):
    descs.append(f""".p2align 6
.amdhsa_kernel {label}
  .amdhsa_next_free_vgpr {vgpr}
  .amdhsa_next_free_sgpr {sgpr}
  .amdhsa_accum_offset {accum}
  .amdhsa_group_segment_fixed_size 0
  .amdhsa_kernarg_size 112
  .amdhsa_user_sgpr_count 2
  .amdhsa_user_sgpr_kernarg_segment_ptr 1
  .amdhsa_system_sgpr_workgroup_id_x 1
.end_amdhsa_kernel""")


def unpack2(dlo, dhi, src):
    e(f"v_lshlrev_b32 v{dlo}, 16, v{src}")
    e(f"v_and_b32 v{dhi}, 0xffff0000, v{src}")


def gemv_rows(nrows, wbase, xbase0, xbase1, acc, tmp, xt, vm_after):
    for i in range(nrows):
        e(f"s_waitcnt vmcnt({nrows - 1 - i + vm_after})")
        if i % 2 == 0:
            e(f"v_lshlrev_b32 v{xt}, 16, v{xbase0 + i // 2}")
            e(f"v_lshlrev_b32 v{xt+1}, 16, v{xbase1 + i // 2}")
        else:
            e(f"v_and_b32 v{xt}, 0xffff0000, v{xbase0 + i // 2}")
            e(f"v_and_b32 v{xt+1}, 0xffff0000, v{xbase1 + i // 2}")
        for k in range(4):
            unpack2(tmp + 2 * k, tmp + 2 * k + 1, wbase + 4 * i + k)
        for k in range(8):
            e(f"v_fmac_f32 v{acc + k}, v{tmp + k}, v{xt}")
            e(f"v_fmac_f32 v{acc + 8 + k}, v{tmp + k}, v{xt+1}")


def k1():
    L = "k1_kernel"
    kernel_header(L)
    e("s_cmp_ge_u32 s2, 192")
    e("s_cbranch_scc1 K1_END")
    e("s_cmp_ge_u32 s2, 128")
    e("s_cbranch_scc1 K1_B")
    srd(8, "A_x"); srd(12, "A_wq"); srd(16, "A_wuk"); srd(20, "ws")
    e("s_and_b32 s24, s2, 31")
    e("s_lshr_b32 s25, s2, 5")
    e("v_and_b32 v1, 15, v0")
    e("v_lshrrev_b32 v2, 4, v0")
    e("v_lshlrev_b32 v3, 18, v2")
    e("v_lshl_add_u32 v3, v1, 4, v3")
    e("v_lshlrev_b32 v4, 6, v2")
    e("v_lshlrev_b32 v5, 13, v2")
    e("v_lshl_add_u32 v5, v1, 4, v5")
    e("s_lshl_b32 s26, s24, 8")
    e("s_waitcnt lgkmcnt(0)")
    srd_fin(8, "A_x"); srd_fin(12, "A_wq"); srd_fin(16, "A_wuk"); srd_fin(20, "ws")
    for b in range(2):
        for k in range(4):
            e(f"buffer_load_dwordx4 {vr(8 + 16 * b + 4 * k, 4)}, v4, s[8:11], 0 offen offset:{1024 * b + 16 * k}")
    e("s_mov_b32 s27, s26")
    for i in range(32):
        e(f"buffer_load_dwordx4 {vr(40 + 4 * i, 4)}, v3, s[12:15], s27 offen nt")
        e("s_add_u32 s27, s27, 8192")
    e("s_lshl_b32 s27, s25, 20")
    e("s_add_u32 s27, s27, s26")
    for i in range(8):
        e(f"buffer_load_dwordx4 {vr(168 + 4 * i, 4)}, v5, s[16:19], s27 offen nt")
        e("s_add_u32 s27, s27, 0x20000")
    for k in range(16):
        e(f"v_mov_b32 v{200 + k}, 0")
    gemv_rows(32, 40, 8, 24, 200, 218, 216, 8)
    e("v_lshlrev_b32 v6, 10, v2")
    e("v_lshl_add_u32 v6, v1, 5, v6")
    e(f"ds_write_b128 v6, {vr(200, 4)}")
    e(f"ds_write_b128 v6, {vr(204, 4)} offset:16")
    e(f"ds_write_b128 v6, {vr(208, 4)} offset:512")
    e(f"ds_write_b128 v6, {vr(212, 4)} offset:528")
    e("s_waitcnt lgkmcnt(0)")
    e("s_barrier")
    e("v_lshlrev_b32 v6, 2, v0")
    for g in range(16):
        e(f"ds_read_b32 v{8 + g}, v6 offset:{1024 * g}")
    e("s_waitcnt lgkmcnt(0)")
    for g in range(1, 16):
        e(f"v_add_f32 v8, v8, v{8 + g}")
    e("v_cvt_pk_bf16_f32 v8, v8, v8")
    e("v_lshlrev_b32 v6, 1, v0")
    e("ds_write_b16 v6, v8 offset:16384")
    e("s_waitcnt lgkmcnt(0)")
    e("s_barrier")
    e("v_lshlrev_b32 v6, 4, v1")
    e(f"ds_read_b128 {vr(8, 4)}, v6 offset:16384")
    e(f"ds_read_b128 {vr(12, 4)}, v6 offset:16640")
    e("s_waitcnt vmcnt(0) lgkmcnt(0)")
    for k in range(4):
        for i in range(8):
            for b in range(2):
                d = 24 + 2 * i + b
                c = "0" if k == 0 else f"v{d}"
                e(f"v_dot2_f32_bf16 v{d}, v{168 + 4 * i + k}, v{8 + 4 * b + k}, {c}")
    e("s_nop 3")
    for sh in (8, 4, 2, 1):
        for d in range(24, 40):
            e(f"v_add_f32_dpp v{d}, v{d}, v{d} row_ror:{sh} row_mask:0xf bank_mask:0xf")
        e("s_nop 1")
    e("v_lshlrev_b32 v6, 2, v2")
    for i in range(8):
        for b in range(2):
            e(f"ds_write_b32 v6, v{24 + 2 * i + b} offset:{16896 + 512 * b + 64 * i}")
    e("s_waitcnt lgkmcnt(0)")
    e("s_barrier")
    e("v_cmp_gt_u32 vcc, 32, v0")
    e("s_and_saveexec_b64 s[28:29], vcc")
    e("s_cbranch_execz K1_END")
    e("v_lshlrev_b32 v6, 5, v0")
    e(f"ds_read_b128 {vr(8, 4)}, v6 offset:16896")
    e(f"ds_read_b128 {vr(12, 4)}, v6 offset:16912")
    e("s_waitcnt lgkmcnt(0)")
    for k in range(4):
        a, b_ = 8 + 2 * k, 9 + 2 * k
        e(f"v_cvt_pk_bf16_f32 v{16 + k}, v{a}, v{b_}")
        unpack2(24, 25, 16 + k)
        e(f"v_sub_f32 v24, v{a}, v24")
        e(f"v_sub_f32 v25, v{b_}, v25")
        e(f"v_cvt_pk_bf16_f32 v{20 + k}, v24, v25")
    e("v_lshrrev_b32 v6, 4, v0")
    e("v_and_b32 v7, 15, v0")
    e("v_lshrrev_b32 v24, 1, v7")
    e("v_and_b32 v25, 1, v7")
    e("v_lshlrev_b32 v6, 15, v6")
    e("v_lshl_add_u32 v6, v24, 10, v6")
    e("v_lshl_add_u32 v6, v25, 9, v6")
    e("s_lshl_b32 s27, s25, 13")
    e("s_lshl_b32 s28, s24, 4")
    e("s_add_u32 s27, s27, s28")
    e(f"buffer_store_dwordx4 {vr(16, 4)}, v6, s[20:23], s27 offen")
    e(f"s_add_u32 s27, s27, {QA_LO}")
    e(f"buffer_store_dwordx4 {vr(20, 4)}, v6, s[20:23], s27 offen")
    e("s_branch K1_END")
    lab("K1_B")
    srd(8, "B_x"); srd(12, "B_wq"); srd(20, "ws")
    e("s_sub_u32 s3, s2, 128")
    e("s_and_b32 s24, s3, 31")
    e("s_lshr_b32 s25, s3, 5")
    e("v_and_b32 v1, 7, v0")
    e("v_lshrrev_b32 v2, 3, v0")
    e("v_lshlrev_b32 v3, 17, v2")
    e("v_lshl_add_u32 v3, v1, 4, v3")
    e("v_lshlrev_b32 v4, 5, v2")
    e("s_lshl_b32 s26, s24, 8")
    e("s_lshl_b32 s27, s25, 7")
    e("s_add_u32 s26, s26, s27")
    e("s_waitcnt lgkmcnt(0)")
    srd_fin(8, "B_x"); srd_fin(12, "B_wq"); srd_fin(20, "ws")
    for b in range(2):
        for k in range(2):
            e(f"buffer_load_dwordx4 {vr(8 + 8 * b + 4 * k, 4)}, v4, s[8:11], 0 offen offset:{1024 * b + 16 * k}")
    e("s_mov_b32 s27, s26")
    for i in range(16):
        e(f"buffer_load_dwordx4 {vr(40 + 4 * i, 4)}, v3, s[12:15], s27 offen nt")
        e("s_add_u32 s27, s27, 8192")
    for k in range(16):
        e(f"v_mov_b32 v{200 + k}, 0")
    gemv_rows(16, 40, 8, 16, 200, 218, 216, 0)
    e("v_lshlrev_b32 v6, 9, v2")
    e("v_lshl_add_u32 v6, v1, 5, v6")
    e(f"ds_write_b128 v6, {vr(200, 4)}")
    e(f"ds_write_b128 v6, {vr(204, 4)} offset:16")
    e(f"ds_write_b128 v6, {vr(208, 4)} offset:256")
    e(f"ds_write_b128 v6, {vr(212, 4)} offset:272")
    e("s_waitcnt lgkmcnt(0)")
    e("s_barrier")
    e("v_cmp_gt_u32 vcc, 128, v0")
    e("s_and_saveexec_b64 s[28:29], vcc")
    e("s_cbranch_execz K1_END")
    e("v_lshlrev_b32 v6, 2, v0")
    for g in range(32):
        e(f"ds_read_b32 v{8 + g}, v6 offset:{512 * g}")
    e("s_waitcnt lgkmcnt(0)")
    for g in range(1, 32):
        e(f"v_add_f32 v8, v8, v{8 + g}")
    e("v_cvt_pk_bf16_f32 v8, v8, v8")
    e("v_lshrrev_b32 v6, 6, v0")
    e("v_and_b32 v7, 63, v0")
    e("v_lshlrev_b32 v6, 13, v6")
    e("v_lshl_add_u32 v6, v7, 1, v6")
    e(f"s_add_u32 s27, s26, {QB}")
    e("buffer_store_short v8, v6, s[20:23], s27 offen")
    lab("K1_END")
    e("s_endpgm")
    kernel_desc(L, 232, 232)
    return f"; @launch kernel={L} grid=(192,1,1) block=(256,1,1) lds=18432"


MX = 131072
LX = 131584
PX = 132096
BO = 140288
RS = PX
BS = BO + 8192
KM_LDS = BS + 128
C3 = 132
C4 = 136
C5 = 168
C6 = 200
SC = " sc1"


def fsw(r):
    return ((r & 3) << 2) | ((r >> 2) & 3)


def bloads(K, V, soff):
    for (base, srdn) in ((K, 12), (V, 16)):
        for i in range(8):
            va = 6 if i < 4 else 7
            e(f"buffer_load_dwordx4 {vr(base + 4 * i, 4)}, v{va}, s[{srdn}:{srdn+3}], s{soff} offen offset:{(i % 4) * 1024} nt")


def round_scale(a, b, t):
    e(f"v_cvt_pk_bf16_f32 v{t}, v{a}, v{b}")
    unpack2(a, b, t)
    e(f"v_mul_f32 v{a}, s34, v{a}")
    e(f"v_mul_f32 v{b}, s34, v{b}")
    e(f"v_cvt_pk_bf16_f32 v{t}, v{a}, v{b}")
    unpack2(a, b, t)
    e(f"v_mul_f32 v{a}, s35, v{a}")
    e(f"v_mul_f32 v{b}, s35, v{b}")


def bscore(K):
    for k in range(4):
        for i in range(8):
            c = "0" if k == 0 else f"v{18+i}"
            e(f"v_dot2_f32_bf16 v{18+i}, v{K + 4*i + k}, v{2+k}, {c}")
    for sh in (8, 4, 2, 1):
        for i in range(8):
            e(f"v_add_f32_dpp v{18+i}, v{18+i}, v{18+i} row_ror:{sh} row_mask:0xf bank_mask:0xf")
    for i in range(0, 8, 2):
        round_scale(18 + i, 19 + i, 26)
    e("v_max3_f32 v26, v18, v19, v20")
    e("v_max3_f32 v26, v26, v21, v22")
    e("v_max3_f32 v26, v26, v23, v24")
    e("v_max3_f32 v26, v26, v25, v8")
    e("v_sub_f32 v27, v8, v26")
    e("v_exp_f32 v27, v27")
    e("v_mov_b32 v8, v26")
    for i in range(8):
        e(f"v_sub_f32 v{18+i}, v{18+i}, v26")
    for i in range(8):
        e(f"v_exp_f32 v{18+i}, v{18+i}")
    e("v_mul_f32 v9, v9, v27")
    for j in range(8):
        e(f"v_mul_f32 v{10+j}, v{10+j}, v27")
    for i in range(8):
        e(f"v_add_f32 v9, v9, v{18+i}")


def bpv(V):
    for i in range(8):
        for k in range(4):
            unpack2(34 + 2 * k, 35 + 2 * k, V + 4 * i + k)
        for j in range(8):
            e(f"v_fmac_f32 v{10+j}, v{34+j}, v{18+i}")


def bload1(base, srdn, soff):
    for i in range(8):
        va = 6 if i < 4 else 7
        e(f"buffer_load_dwordx4 {vr(base + 4 * i, 4)}, v{va}, s[{srdn}:{srdn+3}], s{soff} offen offset:{(i % 4) * 1024} nt")


def bsched(nunits, ahead):
    bufs = [(128, 160), (192, 224)]
    n = 2 * nunits
    issued = 0
    for c in range(n):
        while issued < n and issued <= c + min(ahead(c), 3):
            u, isv = issued >> 1, issued & 1
            if not isv:
                e("s_add_u32 s31, s31, 32768")
                e("s_mov_b32 s33, s31") if False else None
            e(f"s_mov_b32 s{60 + (u & 1)}, s31") if not isv else None
            bload1(bufs[u & 1][isv], 16 if isv else 12, 60 + (u & 1))
            issued += 1
        e(f"s_waitcnt vmcnt({8 * (issued - 1 - c)})")
        u, isv = c >> 1, c & 1
        if isv:
            bpv(bufs[u & 1][1])
        else:
            if u < 3:
                prof_mark(u)
            bscore(bufs[u & 1][0])


def dma_tile():
    for i in range(32):
        if i % 4 == 0:
            e(f"s_add_u32 m0, s41, {i * 1024}")
            e(f"s_add_u32 s42, s40, {i * 1024}")
        e(f"v_xor_b32 v11, {fsw(i & 15) * 16}, v16")
        e(f"buffer_load_dwordx4 v11, s[8:11], s42 offen offset:{(i % 4) * 1024} nt lds")


npoll = [0]


def poll(off, target, soff=None):
    n = npoll[0]
    npoll[0] += 1
    e("s_cmp_lg_u32 s26, 0")
    e(f"s_cbranch_scc1 POLL_DONE{n}")
    e("v_mov_b32 v22, 0")
    e("s_mov_b32 s44, 0x40000")
    if soff is None:
        e(f"s_mov_b32 s45, {off}")
        soff = 45
    lab(f"POLL{n}")
    e(f"buffer_load_dword v21, v22, s[48:51], s{soff} offen{SC}")
    e("s_waitcnt vmcnt(0)")
    e("v_readfirstlane_b32 s43, v21")
    e(f"s_cmp_ge_u32 s43, {target}")
    e(f"s_cbranch_scc1 POLL_DONE{n}")
    e("s_sleep 4")
    e("s_sub_u32 s44, s44, 1")
    e("s_cmp_lg_u32 s44, 0")
    e(f"s_cbranch_scc1 POLL{n}")
    lab(f"POLL_DONE{n}")
    e("s_barrier")


def signal(soffs):
    n = npoll[0]
    npoll[0] += 1
    e("s_waitcnt vmcnt(0)")
    e("s_barrier")
    e("s_cmp_lg_u32 s26, 0")
    e(f"s_cbranch_scc1 SIG_DONE{n}")
    e("v_mov_b32 v21, 1")
    e("v_mov_b32 v22, 0")
    e("s_mov_b64 s[46:47], exec")
    e("s_mov_b64 exec, 1")
    for so in soffs:
        e(f"buffer_atomic_add v21, v22, s[48:51], s{so} offen sc1")
    e("s_mov_b64 exec, s[46:47]")
    lab(f"SIG_DONE{n}")


filler = []


def fill(n=1):
    for _ in range(n):
        if filler:
            for ins in filler.pop(0):
                e(ins)


def tile_loads(defer=False):
    for i in range(32):
        g = []
        if i % 4 == 0:
            g.append(f"s_add_u32 s42, s40, {i * 1024}")
        g.append(f"buffer_load_dwordx4 {ar(128 + 4 * i, 4)}, v16, s[8:11], s42 offen offset:{(i % 4) * 1024} nt")
        filler.append(g)
    if not defer:
        fill(32)


def tile_to_lds():
    e("v_add_u32 v12, s41, v16")
    for i in range(32):
        e(f"v_xor_b32 v{13 + (i & 1)}, {fsw(i & 15) * 16}, v12")
        e(f"s_waitcnt vmcnt({31 - i})")
        e(f"ds_write_b128 v{13 + (i & 1)}, {ar(128 + 4 * i, 4)} offset:{i * 1024}")
    e("s_waitcnt lgkmcnt(0)")


def a_tile(first):
    seq = [(j, k) for j in range(4) for k in range(8)]

    def sread(n):
        j, k = seq[n]
        t = 22 + (n & 1)
        e(f"v_add_u32 v{t}, v{24 + j}, v{28 + k}")
        e(f"ds_read_b128 {vr(72 + 4 * (n % 8), 4)}, v{t}")
    for n in range(8):
        sread(n)
    for n in range(32):
        j, k = seq[n]
        e(f"s_waitcnt lgkmcnt({min(7, 31 - n)})")
        f = vr(72 + 4 * (n % 8), 4)
        acc = ar(64 + 16 * j, 16)
        c = "0" if k == 0 else acc
        e(f"v_mfma_f32_32x32x16_bf16 {acc}, {f}, {ar(4 * k, 4)}, {c}")
        if not HIONLY:
            e(f"v_mfma_f32_32x32x16_bf16 {acc}, {f}, {ar(32 + 4 * k, 4)}, {acc}")
        if n + 8 < 32:
            sread(n + 8)
        if n % 2 == 1:
            fill(1)
    e("s_nop 15")
    for i in range(16):
        e(f"v_accvgpr_read_b32 v{56 + i}, a{64 + i}")
    for j in range(1, 4):
        for q in range(4):
            e(f"ds_write_b128 v36, {ar(64 + 16 * j + 4 * q, 4)} offset:{1024 * q}")
        e("s_waitcnt lgkmcnt(0)")
        e("s_barrier")
        for q in range(4):
            e(f"ds_read_b128 {vr(72 + 4 * q, 4)}, v{36 + j} offset:{1024 * q}")
        e("s_waitcnt lgkmcnt(0)")
        if j < 3:
            e("s_barrier")
        fill(1)
        for i in range(16):
            e(f"v_add_f32 v{56 + i}, v{56 + i}, v{72 + i}")
    for i in range(0, 16, 2):
        round_scale(56 + i, 57 + i, 11)
        if i % 4 == 0:
            fill(1)
    e("v_max3_f32 v12, v56, v57, v58")
    for i in range(59, 71, 2):
        e(f"v_max3_f32 v12, v12, v{i}, v{i+1}")
    e("v_max_f32 v12, v12, v71")
    e("v_mov_b32 v13, v12")
    e("s_nop 1")
    e("v_permlane32_swap_b32 v12, v13")
    e("s_nop 1")
    e("v_max_f32 v12, v12, v13")
    e("ds_write_b32 v17, v12")
    e("s_waitcnt lgkmcnt(0)")
    e("s_barrier")
    for w in range(4):
        e(f"ds_read_b32 v{12 + w}, v18 offset:{128 * w}")
    e("s_waitcnt lgkmcnt(0)")
    e("v_max3_f32 v12, v12, v13, v14")
    e("v_max3_f32 v12, v12, v15, v8")
    e("v_sub_f32 v10, v8, v12")
    e("v_exp_f32 v10, v10")
    e("v_mov_b32 v8, v12")
    for i in range(16):
        e(f"v_sub_f32 v{56+i}, v{56+i}, v12")
    for i in range(16):
        e(f"v_exp_f32 v{56+i}, v{56+i}")
    e("v_mul_f32 v9, v9, v10")
    for i in range(16):
        e(f"v_add_f32 v9, v9, v{56+i}")
    for i in range(8):
        e(f"v_cvt_pk_bf16_f32 v{96+i}, v{56+2*i}, v{57+2*i}")
    e(f"ds_write_b128 v19, {vr(96, 4)}")
    e(f"ds_write_b128 v19, {vr(100, 4)} offset:1024")
    e("s_waitcnt lgkmcnt(0)")
    e("s_barrier")
    for tu in range(8):
        e(f"ds_read_b128 {vr(64 + 4 * tu, 4)}, v20 offset:{(tu >> 1) * 2048 + (tu & 1) * 1024}")
    if not first:
        for i in range(64):
            e(f"v_mul_f32 v{192+i}, v{192+i}, v10")

    def trreads(tu):
        t, u = tu >> 1, tu & 1
        bufb = 96 + 16 * (tu & 1)
        for cc in range(4):
            for v in range(2):
                a = 40 + 8 * (t >> 1) + 2 * cc + v
                off = (32 * (t & 1) + 16 * u + 8 * v) * 1024
                e(f"ds_read_b64_tr_b16 {vr(bufb + 4 * cc + 2 * v, 2)}, v{a} offset:{off}")
    trreads(0)
    for tu in range(8):
        if tu + 1 < 8:
            trreads(tu + 1)
            e("s_waitcnt lgkmcnt(8)")
        else:
            e("s_waitcnt lgkmcnt(0)")
        bufb = 96 + 16 * (tu & 1)
        for cc in range(4):
            acc = vr(192 + 16 * cc, 16)
            c = "0" if (first and tu == 0) else acc
            e(f"v_mfma_f32_32x32x16_bf16 {acc}, {vr(bufb + 4 * cc, 4)}, {vr(64 + 4 * tu, 4)}, {c}")
        fill(1)
    fill(99)


def km():
    L = "km_kernel"
    kernel_header(L)
    e("s_cmp_ge_u32 s2, 256")
    e("s_cbranch_scc1 KM_END")
    prof_kernel[0] = 1
    prof_start()
    srd(8, "A_ckv"); srd(12, "B_k"); srd(16, "B_v"); srd(20, "ws"); srd(48, "dbg")
    e("s_and_b32 s3, s2, 7")
    e("s_lshr_b32 s4, s2, 3")
    e("s_lshr_b32 s5, s3, 2")
    e("s_lshl_b32 s24, s4, 1")
    e("s_or_b32 s24, s24, s5")
    e("s_add_u32 s25, s3, s4")
    e("s_and_b32 s25, s25, 3")
    e("v_and_b32 v1, 63, v0")
    e("v_lshrrev_b32 v2, 6, v0")
    e("s_nop 0")
    e("v_readfirstlane_b32 s26, v2")
    e(f"s_mov_b32 s34, {SCALE_BITS:#x}")
    e(f"s_mov_b32 s35, {LOG2E_BITS:#x}")
    e("v_lshlrev_b32 v16, 4, v1")
    e("s_lshl_b32 s27, s26, 13")
    e("v_add_u32 v6, s27, v16")
    e("v_add_u32 v7, 4096, v6")
    e("v_and_b32 v8, 15, v1")
    e("v_lshlrev_b32 v8, 4, v8")
    e("s_lshl_b32 s27, s24, 8")
    e(f"s_add_u32 s27, s27, {QB}")
    e("s_lshl_b32 s30, s24, 21")
    e("s_add_u32 s30, s30, 1572864")
    e("s_waitcnt lgkmcnt(0)")
    srd_fin(8, "A_ckv"); srd_fin(12, "B_k"); srd_fin(16, "B_v"); srd_fin(20, "ws"); srd_fin(48, "dbg")
    e(f"buffer_load_dwordx4 {vr(2, 4)}, v8, s[20:23], s27 offen")
    e("s_cmp_ge_u32 s25, 2")
    e("s_cbranch_scc1 KM_BONLY")
    e("s_lshr_b32 s36, s24, 5")
    e("s_and_b32 s37, s24, 31")
    e("s_lshl_b32 s37, s37, 1")
    e("s_add_u32 s37, s37, s25")
    e("s_lshl_b32 s40, s36, 23")
    e("s_lshl_b32 s27, s37, 17")
    e("s_add_u32 s40, s40, s27")
    e("s_lshl_b32 s41, s26, 15")
    e("s_add_u32 s40, s40, s41")
    e("s_lshl_b32 s27, s36, 15")
    e("s_lshl_b32 s28, s26, 13")
    e("s_add_u32 s27, s27, s28")
    for part in range(1 if HIONLY else 2):
        for s in range(8):
            if s % 4 == 0:
                e(f"s_add_u32 s28, s27, {part * QA_LO + s * 1024}")
            e(f"buffer_load_dwordx4 {ar(32 * part + 4 * s, 4)}, v16, s[20:23], s28 offen offset:{(s % 4) * 1024}")
    tile_loads()
    e("v_and_b32 v56, 31, v1")
    e("v_lshrrev_b32 v57, 5, v1")
    e("v_and_b32 v58, 3, v1")
    e("v_lshlrev_b32 v58, 2, v58")
    e("v_bfe_u32 v59, v1, 2, 2")
    e("v_or_b32 v58, v58, v59")
    e("v_xor_b32 v58, v58, v57")
    e("v_lshlrev_b32 v58, 4, v58")
    for k in range(8):
        e(f"v_xor_b32 v{28 + k}, {32 * k}, v58")
    e("v_lshlrev_b32 v59, 10, v56")
    e("s_lshl_b32 s27, s26, 8")
    e("v_add_u32 v59, s27, v59")
    for j in range(4):
        e(f"s_add_u32 s27, s26, {j}")
        e("s_and_b32 s27, s27, 3")
        e("s_lshl_b32 s27, s27, 15")
        e(f"v_add_u32 v{24 + j}, s27, v59")
        e(f"s_sub_u32 s27, s26, {j}")
        e("s_and_b32 s27, s27, 3")
        e("s_lshl_b32 s27, s27, 12")
        e(f"s_add_u32 s27, s27, {RS}")
        e(f"v_add_u32 v{36 + j}, s27, v16")
    e("v_lshrrev_b32 v60, 4, v1")
    e("v_lshrrev_b32 v61, 5, v1")
    e("v_bfe_u32 v62, v1, 2, 2")
    e("v_and_b32 v63, 3, v1")
    e("v_and_b32 v64, 1, v60")
    e("v_lshlrev_b32 v64, 1, v64")
    e("v_lshrrev_b32 v65, 1, v63")
    e("v_add_u32 v64, v64, v65")
    e("v_lshl_or_b32 v65, v62, 2, v61")
    e("v_xor_b32 v64, v64, v65")
    e("v_lshlrev_b32 v64, 4, v64")
    e("v_and_b32 v65, 1, v63")
    e("v_lshl_add_u32 v64, v65, 3, v64")
    e("v_lshl_add_u32 v65, v61, 2, v62")
    e("v_lshl_add_u32 v64, v65, 10, v64")
    e("s_lshl_b32 s27, s26, 8")
    e("v_add_u32 v64, s27, v64")
    for cc in range(4):
        for v in range(2):
            e(f"v_xor_b32 v{40 + 2 * cc + v}, {64 * cc + 32 * v}, v64")
            e(f"v_add_u32 v{48 + 2 * cc + v}, 0x10000, v{40 + 2 * cc + v}")
    e("v_lshlrev_b32 v18, 2, v56")
    e(f"v_add_u32 v18, {MX}, v18")
    e("s_lshl_b32 s27, s26, 7")
    e("v_add_u32 v17, s27, v18")
    e(f"v_add_u32 v20, {PX}, v16")
    e("s_lshl_b32 s27, s26, 11")
    e("v_add_u32 v19, s27, v20")
    e("v_mov_b32 v8, 0xff800000")
    e("v_mov_b32 v9, 0")
    tile_to_lds()
    e("s_lshl_b32 s27, s25, 16")
    e("s_add_u32 s31, s30, s27")
    e("s_add_u32 s31, s31, 393216")
    for (base, srdn) in ((128, 12), (160, 16)):
        for i in range(8):
            va = 6 if i < 4 else 7
            filler.append([f"buffer_load_dwordx4 {vr(base + 4 * i, 4)}, v{va}, s[{srdn}:{srdn+3}], s31 offen offset:{(i % 4) * 1024} nt"])
            filler.append([])
    e("s_barrier")
    prof_mark(0)
    a_tile(True)
    prof_mark(1)
    e("v_mov_b32 v13, v9")
    e("s_nop 1")
    e("v_permlane32_swap_b32 v9, v13")
    e("s_nop 1")
    e("v_add_f32 v9, v9, v13")
    e(f"ds_write_b32 v17, v9 offset:{LX - MX}")
    e("s_nop 7")
    e("s_barrier")
    e("v_and_b32 v11, 31, v1")
    e("v_lshrrev_b32 v12, 5, v1")
    e("s_movk_i32 s27, 2064")
    e("v_mul_lo_u32 v14, v11, s27")
    e("v_lshl_add_u32 v14, v12, 4, v14")
    e("s_lshl_b32 s28, s26, 9")
    e("v_add_u32 v14, s28, v14")
    for cc in range(4):
        for q in range(4):
            e(f"ds_write_b128 v14, {vr(192 + 16 * cc + 4 * q, 4)} offset:{cc * 128 + q * 32}")
    e("s_waitcnt lgkmcnt(0)")
    e("s_barrier")
    e("s_mul_i32 s28, s26, 16512")
    e("v_add_u32 v14, s28, v16")
    for i in range(8):
        for hf in range(2):
            e(f"ds_read_b128 {vr(192 + 8 * i + 4 * hf, 4)}, v14 offset:{2064 * i + 1024 * hf}")
    e("s_lshl_b32 s27, s36, 6")
    e("s_add_u32 s27, s27, s37")
    e("s_lshl_b32 s27, s27, 16")
    e("s_lshl_b32 s28, s26, 14")
    e("s_add_u32 s27, s27, s28")
    e(f"s_add_u32 s27, s27, {APART}")
    for i in range(8):
        for hf in range(2):
            n = 2 * i + hf
            if n and n % 4 == 0:
                e("s_add_u32 s27, s27, 4096")
            e(f"s_waitcnt lgkmcnt({15 - n})")
            e(f"buffer_store_dwordx4 {vr(192 + 8 * i + 4 * hf, 4)}, v16, s[20:23], s27 offen offset:{(n % 4) * 1024}")
    e("s_cmp_lg_u32 s26, 0")
    e("s_cbranch_scc1 KM_ASTAT_DONE")
    for w in range(4):
        e(f"ds_read_b32 v{12 + w}, v18 offset:{LX - MX + 128 * w}")
    e("s_waitcnt lgkmcnt(0)")
    e("v_add_f32 v12, v12, v13")
    e("v_add_f32 v14, v14, v15")
    e("v_add_f32 v9, v12, v14")
    e("v_lshlrev_b32 v14, 9, v11")
    e("s_lshl_b32 s27, s36, 14")
    e("s_lshl_b32 s28, s37, 3")
    e("s_add_u32 s27, s27, s28")
    e(f"s_add_u32 s27, s27, {ASTAT}")
    e(f"buffer_store_dwordx2 v[8:9], v14, s[20:23], s27 offen")
    lab("KM_ASTAT_DONE")
    prof_mark(2)
    e("s_add_u32 s31, s31, 32768")
    bloads(192, 224, 31)
    e("v_mov_b32 v8, 0xff800000")
    for j in range(9, 18):
        e(f"v_mov_b32 v{j}, 0")
    e("s_waitcnt vmcnt(16)")
    bscore(128)
    bpv(160)
    e("s_waitcnt vmcnt(0)")
    bscore(192)
    bpv(224)
    e("s_branch KM_BFIN")
    lab("KM_BONLY")
    e("s_sub_u32 s27, s25, 2")
    e("s_mul_i32 s27, s27, 196608")
    e("s_add_u32 s31, s30, s27")
    e("s_sub_u32 s31, s31, 32768")
    e("v_mov_b32 v8, 0xff800000")
    for j in range(9, 18):
        e(f"v_mov_b32 v{j}, 0")
    bsched(6, lambda c: 3)
    lab("KM_BFIN")
    prof_mark(3)
    e("v_lshrrev_b32 v18, 4, v1")
    e("s_lshl_b32 s27, s26, 2")
    e("v_add_u32 v18, s27, v18")
    e("v_and_b32 v19, 15, v1")
    e("v_lshlrev_b32 v20, 9, v18")
    e("v_lshl_add_u32 v20, v19, 5, v20")
    e(f"v_add_u32 v20, {BO}, v20")
    e(f"ds_write_b128 v20, {vr(10, 4)}")
    e(f"ds_write_b128 v20, {vr(14, 4)} offset:16")
    e("v_lshlrev_b32 v21, 3, v18")
    e(f"v_add_u32 v21, {BS}, v21")
    e("ds_write_b64 v21, v[8:9]")
    e("s_waitcnt lgkmcnt(0)")
    e("s_barrier")
    e("s_cmp_ge_u32 s26, 2")
    e("s_cbranch_scc1 KM_BDONE")
    e(f"v_mov_b32 v21, {BS}")
    for s in range(16):
        e(f"ds_read_b64 {vr(64 + 2 * s, 2)}, v21 offset:{8 * s}")
    e("v_lshlrev_b32 v20, 2, v0")
    e(f"v_add_u32 v20, {BO}, v20")
    for s in range(16):
        e(f"ds_read_b32 v{96 + s}, v20 offset:{512 * s}")
    e("s_waitcnt lgkmcnt(0)")
    e("v_max3_f32 v8, v64, v66, v68")
    for s in range(3, 15, 2):
        e(f"v_max3_f32 v8, v8, v{64 + 2 * s}, v{66 + 2 * s}")
    e("v_max_f32 v8, v8, v94")
    for s in range(16):
        e(f"v_sub_f32 v{64 + 2 * s}, v{64 + 2 * s}, v8")
    for s in range(16):
        e(f"v_exp_f32 v{64 + 2 * s}, v{64 + 2 * s}")
    e("s_nop 0")
    e("v_mul_f32 v9, v64, v65")
    e("v_mul_f32 v10, v64, v96")
    for s in range(1, 16):
        e(f"v_fmac_f32 v9, v{64 + 2 * s}, v{65 + 2 * s}")
        e(f"v_fmac_f32 v10, v{64 + 2 * s}, v{96 + s}")
    e("s_lshl_b32 s27, s24, 2")
    e("s_add_u32 s27, s27, s25")
    e("s_lshl_b32 s28, s27, 9")
    e(f"s_add_u32 s28, s28, {BPART}")
    e("v_lshlrev_b32 v20, 2, v0")
    e(f"buffer_store_dword v10, v20, s[20:23], s28 offen")
    e("s_lshl_b32 s28, s27, 3")
    e(f"s_add_u32 s28, s28, {BSTAT}")
    e("v_mov_b32 v20, 0")
    e(f"buffer_store_dwordx2 v[8:9], v20, s[20:23], s28 offen")
    lab("KM_BDONE")
    lab("KM_END")
    e("s_endpgm")
    kernel_desc(L, 512, 256)
    return f"; @launch kernel={L} grid=(256,1,1) block=(256,1,1) lds={KM_LDS}"


OPA = 0xA00000


def k3():
    L = "k3_kernel"
    kernel_header(L)
    e("s_cmp_ge_u32 s2, 512")
    e("s_cbranch_scc1 K3_END")
    srd(20, "ws")
    e("v_and_b32 v1, 63, v0")
    e("v_lshrrev_b32 v2, 6, v0")
    e("s_nop 0")
    e("v_readfirstlane_b32 s26, v2")
    e("s_bfe_u32 s52, s2, 0x20006")
    e("s_and_b32 s53, s2, 63")
    e("s_and_b32 s54, s2, 31")
    e("s_bfe_u32 s55, s2, 0x10005")
    e("s_lshr_b32 s56, s2, 8")
    e("s_cmp_lg_u32 s56, 0")
    e("s_cbranch_scc1 K3_LB")
    srd(16, "A_wo"); srd(12, "A_wuv")
    e("s_branch K3_LD")
    lab("K3_LB")
    srd(16, "B_wo")
    lab("K3_LD")
    e("v_lshrrev_b32 v44, 2, v0")
    e("v_and_b32 v45, 3, v0")
    e("v_lshlrev_b32 v46, 16, v44")
    e("v_lshl_add_u32 v46, v45, 4, v46")
    e("v_lshlrev_b32 v16, 4, v1")
    e("s_waitcnt lgkmcnt(0)")
    srd_fin(16, "A_wo"); srd_fin(20, "ws")
    e("s_lshl_b32 s28, s54, 17")
    e("s_lshl_b32 s29, s52, 15")
    e("s_add_u32 s28, s28, s29")
    e("s_lshl_b32 s29, s26, 13")
    e("s_add_u32 s28, s28, s29")
    for i in range(8):
        if i == 4:
            e("s_add_u32 s28, s28, 4096")
        e(f"buffer_load_dwordx4 {vr(224 + 4 * i, 4)}, v16, s[16:19], s28 offen offset:{(i % 4) * 1024} nt")
    e("s_cmp_lg_u32 s56, 0")
    e("s_cbranch_scc1 K3_B")
    srd_fin(12, "A_wuv")
    e("s_lshl_b32 s28, s54, 8")
    e("s_lshl_b32 s29, s52, 6")
    e("s_add_u32 s28, s28, s29")
    for i in range(8):
        e(f"buffer_load_dwordx4 {vr(192 + 4 * i, 4)}, v46, s[12:15], s28 offen nt")
        e("s_add_u32 s28, s28, 8192")
    e("v_lshlrev_b32 v4, 3, v0")
    e("v_lshlrev_b32 v5, 3, v1")
    e("s_lshl_b32 s28, s53, 9")
    e(f"s_add_u32 s28, s28, {ASTAT}")
    e("buffer_load_dwordx2 v[8:9], v5, s[20:23], s28 offen")
    e("s_lshl_b32 s28, s55, 22")
    e("s_lshl_b32 s29, s54, 11")
    e("s_add_u32 s28, s28, s29")
    e(f"s_add_u32 s28, s28, {APART}")
    for s in range(64):
        e(f"buffer_load_dwordx2 {vr(64 + 2 * s, 2)}, v4, s[20:23], s28 offen")
        e("s_add_u32 s28, s28, 0x10000")
    e("s_waitcnt vmcnt(63)")
    e("s_waitcnt vmcnt(63)")
    e("v_mov_b32 v10, v8")
    for sh in (8, 4, 2, 1):
        e("s_nop 1")
        e(f"v_max_f32_dpp v10, v10, v10 row_ror:{sh} row_mask:0xf bank_mask:0xf")
    e("v_mov_b32 v11, v10")
    e("s_nop 1")
    e("v_permlane16_swap_b32 v10, v11")
    e("s_nop 1")
    e("v_max_f32 v10, v10, v11")
    e("v_mov_b32 v11, v10")
    e("s_nop 1")
    e("v_permlane32_swap_b32 v10, v11")
    e("s_nop 1")
    e("v_max_f32 v10, v10, v11")
    e("v_sub_f32 v8, v8, v10")
    e("v_exp_f32 v8, v8")
    e("s_nop 0")
    e("v_mul_f32 v10, v8, v9")
    for sh in (8, 4, 2, 1):
        e("s_nop 1")
        e(f"v_add_f32_dpp v10, v10, v10 row_ror:{sh} row_mask:0xf bank_mask:0xf")
    e("v_mov_b32 v11, v10")
    e("s_nop 1")
    e("v_permlane16_swap_b32 v10, v11")
    e("s_nop 1")
    e("v_add_f32 v10, v10, v11")
    e("v_mov_b32 v11, v10")
    e("s_nop 1")
    e("v_permlane32_swap_b32 v10, v11")
    e("s_nop 1")
    e("v_add_f32 v10, v10, v11")
    e("v_rcp_f32 v6, v10")
    e("v_mov_b32 v40, 0")
    e("v_mov_b32 v41, 0")
    for s in range(64):
        e(f"v_readlane_b32 s{60 + (s & 3)}, v8, {s}")
        e(f"s_waitcnt vmcnt({63 - s})")
        e("s_nop 0")
        e(f"v_fmac_f32 v40, s{60 + (s & 3)}, v{64 + 2 * s}")
        e(f"v_fmac_f32 v41, s{60 + (s & 3)}, v{65 + 2 * s}")
    e("v_mul_f32 v40, v40, v6")
    e("v_mul_f32 v41, v41, v6")
    e("ds_write_b64 v4, v[40:41]")
    e("s_waitcnt lgkmcnt(0)")
    e("s_barrier")
    e("v_lshlrev_b32 v5, 5, v44")
    e(f"ds_read_b128 {vr(8, 4)}, v5")
    e(f"ds_read_b128 {vr(12, 4)}, v5 offset:16")
    for k in range(8):
        e(f"v_mov_b32 v{24 + k}, 0")
    e("s_waitcnt lgkmcnt(0)")
    for i in range(8):
        for k in range(4):
            unpack2(32 + 2 * k, 33 + 2 * k, 192 + 4 * i + k)
        for k in range(8):
            e(f"v_fmac_f32 v{24 + k}, v{32 + k}, v{8 + i}")
    e("v_lshlrev_b32 v5, 7, v44")
    e("v_lshl_add_u32 v5, v45, 5, v5")
    e(f"ds_write_b128 v5, {vr(24, 4)} offset:2048")
    e(f"ds_write_b128 v5, {vr(28, 4)} offset:2064")
    e("s_waitcnt lgkmcnt(0)")
    e("s_barrier")
    e("v_and_b32 v5, 31, v1")
    e("v_lshrrev_b32 v6, 5, v1")
    e("v_lshlrev_b32 v5, 2, v5")
    e("v_lshl_add_u32 v5, v6, 12, v5")
    for g in range(32):
        e(f"ds_read_b32 v{64 + g}, v5 offset:{2048 + 128 * g}")
    e("s_waitcnt lgkmcnt(0)")
    for n in (16, 8, 4, 2, 1):
        for g in range(n):
            e(f"v_add_f32 v{64 + g}, v{64 + g}, v{64 + n + g}")
    e("v_mov_b32 v65, v64")
    e("s_nop 1")
    e("v_permlane32_swap_b32 v64, v65")
    e("s_nop 1")
    e("v_add_f32 v64, v64, v65")
    e("v_cvt_pk_bf16_f32 v64, v64, v64")
    e("v_lshlrev_b32 v64, 16, v64")
    e("s_branch K3_OUT")
    lab("K3_B")
    e("v_mov_b32 v5, 0")
    e("s_lshl_b32 s28, s53, 5")
    e(f"s_add_u32 s28, s28, {BSTAT}")
    e(f"buffer_load_dwordx4 v[8:11], v5, s[20:23], s28 offen")
    e(f"buffer_load_dwordx4 v[12:15], v5, s[20:23], s28 offen offset:16")
    e("v_and_b32 v5, 31, v1")
    e("v_lshlrev_b32 v5, 2, v5")
    e("s_lshl_b32 s28, s53, 11")
    e("s_lshl_b32 s29, s52, 7")
    e("s_add_u32 s28, s28, s29")
    e(f"s_add_u32 s28, s28, {BPART}")
    for r in range(4):
        e(f"buffer_load_dword v{64 + r}, v5, s[20:23], s28 offen offset:{512 * r}")
    e("s_waitcnt vmcnt(0)")
    e("v_max3_f32 v56, v8, v10, v12")
    e("v_max_f32 v56, v56, v14")
    for r in range(4):
        e(f"v_sub_f32 v{8 + 2 * r}, v{8 + 2 * r}, v56")
    for r in range(4):
        e(f"v_exp_f32 v{8 + 2 * r}, v{8 + 2 * r}")
    e("s_nop 0")
    e("v_mul_f32 v57, v8, v9")
    e("v_mul_f32 v58, v8, v64")
    for r in range(1, 4):
        e(f"v_fmac_f32 v57, v{8 + 2 * r}, v{9 + 2 * r}")
        e(f"v_fmac_f32 v58, v{8 + 2 * r}, v{64 + r}")
    e("v_rcp_f32 v57, v57")
    e("s_nop 0")
    e("v_mul_f32 v58, v58, v57")
    e("v_cvt_pk_bf16_f32 v58, v58, v58")
    e("v_lshlrev_b32 v64, 16, v58")
    lab("K3_OUT")
    e("s_lshl_b32 s30, s26, 3")
    for k in range(8):
        e(f"v_mov_b32 v{24 + k}, 0")
    e("s_waitcnt vmcnt(0)")
    for i in range(8):
        e(f"s_add_u32 s31, s30, {i}")
        e(f"v_readlane_b32 s{60 + i}, v64, s31")
    for i in range(8):
        for k in range(4):
            unpack2(32 + 2 * k, 33 + 2 * k, 224 + 4 * i + k)
        for k in range(8):
            e(f"v_fmac_f32 v{24 + k}, s{60 + i}, v{32 + k}")
    e("s_barrier")
    e("v_lshlrev_b32 v5, 5, v1")
    e("s_lshl_b32 s30, s26, 11")
    e("v_add_u32 v5, s30, v5")
    e(f"ds_write_b128 v5, {vr(24, 4)}")
    e(f"ds_write_b128 v5, {vr(28, 4)} offset:16")
    e("s_waitcnt lgkmcnt(0)")
    e("s_barrier")
    e("v_lshlrev_b32 v5, 3, v0")
    for w in range(4):
        e(f"ds_read_b64 {vr(8 + 2 * w, 2)}, v5 offset:{2048 * w}")
    e("s_waitcnt lgkmcnt(0)")
    e("v_add_f32 v8, v8, v10")
    e("v_add_f32 v9, v9, v11")
    e("v_add_f32 v12, v12, v14")
    e("v_add_f32 v13, v13, v15")
    e("v_add_f32 v8, v8, v12")
    e("v_add_f32 v9, v9, v13")
    e("s_lshl_b32 s28, s56, 19")
    e("s_lshl_b32 s29, s55, 18")
    e("s_add_u32 s28, s28, s29")
    e("s_lshl_b32 s29, s54, 13")
    e("s_add_u32 s28, s28, s29")
    e("s_lshl_b32 s29, s52, 11")
    e("s_add_u32 s28, s28, s29")
    e(f"s_add_u32 s28, s28, {OPA}")
    e("buffer_store_dwordx2 v[8:9], v5, s[20:23], s28 offen")
    lab("K3_END")
    e("s_endpgm")
    kernel_desc(L, 256, 256)
    return f"; @launch kernel={L} grid=(512,1,1) block=(256,1,1) lds=10240"


def k4():
    L = "k4_kernel"
    kernel_header(L)
    e("s_cmp_ge_u32 s2, 32")
    e("s_cbranch_scc1 K4_END")
    srd(20, "ws"); srd(8, "out")
    e("s_lshr_b32 s24, s2, 3")
    e("s_and_b32 s25, s2, 7")
    e("v_and_b32 v1, 15, v0")
    e("v_lshrrev_b32 v2, 4, v0")
    e("v_lshlrev_b32 v3, 14, v2")
    e("v_lshl_add_u32 v3, v1, 4, v3")
    e("s_lshl_b32 s26, s24, 18")
    e("s_lshl_b32 s27, s25, 8")
    e("s_add_u32 s26, s26, s27")
    e(f"s_add_u32 s26, s26, {OPA}")
    e("s_waitcnt lgkmcnt(0)")
    srd_fin(20, "ws"); srd_fin(8, "out")
    for i in range(8):
        if i % 2 == 0 and i:
            e("s_add_u32 s26, s26, 4096")
        e(f"buffer_load_dwordx4 {vr(8 + 4 * i, 4)}, v3, s[20:23], s26 offen offset:{(i % 2) * 2048}")
    e("s_waitcnt vmcnt(0)")
    for n in (4, 2, 1):
        for i in range(n):
            for k in range(4):
                e(f"v_add_f32 v{8 + 4 * i + k}, v{8 + 4 * i + k}, v{8 + 4 * (i + n) + k}")
    e("v_lshlrev_b32 v4, 4, v0")
    e(f"ds_write_b128 v4, {vr(8, 4)}")
    e("s_waitcnt lgkmcnt(0)")
    e("s_barrier")
    e("v_cmp_gt_u32 vcc, 64, v0")
    e("s_and_saveexec_b64 s[28:29], vcc")
    e("s_cbranch_execz K4_END")
    e("v_lshlrev_b32 v4, 2, v0")
    for g in range(16):
        e(f"ds_read_b32 v{8 + g}, v4 offset:{256 * g}")
    e("s_waitcnt lgkmcnt(0)")
    for n in (8, 4, 2, 1):
        for g in range(n):
            e(f"v_add_f32 v{8 + g}, v{8 + g}, v{8 + n + g}")
    e("v_cvt_pk_bf16_f32 v8, v8, v8")
    e("s_and_b32 s26, s24, 1")
    e("s_lshl_b32 s26, s26, 11")
    e("s_lshr_b32 s27, s24, 1")
    e("s_lshl_b32 s27, s27, 10")
    e("s_add_u32 s26, s26, s27")
    e("s_lshl_b32 s27, s25, 7")
    e("s_add_u32 s26, s26, s27")
    e("v_lshlrev_b32 v4, 1, v0")
    e("buffer_store_short v8, v4, s[8:11], s26 offen")
    lab("K4_END")
    e("s_endpgm")
    kernel_desc(L, 48, 48)
    return f"; @launch kernel={L} grid=(32,1,1) block=(256,1,1) lds=4096"


LAUNCHES = []


def main():
    LAUNCHES.append(k1())
    LAUNCHES.append(km())
    LAUNCHES.append(k3())
    LAUNCHES.append(k4())
    head = open(f"cdna_kernels/{NAME}.s.ref").read().split("; Override launch")[0]
    txt = head + "\n".join(LAUNCHES) + "\n"
    txt += '.amdgcn_target "amdgcn-amd-amdhsa--gfx950"\n.text\n'
    txt += "\n".join(out) + "\n"
    txt += '.section .rodata,"a"\n' + "\n".join(descs) + "\n"
    path = sys.argv[1] if len(sys.argv) > 1 else f"cdna_kernels/{NAME}.s"
    open(path, "w").write(txt)


if __name__ == "__main__":
    main()
```

```python
import sys

NAME = "concat_heads__compressed_kv_cla__sliding_block_cached__decode"

KA = dict(A_x=0, A_ckv=8, A_wq=16, A_wuk=24, A_wuv=32, A_wo=40, B_x=48, B_k=56, B_v=64,
          B_wq=72, B_wo=80, out=88, dbg=96, ws=104)
SZ = dict(A_x=2048, A_ckv=16777216, A_wq=4194304, A_wuk=4194304, A_wuv=4194304, A_wo=4194304,
          B_x=2048, B_k=134217728, B_v=134217728, B_wq=4194304, B_wo=4194304, out=4096, dbg=256,
          ws=536870912)

QA_HI = 0x00000
QA_LO = 0x10000
QB = 0x20000
ASTAT = 0x30000
BPART = 0x40000
BSTAT = 0x60000
CTX = 0x70000
OPART = 0x80000
APART = 0x100000

SCALE_BITS = 0x3DB504F3
LOG2E_BITS = 0x3FB8AA3B

out = []
import os
DEBUG = bool(os.environ.get('DEBUG'))
PROF = bool(os.environ.get('PROF'))
HIONLY = bool(os.environ.get('HIONLY'))
PROFBASE = 0xC00000


def prof_start():
    if PROF:
        e("s_memrealtime s[90:91]")


def prof_mark(slot, t=21):
    if PROF:
        e("s_memrealtime s[92:93]")
        e("s_waitcnt lgkmcnt(0)")
        e("s_sub_u32 s92, s92, s90")
        e(f"v_mov_b32 v{t}, s92")
        e("s_lshl_b32 s94, s2, 7")
        e(f"s_add_u32 s94, s94, {PROFBASE + prof_kernel[0] * 0x10000 + slot * 4}")
        e(f"v_lshrrev_b32 v{t+1}, 6, v0")
        e(f"v_lshlrev_b32 v{t+1}, 5, v{t+1}")
        e(f"buffer_store_dword v{t}, v{t+1}, s[20:23], s94 offen")


prof_kernel = [0]


def e(s):
    out.append("    " + s)


def lab(s):
    out.append(s + ":")


def srd(dst, name):
    e(f"s_load_dwordx2 s[{dst}:{dst+1}], s[0:1], {KA[name]}")


def srd_fin(dst, name):
    e(f"s_mov_b32 s{dst+2}, {SZ[name]}")
    e(f"s_mov_b32 s{dst+3}, 0x20000")


def vr(a, n):
    return f"v[{a}:{a+n-1}]"


def ar(a, n):
    return f"a[{a}:{a+n-1}]"


def kernel_header(label):
    out.append(f".globl {label}")
    out.append(".p2align 8")
    out.append(f".type {label},@function")
    lab(label)


descs = []


def kernel_desc(label, vgpr, accum, sgpr=102):
    descs.append(f""".p2align 6
.amdhsa_kernel {label}
  .amdhsa_next_free_vgpr {vgpr}
  .amdhsa_next_free_sgpr {sgpr}
  .amdhsa_accum_offset {accum}
  .amdhsa_group_segment_fixed_size 0
  .amdhsa_kernarg_size 112
  .amdhsa_user_sgpr_count 2
  .amdhsa_user_sgpr_kernarg_segment_ptr 1
  .amdhsa_system_sgpr_workgroup_id_x 1
.end_amdhsa_kernel""")


def unpack2(dlo, dhi, src):
    e(f"v_lshlrev_b32 v{dlo}, 16, v{src}")
    e(f"v_and_b32 v{dhi}, 0xffff0000, v{src}")


def gemv_rows(nrows, wbase, xbase0, xbase1, acc, tmp, xt, vm_after):
    for i in range(nrows):
        e(f"s_waitcnt vmcnt({nrows - 1 - i + vm_after})")
        if i % 2 == 0:
            e(f"v_lshlrev_b32 v{xt}, 16, v{xbase0 + i // 2}")
            e(f"v_lshlrev_b32 v{xt+1}, 16, v{xbase1 + i // 2}")
        else:
            e(f"v_and_b32 v{xt}, 0xffff0000, v{xbase0 + i // 2}")
            e(f"v_and_b32 v{xt+1}, 0xffff0000, v{xbase1 + i // 2}")
        for k in range(4):
            unpack2(tmp + 2 * k, tmp + 2 * k + 1, wbase + 4 * i + k)
        for k in range(8):
            e(f"v_fmac_f32 v{acc + k}, v{tmp + k}, v{xt}")
            e(f"v_fmac_f32 v{acc + 8 + k}, v{tmp + k}, v{xt+1}")


def k1():
    L = "k1_kernel"
    kernel_header(L)
    e("s_cmp_ge_u32 s2, 256")
    e("s_cbranch_scc1 K1_END")
    e("s_cmp_ge_u32 s2, 128")
    e("s_cbranch_scc1 K1_B")
    srd(8, "A_x"); srd(12, "A_wq"); srd(16, "A_wuk"); srd(20, "ws")
    e("s_and_b32 s24, s2, 31")
    e("s_lshr_b32 s25, s2, 5")
    e("v_and_b32 v1, 15, v0")
    e("v_lshrrev_b32 v2, 4, v0")
    e("v_lshlrev_b32 v3, 18, v2")
    e("v_lshl_add_u32 v3, v1, 4, v3")
    e("v_lshlrev_b32 v4, 6, v2")
    e("v_lshlrev_b32 v5, 13, v2")
    e("v_lshl_add_u32 v5, v1, 4, v5")
    e("s_lshl_b32 s26, s24, 8")
    e("s_waitcnt lgkmcnt(0)")
    srd_fin(8, "A_x"); srd_fin(12, "A_wq"); srd_fin(16, "A_wuk"); srd_fin(20, "ws")
    for b in range(2):
        for k in range(4):
            e(f"buffer_load_dwordx4 {vr(8 + 16 * b + 4 * k, 4)}, v4, s[8:11], 0 offen offset:{1024 * b + 16 * k}")
    e("s_mov_b32 s27, s26")
    for i in range(32):
        e(f"buffer_load_dwordx4 {vr(40 + 4 * i, 4)}, v3, s[12:15], s27 offen nt")
        e("s_add_u32 s27, s27, 8192")
    e("s_lshl_b32 s27, s25, 20")
    e("s_add_u32 s27, s27, s26")
    for i in range(8):
        e(f"buffer_load_dwordx4 {vr(168 + 4 * i, 4)}, v5, s[16:19], s27 offen nt")
        e("s_add_u32 s27, s27, 0x20000")
    for k in range(16):
        e(f"v_mov_b32 v{200 + k}, 0")
    gemv_rows(32, 40, 8, 24, 200, 218, 216, 8)
    e("v_lshlrev_b32 v6, 10, v2")
    e("v_lshl_add_u32 v6, v1, 5, v6")
    e(f"ds_write_b128 v6, {vr(200, 4)}")
    e(f"ds_write_b128 v6, {vr(204, 4)} offset:16")
    e(f"ds_write_b128 v6, {vr(208, 4)} offset:512")
    e(f"ds_write_b128 v6, {vr(212, 4)} offset:528")
    e("s_waitcnt lgkmcnt(0)")
    e("s_barrier")
    e("v_lshlrev_b32 v6, 2, v0")
    for g in range(16):
        e(f"ds_read_b32 v{8 + g}, v6 offset:{1024 * g}")
    e("s_waitcnt lgkmcnt(0)")
    for g in range(1, 16):
        e(f"v_add_f32 v8, v8, v{8 + g}")
    e("v_cvt_pk_bf16_f32 v8, v8, v8")
    e("v_lshlrev_b32 v6, 1, v0")
    e("ds_write_b16 v6, v8 offset:16384")
    e("s_waitcnt lgkmcnt(0)")
    e("s_barrier")
    e("v_lshlrev_b32 v6, 4, v1")
    e(f"ds_read_b128 {vr(8, 4)}, v6 offset:16384")
    e(f"ds_read_b128 {vr(12, 4)}, v6 offset:16640")
    e("s_waitcnt vmcnt(0) lgkmcnt(0)")
    for k in range(4):
        for i in range(8):
            for b in range(2):
                d = 24 + 2 * i + b
                c = "0" if k == 0 else f"v{d}"
                e(f"v_dot2_f32_bf16 v{d}, v{168 + 4 * i + k}, v{8 + 4 * b + k}, {c}")
    e("s_nop 3")
    for sh in (8, 4, 2, 1):
        for d in range(24, 40):
            e(f"v_add_f32_dpp v{d}, v{d}, v{d} row_ror:{sh} row_mask:0xf bank_mask:0xf")
        e("s_nop 1")
    e("v_lshlrev_b32 v6, 2, v2")
    for i in range(8):
        for b in range(2):
            e(f"ds_write_b32 v6, v{24 + 2 * i + b} offset:{16896 + 512 * b + 64 * i}")
    e("s_waitcnt lgkmcnt(0)")
    e("s_barrier")
    e("v_cmp_gt_u32 vcc, 32, v0")
    e("s_and_saveexec_b64 s[28:29], vcc")
    e("s_cbranch_execz K1_END")
    e("v_lshlrev_b32 v6, 5, v0")
    e(f"ds_read_b128 {vr(8, 4)}, v6 offset:16896")
    e(f"ds_read_b128 {vr(12, 4)}, v6 offset:16912")
    e("s_waitcnt lgkmcnt(0)")
    for k in range(4):
        a, b_ = 8 + 2 * k, 9 + 2 * k
        e(f"v_cvt_pk_bf16_f32 v{16 + k}, v{a}, v{b_}")
        unpack2(24, 25, 16 + k)
        e(f"v_sub_f32 v24, v{a}, v24")
        e(f"v_sub_f32 v25, v{b_}, v25")
        e(f"v_cvt_pk_bf16_f32 v{20 + k}, v24, v25")
    e("v_lshrrev_b32 v6, 4, v0")
    e("v_and_b32 v7, 15, v0")
    e("v_lshrrev_b32 v24, 1, v7")
    e("v_and_b32 v25, 1, v7")
    e("v_lshlrev_b32 v6, 15, v6")
    e("v_lshl_add_u32 v6, v24, 10, v6")
    e("v_lshl_add_u32 v6, v25, 9, v6")
    e("s_lshl_b32 s27, s25, 13")
    e("s_lshl_b32 s28, s24, 4")
    e("s_add_u32 s27, s27, s28")
    e(f"buffer_store_dwordx4 {vr(16, 4)}, v6, s[20:23], s27 offen")
    e(f"s_add_u32 s27, s27, {QA_LO}")
    e(f"buffer_store_dwordx4 {vr(20, 4)}, v6, s[20:23], s27 offen")
    e("s_branch K1_END")
    lab("K1_B")
    srd(8, "B_x"); srd(44, "B_wq"); srd(20, "ws"); srd(12, "B_k"); srd(16, "B_v")
    e("s_sub_u32 s3, s2, 128")
    e("s_and_b32 s4, s3, 31")
    e("s_bfe_u32 s5, s3, 0x10005")
    e("s_lshr_b32 s25, s3, 6")
    e("s_lshl_b32 s24, s5, 5")
    e("s_add_u32 s24, s24, s4")
    e("v_and_b32 v1, 63, v0")
    e("v_lshrrev_b32 v2, 6, v0")
    e("s_nop 0")
    e("v_readfirstlane_b32 s26, v2")
    e(f"s_mov_b32 s34, {SCALE_BITS:#x}")
    e(f"s_mov_b32 s35, {LOG2E_BITS:#x}")
    e("v_and_b32 v42, 15, v0")
    e("v_lshrrev_b32 v43, 4, v0")
    e("v_lshlrev_b32 v3, 18, v43")
    e("v_lshl_add_u32 v3, v42, 4, v3")
    e("v_lshlrev_b32 v4, 6, v43")
    e("v_lshlrev_b32 v16, 4, v1")
    e("s_lshl_b32 s27, s26, 13")
    e("v_add_u32 v6, s27, v16")
    e("v_add_u32 v7, 4096, v6")
    e("s_lshl_b32 s30, s24, 21")
    e("s_lshl_b32 s27, s25, 16")
    e("s_add_u32 s30, s30, s27")
    e("s_add_u32 s31, s30, 1966080")
    e("s_lshl_b32 s36, s4, 8")
    e("s_lshl_b32 s37, s5, 10")
    e("s_waitcnt lgkmcnt(0)")
    srd_fin(8, "B_x"); srd_fin(44, "B_wq"); srd_fin(20, "ws"); srd_fin(12, "B_k"); srd_fin(16, "B_v")
    for k in range(4):
        e(f"buffer_load_dwordx4 {vr(44 + 4 * k, 4)}, v4, s[8:11], s37 offen offset:{16 * k}")
    e("s_mov_b32 s27, s36")
    for i in range(32):
        e(f"buffer_load_dwordx4 {vr(64 + 4 * i, 4)}, v3, s[44:47], s27 offen nt")
        e("s_add_u32 s27, s27, 8192")
    bloads(192, 224, 31)
    for k in range(8):
        e(f"v_mov_b32 v{20 + k}, 0")
    for i in range(32):
        e(f"s_waitcnt vmcnt({31 - i + 16})")
        if i % 2 == 0:
            e(f"v_lshlrev_b32 v18, 16, v{44 + i // 2}")
        else:
            e(f"v_and_b32 v18, 0xffff0000, v{44 + i // 2}")
        for k in range(4):
            unpack2(28 + 2 * k, 29 + 2 * k, 64 + 4 * i + k)
        for k in range(8):
            e(f"v_fmac_f32 v{20 + k}, v{28 + k}, v18")
    e("s_add_u32 s31, s31, 32768")
    bloads(64, 96, 31)
    e("v_lshlrev_b32 v18, 9, v43")
    e("v_lshl_add_u32 v18, v42, 5, v18")
    e(f"ds_write_b128 v18, {vr(20, 4)}")
    e(f"ds_write_b128 v18, {vr(24, 4)} offset:16")
    e("s_waitcnt lgkmcnt(0)")
    e("s_barrier")
    e("v_and_b32 v18, 127, v0")
    e("v_lshlrev_b32 v19, 2, v18")
    for g in range(16):
        e(f"ds_read_b32 v{20 + g}, v19 offset:{512 * g}")
    e("s_waitcnt lgkmcnt(0)")
    for n in (8, 4, 2, 1):
        for g in range(n):
            e(f"v_add_f32 v{20 + g}, v{20 + g}, v{20 + n + g}")
    e("v_cvt_pk_bf16_f32 v20, v20, v20")
    e("v_lshlrev_b32 v19, 1, v18")
    e("ds_write_b16 v19, v20 offset:8192")
    e("s_cmp_lg_u32 s25, 0")
    e("s_cbranch_scc1 K1_NOQB")
    e("s_lshl_b32 s27, s24, 8")
    e(f"s_add_u32 s27, s27, {QB}")
    e("buffer_store_short v20, v19, s[20:23], s27 offen")
    lab("K1_NOQB")
    e("s_waitcnt lgkmcnt(0)")
    e("s_barrier")
    e("v_and_b32 v18, 15, v1")
    e("v_lshlrev_b32 v18, 4, v18")
    e(f"ds_read_b128 {vr(2, 4)}, v18 offset:8192")
    e("v_mov_b32 v8, 0xff800000")
    for j in range(9, 18):
        e(f"v_mov_b32 v{j}, 0")
    e("s_waitcnt vmcnt(16) lgkmcnt(0)")
    bscore(192)
    bpv(224)
    e("s_waitcnt vmcnt(0)")
    bscore(64)
    bpv(96)
    bcombine(8704, 8704 + 8192, "K1_END")
    lab("K1_END")
    e("s_endpgm")
    kernel_desc(L, 256, 256)
    return f"; @launch kernel={L} grid=(256,1,1) block=(256,1,1) lds=18432"


MX = 131072
LX = 131584
PX = 132096
BO = 140288
RS = PX
BS = BO + 8192
KM_LDS = BS + 128
C3 = 132
C4 = 136
C5 = 168
C6 = 200
SC = " sc1"


def fsw(r):
    return ((r & 3) << 2) | ((r >> 2) & 3)


def bloads(K, V, soff):
    for (base, srdn) in ((K, 12), (V, 16)):
        for i in range(8):
            va = 6 if i < 4 else 7
            e(f"buffer_load_dwordx4 {vr(base + 4 * i, 4)}, v{va}, s[{srdn}:{srdn+3}], s{soff} offen offset:{(i % 4) * 1024} nt")


def round_scale(a, b, t):
    e(f"v_cvt_pk_bf16_f32 v{t}, v{a}, v{b}")
    unpack2(a, b, t)
    e(f"v_mul_f32 v{a}, s34, v{a}")
    e(f"v_mul_f32 v{b}, s34, v{b}")
    e(f"v_cvt_pk_bf16_f32 v{t}, v{a}, v{b}")
    unpack2(a, b, t)
    e(f"v_mul_f32 v{a}, s35, v{a}")
    e(f"v_mul_f32 v{b}, s35, v{b}")


def bscore(K):
    for k in range(4):
        for i in range(8):
            c = "0" if k == 0 else f"v{18+i}"
            e(f"v_dot2_f32_bf16 v{18+i}, v{K + 4*i + k}, v{2+k}, {c}")
    for sh in (8, 4, 2, 1):
        for i in range(8):
            e(f"v_add_f32_dpp v{18+i}, v{18+i}, v{18+i} row_ror:{sh} row_mask:0xf bank_mask:0xf")
    for i in range(0, 8, 2):
        round_scale(18 + i, 19 + i, 26)
    e("v_max3_f32 v26, v18, v19, v20")
    e("v_max3_f32 v26, v26, v21, v22")
    e("v_max3_f32 v26, v26, v23, v24")
    e("v_max3_f32 v26, v26, v25, v8")
    e("v_sub_f32 v27, v8, v26")
    e("v_exp_f32 v27, v27")
    e("v_mov_b32 v8, v26")
    for i in range(8):
        e(f"v_sub_f32 v{18+i}, v{18+i}, v26")
    for i in range(8):
        e(f"v_exp_f32 v{18+i}, v{18+i}")
    e("v_mul_f32 v9, v9, v27")
    for j in range(8):
        e(f"v_mul_f32 v{10+j}, v{10+j}, v27")
    for i in range(8):
        e(f"v_add_f32 v9, v9, v{18+i}")


def bpv(V):
    for i in range(8):
        for k in range(4):
            unpack2(34 + 2 * k, 35 + 2 * k, V + 4 * i + k)
        for j in range(8):
            e(f"v_fmac_f32 v{10+j}, v{34+j}, v{18+i}")


def bload1(base, srdn, soff):
    for i in range(8):
        va = 6 if i < 4 else 7
        e(f"buffer_load_dwordx4 {vr(base + 4 * i, 4)}, v{va}, s[{srdn}:{srdn+3}], s{soff} offen offset:{(i % 4) * 1024} nt")


def bsched(nunits, ahead):
    bufs = [(128, 160), (192, 224)]
    n = 2 * nunits
    issued = 0
    for c in range(n):
        while issued < n and issued <= c + min(ahead(c), 3):
            u, isv = issued >> 1, issued & 1
            if not isv:
                e("s_add_u32 s31, s31, 32768")
                e("s_mov_b32 s33, s31") if False else None
            e(f"s_mov_b32 s{60 + (u & 1)}, s31") if not isv else None
            bload1(bufs[u & 1][isv], 16 if isv else 12, 60 + (u & 1))
            issued += 1
        e(f"s_waitcnt vmcnt({8 * (issued - 1 - c)})")
        u, isv = c >> 1, c & 1
        if isv:
            bpv(bufs[u & 1][1])
        else:
            if u < 3:
                prof_mark(u)
            bscore(bufs[u & 1][0])


def bcombine(BO, BS, done):
    e("v_lshrrev_b32 v18, 4, v1")
    e("s_lshl_b32 s27, s26, 2")
    e("v_add_u32 v18, s27, v18")
    e("v_and_b32 v19, 15, v1")
    e("v_lshlrev_b32 v20, 9, v18")
    e("v_lshl_add_u32 v20, v19, 5, v20")
    e(f"v_add_u32 v20, {BO}, v20")
    e(f"ds_write_b128 v20, {vr(10, 4)}")
    e(f"ds_write_b128 v20, {vr(14, 4)} offset:16")
    e("v_lshlrev_b32 v21, 3, v18")
    e(f"v_add_u32 v21, {BS}, v21")
    e("ds_write_b64 v21, v[8:9]")
    e("s_waitcnt lgkmcnt(0)")
    e("s_barrier")
    e("s_cmp_ge_u32 s26, 2")
    e(f"s_cbranch_scc1 {done}")
    e(f"v_mov_b32 v21, {BS}")
    for s in range(16):
        e(f"ds_read_b64 {vr(64 + 2 * s, 2)}, v21 offset:{8 * s}")
    e("v_lshlrev_b32 v20, 2, v0")
    e(f"v_add_u32 v20, {BO}, v20")
    for s in range(16):
        e(f"ds_read_b32 v{96 + s}, v20 offset:{512 * s}")
    e("s_waitcnt lgkmcnt(0)")
    e("v_max3_f32 v8, v64, v66, v68")
    for s in range(3, 15, 2):
        e(f"v_max3_f32 v8, v8, v{64 + 2 * s}, v{66 + 2 * s}")
    e("v_max_f32 v8, v8, v94")
    for s in range(16):
        e(f"v_sub_f32 v{64 + 2 * s}, v{64 + 2 * s}, v8")
    for s in range(16):
        e(f"v_exp_f32 v{64 + 2 * s}, v{64 + 2 * s}")
    e("s_nop 0")
    e("v_mul_f32 v9, v64, v65")
    e("v_mul_f32 v10, v64, v96")
    for s in range(1, 16):
        e(f"v_fmac_f32 v9, v{64 + 2 * s}, v{65 + 2 * s}")
        e(f"v_fmac_f32 v10, v{64 + 2 * s}, v{96 + s}")
    e("s_lshl_b32 s27, s24, 2")
    e("s_add_u32 s27, s27, s25")
    e("s_lshl_b32 s28, s27, 9")
    e(f"s_add_u32 s28, s28, {BPART}")
    e("v_lshlrev_b32 v20, 2, v0")
    e(f"buffer_store_dword v10, v20, s[20:23], s28 offen")
    e("s_lshl_b32 s28, s27, 3")
    e(f"s_add_u32 s28, s28, {BSTAT}")
    e("v_mov_b32 v20, 0")
    e(f"buffer_store_dwordx2 v[8:9], v20, s[20:23], s28 offen")


def dma_tile():
    for i in range(32):
        if i % 4 == 0:
            e(f"s_add_u32 m0, s41, {i * 1024}")
            e(f"s_add_u32 s42, s40, {i * 1024}")
        e(f"v_xor_b32 v11, {fsw(i & 15) * 16}, v16")
        e(f"buffer_load_dwordx4 v11, s[8:11], s42 offen offset:{(i % 4) * 1024} nt lds")


npoll = [0]


def poll(off, target, soff=None):
    n = npoll[0]
    npoll[0] += 1
    e("s_cmp_lg_u32 s26, 0")
    e(f"s_cbranch_scc1 POLL_DONE{n}")
    e("v_mov_b32 v22, 0")
    e("s_mov_b32 s44, 0x40000")
    if soff is None:
        e(f"s_mov_b32 s45, {off}")
        soff = 45
    lab(f"POLL{n}")
    e(f"buffer_load_dword v21, v22, s[48:51], s{soff} offen{SC}")
    e("s_waitcnt vmcnt(0)")
    e("v_readfirstlane_b32 s43, v21")
    e(f"s_cmp_ge_u32 s43, {target}")
    e(f"s_cbranch_scc1 POLL_DONE{n}")
    e("s_sleep 4")
    e("s_sub_u32 s44, s44, 1")
    e("s_cmp_lg_u32 s44, 0")
    e(f"s_cbranch_scc1 POLL{n}")
    lab(f"POLL_DONE{n}")
    e("s_barrier")


def signal(soffs):
    n = npoll[0]
    npoll[0] += 1
    e("s_waitcnt vmcnt(0)")
    e("s_barrier")
    e("s_cmp_lg_u32 s26, 0")
    e(f"s_cbranch_scc1 SIG_DONE{n}")
    e("v_mov_b32 v21, 1")
    e("v_mov_b32 v22, 0")
    e("s_mov_b64 s[46:47], exec")
    e("s_mov_b64 exec, 1")
    for so in soffs:
        e(f"buffer_atomic_add v21, v22, s[48:51], s{so} offen sc1")
    e("s_mov_b64 exec, s[46:47]")
    lab(f"SIG_DONE{n}")


filler = []


def fill(n=1):
    for _ in range(n):
        if filler:
            for ins in filler.pop(0):
                e(ins)


def tile_loads(defer=False):
    for i in range(32):
        g = []
        if i % 4 == 0:
            g.append(f"s_add_u32 s42, s40, {i * 1024}")
        g.append(f"buffer_load_dwordx4 {ar(128 + 4 * i, 4)}, v16, s[8:11], s42 offen offset:{(i % 4) * 1024} nt")
        filler.append(g)
    if not defer:
        fill(32)


def tile_to_lds():
    e("v_add_u32 v12, s41, v16")
    for i in range(32):
        e(f"v_xor_b32 v{13 + (i & 1)}, {fsw(i & 15) * 16}, v12")
        e(f"s_waitcnt vmcnt({31 - i})")
        e(f"ds_write_b128 v{13 + (i & 1)}, {ar(128 + 4 * i, 4)} offset:{i * 1024}")
    e("s_waitcnt lgkmcnt(0)")


def a_tile(first):
    seq = [(j, k) for j in range(4) for k in range(8)]

    def sread(n):
        j, k = seq[n]
        t = 22 + (n & 1)
        e(f"v_add_u32 v{t}, v{24 + j}, v{28 + k}")
        e(f"ds_read_b128 {vr(72 + 4 * (n % 8), 4)}, v{t}")
    for n in range(8):
        sread(n)
    for n in range(32):
        j, k = seq[n]
        e(f"s_waitcnt lgkmcnt({min(7, 31 - n)})")
        f = vr(72 + 4 * (n % 8), 4)
        acc = ar(64 + 16 * j, 16)
        c = "0" if k == 0 else acc
        e(f"v_mfma_f32_32x32x16_bf16 {acc}, {f}, {ar(4 * k, 4)}, {c}")
        if not HIONLY:
            e(f"v_mfma_f32_32x32x16_bf16 {acc}, {f}, {ar(32 + 4 * k, 4)}, {acc}")
        if n + 8 < 32:
            sread(n + 8)
        if n % 2 == 1:
            fill(1)
    e("s_nop 15")
    for i in range(16):
        e(f"v_accvgpr_read_b32 v{56 + i}, a{64 + i}")
    for j in range(1, 4):
        for q in range(4):
            e(f"ds_write_b128 v36, {ar(64 + 16 * j + 4 * q, 4)} offset:{1024 * q}")
        e("s_waitcnt lgkmcnt(0)")
        e("s_barrier")
        for q in range(4):
            e(f"ds_read_b128 {vr(72 + 4 * q, 4)}, v{36 + j} offset:{1024 * q}")
        e("s_waitcnt lgkmcnt(0)")
        if j < 3:
            e("s_barrier")
        fill(1)
        for i in range(16):
            e(f"v_add_f32 v{56 + i}, v{56 + i}, v{72 + i}")
    for i in range(0, 16, 2):
        round_scale(56 + i, 57 + i, 11)
        if i % 4 == 0:
            fill(1)
    e("v_max3_f32 v12, v56, v57, v58")
    for i in range(59, 71, 2):
        e(f"v_max3_f32 v12, v12, v{i}, v{i+1}")
    e("v_max_f32 v12, v12, v71")
    e("v_mov_b32 v13, v12")
    e("s_nop 1")
    e("v_permlane32_swap_b32 v12, v13")
    e("s_nop 1")
    e("v_max_f32 v12, v12, v13")
    e("ds_write_b32 v17, v12")
    e("s_waitcnt lgkmcnt(0)")
    e("s_barrier")
    for w in range(4):
        e(f"ds_read_b32 v{12 + w}, v18 offset:{128 * w}")
    e("s_waitcnt lgkmcnt(0)")
    e("v_max3_f32 v12, v12, v13, v14")
    e("v_max3_f32 v12, v12, v15, v8")
    e("v_sub_f32 v10, v8, v12")
    e("v_exp_f32 v10, v10")
    e("v_mov_b32 v8, v12")
    for i in range(16):
        e(f"v_sub_f32 v{56+i}, v{56+i}, v12")
    for i in range(16):
        e(f"v_exp_f32 v{56+i}, v{56+i}")
    e("v_mul_f32 v9, v9, v10")
    for i in range(16):
        e(f"v_add_f32 v9, v9, v{56+i}")
    for i in range(8):
        e(f"v_cvt_pk_bf16_f32 v{96+i}, v{56+2*i}, v{57+2*i}")
    e(f"ds_write_b128 v19, {vr(96, 4)}")
    e(f"ds_write_b128 v19, {vr(100, 4)} offset:1024")
    e("s_waitcnt lgkmcnt(0)")
    e("s_barrier")
    for tu in range(8):
        e(f"ds_read_b128 {vr(64 + 4 * tu, 4)}, v20 offset:{(tu >> 1) * 2048 + (tu & 1) * 1024}")
    if not first:
        for i in range(64):
            e(f"v_mul_f32 v{192+i}, v{192+i}, v10")

    def trreads(tu):
        t, u = tu >> 1, tu & 1
        bufb = 96 + 16 * (tu & 1)
        for cc in range(4):
            for v in range(2):
                a = 40 + 8 * (t >> 1) + 2 * cc + v
                off = (32 * (t & 1) + 16 * u + 8 * v) * 1024
                e(f"ds_read_b64_tr_b16 {vr(bufb + 4 * cc + 2 * v, 2)}, v{a} offset:{off}")
    trreads(0)
    for tu in range(8):
        if tu + 1 < 8:
            trreads(tu + 1)
            e("s_waitcnt lgkmcnt(8)")
        else:
            e("s_waitcnt lgkmcnt(0)")
        bufb = 96 + 16 * (tu & 1)
        for cc in range(4):
            acc = vr(192 + 16 * cc, 16)
            c = "0" if (first and tu == 0) else acc
            e(f"v_mfma_f32_32x32x16_bf16 {acc}, {vr(bufb + 4 * cc, 4)}, {vr(64 + 4 * tu, 4)}, {c}")
        fill(1)
    fill(99)


def km():
    L = "km_kernel"
    kernel_header(L)
    e("s_cmp_ge_u32 s2, 256")
    e("s_cbranch_scc1 KM_END")
    prof_kernel[0] = 1
    prof_start()
    srd(8, "A_ckv"); srd(12, "B_k"); srd(16, "B_v"); srd(20, "ws"); srd(48, "dbg")
    e("s_and_b32 s3, s2, 7")
    e("s_lshr_b32 s4, s2, 3")
    e("s_lshr_b32 s5, s3, 2")
    e("s_lshl_b32 s24, s4, 1")
    e("s_or_b32 s24, s24, s5")
    e("s_add_u32 s25, s3, s4")
    e("s_and_b32 s25, s25, 3")
    e("v_and_b32 v1, 63, v0")
    e("v_lshrrev_b32 v2, 6, v0")
    e("s_nop 0")
    e("v_readfirstlane_b32 s26, v2")
    e(f"s_mov_b32 s34, {SCALE_BITS:#x}")
    e(f"s_mov_b32 s35, {LOG2E_BITS:#x}")
    e("v_lshlrev_b32 v16, 4, v1")
    e("s_lshl_b32 s27, s26, 13")
    e("v_add_u32 v6, s27, v16")
    e("v_add_u32 v7, 4096, v6")
    e("v_and_b32 v8, 15, v1")
    e("v_lshlrev_b32 v8, 4, v8")
    e("s_lshl_b32 s27, s24, 8")
    e(f"s_add_u32 s27, s27, {QB}")
    e("s_lshl_b32 s30, s24, 21")
    e("s_add_u32 s30, s30, 1572864")
    e("s_waitcnt lgkmcnt(0)")
    srd_fin(8, "A_ckv"); srd_fin(12, "B_k"); srd_fin(16, "B_v"); srd_fin(20, "ws"); srd_fin(48, "dbg")
    e(f"buffer_load_dwordx4 {vr(2, 4)}, v8, s[20:23], s27 offen")
    e("s_cmp_ge_u32 s25, 2")
    e("s_cbranch_scc1 KM_BONLY")
    e("s_lshr_b32 s36, s24, 5")
    e("s_and_b32 s37, s24, 31")
    e("s_lshl_b32 s37, s37, 1")
    e("s_add_u32 s37, s37, s25")
    e("s_lshl_b32 s40, s36, 23")
    e("s_lshl_b32 s27, s37, 17")
    e("s_add_u32 s40, s40, s27")
    e("s_lshl_b32 s41, s26, 15")
    e("s_add_u32 s40, s40, s41")
    e("s_lshl_b32 s27, s36, 15")
    e("s_lshl_b32 s28, s26, 13")
    e("s_add_u32 s27, s27, s28")
    for part in range(1 if HIONLY else 2):
        for s in range(8):
            if s % 4 == 0:
                e(f"s_add_u32 s28, s27, {part * QA_LO + s * 1024}")
            e(f"buffer_load_dwordx4 {ar(32 * part + 4 * s, 4)}, v16, s[20:23], s28 offen offset:{(s % 4) * 1024}")
    tile_loads()
    e("v_and_b32 v56, 31, v1")
    e("v_lshrrev_b32 v57, 5, v1")
    e("v_and_b32 v58, 3, v1")
    e("v_lshlrev_b32 v58, 2, v58")
    e("v_bfe_u32 v59, v1, 2, 2")
    e("v_or_b32 v58, v58, v59")
    e("v_xor_b32 v58, v58, v57")
    e("v_lshlrev_b32 v58, 4, v58")
    for k in range(8):
        e(f"v_xor_b32 v{28 + k}, {32 * k}, v58")
    e("v_lshlrev_b32 v59, 10, v56")
    e("s_lshl_b32 s27, s26, 8")
    e("v_add_u32 v59, s27, v59")
    for j in range(4):
        e(f"s_add_u32 s27, s26, {j}")
        e("s_and_b32 s27, s27, 3")
        e("s_lshl_b32 s27, s27, 15")
        e(f"v_add_u32 v{24 + j}, s27, v59")
        e(f"s_sub_u32 s27, s26, {j}")
        e("s_and_b32 s27, s27, 3")
        e("s_lshl_b32 s27, s27, 12")
        e(f"s_add_u32 s27, s27, {RS}")
        e(f"v_add_u32 v{36 + j}, s27, v16")
    e("v_lshrrev_b32 v60, 4, v1")
    e("v_lshrrev_b32 v61, 5, v1")
    e("v_bfe_u32 v62, v1, 2, 2")
    e("v_and_b32 v63, 3, v1")
    e("v_and_b32 v64, 1, v60")
    e("v_lshlrev_b32 v64, 1, v64")
    e("v_lshrrev_b32 v65, 1, v63")
    e("v_add_u32 v64, v64, v65")
    e("v_lshl_or_b32 v65, v62, 2, v61")
    e("v_xor_b32 v64, v64, v65")
    e("v_lshlrev_b32 v64, 4, v64")
    e("v_and_b32 v65, 1, v63")
    e("v_lshl_add_u32 v64, v65, 3, v64")
    e("v_lshl_add_u32 v65, v61, 2, v62")
    e("v_lshl_add_u32 v64, v65, 10, v64")
    e("s_lshl_b32 s27, s26, 8")
    e("v_add_u32 v64, s27, v64")
    for cc in range(4):
        for v in range(2):
            e(f"v_xor_b32 v{40 + 2 * cc + v}, {64 * cc + 32 * v}, v64")
            e(f"v_add_u32 v{48 + 2 * cc + v}, 0x10000, v{40 + 2 * cc + v}")
    e("v_lshlrev_b32 v18, 2, v56")
    e(f"v_add_u32 v18, {MX}, v18")
    e("s_lshl_b32 s27, s26, 7")
    e("v_add_u32 v17, s27, v18")
    e(f"v_add_u32 v20, {PX}, v16")
    e("s_lshl_b32 s27, s26, 11")
    e("v_add_u32 v19, s27, v20")
    e("v_mov_b32 v8, 0xff800000")
    e("v_mov_b32 v9, 0")
    tile_to_lds()
    e("s_barrier")
    prof_mark(0)
    a_tile(True)
    prof_mark(1)
    e("v_mov_b32 v13, v9")
    e("s_nop 1")
    e("v_permlane32_swap_b32 v9, v13")
    e("s_nop 1")
    e("v_add_f32 v9, v9, v13")
    e(f"ds_write_b32 v17, v9 offset:{LX - MX}")
    e("s_nop 7")
    e("s_barrier")
    e("v_and_b32 v11, 31, v1")
    e("v_lshrrev_b32 v12, 5, v1")
    e("s_movk_i32 s27, 2064")
    e("v_mul_lo_u32 v14, v11, s27")
    e("v_lshl_add_u32 v14, v12, 4, v14")
    e("s_lshl_b32 s28, s26, 9")
    e("v_add_u32 v14, s28, v14")
    for cc in range(4):
        for q in range(4):
            e(f"ds_write_b128 v14, {vr(192 + 16 * cc + 4 * q, 4)} offset:{cc * 128 + q * 32}")
    e("s_waitcnt lgkmcnt(0)")
    e("s_barrier")
    e("s_mul_i32 s28, s26, 16512")
    e("v_add_u32 v14, s28, v16")
    for i in range(8):
        for hf in range(2):
            e(f"ds_read_b128 {vr(192 + 8 * i + 4 * hf, 4)}, v14 offset:{2064 * i + 1024 * hf}")
    e("s_lshl_b32 s27, s36, 6")
    e("s_add_u32 s27, s27, s37")
    e("s_lshl_b32 s27, s27, 16")
    e("s_lshl_b32 s28, s26, 14")
    e("s_add_u32 s27, s27, s28")
    e(f"s_add_u32 s27, s27, {APART}")
    for i in range(8):
        for hf in range(2):
            n = 2 * i + hf
            if n and n % 4 == 0:
                e("s_add_u32 s27, s27, 4096")
            e(f"s_waitcnt lgkmcnt({15 - n})")
            e(f"buffer_store_dwordx4 {vr(192 + 8 * i + 4 * hf, 4)}, v16, s[20:23], s27 offen offset:{(n % 4) * 1024}")
    e("s_cmp_lg_u32 s26, 0")
    e("s_cbranch_scc1 KM_ASTAT_DONE")
    for w in range(4):
        e(f"ds_read_b32 v{12 + w}, v18 offset:{LX - MX + 128 * w}")
    e("s_waitcnt lgkmcnt(0)")
    e("v_add_f32 v12, v12, v13")
    e("v_add_f32 v14, v14, v15")
    e("v_add_f32 v9, v12, v14")
    e("v_lshlrev_b32 v14, 9, v11")
    e("s_lshl_b32 s27, s36, 14")
    e("s_lshl_b32 s28, s37, 3")
    e("s_add_u32 s27, s27, s28")
    e(f"s_add_u32 s27, s27, {ASTAT}")
    e(f"buffer_store_dwordx2 v[8:9], v14, s[20:23], s27 offen")
    lab("KM_ASTAT_DONE")
    prof_mark(2)
    e("s_branch KM_END")
    lab("KM_BONLY")
    e("s_sub_u32 s27, s25, 2")
    e("s_mul_i32 s27, s27, 196608")
    e("s_add_u32 s31, s30, s27")
    e("s_sub_u32 s31, s31, 32768")
    e("v_mov_b32 v8, 0xff800000")
    for j in range(9, 18):
        e(f"v_mov_b32 v{j}, 0")
    bsched(6, lambda c: 3)
    lab("KM_BFIN")
    prof_mark(3)
    bcombine(BO, BS, "KM_BDONE")
    lab("KM_BDONE")
    lab("KM_END")
    e("s_endpgm")
    kernel_desc(L, 512, 256)
    return f"; @launch kernel={L} grid=(256,1,1) block=(256,1,1) lds={KM_LDS}"


OPA = 0xA00000


def k3():
    L = "k3_kernel"
    kernel_header(L)
    e("s_cmp_ge_u32 s2, 512")
    e("s_cbranch_scc1 K3_END")
    srd(20, "ws")
    e("v_and_b32 v1, 63, v0")
    e("v_lshrrev_b32 v2, 6, v0")
    e("s_nop 0")
    e("v_readfirstlane_b32 s26, v2")
    e("s_bfe_u32 s52, s2, 0x20006")
    e("s_and_b32 s53, s2, 63")
    e("s_and_b32 s54, s2, 31")
    e("s_bfe_u32 s55, s2, 0x10005")
    e("s_lshr_b32 s56, s2, 8")
    e("s_cmp_lg_u32 s56, 0")
    e("s_cbranch_scc1 K3_LB")
    srd(16, "A_wo"); srd(12, "A_wuv")
    e("s_branch K3_LD")
    lab("K3_LB")
    srd(16, "B_wo")
    lab("K3_LD")
    e("v_lshrrev_b32 v44, 2, v0")
    e("v_and_b32 v45, 3, v0")
    e("v_lshlrev_b32 v46, 16, v44")
    e("v_lshl_add_u32 v46, v45, 4, v46")
    e("v_lshlrev_b32 v16, 4, v1")
    e("s_waitcnt lgkmcnt(0)")
    srd_fin(16, "A_wo"); srd_fin(20, "ws")
    e("s_lshl_b32 s28, s54, 17")
    e("s_lshl_b32 s29, s52, 15")
    e("s_add_u32 s28, s28, s29")
    e("s_lshl_b32 s29, s26, 13")
    e("s_add_u32 s28, s28, s29")
    for i in range(8):
        if i == 4:
            e("s_add_u32 s28, s28, 4096")
        e(f"buffer_load_dwordx4 {vr(224 + 4 * i, 4)}, v16, s[16:19], s28 offen offset:{(i % 4) * 1024} nt")
    e("s_cmp_lg_u32 s56, 0")
    e("s_cbranch_scc1 K3_B")
    srd_fin(12, "A_wuv")
    e("s_lshl_b32 s28, s54, 8")
    e("s_lshl_b32 s29, s52, 6")
    e("s_add_u32 s28, s28, s29")
    for i in range(8):
        e(f"buffer_load_dwordx4 {vr(192 + 4 * i, 4)}, v46, s[12:15], s28 offen nt")
        e("s_add_u32 s28, s28, 8192")
    e("v_lshlrev_b32 v4, 3, v0")
    e("v_lshlrev_b32 v5, 3, v1")
    e("s_lshl_b32 s28, s53, 9")
    e(f"s_add_u32 s28, s28, {ASTAT}")
    e("buffer_load_dwordx2 v[8:9], v5, s[20:23], s28 offen")
    e("s_lshl_b32 s28, s55, 22")
    e("s_lshl_b32 s29, s54, 11")
    e("s_add_u32 s28, s28, s29")
    e(f"s_add_u32 s28, s28, {APART}")
    for s in range(64):
        e(f"buffer_load_dwordx2 {vr(64 + 2 * s, 2)}, v4, s[20:23], s28 offen")
        e("s_add_u32 s28, s28, 0x10000")
    e("s_waitcnt vmcnt(63)")
    e("s_waitcnt vmcnt(63)")
    e("v_mov_b32 v10, v8")
    for sh in (8, 4, 2, 1):
        e("s_nop 1")
        e(f"v_max_f32_dpp v10, v10, v10 row_ror:{sh} row_mask:0xf bank_mask:0xf")
    e("v_mov_b32 v11, v10")
    e("s_nop 1")
    e("v_permlane16_swap_b32 v10, v11")
    e("s_nop 1")
    e("v_max_f32 v10, v10, v11")
    e("v_mov_b32 v11, v10")
    e("s_nop 1")
    e("v_permlane32_swap_b32 v10, v11")
    e("s_nop 1")
    e("v_max_f32 v10, v10, v11")
    e("v_sub_f32 v8, v8, v10")
    e("v_exp_f32 v8, v8")
    e("s_nop 0")
    e("v_mul_f32 v10, v8, v9")
    for sh in (8, 4, 2, 1):
        e("s_nop 1")
        e(f"v_add_f32_dpp v10, v10, v10 row_ror:{sh} row_mask:0xf bank_mask:0xf")
    e("v_mov_b32 v11, v10")
    e("s_nop 1")
    e("v_permlane16_swap_b32 v10, v11")
    e("s_nop 1")
    e("v_add_f32 v10, v10, v11")
    e("v_mov_b32 v11, v10")
    e("s_nop 1")
    e("v_permlane32_swap_b32 v10, v11")
    e("s_nop 1")
    e("v_add_f32 v10, v10, v11")
    e("v_rcp_f32 v6, v10")
    e("v_mov_b32 v40, 0")
    e("v_mov_b32 v41, 0")
    for s in range(64):
        e(f"v_readlane_b32 s{60 + (s & 3)}, v8, {s}")
        e(f"s_waitcnt vmcnt({63 - s})")
        e("s_nop 0")
        e(f"v_fmac_f32 v40, s{60 + (s & 3)}, v{64 + 2 * s}")
        e(f"v_fmac_f32 v41, s{60 + (s & 3)}, v{65 + 2 * s}")
    e("v_mul_f32 v40, v40, v6")
    e("v_mul_f32 v41, v41, v6")
    e("ds_write_b64 v4, v[40:41]")
    e("s_waitcnt lgkmcnt(0)")
    e("s_barrier")
    e("v_lshlrev_b32 v5, 5, v44")
    e(f"ds_read_b128 {vr(8, 4)}, v5")
    e(f"ds_read_b128 {vr(12, 4)}, v5 offset:16")
    for k in range(8):
        e(f"v_mov_b32 v{24 + k}, 0")
    e("s_waitcnt lgkmcnt(0)")
    for i in range(8):
        for k in range(4):
            unpack2(32 + 2 * k, 33 + 2 * k, 192 + 4 * i + k)
        for k in range(8):
            e(f"v_fmac_f32 v{24 + k}, v{32 + k}, v{8 + i}")
    e("v_lshlrev_b32 v5, 7, v44")
    e("v_lshl_add_u32 v5, v45, 5, v5")
    e(f"ds_write_b128 v5, {vr(24, 4)} offset:2048")
    e(f"ds_write_b128 v5, {vr(28, 4)} offset:2064")
    e("s_waitcnt lgkmcnt(0)")
    e("s_barrier")
    e("v_and_b32 v5, 31, v1")
    e("v_lshrrev_b32 v6, 5, v1")
    e("v_lshlrev_b32 v5, 2, v5")
    e("v_lshl_add_u32 v5, v6, 12, v5")
    for g in range(32):
        e(f"ds_read_b32 v{64 + g}, v5 offset:{2048 + 128 * g}")
    e("s_waitcnt lgkmcnt(0)")
    for n in (16, 8, 4, 2, 1):
        for g in range(n):
            e(f"v_add_f32 v{64 + g}, v{64 + g}, v{64 + n + g}")
    e("v_mov_b32 v65, v64")
    e("s_nop 1")
    e("v_permlane32_swap_b32 v64, v65")
    e("s_nop 1")
    e("v_add_f32 v64, v64, v65")
    e("v_cvt_pk_bf16_f32 v64, v64, v64")
    e("v_lshlrev_b32 v64, 16, v64")
    e("s_branch K3_OUT")
    lab("K3_B")
    e("v_mov_b32 v5, 0")
    e("s_lshl_b32 s28, s53, 5")
    e(f"s_add_u32 s28, s28, {BSTAT}")
    e(f"buffer_load_dwordx4 v[8:11], v5, s[20:23], s28 offen")
    e(f"buffer_load_dwordx4 v[12:15], v5, s[20:23], s28 offen offset:16")
    e("v_and_b32 v5, 31, v1")
    e("v_lshlrev_b32 v5, 2, v5")
    e("s_lshl_b32 s28, s53, 11")
    e("s_lshl_b32 s29, s52, 7")
    e("s_add_u32 s28, s28, s29")
    e(f"s_add_u32 s28, s28, {BPART}")
    for r in range(4):
        e(f"buffer_load_dword v{64 + r}, v5, s[20:23], s28 offen offset:{512 * r}")
    e("s_waitcnt vmcnt(0)")
    e("v_max3_f32 v56, v8, v10, v12")
    e("v_max_f32 v56, v56, v14")
    for r in range(4):
        e(f"v_sub_f32 v{8 + 2 * r}, v{8 + 2 * r}, v56")
    for r in range(4):
        e(f"v_exp_f32 v{8 + 2 * r}, v{8 + 2 * r}")
    e("s_nop 0")
    e("v_mul_f32 v57, v8, v9")
    e("v_mul_f32 v58, v8, v64")
    for r in range(1, 4):
        e(f"v_fmac_f32 v57, v{8 + 2 * r}, v{9 + 2 * r}")
        e(f"v_fmac_f32 v58, v{8 + 2 * r}, v{64 + r}")
    e("v_rcp_f32 v57, v57")
    e("s_nop 0")
    e("v_mul_f32 v58, v58, v57")
    e("v_cvt_pk_bf16_f32 v58, v58, v58")
    e("v_lshlrev_b32 v64, 16, v58")
    lab("K3_OUT")
    e("s_lshl_b32 s30, s26, 3")
    for k in range(8):
        e(f"v_mov_b32 v{24 + k}, 0")
    e("s_waitcnt vmcnt(0)")
    for i in range(8):
        e(f"s_add_u32 s31, s30, {i}")
        e(f"v_readlane_b32 s{60 + i}, v64, s31")
    for i in range(8):
        for k in range(4):
            unpack2(32 + 2 * k, 33 + 2 * k, 224 + 4 * i + k)
        for k in range(8):
            e(f"v_fmac_f32 v{24 + k}, s{60 + i}, v{32 + k}")
    e("s_barrier")
    e("v_lshlrev_b32 v5, 5, v1")
    e("s_lshl_b32 s30, s26, 11")
    e("v_add_u32 v5, s30, v5")
    e(f"ds_write_b128 v5, {vr(24, 4)}")
    e(f"ds_write_b128 v5, {vr(28, 4)} offset:16")
    e("s_waitcnt lgkmcnt(0)")
    e("s_barrier")
    e("v_lshlrev_b32 v5, 3, v0")
    for w in range(4):
        e(f"ds_read_b64 {vr(8 + 2 * w, 2)}, v5 offset:{2048 * w}")
    e("s_waitcnt lgkmcnt(0)")
    e("v_add_f32 v8, v8, v10")
    e("v_add_f32 v9, v9, v11")
    e("v_add_f32 v12, v12, v14")
    e("v_add_f32 v13, v13, v15")
    e("v_add_f32 v8, v8, v12")
    e("v_add_f32 v9, v9, v13")
    e("s_lshl_b32 s28, s56, 19")
    e("s_lshl_b32 s29, s55, 18")
    e("s_add_u32 s28, s28, s29")
    e("s_lshl_b32 s29, s54, 13")
    e("s_add_u32 s28, s28, s29")
    e("s_lshl_b32 s29, s52, 11")
    e("s_add_u32 s28, s28, s29")
    e(f"s_add_u32 s28, s28, {OPA}")
    e("buffer_store_dwordx2 v[8:9], v5, s[20:23], s28 offen")
    lab("K3_END")
    e("s_endpgm")
    kernel_desc(L, 256, 256)
    return f"; @launch kernel={L} grid=(512,1,1) block=(256,1,1) lds=10240"


def k4():
    L = "k4_kernel"
    kernel_header(L)
    e("s_cmp_ge_u32 s2, 32")
    e("s_cbranch_scc1 K4_END")
    srd(20, "ws"); srd(8, "out")
    e("s_lshr_b32 s24, s2, 3")
    e("s_and_b32 s25, s2, 7")
    e("v_and_b32 v1, 15, v0")
    e("v_lshrrev_b32 v2, 4, v0")
    e("v_lshlrev_b32 v3, 14, v2")
    e("v_lshl_add_u32 v3, v1, 4, v3")
    e("s_lshl_b32 s26, s24, 18")
    e("s_lshl_b32 s27, s25, 8")
    e("s_add_u32 s26, s26, s27")
    e(f"s_add_u32 s26, s26, {OPA}")
    e("s_waitcnt lgkmcnt(0)")
    srd_fin(20, "ws"); srd_fin(8, "out")
    for i in range(8):
        if i % 2 == 0 and i:
            e("s_add_u32 s26, s26, 4096")
        e(f"buffer_load_dwordx4 {vr(8 + 4 * i, 4)}, v3, s[20:23], s26 offen offset:{(i % 2) * 2048}")
    e("s_waitcnt vmcnt(0)")
    for n in (4, 2, 1):
        for i in range(n):
            for k in range(4):
                e(f"v_add_f32 v{8 + 4 * i + k}, v{8 + 4 * i + k}, v{8 + 4 * (i + n) + k}")
    e("v_lshlrev_b32 v4, 4, v0")
    e(f"ds_write_b128 v4, {vr(8, 4)}")
    e("s_waitcnt lgkmcnt(0)")
    e("s_barrier")
    e("v_cmp_gt_u32 vcc, 64, v0")
    e("s_and_saveexec_b64 s[28:29], vcc")
    e("s_cbranch_execz K4_END")
    e("v_lshlrev_b32 v4, 2, v0")
    for g in range(16):
        e(f"ds_read_b32 v{8 + g}, v4 offset:{256 * g}")
    e("s_waitcnt lgkmcnt(0)")
    for n in (8, 4, 2, 1):
        for g in range(n):
            e(f"v_add_f32 v{8 + g}, v{8 + g}, v{8 + n + g}")
    e("v_cvt_pk_bf16_f32 v8, v8, v8")
    e("s_and_b32 s26, s24, 1")
    e("s_lshl_b32 s26, s26, 11")
    e("s_lshr_b32 s27, s24, 1")
    e("s_lshl_b32 s27, s27, 10")
    e("s_add_u32 s26, s26, s27")
    e("s_lshl_b32 s27, s25, 7")
    e("s_add_u32 s26, s26, s27")
    e("v_lshlrev_b32 v4, 1, v0")
    e("buffer_store_short v8, v4, s[8:11], s26 offen")
    lab("K4_END")
    e("s_endpgm")
    kernel_desc(L, 48, 48)
    return f"; @launch kernel={L} grid=(32,1,1) block=(256,1,1) lds=4096"


LAUNCHES = []


def main():
    LAUNCHES.append(k1())
    LAUNCHES.append(km())
    LAUNCHES.append(k3())
    LAUNCHES.append(k4())
    head = open(f"cdna_kernels/{NAME}.s.ref").read().split("; Override launch")[0]
    txt = head + "\n".join(LAUNCHES) + "\n"
    txt += '.amdgcn_target "amdgcn-amd-amdhsa--gfx950"\n.text\n'
    txt += "\n".join(out) + "\n"
    txt += '.section .rodata,"a"\n' + "\n".join(descs) + "\n"
    path = sys.argv[1] if len(sys.argv) > 1 else f"cdna_kernels/{NAME}.s"
    open(path, "w").write(txt)


if __name__ == "__main__":
    main()
```

```python
import sys

NAME = "concat_heads__compressed_kv_cla__sliding_block_cached__decode"

KA = dict(A_x=0, A_ckv=8, A_wq=16, A_wuk=24, A_wuv=32, A_wo=40, B_x=48, B_k=56, B_v=64,
          B_wq=72, B_wo=80, out=88, dbg=96, ws=104)
SZ = dict(A_x=2048, A_ckv=16777216, A_wq=4194304, A_wuk=4194304, A_wuv=4194304, A_wo=4194304,
          B_x=2048, B_k=134217728, B_v=134217728, B_wq=4194304, B_wo=4194304, out=4096, dbg=256,
          ws=536870912)

QA_HI = 0x00000
QA_LO = 0x10000
QB = 0x20000
ASTAT = 0x30000
BPART = 0x40000
BSTAT = 0x80000
CTX = 0x70000
OPART = 0x80000
APART = 0x100000

SCALE_BITS = 0x3DB504F3
LOG2E_BITS = 0x3FB8AA3B

out = []
import os
DEBUG = bool(os.environ.get('DEBUG'))
PROF = bool(os.environ.get('PROF'))
HIONLY = bool(os.environ.get('HIONLY'))
PROFBASE = 0xC00000


def prof_start():
    if PROF:
        e("s_memrealtime s[90:91]")


def prof_mark(slot, t=21):
    if PROF:
        e("s_memrealtime s[92:93]")
        e("s_waitcnt lgkmcnt(0)")
        e("s_sub_u32 s92, s92, s90")
        e(f"v_mov_b32 v{t}, s92")
        e("s_lshl_b32 s94, s2, 7")
        e(f"s_add_u32 s94, s94, {PROFBASE + prof_kernel[0] * 0x10000 + slot * 4}")
        e(f"v_lshrrev_b32 v{t+1}, 6, v0")
        e(f"v_lshlrev_b32 v{t+1}, 5, v{t+1}")
        e(f"buffer_store_dword v{t}, v{t+1}, s[20:23], s94 offen")


prof_kernel = [0]


def e(s):
    out.append("    " + s)


def lab(s):
    out.append(s + ":")


def srd(dst, name):
    e(f"s_load_dwordx2 s[{dst}:{dst+1}], s[0:1], {KA[name]}")


def srd_fin(dst, name):
    e(f"s_mov_b32 s{dst+2}, {SZ[name]}")
    e(f"s_mov_b32 s{dst+3}, 0x20000")


def vr(a, n):
    return f"v[{a}:{a+n-1}]"


def ar(a, n):
    return f"a[{a}:{a+n-1}]"


def kernel_header(label):
    out.append(f".globl {label}")
    out.append(".p2align 8")
    out.append(f".type {label},@function")
    lab(label)


descs = []


def kernel_desc(label, vgpr, accum, sgpr=102):
    descs.append(f""".p2align 6
.amdhsa_kernel {label}
  .amdhsa_next_free_vgpr {vgpr}
  .amdhsa_next_free_sgpr {sgpr}
  .amdhsa_accum_offset {accum}
  .amdhsa_group_segment_fixed_size 0
  .amdhsa_kernarg_size 112
  .amdhsa_user_sgpr_count 2
  .amdhsa_user_sgpr_kernarg_segment_ptr 1
  .amdhsa_system_sgpr_workgroup_id_x 1
.end_amdhsa_kernel""")


def unpack2(dlo, dhi, src):
    e(f"v_lshlrev_b32 v{dlo}, 16, v{src}")
    e(f"v_and_b32 v{dhi}, 0xffff0000, v{src}")


def gemv_rows(nrows, wbase, xbase0, xbase1, acc, tmp, xt, vm_after):
    for i in range(nrows):
        e(f"s_waitcnt vmcnt({nrows - 1 - i + vm_after})")
        if i % 2 == 0:
            e(f"v_lshlrev_b32 v{xt}, 16, v{xbase0 + i // 2}")
            e(f"v_lshlrev_b32 v{xt+1}, 16, v{xbase1 + i // 2}")
        else:
            e(f"v_and_b32 v{xt}, 0xffff0000, v{xbase0 + i // 2}")
            e(f"v_and_b32 v{xt+1}, 0xffff0000, v{xbase1 + i // 2}")
        for k in range(4):
            unpack2(tmp + 2 * k, tmp + 2 * k + 1, wbase + 4 * i + k)
        for k in range(8):
            e(f"v_fmac_f32 v{acc + k}, v{tmp + k}, v{xt}")
            e(f"v_fmac_f32 v{acc + 8 + k}, v{tmp + k}, v{xt+1}")


def k1():
    L = "k1_kernel"
    kernel_header(L)
    e("s_cmp_ge_u32 s2, 256")
    e("s_cbranch_scc1 K1_END")
    e("s_cmp_ge_u32 s2, 128")
    e("s_cbranch_scc1 K1_B")
    srd(8, "A_x"); srd(12, "A_wq"); srd(16, "A_wuk"); srd(20, "ws")
    e("s_and_b32 s24, s2, 31")
    e("s_lshr_b32 s25, s2, 5")
    e("v_and_b32 v1, 15, v0")
    e("v_lshrrev_b32 v2, 4, v0")
    e("v_lshlrev_b32 v3, 18, v2")
    e("v_lshl_add_u32 v3, v1, 4, v3")
    e("v_lshlrev_b32 v4, 6, v2")
    e("v_lshlrev_b32 v5, 13, v2")
    e("v_lshl_add_u32 v5, v1, 4, v5")
    e("s_lshl_b32 s26, s24, 8")
    e("s_waitcnt lgkmcnt(0)")
    srd_fin(8, "A_x"); srd_fin(12, "A_wq"); srd_fin(16, "A_wuk"); srd_fin(20, "ws")
    for b in range(2):
        for k in range(4):
            e(f"buffer_load_dwordx4 {vr(8 + 16 * b + 4 * k, 4)}, v4, s[8:11], 0 offen offset:{1024 * b + 16 * k}")
    e("s_mov_b32 s27, s26")
    for i in range(32):
        e(f"buffer_load_dwordx4 {vr(40 + 4 * i, 4)}, v3, s[12:15], s27 offen nt")
        e("s_add_u32 s27, s27, 8192")
    e("s_lshl_b32 s27, s25, 20")
    e("s_add_u32 s27, s27, s26")
    for i in range(8):
        e(f"buffer_load_dwordx4 {vr(168 + 4 * i, 4)}, v5, s[16:19], s27 offen nt")
        e("s_add_u32 s27, s27, 0x20000")
    for k in range(16):
        e(f"v_mov_b32 v{200 + k}, 0")
    gemv_rows(32, 40, 8, 24, 200, 218, 216, 8)
    e("v_lshlrev_b32 v6, 10, v2")
    e("v_lshl_add_u32 v6, v1, 5, v6")
    e(f"ds_write_b128 v6, {vr(200, 4)}")
    e(f"ds_write_b128 v6, {vr(204, 4)} offset:16")
    e(f"ds_write_b128 v6, {vr(208, 4)} offset:512")
    e(f"ds_write_b128 v6, {vr(212, 4)} offset:528")
    e("s_waitcnt lgkmcnt(0)")
    e("s_barrier")
    e("v_lshlrev_b32 v6, 2, v0")
    for g in range(16):
        e(f"ds_read_b32 v{8 + g}, v6 offset:{1024 * g}")
    e("s_waitcnt lgkmcnt(0)")
    for g in range(1, 16):
        e(f"v_add_f32 v8, v8, v{8 + g}")
    e("v_cvt_pk_bf16_f32 v8, v8, v8")
    e("v_lshlrev_b32 v6, 1, v0")
    e("ds_write_b16 v6, v8 offset:16384")
    e("s_waitcnt lgkmcnt(0)")
    e("s_barrier")
    e("v_lshlrev_b32 v6, 4, v1")
    e(f"ds_read_b128 {vr(8, 4)}, v6 offset:16384")
    e(f"ds_read_b128 {vr(12, 4)}, v6 offset:16640")
    e("s_waitcnt vmcnt(0) lgkmcnt(0)")
    for k in range(4):
        for i in range(8):
            for b in range(2):
                d = 24 + 2 * i + b
                c = "0" if k == 0 else f"v{d}"
                e(f"v_dot2_f32_bf16 v{d}, v{168 + 4 * i + k}, v{8 + 4 * b + k}, {c}")
    e("s_nop 3")
    for sh in (8, 4, 2, 1):
        for d in range(24, 40):
            e(f"v_add_f32_dpp v{d}, v{d}, v{d} row_ror:{sh} row_mask:0xf bank_mask:0xf")
        e("s_nop 1")
    e("v_lshlrev_b32 v6, 2, v2")
    for i in range(8):
        for b in range(2):
            e(f"ds_write_b32 v6, v{24 + 2 * i + b} offset:{16896 + 512 * b + 64 * i}")
    e("s_waitcnt lgkmcnt(0)")
    e("s_barrier")
    e("v_cmp_gt_u32 vcc, 32, v0")
    e("s_and_saveexec_b64 s[28:29], vcc")
    e("s_cbranch_execz K1_END")
    e("v_lshlrev_b32 v6, 5, v0")
    e(f"ds_read_b128 {vr(8, 4)}, v6 offset:16896")
    e(f"ds_read_b128 {vr(12, 4)}, v6 offset:16912")
    e("s_waitcnt lgkmcnt(0)")
    for k in range(4):
        a, b_ = 8 + 2 * k, 9 + 2 * k
        e(f"v_cvt_pk_bf16_f32 v{16 + k}, v{a}, v{b_}")
        unpack2(24, 25, 16 + k)
        e(f"v_sub_f32 v24, v{a}, v24")
        e(f"v_sub_f32 v25, v{b_}, v25")
        e(f"v_cvt_pk_bf16_f32 v{20 + k}, v24, v25")
    e("v_lshrrev_b32 v6, 4, v0")
    e("v_and_b32 v7, 15, v0")
    e("v_lshrrev_b32 v24, 1, v7")
    e("v_and_b32 v25, 1, v7")
    e("v_lshlrev_b32 v6, 15, v6")
    e("v_lshl_add_u32 v6, v24, 10, v6")
    e("v_lshl_add_u32 v6, v25, 9, v6")
    e("s_lshl_b32 s27, s25, 13")
    e("s_lshl_b32 s28, s24, 4")
    e("s_add_u32 s27, s27, s28")
    e(f"buffer_store_dwordx4 {vr(16, 4)}, v6, s[20:23], s27 offen")
    e(f"s_add_u32 s27, s27, {QA_LO}")
    e(f"buffer_store_dwordx4 {vr(20, 4)}, v6, s[20:23], s27 offen")
    e("s_branch K1_END")
    lab("K1_B")
    srd(8, "B_x"); srd(44, "B_wq"); srd(20, "ws"); srd(12, "B_k"); srd(16, "B_v")
    e("s_sub_u32 s3, s2, 128")
    e("s_and_b32 s4, s3, 31")
    e("s_bfe_u32 s5, s3, 0x10005")
    e("s_lshr_b32 s25, s3, 6")
    e("s_lshl_b32 s24, s5, 5")
    e("s_add_u32 s24, s24, s4")
    e("v_and_b32 v1, 63, v0")
    e("v_lshrrev_b32 v2, 6, v0")
    e("s_nop 0")
    e("v_readfirstlane_b32 s26, v2")
    e(f"s_mov_b32 s34, {SCALE_BITS:#x}")
    e(f"s_mov_b32 s35, {LOG2E_BITS:#x}")
    e("v_and_b32 v42, 15, v0")
    e("v_lshrrev_b32 v43, 4, v0")
    e("v_lshlrev_b32 v3, 18, v43")
    e("v_lshl_add_u32 v3, v42, 4, v3")
    e("v_lshlrev_b32 v4, 6, v43")
    e("v_lshlrev_b32 v16, 4, v1")
    e("s_lshl_b32 s27, s26, 13")
    e("v_add_u32 v6, s27, v16")
    e("v_add_u32 v7, 4096, v6")
    e("s_lshl_b32 s30, s24, 21")
    e("s_lshl_b32 s27, s25, 16")
    e("s_add_u32 s30, s30, s27")
    e("s_add_u32 s31, s30, 1966080")
    e("s_lshl_b32 s36, s4, 8")
    e("s_lshl_b32 s37, s5, 10")
    e("s_waitcnt lgkmcnt(0)")
    srd_fin(8, "B_x"); srd_fin(44, "B_wq"); srd_fin(20, "ws"); srd_fin(12, "B_k"); srd_fin(16, "B_v")
    for k in range(4):
        e(f"buffer_load_dwordx4 {vr(44 + 4 * k, 4)}, v4, s[8:11], s37 offen offset:{16 * k}")
    e("s_mov_b32 s27, s36")
    for i in range(32):
        e(f"buffer_load_dwordx4 {vr(64 + 4 * i, 4)}, v3, s[44:47], s27 offen nt")
        e("s_add_u32 s27, s27, 8192")
    bloads(192, 224, 31)
    for k in range(8):
        e(f"v_mov_b32 v{20 + k}, 0")
    for i in range(32):
        e(f"s_waitcnt vmcnt({31 - i + 16})")
        if i % 2 == 0:
            e(f"v_lshlrev_b32 v18, 16, v{44 + i // 2}")
        else:
            e(f"v_and_b32 v18, 0xffff0000, v{44 + i // 2}")
        for k in range(4):
            unpack2(28 + 2 * k, 29 + 2 * k, 64 + 4 * i + k)
        for k in range(8):
            e(f"v_fmac_f32 v{20 + k}, v{28 + k}, v18")
    e("s_add_u32 s31, s31, 32768")
    bloads(64, 96, 31)
    e("v_lshlrev_b32 v18, 9, v43")
    e("v_lshl_add_u32 v18, v42, 5, v18")
    e(f"ds_write_b128 v18, {vr(20, 4)}")
    e(f"ds_write_b128 v18, {vr(24, 4)} offset:16")
    e("s_waitcnt lgkmcnt(0)")
    e("s_barrier")
    e("v_and_b32 v18, 127, v0")
    e("v_lshlrev_b32 v19, 2, v18")
    for g in range(16):
        e(f"ds_read_b32 v{20 + g}, v19 offset:{512 * g}")
    e("s_waitcnt lgkmcnt(0)")
    for n in (8, 4, 2, 1):
        for g in range(n):
            e(f"v_add_f32 v{20 + g}, v{20 + g}, v{20 + n + g}")
    e("v_cvt_pk_bf16_f32 v20, v20, v20")
    e("v_lshlrev_b32 v19, 1, v18")
    e("ds_write_b16 v19, v20 offset:8192")
    e("s_cmp_lg_u32 s25, 0")
    e("s_cbranch_scc1 K1_NOQB")
    e("s_lshl_b32 s27, s24, 8")
    e(f"s_add_u32 s27, s27, {QB}")
    e("buffer_store_short v20, v19, s[20:23], s27 offen")
    lab("K1_NOQB")
    e("s_waitcnt lgkmcnt(0)")
    e("s_barrier")
    e("v_and_b32 v18, 15, v1")
    e("v_lshlrev_b32 v18, 4, v18")
    e(f"ds_read_b128 {vr(2, 4)}, v18 offset:8192")
    e("v_mov_b32 v8, 0xff800000")
    for j in range(9, 18):
        e(f"v_mov_b32 v{j}, 0")
    e("s_waitcnt vmcnt(16) lgkmcnt(0)")
    bscore(192)
    bpv(224)
    e("s_waitcnt vmcnt(0)")
    bscore(64)
    bpv(96)
    bcombine(8704, 8704 + 8192, "K1_END")
    lab("K1_END")
    e("s_endpgm")
    kernel_desc(L, 256, 256)
    return f"; @launch kernel={L} grid=(256,1,1) block=(256,1,1) lds=18432"


MX = 131072
LX = 131584
PX = 132096
BO = 140288
RS = PX
BS = BO + 8192
KM_LDS = BS + 128
C3 = 132
C4 = 136
C5 = 168
C6 = 200
SC = " sc1"


def fsw(r):
    return ((r & 3) << 2) | ((r >> 2) & 3)


def bloads(K, V, soff):
    for (base, srdn) in ((K, 12), (V, 16)):
        for i in range(8):
            va = 6 if i < 4 else 7
            e(f"buffer_load_dwordx4 {vr(base + 4 * i, 4)}, v{va}, s[{srdn}:{srdn+3}], s{soff} offen offset:{(i % 4) * 1024} nt")


def round_scale(a, b, t):
    e(f"v_cvt_pk_bf16_f32 v{t}, v{a}, v{b}")
    unpack2(a, b, t)
    e(f"v_mul_f32 v{a}, s34, v{a}")
    e(f"v_mul_f32 v{b}, s34, v{b}")
    e(f"v_cvt_pk_bf16_f32 v{t}, v{a}, v{b}")
    unpack2(a, b, t)
    e(f"v_mul_f32 v{a}, s35, v{a}")
    e(f"v_mul_f32 v{b}, s35, v{b}")


def bscore(K):
    for k in range(4):
        for i in range(8):
            c = "0" if k == 0 else f"v{18+i}"
            e(f"v_dot2_f32_bf16 v{18+i}, v{K + 4*i + k}, v{2+k}, {c}")
    for sh in (8, 4, 2, 1):
        for i in range(8):
            e(f"v_add_f32_dpp v{18+i}, v{18+i}, v{18+i} row_ror:{sh} row_mask:0xf bank_mask:0xf")
    for i in range(0, 8, 2):
        round_scale(18 + i, 19 + i, 26)
    e("v_max3_f32 v26, v18, v19, v20")
    e("v_max3_f32 v26, v26, v21, v22")
    e("v_max3_f32 v26, v26, v23, v24")
    e("v_max3_f32 v26, v26, v25, v8")
    e("v_sub_f32 v27, v8, v26")
    e("v_exp_f32 v27, v27")
    e("v_mov_b32 v8, v26")
    for i in range(8):
        e(f"v_sub_f32 v{18+i}, v{18+i}, v26")
    for i in range(8):
        e(f"v_exp_f32 v{18+i}, v{18+i}")
    e("v_mul_f32 v9, v9, v27")
    for j in range(8):
        e(f"v_mul_f32 v{10+j}, v{10+j}, v27")
    for i in range(8):
        e(f"v_add_f32 v9, v9, v{18+i}")


def bpv(V):
    for i in range(8):
        for k in range(4):
            unpack2(34 + 2 * k, 35 + 2 * k, V + 4 * i + k)
        for j in range(8):
            e(f"v_fmac_f32 v{10+j}, v{34+j}, v{18+i}")


def bload1(base, srdn, soff):
    for i in range(8):
        va = 6 if i < 4 else 7
        e(f"buffer_load_dwordx4 {vr(base + 4 * i, 4)}, v{va}, s[{srdn}:{srdn+3}], s{soff} offen offset:{(i % 4) * 1024} nt")


def bsched(nunits, ahead):
    bufs = [(128, 160), (192, 224)]
    n = 2 * nunits
    issued = 0
    for c in range(n):
        while issued < n and issued <= c + min(ahead(c), 3):
            u, isv = issued >> 1, issued & 1
            if not isv:
                e("s_add_u32 s31, s31, 32768")
                e("s_mov_b32 s33, s31") if False else None
            e(f"s_mov_b32 s{60 + (u & 1)}, s31") if not isv else None
            bload1(bufs[u & 1][isv], 16 if isv else 12, 60 + (u & 1))
            issued += 1
        e(f"s_waitcnt vmcnt({8 * (issued - 1 - c)})")
        u, isv = c >> 1, c & 1
        if isv:
            bpv(bufs[u & 1][1])
        else:
            if u < 3:
                prof_mark(u)
            bscore(bufs[u & 1][0])


def bcombine(BO, BS, done):
    e("v_lshrrev_b32 v18, 4, v1")
    e("s_lshl_b32 s27, s26, 2")
    e("v_add_u32 v18, s27, v18")
    e("v_and_b32 v19, 15, v1")
    e("v_lshlrev_b32 v20, 9, v18")
    e("v_lshl_add_u32 v20, v19, 5, v20")
    e(f"v_add_u32 v20, {BO}, v20")
    e(f"ds_write_b128 v20, {vr(10, 4)}")
    e(f"ds_write_b128 v20, {vr(14, 4)} offset:16")
    e("v_lshlrev_b32 v21, 3, v18")
    e(f"v_add_u32 v21, {BS}, v21")
    e("ds_write_b64 v21, v[8:9]")
    e("s_waitcnt lgkmcnt(0)")
    e("s_barrier")
    e("s_cmp_ge_u32 s26, 2")
    e(f"s_cbranch_scc1 {done}")
    e(f"v_mov_b32 v21, {BS}")
    for s in range(16):
        e(f"ds_read_b64 {vr(64 + 2 * s, 2)}, v21 offset:{8 * s}")
    e("v_lshlrev_b32 v20, 2, v0")
    e(f"v_add_u32 v20, {BO}, v20")
    for s in range(16):
        e(f"ds_read_b32 v{96 + s}, v20 offset:{512 * s}")
    e("s_waitcnt lgkmcnt(0)")
    e("v_max3_f32 v8, v64, v66, v68")
    for s in range(3, 15, 2):
        e(f"v_max3_f32 v8, v8, v{64 + 2 * s}, v{66 + 2 * s}")
    e("v_max_f32 v8, v8, v94")
    for s in range(16):
        e(f"v_sub_f32 v{64 + 2 * s}, v{64 + 2 * s}, v8")
    for s in range(16):
        e(f"v_exp_f32 v{64 + 2 * s}, v{64 + 2 * s}")
    e("s_nop 0")
    e("v_mul_f32 v9, v64, v65")
    e("v_mul_f32 v10, v64, v96")
    for s in range(1, 16):
        e(f"v_fmac_f32 v9, v{64 + 2 * s}, v{65 + 2 * s}")
        e(f"v_fmac_f32 v10, v{64 + 2 * s}, v{96 + s}")
    e("s_lshl_b32 s27, s24, 3")
    e("s_add_u32 s27, s27, s25")
    e("s_lshl_b32 s28, s27, 9")
    e(f"s_add_u32 s28, s28, {BPART}")
    e("v_lshlrev_b32 v20, 2, v0")
    e(f"buffer_store_dword v10, v20, s[20:23], s28 offen")
    e("s_lshl_b32 s28, s27, 3")
    e(f"s_add_u32 s28, s28, {BSTAT}")
    e("v_mov_b32 v20, 0")
    e(f"buffer_store_dwordx2 v[8:9], v20, s[20:23], s28 offen")


def dma_tile():
    for i in range(32):
        if i % 4 == 0:
            e(f"s_add_u32 m0, s41, {i * 1024}")
            e(f"s_add_u32 s42, s40, {i * 1024}")
        e(f"v_xor_b32 v11, {fsw(i & 15) * 16}, v16")
        e(f"buffer_load_dwordx4 v11, s[8:11], s42 offen offset:{(i % 4) * 1024} nt lds")


npoll = [0]


def poll(off, target, soff=None):
    n = npoll[0]
    npoll[0] += 1
    e("s_cmp_lg_u32 s26, 0")
    e(f"s_cbranch_scc1 POLL_DONE{n}")
    e("v_mov_b32 v22, 0")
    e("s_mov_b32 s44, 0x40000")
    if soff is None:
        e(f"s_mov_b32 s45, {off}")
        soff = 45
    lab(f"POLL{n}")
    e(f"buffer_load_dword v21, v22, s[48:51], s{soff} offen{SC}")
    e("s_waitcnt vmcnt(0)")
    e("v_readfirstlane_b32 s43, v21")
    e(f"s_cmp_ge_u32 s43, {target}")
    e(f"s_cbranch_scc1 POLL_DONE{n}")
    e("s_sleep 4")
    e("s_sub_u32 s44, s44, 1")
    e("s_cmp_lg_u32 s44, 0")
    e(f"s_cbranch_scc1 POLL{n}")
    lab(f"POLL_DONE{n}")
    e("s_barrier")


def signal(soffs):
    n = npoll[0]
    npoll[0] += 1
    e("s_waitcnt vmcnt(0)")
    e("s_barrier")
    e("s_cmp_lg_u32 s26, 0")
    e(f"s_cbranch_scc1 SIG_DONE{n}")
    e("v_mov_b32 v21, 1")
    e("v_mov_b32 v22, 0")
    e("s_mov_b64 s[46:47], exec")
    e("s_mov_b64 exec, 1")
    for so in soffs:
        e(f"buffer_atomic_add v21, v22, s[48:51], s{so} offen sc1")
    e("s_mov_b64 exec, s[46:47]")
    lab(f"SIG_DONE{n}")


filler = []


def fill(n=1):
    for _ in range(n):
        if filler:
            for ins in filler.pop(0):
                e(ins)


def tile_loads(defer=False):
    for i in range(32):
        g = []
        if i % 4 == 0:
            g.append(f"s_add_u32 s42, s40, {i * 1024}")
        g.append(f"buffer_load_dwordx4 {ar(128 + 4 * i, 4)}, v16, s[8:11], s42 offen offset:{(i % 4) * 1024} nt")
        filler.append(g)
    if not defer:
        fill(32)


def tile_to_lds():
    e("v_add_u32 v12, s41, v16")
    for i in range(32):
        e(f"v_xor_b32 v{13 + (i & 1)}, {fsw(i & 15) * 16}, v12")
        e(f"s_waitcnt vmcnt({31 - i})")
        e(f"ds_write_b128 v{13 + (i & 1)}, {ar(128 + 4 * i, 4)} offset:{i * 1024}")
    e("s_waitcnt lgkmcnt(0)")


def a_tile(first):
    seq = [(j, k) for j in range(4) for k in range(8)]

    def sread(n):
        j, k = seq[n]
        t = 22 + (n & 1)
        e(f"v_add_u32 v{t}, v{24 + j}, v{28 + k}")
        e(f"ds_read_b128 {vr(72 + 4 * (n % 8), 4)}, v{t}")
    for n in range(8):
        sread(n)
    for n in range(32):
        j, k = seq[n]
        e(f"s_waitcnt lgkmcnt({min(7, 31 - n)})")
        f = vr(72 + 4 * (n % 8), 4)
        acc = ar(64 + 16 * j, 16)
        c = "0" if k == 0 else acc
        e(f"v_mfma_f32_32x32x16_bf16 {acc}, {f}, {ar(4 * k, 4)}, {c}")
        if not HIONLY:
            e(f"v_mfma_f32_32x32x16_bf16 {acc}, {f}, {ar(32 + 4 * k, 4)}, {acc}")
        if n + 8 < 32:
            sread(n + 8)
        if n % 2 == 1:
            fill(1)
    e("s_nop 15")
    for i in range(16):
        e(f"v_accvgpr_read_b32 v{56 + i}, a{64 + i}")
    for j in range(1, 4):
        for q in range(4):
            e(f"ds_write_b128 v36, {ar(64 + 16 * j + 4 * q, 4)} offset:{1024 * q}")
        e("s_waitcnt lgkmcnt(0)")
        e("s_barrier")
        for q in range(4):
            e(f"ds_read_b128 {vr(72 + 4 * q, 4)}, v{36 + j} offset:{1024 * q}")
        e("s_waitcnt lgkmcnt(0)")
        if j < 3:
            e("s_barrier")
        fill(1)
        for i in range(16):
            e(f"v_add_f32 v{56 + i}, v{56 + i}, v{72 + i}")
    for i in range(0, 16, 2):
        round_scale(56 + i, 57 + i, 11)
        if i % 4 == 0:
            fill(1)
    e("v_max3_f32 v12, v56, v57, v58")
    for i in range(59, 71, 2):
        e(f"v_max3_f32 v12, v12, v{i}, v{i+1}")
    e("v_max_f32 v12, v12, v71")
    e("v_mov_b32 v13, v12")
    e("s_nop 1")
    e("v_permlane32_swap_b32 v12, v13")
    e("s_nop 1")
    e("v_max_f32 v12, v12, v13")
    e("ds_write_b32 v17, v12")
    e("s_waitcnt lgkmcnt(0)")
    e("s_barrier")
    for w in range(4):
        e(f"ds_read_b32 v{12 + w}, v18 offset:{128 * w}")
    e("s_waitcnt lgkmcnt(0)")
    e("v_max3_f32 v12, v12, v13, v14")
    e("v_max3_f32 v12, v12, v15, v8")
    e("v_sub_f32 v10, v8, v12")
    e("v_exp_f32 v10, v10")
    e("v_mov_b32 v8, v12")
    for i in range(16):
        e(f"v_sub_f32 v{56+i}, v{56+i}, v12")
    for i in range(16):
        e(f"v_exp_f32 v{56+i}, v{56+i}")
    e("v_mul_f32 v9, v9, v10")
    for i in range(16):
        e(f"v_add_f32 v9, v9, v{56+i}")
    for i in range(8):
        e(f"v_cvt_pk_bf16_f32 v{96+i}, v{56+2*i}, v{57+2*i}")
    e(f"ds_write_b128 v19, {vr(96, 4)}")
    e(f"ds_write_b128 v19, {vr(100, 4)} offset:1024")
    e("s_waitcnt lgkmcnt(0)")
    e("s_barrier")
    for tu in range(8):
        e(f"ds_read_b128 {vr(64 + 4 * tu, 4)}, v20 offset:{(tu >> 1) * 2048 + (tu & 1) * 1024}")
    if not first:
        for i in range(64):
            e(f"v_mul_f32 v{192+i}, v{192+i}, v10")

    def trreads(tu):
        t, u = tu >> 1, tu & 1
        bufb = 96 + 16 * (tu & 1)
        for cc in range(4):
            for v in range(2):
                a = 40 + 8 * (t >> 1) + 2 * cc + v
                off = (32 * (t & 1) + 16 * u + 8 * v) * 1024
                e(f"ds_read_b64_tr_b16 {vr(bufb + 4 * cc + 2 * v, 2)}, v{a} offset:{off}")
    trreads(0)
    for tu in range(8):
        if tu + 1 < 8:
            trreads(tu + 1)
            e("s_waitcnt lgkmcnt(8)")
        else:
            e("s_waitcnt lgkmcnt(0)")
        bufb = 96 + 16 * (tu & 1)
        for cc in range(4):
            acc = vr(192 + 16 * cc, 16)
            c = "0" if (first and tu == 0) else acc
            e(f"v_mfma_f32_32x32x16_bf16 {acc}, {vr(bufb + 4 * cc, 4)}, {vr(64 + 4 * tu, 4)}, {c}")
        fill(1)
    fill(99)


def km():
    L = "km_kernel"
    kernel_header(L)
    e("s_cmp_ge_u32 s2, 256")
    e("s_cbranch_scc1 KM_END")
    prof_kernel[0] = 1
    prof_start()
    srd(8, "A_ckv"); srd(12, "B_k"); srd(16, "B_v"); srd(20, "ws"); srd(48, "dbg")
    e("s_and_b32 s3, s2, 7")
    e("s_lshr_b32 s4, s2, 3")
    e("s_lshr_b32 s5, s3, 2")
    e("s_lshl_b32 s24, s4, 1")
    e("s_or_b32 s24, s24, s5")
    e("s_add_u32 s25, s3, s4")
    e("s_and_b32 s25, s25, 3")
    e("v_and_b32 v1, 63, v0")
    e("v_lshrrev_b32 v2, 6, v0")
    e("s_nop 0")
    e("v_readfirstlane_b32 s26, v2")
    e(f"s_mov_b32 s34, {SCALE_BITS:#x}")
    e(f"s_mov_b32 s35, {LOG2E_BITS:#x}")
    e("v_lshlrev_b32 v16, 4, v1")
    e("s_lshl_b32 s27, s26, 13")
    e("v_add_u32 v6, s27, v16")
    e("v_add_u32 v7, 4096, v6")
    e("v_and_b32 v8, 15, v1")
    e("v_lshlrev_b32 v8, 4, v8")
    e("s_lshl_b32 s27, s24, 8")
    e(f"s_add_u32 s27, s27, {QB}")
    e("s_lshl_b32 s30, s24, 21")
    e("s_add_u32 s30, s30, 1572864")
    e("s_waitcnt lgkmcnt(0)")
    srd_fin(8, "A_ckv"); srd_fin(12, "B_k"); srd_fin(16, "B_v"); srd_fin(20, "ws"); srd_fin(48, "dbg")
    e(f"buffer_load_dwordx4 {vr(2, 4)}, v8, s[20:23], s27 offen")
    e("s_cmp_ge_u32 s25, 2")
    e("s_cbranch_scc1 KM_BONLY")
    e("s_lshr_b32 s36, s24, 5")
    e("s_and_b32 s37, s24, 31")
    e("s_lshl_b32 s37, s37, 1")
    e("s_add_u32 s37, s37, s25")
    e("s_lshl_b32 s40, s36, 23")
    e("s_lshl_b32 s27, s37, 17")
    e("s_add_u32 s40, s40, s27")
    e("s_lshl_b32 s41, s26, 15")
    e("s_add_u32 s40, s40, s41")
    e("s_lshl_b32 s27, s36, 15")
    e("s_lshl_b32 s28, s26, 13")
    e("s_add_u32 s27, s27, s28")
    for part in range(1 if HIONLY else 2):
        for s in range(8):
            if s % 4 == 0:
                e(f"s_add_u32 s28, s27, {part * QA_LO + s * 1024}")
            e(f"buffer_load_dwordx4 {ar(32 * part + 4 * s, 4)}, v16, s[20:23], s28 offen offset:{(s % 4) * 1024}")
    tile_loads()
    e("v_and_b32 v56, 31, v1")
    e("v_lshrrev_b32 v57, 5, v1")
    e("v_and_b32 v58, 3, v1")
    e("v_lshlrev_b32 v58, 2, v58")
    e("v_bfe_u32 v59, v1, 2, 2")
    e("v_or_b32 v58, v58, v59")
    e("v_xor_b32 v58, v58, v57")
    e("v_lshlrev_b32 v58, 4, v58")
    for k in range(8):
        e(f"v_xor_b32 v{28 + k}, {32 * k}, v58")
    e("v_lshlrev_b32 v59, 10, v56")
    e("s_lshl_b32 s27, s26, 8")
    e("v_add_u32 v59, s27, v59")
    for j in range(4):
        e(f"s_add_u32 s27, s26, {j}")
        e("s_and_b32 s27, s27, 3")
        e("s_lshl_b32 s27, s27, 15")
        e(f"v_add_u32 v{24 + j}, s27, v59")
        e(f"s_sub_u32 s27, s26, {j}")
        e("s_and_b32 s27, s27, 3")
        e("s_lshl_b32 s27, s27, 12")
        e(f"s_add_u32 s27, s27, {RS}")
        e(f"v_add_u32 v{36 + j}, s27, v16")
    e("v_lshrrev_b32 v60, 4, v1")
    e("v_lshrrev_b32 v61, 5, v1")
    e("v_bfe_u32 v62, v1, 2, 2")
    e("v_and_b32 v63, 3, v1")
    e("v_and_b32 v64, 1, v60")
    e("v_lshlrev_b32 v64, 1, v64")
    e("v_lshrrev_b32 v65, 1, v63")
    e("v_add_u32 v64, v64, v65")
    e("v_lshl_or_b32 v65, v62, 2, v61")
    e("v_xor_b32 v64, v64, v65")
    e("v_lshlrev_b32 v64, 4, v64")
    e("v_and_b32 v65, 1, v63")
    e("v_lshl_add_u32 v64, v65, 3, v64")
    e("v_lshl_add_u32 v65, v61, 2, v62")
    e("v_lshl_add_u32 v64, v65, 10, v64")
    e("s_lshl_b32 s27, s26, 8")
    e("v_add_u32 v64, s27, v64")
    for cc in range(4):
        for v in range(2):
            e(f"v_xor_b32 v{40 + 2 * cc + v}, {64 * cc + 32 * v}, v64")
            e(f"v_add_u32 v{48 + 2 * cc + v}, 0x10000, v{40 + 2 * cc + v}")
    e("v_lshlrev_b32 v18, 2, v56")
    e(f"v_add_u32 v18, {MX}, v18")
    e("s_lshl_b32 s27, s26, 7")
    e("v_add_u32 v17, s27, v18")
    e(f"v_add_u32 v20, {PX}, v16")
    e("s_lshl_b32 s27, s26, 11")
    e("v_add_u32 v19, s27, v20")
    e("v_mov_b32 v8, 0xff800000")
    e("v_mov_b32 v9, 0")
    tile_to_lds()
    e("s_lshl_b32 s27, s25, 15")
    e("s_add_u32 s31, s30, s27")
    e("s_add_u32 s31, s31, 327680")
    for (base, srdn) in ((128, 12), (160, 16)):
        for i in range(8):
            va = 6 if i < 4 else 7
            filler.append([f"buffer_load_dwordx4 {vr(base + 4 * i, 4)}, v{va}, s[{srdn}:{srdn+3}], s31 offen offset:{(i % 4) * 1024} nt"])
            filler.append([])
    e("s_barrier")
    prof_mark(0)
    a_tile(True)
    prof_mark(1)
    e("v_mov_b32 v13, v9")
    e("s_nop 1")
    e("v_permlane32_swap_b32 v9, v13")
    e("s_nop 1")
    e("v_add_f32 v9, v9, v13")
    e(f"ds_write_b32 v17, v9 offset:{LX - MX}")
    e("s_nop 7")
    e("s_barrier")
    e("v_and_b32 v11, 31, v1")
    e("v_lshrrev_b32 v12, 5, v1")
    e("s_movk_i32 s27, 2064")
    e("v_mul_lo_u32 v14, v11, s27")
    e("v_lshl_add_u32 v14, v12, 4, v14")
    e("s_lshl_b32 s28, s26, 9")
    e("v_add_u32 v14, s28, v14")
    for cc in range(4):
        for q in range(4):
            e(f"ds_write_b128 v14, {vr(192 + 16 * cc + 4 * q, 4)} offset:{cc * 128 + q * 32}")
    e("s_waitcnt lgkmcnt(0)")
    e("s_barrier")
    e("s_mul_i32 s28, s26, 16512")
    e("v_add_u32 v14, s28, v16")
    for i in range(8):
        for hf in range(2):
            e(f"ds_read_b128 {vr(192 + 8 * i + 4 * hf, 4)}, v14 offset:{2064 * i + 1024 * hf}")
    e("s_lshl_b32 s27, s36, 6")
    e("s_add_u32 s27, s27, s37")
    e("s_lshl_b32 s27, s27, 16")
    e("s_lshl_b32 s28, s26, 14")
    e("s_add_u32 s27, s27, s28")
    e(f"s_add_u32 s27, s27, {APART}")
    for i in range(8):
        for hf in range(2):
            n = 2 * i + hf
            if n and n % 4 == 0:
                e("s_add_u32 s27, s27, 4096")
            e(f"s_waitcnt lgkmcnt({15 - n})")
            e(f"buffer_store_dwordx4 {vr(192 + 8 * i + 4 * hf, 4)}, v16, s[20:23], s27 offen offset:{(n % 4) * 1024}")
    e("s_cmp_lg_u32 s26, 0")
    e("s_cbranch_scc1 KM_ASTAT_DONE")
    for w in range(4):
        e(f"ds_read_b32 v{12 + w}, v18 offset:{LX - MX + 128 * w}")
    e("s_waitcnt lgkmcnt(0)")
    e("v_add_f32 v12, v12, v13")
    e("v_add_f32 v14, v14, v15")
    e("v_add_f32 v9, v12, v14")
    e("v_lshlrev_b32 v14, 9, v11")
    e("s_lshl_b32 s27, s36, 14")
    e("s_lshl_b32 s28, s37, 3")
    e("s_add_u32 s27, s27, s28")
    e(f"s_add_u32 s27, s27, {ASTAT}")
    e(f"buffer_store_dwordx2 v[8:9], v14, s[20:23], s27 offen")
    lab("KM_ASTAT_DONE")
    prof_mark(2)
    e("v_mov_b32 v8, 0xff800000")
    for j in range(9, 18):
        e(f"v_mov_b32 v{j}, 0")
    e("s_waitcnt vmcnt(0)")
    bscore(128)
    bpv(160)
    e("s_branch KM_BFIN")
    lab("KM_BONLY")
    e("s_sub_u32 s27, s25, 2")
    e("s_mul_i32 s27, s27, 163840")
    e("s_add_u32 s31, s30, s27")
    e("s_sub_u32 s31, s31, 32768")
    e("v_mov_b32 v8, 0xff800000")
    for j in range(9, 18):
        e(f"v_mov_b32 v{j}, 0")
    bsched(5, lambda c: 3)
    lab("KM_BFIN")
    prof_mark(3)
    e("s_add_u32 s25, s25, 2")
    bcombine(BO, BS, "KM_BDONE")
    lab("KM_BDONE")
    lab("KM_END")
    e("s_endpgm")
    kernel_desc(L, 512, 256)
    return f"; @launch kernel={L} grid=(256,1,1) block=(256,1,1) lds={KM_LDS}"


OPA = 0xA00000


def k3():
    L = "k3_kernel"
    kernel_header(L)
    e("s_cmp_ge_u32 s2, 512")
    e("s_cbranch_scc1 K3_END")
    srd(20, "ws")
    e("v_and_b32 v1, 63, v0")
    e("v_lshrrev_b32 v2, 6, v0")
    e("s_nop 0")
    e("v_readfirstlane_b32 s26, v2")
    e("s_bfe_u32 s52, s2, 0x20006")
    e("s_and_b32 s53, s2, 63")
    e("s_and_b32 s54, s2, 31")
    e("s_bfe_u32 s55, s2, 0x10005")
    e("s_lshr_b32 s56, s2, 8")
    e("s_cmp_lg_u32 s56, 0")
    e("s_cbranch_scc1 K3_LB")
    srd(16, "A_wo"); srd(12, "A_wuv")
    e("s_branch K3_LD")
    lab("K3_LB")
    srd(16, "B_wo")
    lab("K3_LD")
    e("v_lshrrev_b32 v44, 2, v0")
    e("v_and_b32 v45, 3, v0")
    e("v_lshlrev_b32 v46, 16, v44")
    e("v_lshl_add_u32 v46, v45, 4, v46")
    e("v_lshlrev_b32 v16, 4, v1")
    e("s_waitcnt lgkmcnt(0)")
    srd_fin(16, "A_wo"); srd_fin(20, "ws")
    e("s_lshl_b32 s28, s54, 17")
    e("s_lshl_b32 s29, s52, 15")
    e("s_add_u32 s28, s28, s29")
    e("s_lshl_b32 s29, s26, 13")
    e("s_add_u32 s28, s28, s29")
    for i in range(8):
        if i == 4:
            e("s_add_u32 s28, s28, 4096")
        e(f"buffer_load_dwordx4 {vr(224 + 4 * i, 4)}, v16, s[16:19], s28 offen offset:{(i % 4) * 1024} nt")
    e("s_cmp_lg_u32 s56, 0")
    e("s_cbranch_scc1 K3_B")
    srd_fin(12, "A_wuv")
    e("s_lshl_b32 s28, s54, 8")
    e("s_lshl_b32 s29, s52, 6")
    e("s_add_u32 s28, s28, s29")
    for i in range(8):
        e(f"buffer_load_dwordx4 {vr(192 + 4 * i, 4)}, v46, s[12:15], s28 offen nt")
        e("s_add_u32 s28, s28, 8192")
    e("v_lshlrev_b32 v4, 3, v0")
    e("v_lshlrev_b32 v5, 3, v1")
    e("s_lshl_b32 s28, s53, 9")
    e(f"s_add_u32 s28, s28, {ASTAT}")
    e("buffer_load_dwordx2 v[8:9], v5, s[20:23], s28 offen")
    e("s_lshl_b32 s28, s55, 22")
    e("s_lshl_b32 s29, s54, 11")
    e("s_add_u32 s28, s28, s29")
    e(f"s_add_u32 s28, s28, {APART}")
    for s in range(64):
        e(f"buffer_load_dwordx2 {vr(64 + 2 * s, 2)}, v4, s[20:23], s28 offen")
        e("s_add_u32 s28, s28, 0x10000")
    e("s_waitcnt vmcnt(63)")
    e("s_waitcnt vmcnt(63)")
    e("v_mov_b32 v10, v8")
    for sh in (8, 4, 2, 1):
        e("s_nop 1")
        e(f"v_max_f32_dpp v10, v10, v10 row_ror:{sh} row_mask:0xf bank_mask:0xf")
    e("v_mov_b32 v11, v10")
    e("s_nop 1")
    e("v_permlane16_swap_b32 v10, v11")
    e("s_nop 1")
    e("v_max_f32 v10, v10, v11")
    e("v_mov_b32 v11, v10")
    e("s_nop 1")
    e("v_permlane32_swap_b32 v10, v11")
    e("s_nop 1")
    e("v_max_f32 v10, v10, v11")
    e("v_sub_f32 v8, v8, v10")
    e("v_exp_f32 v8, v8")
    e("s_nop 0")
    e("v_mul_f32 v10, v8, v9")
    for sh in (8, 4, 2, 1):
        e("s_nop 1")
        e(f"v_add_f32_dpp v10, v10, v10 row_ror:{sh} row_mask:0xf bank_mask:0xf")
    e("v_mov_b32 v11, v10")
    e("s_nop 1")
    e("v_permlane16_swap_b32 v10, v11")
    e("s_nop 1")
    e("v_add_f32 v10, v10, v11")
    e("v_mov_b32 v11, v10")
    e("s_nop 1")
    e("v_permlane32_swap_b32 v10, v11")
    e("s_nop 1")
    e("v_add_f32 v10, v10, v11")
    e("v_rcp_f32 v6, v10")
    e("v_mov_b32 v40, 0")
    e("v_mov_b32 v41, 0")
    for s in range(64):
        e(f"v_readlane_b32 s{60 + (s & 3)}, v8, {s}")
        e(f"s_waitcnt vmcnt({63 - s})")
        e("s_nop 0")
        e(f"v_fmac_f32 v40, s{60 + (s & 3)}, v{64 + 2 * s}")
        e(f"v_fmac_f32 v41, s{60 + (s & 3)}, v{65 + 2 * s}")
    e("v_mul_f32 v40, v40, v6")
    e("v_mul_f32 v41, v41, v6")
    e("ds_write_b64 v4, v[40:41]")
    e("s_waitcnt lgkmcnt(0)")
    e("s_barrier")
    e("v_lshlrev_b32 v5, 5, v44")
    e(f"ds_read_b128 {vr(8, 4)}, v5")
    e(f"ds_read_b128 {vr(12, 4)}, v5 offset:16")
    for k in range(8):
        e(f"v_mov_b32 v{24 + k}, 0")
    e("s_waitcnt lgkmcnt(0)")
    for i in range(8):
        for k in range(4):
            unpack2(32 + 2 * k, 33 + 2 * k, 192 + 4 * i + k)
        for k in range(8):
            e(f"v_fmac_f32 v{24 + k}, v{32 + k}, v{8 + i}")
    e("v_lshlrev_b32 v5, 7, v44")
    e("v_lshl_add_u32 v5, v45, 5, v5")
    e(f"ds_write_b128 v5, {vr(24, 4)} offset:2048")
    e(f"ds_write_b128 v5, {vr(28, 4)} offset:2064")
    e("s_waitcnt lgkmcnt(0)")
    e("s_barrier")
    e("v_and_b32 v5, 31, v1")
    e("v_lshrrev_b32 v6, 5, v1")
    e("v_lshlrev_b32 v5, 2, v5")
    e("v_lshl_add_u32 v5, v6, 12, v5")
    for g in range(32):
        e(f"ds_read_b32 v{64 + g}, v5 offset:{2048 + 128 * g}")
    e("s_waitcnt lgkmcnt(0)")
    for n in (16, 8, 4, 2, 1):
        for g in range(n):
            e(f"v_add_f32 v{64 + g}, v{64 + g}, v{64 + n + g}")
    e("v_mov_b32 v65, v64")
    e("s_nop 1")
    e("v_permlane32_swap_b32 v64, v65")
    e("s_nop 1")
    e("v_add_f32 v64, v64, v65")
    e("v_cvt_pk_bf16_f32 v64, v64, v64")
    e("v_lshlrev_b32 v64, 16, v64")
    e("s_branch K3_OUT")
    lab("K3_B")
    e("v_mov_b32 v5, 0")
    e("s_lshl_b32 s28, s53, 6")
    e(f"s_add_u32 s28, s28, {BSTAT}")
    for k in range(3):
        e(f"buffer_load_dwordx4 {vr(8 + 4 * k, 4)}, v5, s[20:23], s28 offen offset:{16 * k}")
    e("v_and_b32 v5, 31, v1")
    e("v_lshlrev_b32 v5, 2, v5")
    e("s_lshl_b32 s28, s53, 12")
    e("s_lshl_b32 s29, s52, 7")
    e("s_add_u32 s28, s28, s29")
    e(f"s_add_u32 s28, s28, {BPART}")
    for r in range(6):
        e(f"buffer_load_dword v{64 + r}, v5, s[20:23], s28 offen offset:{512 * r}")
    e("s_waitcnt vmcnt(0)")
    e("v_max3_f32 v56, v8, v10, v12")
    e("v_max3_f32 v56, v56, v14, v16")
    e("v_max_f32 v56, v56, v18")
    for r in range(6):
        e(f"v_sub_f32 v{8 + 2 * r}, v{8 + 2 * r}, v56")
    for r in range(6):
        e(f"v_exp_f32 v{8 + 2 * r}, v{8 + 2 * r}")
    e("s_nop 0")
    e("v_mul_f32 v57, v8, v9")
    e("v_mul_f32 v58, v8, v64")
    for r in range(1, 6):
        e(f"v_fmac_f32 v57, v{8 + 2 * r}, v{9 + 2 * r}")
        e(f"v_fmac_f32 v58, v{8 + 2 * r}, v{64 + r}")
    e("v_rcp_f32 v57, v57")
    e("s_nop 0")
    e("v_mul_f32 v58, v58, v57")
    e("v_cvt_pk_bf16_f32 v58, v58, v58")
    e("v_lshlrev_b32 v64, 16, v58")
    lab("K3_OUT")
    e("s_lshl_b32 s30, s26, 3")
    for k in range(8):
        e(f"v_mov_b32 v{24 + k}, 0")
    e("s_waitcnt vmcnt(0)")
    for i in range(8):
        e(f"s_add_u32 s31, s30, {i}")
        e(f"v_readlane_b32 s{60 + i}, v64, s31")
    for i in range(8):
        for k in range(4):
            unpack2(32 + 2 * k, 33 + 2 * k, 224 + 4 * i + k)
        for k in range(8):
            e(f"v_fmac_f32 v{24 + k}, s{60 + i}, v{32 + k}")
    e("s_barrier")
    e("v_lshlrev_b32 v5, 5, v1")
    e("s_lshl_b32 s30, s26, 11")
    e("v_add_u32 v5, s30, v5")
    e(f"ds_write_b128 v5, {vr(24, 4)}")
    e(f"ds_write_b128 v5, {vr(28, 4)} offset:16")
    e("s_waitcnt lgkmcnt(0)")
    e("s_barrier")
    e("v_lshlrev_b32 v5, 3, v0")
    for w in range(4):
        e(f"ds_read_b64 {vr(8 + 2 * w, 2)}, v5 offset:{2048 * w}")
    e("s_waitcnt lgkmcnt(0)")
    e("v_add_f32 v8, v8, v10")
    e("v_add_f32 v9, v9, v11")
    e("v_add_f32 v12, v12, v14")
    e("v_add_f32 v13, v13, v15")
    e("v_add_f32 v8, v8, v12")
    e("v_add_f32 v9, v9, v13")
    e("s_lshl_b32 s28, s56, 19")
    e("s_lshl_b32 s29, s55, 18")
    e("s_add_u32 s28, s28, s29")
    e("s_lshl_b32 s29, s54, 13")
    e("s_add_u32 s28, s28, s29")
    e("s_lshl_b32 s29, s52, 11")
    e("s_add_u32 s28, s28, s29")
    e(f"s_add_u32 s28, s28, {OPA}")
    e("buffer_store_dwordx2 v[8:9], v5, s[20:23], s28 offen")
    lab("K3_END")
    e("s_endpgm")
    kernel_desc(L, 256, 256)
    return f"; @launch kernel={L} grid=(512,1,1) block=(256,1,1) lds=10240"


def k4():
    L = "k4_kernel"
    kernel_header(L)
    e("s_cmp_ge_u32 s2, 32")
    e("s_cbranch_scc1 K4_END")
    srd(20, "ws"); srd(8, "out")
    e("s_lshr_b32 s24, s2, 3")
    e("s_and_b32 s25, s2, 7")
    e("v_and_b32 v1, 15, v0")
    e("v_lshrrev_b32 v2, 4, v0")
    e("v_lshlrev_b32 v3, 14, v2")
    e("v_lshl_add_u32 v3, v1, 4, v3")
    e("s_lshl_b32 s26, s24, 18")
    e("s_lshl_b32 s27, s25, 8")
    e("s_add_u32 s26, s26, s27")
    e(f"s_add_u32 s26, s26, {OPA}")
    e("s_waitcnt lgkmcnt(0)")
    srd_fin(20, "ws"); srd_fin(8, "out")
    for i in range(8):
        if i % 2 == 0 and i:
            e("s_add_u32 s26, s26, 4096")
        e(f"buffer_load_dwordx4 {vr(8 + 4 * i, 4)}, v3, s[20:23], s26 offen offset:{(i % 2) * 2048}")
    e("s_waitcnt vmcnt(0)")
    for n in (4, 2, 1):
        for i in range(n):
            for k in range(4):
                e(f"v_add_f32 v{8 + 4 * i + k}, v{8 + 4 * i + k}, v{8 + 4 * (i + n) + k}")
    e("v_lshlrev_b32 v4, 4, v0")
    e(f"ds_write_b128 v4, {vr(8, 4)}")
    e("s_waitcnt lgkmcnt(0)")
    e("s_barrier")
    e("v_cmp_gt_u32 vcc, 64, v0")
    e("s_and_saveexec_b64 s[28:29], vcc")
    e("s_cbranch_execz K4_END")
    e("v_lshlrev_b32 v4, 2, v0")
    for g in range(16):
        e(f"ds_read_b32 v{8 + g}, v4 offset:{256 * g}")
    e("s_waitcnt lgkmcnt(0)")
    for n in (8, 4, 2, 1):
        for g in range(n):
            e(f"v_add_f32 v{8 + g}, v{8 + g}, v{8 + n + g}")
    e("v_cvt_pk_bf16_f32 v8, v8, v8")
    e("s_and_b32 s26, s24, 1")
    e("s_lshl_b32 s26, s26, 11")
    e("s_lshr_b32 s27, s24, 1")
    e("s_lshl_b32 s27, s27, 10")
    e("s_add_u32 s26, s26, s27")
    e("s_lshl_b32 s27, s25, 7")
    e("s_add_u32 s26, s26, s27")
    e("v_lshlrev_b32 v4, 1, v0")
    e("buffer_store_short v8, v4, s[8:11], s26 offen")
    lab("K4_END")
    e("s_endpgm")
    kernel_desc(L, 48, 48)
    return f"; @launch kernel={L} grid=(32,1,1) block=(256,1,1) lds=4096"


LAUNCHES = []


def main():
    LAUNCHES.append(k1())
    LAUNCHES.append(km())
    LAUNCHES.append(k3())
    LAUNCHES.append(k4())
    head = open(f"cdna_kernels/{NAME}.s.ref").read().split("; Override launch")[0]
    txt = head + "\n".join(LAUNCHES) + "\n"
    txt += '.amdgcn_target "amdgcn-amd-amdhsa--gfx950"\n.text\n'
    txt += "\n".join(out) + "\n"
    txt += '.section .rodata,"a"\n' + "\n".join(descs) + "\n"
    path = sys.argv[1] if len(sys.argv) > 1 else f"cdna_kernels/{NAME}.s"
    open(path, "w").write(txt)


if __name__ == "__main__":
    main()
```

```python
import sys

NAME = "concat_heads__compressed_kv_cla__sliding_block_cached__decode"

KA = dict(A_x=0, A_ckv=8, A_wq=16, A_wuk=24, A_wuv=32, A_wo=40, B_x=48, B_k=56, B_v=64,
          B_wq=72, B_wo=80, out=88, dbg=96, ws=104)
SZ = dict(A_x=2048, A_ckv=16777216, A_wq=4194304, A_wuk=4194304, A_wuv=4194304, A_wo=4194304,
          B_x=2048, B_k=134217728, B_v=134217728, B_wq=4194304, B_wo=4194304, out=4096, dbg=256,
          ws=536870912)

QA_HI = 0x00000
QA_LO = 0x10000
QB = 0x20000
ASTAT = 0x30000
BPART = 0x40000
BSTAT = 0x80000
CTX = 0x70000
OPART = 0x80000
APART = 0x100000

SCALE_BITS = 0x3DB504F3
LOG2E_BITS = 0x3FB8AA3B

out = []
import os
DEBUG = bool(os.environ.get('DEBUG'))
PROF = bool(os.environ.get('PROF'))
PST = os.environ.get('PST', '')
HIONLY = bool(os.environ.get('HIONLY'))
PROFBASE = 0xC00000


def prof_start():
    if PROF:
        e("s_memrealtime s[90:91]")


def prof_mark(slot, t=21):
    if PROF:
        e("s_memrealtime s[92:93]")
        e("s_waitcnt lgkmcnt(0)")
        e("s_sub_u32 s92, s92, s90")
        e(f"v_mov_b32 v{t}, s92")
        e("s_lshl_b32 s94, s2, 7")
        e(f"s_add_u32 s94, s94, {PROFBASE + prof_kernel[0] * 0x10000 + slot * 4}")
        e(f"v_lshrrev_b32 v{t+1}, 6, v0")
        e(f"v_lshlrev_b32 v{t+1}, 5, v{t+1}")
        e(f"buffer_store_dword v{t}, v{t+1}, s[20:23], s94 offen")


prof_kernel = [0]


def e(s):
    out.append("    " + s)


def lab(s):
    out.append(s + ":")


def srd(dst, name):
    e(f"s_load_dwordx2 s[{dst}:{dst+1}], s[0:1], {KA[name]}")


def srd_fin(dst, name):
    e(f"s_mov_b32 s{dst+2}, {SZ[name]}")
    e(f"s_mov_b32 s{dst+3}, 0x20000")


def vr(a, n):
    return f"v[{a}:{a+n-1}]"


def ar(a, n):
    return f"a[{a}:{a+n-1}]"


def kernel_header(label):
    out.append(f".globl {label}")
    out.append(".p2align 8")
    out.append(f".type {label},@function")
    lab(label)


descs = []


def kernel_desc(label, vgpr, accum, sgpr=102):
    descs.append(f""".p2align 6
.amdhsa_kernel {label}
  .amdhsa_next_free_vgpr {vgpr}
  .amdhsa_next_free_sgpr {sgpr}
  .amdhsa_accum_offset {accum}
  .amdhsa_group_segment_fixed_size 0
  .amdhsa_kernarg_size 112
  .amdhsa_user_sgpr_count 2
  .amdhsa_user_sgpr_kernarg_segment_ptr 1
  .amdhsa_system_sgpr_workgroup_id_x 1
.end_amdhsa_kernel""")


def unpack2(dlo, dhi, src):
    e(f"v_lshlrev_b32 v{dlo}, 16, v{src}")
    e(f"v_and_b32 v{dhi}, 0xffff0000, v{src}")


def gemv_rows(nrows, wbase, xbase0, xbase1, acc, tmp, xt, vm_after):
    for i in range(nrows):
        e(f"s_waitcnt vmcnt({nrows - 1 - i + vm_after})")
        if i % 2 == 0:
            e(f"v_lshlrev_b32 v{xt}, 16, v{xbase0 + i // 2}")
            e(f"v_lshlrev_b32 v{xt+1}, 16, v{xbase1 + i // 2}")
        else:
            e(f"v_and_b32 v{xt}, 0xffff0000, v{xbase0 + i // 2}")
            e(f"v_and_b32 v{xt+1}, 0xffff0000, v{xbase1 + i // 2}")
        for k in range(4):
            unpack2(tmp + 2 * k, tmp + 2 * k + 1, wbase + 4 * i + k)
        for k in range(8):
            e(f"v_fmac_f32 v{acc + k}, v{tmp + k}, v{xt}")
            e(f"v_fmac_f32 v{acc + 8 + k}, v{tmp + k}, v{xt+1}")


def k1():
    L = "k1_kernel"
    kernel_header(L)
    e("s_cmp_ge_u32 s2, 256")
    e("s_cbranch_scc1 K1_END")
    e("s_cmp_ge_u32 s2, 128")
    e("s_cbranch_scc1 K1_B")
    srd(8, "A_x"); srd(12, "A_wq"); srd(16, "A_wuk"); srd(20, "ws")
    e("s_and_b32 s24, s2, 31")
    e("s_lshr_b32 s25, s2, 5")
    e("v_and_b32 v1, 15, v0")
    e("v_lshrrev_b32 v2, 4, v0")
    e("v_lshlrev_b32 v3, 18, v2")
    e("v_lshl_add_u32 v3, v1, 4, v3")
    e("v_lshlrev_b32 v4, 6, v2")
    e("v_lshlrev_b32 v5, 13, v2")
    e("v_lshl_add_u32 v5, v1, 4, v5")
    e("s_lshl_b32 s26, s24, 8")
    e("s_waitcnt lgkmcnt(0)")
    srd_fin(8, "A_x"); srd_fin(12, "A_wq"); srd_fin(16, "A_wuk"); srd_fin(20, "ws")
    for b in range(2):
        for k in range(4):
            e(f"buffer_load_dwordx4 {vr(8 + 16 * b + 4 * k, 4)}, v4, s[8:11], 0 offen offset:{1024 * b + 16 * k}")
    e("s_mov_b32 s27, s26")
    for i in range(32):
        e(f"buffer_load_dwordx4 {vr(40 + 4 * i, 4)}, v3, s[12:15], s27 offen nt")
        e("s_add_u32 s27, s27, 8192")
    e("s_lshl_b32 s27, s25, 20")
    e("s_add_u32 s27, s27, s26")
    for i in range(8):
        e(f"buffer_load_dwordx4 {vr(168 + 4 * i, 4)}, v5, s[16:19], s27 offen nt")
        e("s_add_u32 s27, s27, 0x20000")
    for k in range(16):
        e(f"v_mov_b32 v{200 + k}, 0")
    gemv_rows(32, 40, 8, 24, 200, 218, 216, 8)
    e("v_lshlrev_b32 v6, 10, v2")
    e("v_lshl_add_u32 v6, v1, 5, v6")
    e(f"ds_write_b128 v6, {vr(200, 4)}")
    e(f"ds_write_b128 v6, {vr(204, 4)} offset:16")
    e(f"ds_write_b128 v6, {vr(208, 4)} offset:512")
    e(f"ds_write_b128 v6, {vr(212, 4)} offset:528")
    e("s_waitcnt lgkmcnt(0)")
    e("s_barrier")
    e("v_lshlrev_b32 v6, 2, v0")
    for g in range(16):
        e(f"ds_read_b32 v{8 + g}, v6 offset:{1024 * g}")
    e("s_waitcnt lgkmcnt(0)")
    for g in range(1, 16):
        e(f"v_add_f32 v8, v8, v{8 + g}")
    e("v_cvt_pk_bf16_f32 v8, v8, v8")
    e("v_lshlrev_b32 v6, 1, v0")
    e("ds_write_b16 v6, v8 offset:16384")
    e("s_waitcnt lgkmcnt(0)")
    e("s_barrier")
    e("v_lshlrev_b32 v6, 4, v1")
    e(f"ds_read_b128 {vr(8, 4)}, v6 offset:16384")
    e(f"ds_read_b128 {vr(12, 4)}, v6 offset:16640")
    e("s_waitcnt vmcnt(0) lgkmcnt(0)")
    for k in range(4):
        for i in range(8):
            for b in range(2):
                d = 24 + 2 * i + b
                c = "0" if k == 0 else f"v{d}"
                e(f"v_dot2_f32_bf16 v{d}, v{168 + 4 * i + k}, v{8 + 4 * b + k}, {c}")
    e("s_nop 3")
    for sh in (8, 4, 2, 1):
        for d in range(24, 40):
            e(f"v_add_f32_dpp v{d}, v{d}, v{d} row_ror:{sh} row_mask:0xf bank_mask:0xf")
        e("s_nop 1")
    e("v_lshlrev_b32 v6, 2, v2")
    for i in range(8):
        for b in range(2):
            e(f"ds_write_b32 v6, v{24 + 2 * i + b} offset:{16896 + 512 * b + 64 * i}")
    e("s_waitcnt lgkmcnt(0)")
    e("s_barrier")
    e("v_cmp_gt_u32 vcc, 32, v0")
    e("s_and_saveexec_b64 s[28:29], vcc")
    e("s_cbranch_execz K1_END")
    e("v_lshlrev_b32 v6, 5, v0")
    e(f"ds_read_b128 {vr(8, 4)}, v6 offset:16896")
    e(f"ds_read_b128 {vr(12, 4)}, v6 offset:16912")
    e("s_waitcnt lgkmcnt(0)")
    for k in range(4):
        a, b_ = 8 + 2 * k, 9 + 2 * k
        e(f"v_cvt_pk_bf16_f32 v{16 + k}, v{a}, v{b_}")
        unpack2(24, 25, 16 + k)
        e(f"v_sub_f32 v24, v{a}, v24")
        e(f"v_sub_f32 v25, v{b_}, v25")
        e(f"v_cvt_pk_bf16_f32 v{20 + k}, v24, v25")
    e("v_lshrrev_b32 v6, 4, v0")
    e("v_and_b32 v7, 15, v0")
    e("v_lshrrev_b32 v24, 1, v7")
    e("v_and_b32 v25, 1, v7")
    e("v_lshlrev_b32 v6, 15, v6")
    e("v_lshl_add_u32 v6, v24, 10, v6")
    e("v_lshl_add_u32 v6, v25, 9, v6")
    e("s_lshl_b32 s27, s25, 13")
    e("s_lshl_b32 s28, s24, 4")
    e("s_add_u32 s27, s27, s28")
    e(f"buffer_store_dwordx4 {vr(16, 4)}, v6, s[20:23], s27 offen")
    e(f"s_add_u32 s27, s27, {QA_LO}")
    e(f"buffer_store_dwordx4 {vr(20, 4)}, v6, s[20:23], s27 offen")
    e("s_branch K1_END")
    lab("K1_B")
    srd(8, "B_x"); srd(44, "B_wq"); srd(20, "ws"); srd(12, "B_k"); srd(16, "B_v")
    e("s_sub_u32 s3, s2, 128")
    e("s_and_b32 s4, s3, 31")
    e("s_bfe_u32 s5, s3, 0x10005")
    e("s_lshr_b32 s25, s3, 6")
    e("s_lshl_b32 s24, s5, 5")
    e("s_add_u32 s24, s24, s4")
    e("v_and_b32 v1, 63, v0")
    e("v_lshrrev_b32 v2, 6, v0")
    e("s_nop 0")
    e("v_readfirstlane_b32 s26, v2")
    e(f"s_mov_b32 s34, {SCALE_BITS:#x}")
    e(f"s_mov_b32 s35, {LOG2E_BITS:#x}")
    e("v_and_b32 v42, 15, v0")
    e("v_lshrrev_b32 v43, 4, v0")
    e("v_lshlrev_b32 v3, 18, v43")
    e("v_lshl_add_u32 v3, v42, 4, v3")
    e("v_lshlrev_b32 v4, 6, v43")
    e("v_lshlrev_b32 v16, 4, v1")
    e("s_lshl_b32 s27, s26, 13")
    e("v_add_u32 v6, s27, v16")
    e("v_add_u32 v7, 4096, v6")
    e("s_lshl_b32 s30, s24, 21")
    e("s_lshl_b32 s27, s25, 16")
    e("s_add_u32 s30, s30, s27")
    e("s_add_u32 s31, s30, 1966080")
    e("s_lshl_b32 s36, s4, 8")
    e("s_lshl_b32 s37, s5, 10")
    e("s_waitcnt lgkmcnt(0)")
    srd_fin(8, "B_x"); srd_fin(44, "B_wq"); srd_fin(20, "ws"); srd_fin(12, "B_k"); srd_fin(16, "B_v")
    for k in range(4):
        e(f"buffer_load_dwordx4 {vr(44 + 4 * k, 4)}, v4, s[8:11], s37 offen offset:{16 * k}")
    e("s_mov_b32 s27, s36")
    for i in range(32):
        e(f"buffer_load_dwordx4 {vr(64 + 4 * i, 4)}, v3, s[44:47], s27 offen nt")
        e("s_add_u32 s27, s27, 8192")
    bloads(192, 224, 31)
    for k in range(8):
        e(f"v_mov_b32 v{20 + k}, 0")
    for i in range(32):
        e(f"s_waitcnt vmcnt({31 - i + 16})")
        if i % 2 == 0:
            e(f"v_lshlrev_b32 v18, 16, v{44 + i // 2}")
        else:
            e(f"v_and_b32 v18, 0xffff0000, v{44 + i // 2}")
        for k in range(4):
            unpack2(28 + 2 * k, 29 + 2 * k, 64 + 4 * i + k)
        for k in range(8):
            e(f"v_fmac_f32 v{20 + k}, v{28 + k}, v18")
    e("s_add_u32 s31, s31, 32768")
    bloads(64, 96, 31)
    e("v_lshlrev_b32 v18, 9, v43")
    e("v_lshl_add_u32 v18, v42, 5, v18")
    e(f"ds_write_b128 v18, {vr(20, 4)}")
    e(f"ds_write_b128 v18, {vr(24, 4)} offset:16")
    e("s_waitcnt lgkmcnt(0)")
    e("s_barrier")
    e("v_and_b32 v18, 127, v0")
    e("v_lshlrev_b32 v19, 2, v18")
    for g in range(16):
        e(f"ds_read_b32 v{20 + g}, v19 offset:{512 * g}")
    e("s_waitcnt lgkmcnt(0)")
    for n in (8, 4, 2, 1):
        for g in range(n):
            e(f"v_add_f32 v{20 + g}, v{20 + g}, v{20 + n + g}")
    e("v_cvt_pk_bf16_f32 v20, v20, v20")
    e("v_lshlrev_b32 v19, 1, v18")
    e("ds_write_b16 v19, v20 offset:8192")
    e("s_cmp_lg_u32 s25, 0")
    e("s_cbranch_scc1 K1_NOQB")
    e("s_lshl_b32 s27, s24, 8")
    e(f"s_add_u32 s27, s27, {QB}")
    e("buffer_store_short v20, v19, s[20:23], s27 offen")
    lab("K1_NOQB")
    e("s_waitcnt lgkmcnt(0)")
    e("s_barrier")
    e("v_and_b32 v18, 15, v1")
    e("v_lshlrev_b32 v18, 4, v18")
    e(f"ds_read_b128 {vr(2, 4)}, v18 offset:8192")
    e("v_mov_b32 v8, 0xff800000")
    for j in range(9, 18):
        e(f"v_mov_b32 v{j}, 0")
    e("s_waitcnt vmcnt(16) lgkmcnt(0)")
    bscore(192)
    bpv(224)
    e("s_waitcnt vmcnt(0)")
    bscore(64)
    bpv(96)
    bcombine(8704, 8704 + 8192, "K1_END")
    lab("K1_END")
    e("s_endpgm")
    kernel_desc(L, 256, 256)
    return f"; @launch kernel={L} grid=(256,1,1) block=(256,1,1) lds=18432"


MX = 131072
LX = 131584
PX = 132096
BO = 140288
RS = PX
BS = BO + 8192
KM_LDS = BS + 128
C3 = 132
C4 = 136
C5 = 168
C6 = 200
SC = " sc1"


def fsw(r):
    return ((r & 3) << 2) | ((r >> 2) & 3)


def bloads(K, V, soff):
    for (base, srdn) in ((K, 12), (V, 16)):
        for i in range(8):
            va = 6 if i < 4 else 7
            e(f"buffer_load_dwordx4 {vr(base + 4 * i, 4)}, v{va}, s[{srdn}:{srdn+3}], s{soff} offen offset:{(i % 4) * 1024} nt")


def round_scale(a, b, t):
    e(f"v_cvt_pk_bf16_f32 v{t}, v{a}, v{b}")
    unpack2(a, b, t)
    e(f"v_mul_f32 v{a}, s34, v{a}")
    e(f"v_mul_f32 v{b}, s34, v{b}")
    e(f"v_cvt_pk_bf16_f32 v{t}, v{a}, v{b}")
    unpack2(a, b, t)
    e(f"v_mul_f32 v{a}, s35, v{a}")
    e(f"v_mul_f32 v{b}, s35, v{b}")


def bscore(K):
    for k in range(4):
        for i in range(8):
            c = "0" if k == 0 else f"v{18+i}"
            e(f"v_dot2_f32_bf16 v{18+i}, v{K + 4*i + k}, v{2+k}, {c}")
    for sh in (8, 4, 2, 1):
        for i in range(8):
            e(f"v_add_f32_dpp v{18+i}, v{18+i}, v{18+i} row_ror:{sh} row_mask:0xf bank_mask:0xf")
    for i in range(0, 8, 2):
        round_scale(18 + i, 19 + i, 26)
    e("v_max3_f32 v26, v18, v19, v20")
    e("v_max3_f32 v26, v26, v21, v22")
    e("v_max3_f32 v26, v26, v23, v24")
    e("v_max3_f32 v26, v26, v25, v8")
    e("v_sub_f32 v27, v8, v26")
    e("v_exp_f32 v27, v27")
    e("v_mov_b32 v8, v26")
    for i in range(8):
        e(f"v_sub_f32 v{18+i}, v{18+i}, v26")
    for i in range(8):
        e(f"v_exp_f32 v{18+i}, v{18+i}")
    e("v_mul_f32 v9, v9, v27")
    for j in range(8):
        e(f"v_mul_f32 v{10+j}, v{10+j}, v27")
    for i in range(8):
        e(f"v_add_f32 v9, v9, v{18+i}")


def bpv(V):
    for i in range(8):
        for k in range(4):
            unpack2(34 + 2 * k, 35 + 2 * k, V + 4 * i + k)
        for j in range(8):
            e(f"v_fmac_f32 v{10+j}, v{34+j}, v{18+i}")


def bload1(base, srdn, soff):
    for i in range(8):
        va = 6 if i < 4 else 7
        e(f"buffer_load_dwordx4 {vr(base + 4 * i, 4)}, v{va}, s[{srdn}:{srdn+3}], s{soff} offen offset:{(i % 4) * 1024} nt")


def bsched(nunits, ahead):
    bufs = [(128, 160), (192, 224)]
    n = 2 * nunits
    issued = 0
    for c in range(n):
        while issued < n and issued <= c + min(ahead(c), 3):
            u, isv = issued >> 1, issued & 1
            if not isv:
                e("s_add_u32 s31, s31, 32768")
                e("s_mov_b32 s33, s31") if False else None
            e(f"s_mov_b32 s{60 + (u & 1)}, s31") if not isv else None
            bload1(bufs[u & 1][isv], 16 if isv else 12, 60 + (u & 1))
            issued += 1
        e(f"s_waitcnt vmcnt({8 * (issued - 1 - c)})")
        u, isv = c >> 1, c & 1
        if isv:
            bpv(bufs[u & 1][1])
        else:
            if u < 3:
                prof_mark(u)
            bscore(bufs[u & 1][0])


def bcombine(BO, BS, done):
    e("v_lshrrev_b32 v18, 4, v1")
    e("s_lshl_b32 s27, s26, 2")
    e("v_add_u32 v18, s27, v18")
    e("v_and_b32 v19, 15, v1")
    e("v_lshlrev_b32 v20, 9, v18")
    e("v_lshl_add_u32 v20, v19, 5, v20")
    e(f"v_add_u32 v20, {BO}, v20")
    e(f"ds_write_b128 v20, {vr(10, 4)}")
    e(f"ds_write_b128 v20, {vr(14, 4)} offset:16")
    e("v_lshlrev_b32 v21, 3, v18")
    e(f"v_add_u32 v21, {BS}, v21")
    e("ds_write_b64 v21, v[8:9]")
    e("s_waitcnt lgkmcnt(0)")
    e("s_barrier")
    e("s_cmp_ge_u32 s26, 2")
    e(f"s_cbranch_scc1 {done}")
    e(f"v_mov_b32 v21, {BS}")
    for s in range(16):
        e(f"ds_read_b64 {vr(64 + 2 * s, 2)}, v21 offset:{8 * s}")
    e("v_lshlrev_b32 v20, 2, v0")
    e(f"v_add_u32 v20, {BO}, v20")
    for s in range(16):
        e(f"ds_read_b32 v{96 + s}, v20 offset:{512 * s}")
    e("s_waitcnt lgkmcnt(0)")
    e("v_max3_f32 v8, v64, v66, v68")
    for s in range(3, 15, 2):
        e(f"v_max3_f32 v8, v8, v{64 + 2 * s}, v{66 + 2 * s}")
    e("v_max_f32 v8, v8, v94")
    for s in range(16):
        e(f"v_sub_f32 v{64 + 2 * s}, v{64 + 2 * s}, v8")
    for s in range(16):
        e(f"v_exp_f32 v{64 + 2 * s}, v{64 + 2 * s}")
    e("s_nop 0")
    e("v_mul_f32 v9, v64, v65")
    e("v_mul_f32 v10, v64, v96")
    for s in range(1, 16):
        e(f"v_fmac_f32 v9, v{64 + 2 * s}, v{65 + 2 * s}")
        e(f"v_fmac_f32 v10, v{64 + 2 * s}, v{96 + s}")
    e("s_lshl_b32 s27, s24, 3")
    e("s_add_u32 s27, s27, s25")
    e("s_lshl_b32 s28, s27, 9")
    e(f"s_add_u32 s28, s28, {BPART}")
    e("v_lshlrev_b32 v20, 2, v0")
    e(f"buffer_store_dword v10, v20, s[20:23], s28 offen")
    e("s_lshl_b32 s28, s27, 3")
    e(f"s_add_u32 s28, s28, {BSTAT}")
    e("v_mov_b32 v20, 0")
    e(f"buffer_store_dwordx2 v[8:9], v20, s[20:23], s28 offen")


def dma_tile():
    for i in range(32):
        if i % 4 == 0:
            e(f"s_add_u32 m0, s41, {i * 1024}")
            e(f"s_add_u32 s42, s40, {i * 1024}")
        e(f"v_xor_b32 v11, {fsw(i & 15) * 16}, v16")
        e(f"buffer_load_dwordx4 v11, s[8:11], s42 offen offset:{(i % 4) * 1024} nt lds")


npoll = [0]


def poll(off, target, soff=None):
    n = npoll[0]
    npoll[0] += 1
    e("s_cmp_lg_u32 s26, 0")
    e(f"s_cbranch_scc1 POLL_DONE{n}")
    e("v_mov_b32 v22, 0")
    e("s_mov_b32 s44, 0x40000")
    if soff is None:
        e(f"s_mov_b32 s45, {off}")
        soff = 45
    lab(f"POLL{n}")
    e(f"buffer_load_dword v21, v22, s[48:51], s{soff} offen{SC}")
    e("s_waitcnt vmcnt(0)")
    e("v_readfirstlane_b32 s43, v21")
    e(f"s_cmp_ge_u32 s43, {target}")
    e(f"s_cbranch_scc1 POLL_DONE{n}")
    e("s_sleep 4")
    e("s_sub_u32 s44, s44, 1")
    e("s_cmp_lg_u32 s44, 0")
    e(f"s_cbranch_scc1 POLL{n}")
    lab(f"POLL_DONE{n}")
    e("s_barrier")


def signal(soffs):
    n = npoll[0]
    npoll[0] += 1
    e("s_waitcnt vmcnt(0)")
    e("s_barrier")
    e("s_cmp_lg_u32 s26, 0")
    e(f"s_cbranch_scc1 SIG_DONE{n}")
    e("v_mov_b32 v21, 1")
    e("v_mov_b32 v22, 0")
    e("s_mov_b64 s[46:47], exec")
    e("s_mov_b64 exec, 1")
    for so in soffs:
        e(f"buffer_atomic_add v21, v22, s[48:51], s{so} offen sc1")
    e("s_mov_b64 exec, s[46:47]")
    lab(f"SIG_DONE{n}")


filler = []


def fill(n=1):
    for _ in range(n):
        if filler:
            for ins in filler.pop(0):
                e(ins)


def tile_loads(defer=False):
    for i in range(32):
        g = []
        if i % 4 == 0:
            g.append(f"s_add_u32 s42, s40, {i * 1024}")
        g.append(f"buffer_load_dwordx4 {ar(128 + 4 * i, 4)}, v16, s[8:11], s42 offen offset:{(i % 4) * 1024} nt")
        filler.append(g)
    if not defer:
        fill(32)


def tile_to_lds():
    e("v_add_u32 v12, s41, v16")
    for i in range(32):
        e(f"v_xor_b32 v{13 + (i & 1)}, {fsw(i & 15) * 16}, v12")
        e(f"s_waitcnt vmcnt({31 - i})")
        e(f"ds_write_b128 v{13 + (i & 1)}, {ar(128 + 4 * i, 4)} offset:{i * 1024}")
    e("s_waitcnt lgkmcnt(0)")


def a_tile(first):
    seq = [(j, k) for j in range(4) for k in range(8)]

    def sread(n):
        j, k = seq[n]
        t = 22 + (n & 1)
        e(f"v_add_u32 v{t}, v{24 + j}, v{28 + k}")
        e(f"ds_read_b128 {vr(72 + 4 * (n % 8), 4)}, v{t}")
    for n in range(8):
        sread(n)
    for n in range(32):
        j, k = seq[n]
        e(f"s_waitcnt lgkmcnt({min(7, 31 - n)})")
        f = vr(72 + 4 * (n % 8), 4)
        acc = ar(64 + 16 * j, 16)
        c = "0" if k == 0 else acc
        e(f"v_mfma_f32_32x32x16_bf16 {acc}, {f}, {ar(4 * k, 4)}, {c}")
        if not HIONLY:
            e(f"v_mfma_f32_32x32x16_bf16 {acc}, {f}, {ar(32 + 4 * k, 4)}, {acc}")
        if n + 8 < 32:
            sread(n + 8)
        if n % 2 == 1:
            fill(1)
    e("s_nop 15")
    for i in range(16):
        e(f"v_accvgpr_read_b32 v{56 + i}, a{64 + i}")
    for j in range(1, 4):
        for q in range(4):
            e(f"ds_write_b128 v36, {ar(64 + 16 * j + 4 * q, 4)} offset:{1024 * q}")
        e("s_waitcnt lgkmcnt(0)")
        e("s_barrier")
        for q in range(4):
            e(f"ds_read_b128 {vr(72 + 4 * q, 4)}, v{36 + j} offset:{1024 * q}")
        e("s_waitcnt lgkmcnt(0)")
        if j < 3:
            e("s_barrier")
        fill(1)
        for i in range(16):
            e(f"v_add_f32 v{56 + i}, v{56 + i}, v{72 + i}")
    for i in range(0, 16, 2):
        round_scale(56 + i, 57 + i, 11)
        if i % 4 == 0:
            fill(1)
    e("v_max3_f32 v12, v56, v57, v58")
    for i in range(59, 71, 2):
        e(f"v_max3_f32 v12, v12, v{i}, v{i+1}")
    e("v_max_f32 v12, v12, v71")
    e("v_mov_b32 v13, v12")
    e("s_nop 1")
    e("v_permlane32_swap_b32 v12, v13")
    e("s_nop 1")
    e("v_max_f32 v12, v12, v13")
    e("ds_write_b32 v17, v12")
    e("s_waitcnt lgkmcnt(0)")
    e("s_barrier")
    for w in range(4):
        e(f"ds_read_b32 v{12 + w}, v18 offset:{128 * w}")
    e("s_waitcnt lgkmcnt(0)")
    e("v_max3_f32 v12, v12, v13, v14")
    e("v_max3_f32 v12, v12, v15, v8")
    e("v_sub_f32 v10, v8, v12")
    e("v_exp_f32 v10, v10")
    e("v_mov_b32 v8, v12")
    for i in range(16):
        e(f"v_sub_f32 v{56+i}, v{56+i}, v12")
    for i in range(16):
        e(f"v_exp_f32 v{56+i}, v{56+i}")
    e("v_mul_f32 v9, v9, v10")
    for i in range(16):
        e(f"v_add_f32 v9, v9, v{56+i}")
    for i in range(8):
        e(f"v_cvt_pk_bf16_f32 v{96+i}, v{56+2*i}, v{57+2*i}")
    e(f"ds_write_b128 v19, {vr(96, 4)}")
    e(f"ds_write_b128 v19, {vr(100, 4)} offset:1024")
    e("s_waitcnt lgkmcnt(0)")
    e("s_barrier")
    for tu in range(8):
        e(f"ds_read_b128 {vr(64 + 4 * tu, 4)}, v20 offset:{(tu >> 1) * 2048 + (tu & 1) * 1024}")
    if not first:
        for i in range(64):
            e(f"v_mul_f32 v{192+i}, v{192+i}, v10")

    def trreads(tu):
        t, u = tu >> 1, tu & 1
        bufb = 96 + 16 * (tu & 1)
        for cc in range(4):
            for v in range(2):
                a = 40 + 8 * (t >> 1) + 2 * cc + v
                off = (32 * (t & 1) + 16 * u + 8 * v) * 1024
                e(f"ds_read_b64_tr_b16 {vr(bufb + 4 * cc + 2 * v, 2)}, v{a} offset:{off}")
    trreads(0)
    for tu in range(8):
        if tu + 1 < 8:
            trreads(tu + 1)
            e("s_waitcnt lgkmcnt(8)")
        else:
            e("s_waitcnt lgkmcnt(0)")
        bufb = 96 + 16 * (tu & 1)
        for cc in range(4):
            acc = vr(192 + 16 * cc, 16)
            c = "0" if (first and tu == 0) else acc
            e(f"v_mfma_f32_32x32x16_bf16 {acc}, {vr(bufb + 4 * cc, 4)}, {vr(64 + 4 * tu, 4)}, {c}")
        fill(1)
    fill(99)


def km():
    L = "km_kernel"
    kernel_header(L)
    e("s_cmp_ge_u32 s2, 256")
    e("s_cbranch_scc1 KM_END")
    prof_kernel[0] = 1
    prof_start()
    srd(8, "A_ckv"); srd(12, "B_k"); srd(16, "B_v"); srd(20, "ws"); srd(48, "dbg")
    e("s_and_b32 s3, s2, 7")
    e("s_lshr_b32 s4, s2, 3")
    e("s_lshr_b32 s5, s3, 2")
    e("s_lshl_b32 s24, s4, 1")
    e("s_or_b32 s24, s24, s5")
    e("s_add_u32 s25, s3, s4")
    e("s_and_b32 s25, s25, 3")
    e("v_and_b32 v1, 63, v0")
    e("v_lshrrev_b32 v2, 6, v0")
    e("s_nop 0")
    e("v_readfirstlane_b32 s26, v2")
    e(f"s_mov_b32 s34, {SCALE_BITS:#x}")
    e(f"s_mov_b32 s35, {LOG2E_BITS:#x}")
    e("v_lshlrev_b32 v16, 4, v1")
    e("s_lshl_b32 s27, s26, 13")
    e("v_add_u32 v6, s27, v16")
    e("v_add_u32 v7, 4096, v6")
    e("v_and_b32 v8, 15, v1")
    e("v_lshlrev_b32 v8, 4, v8")
    e("s_lshl_b32 s27, s24, 8")
    e(f"s_add_u32 s27, s27, {QB}")
    e("s_lshl_b32 s30, s24, 21")
    e("s_add_u32 s30, s30, 1572864")
    e("s_waitcnt lgkmcnt(0)")
    srd_fin(8, "A_ckv"); srd_fin(12, "B_k"); srd_fin(16, "B_v"); srd_fin(20, "ws"); srd_fin(48, "dbg")
    e(f"buffer_load_dwordx4 {vr(2, 4)}, v8, s[20:23], s27 offen")
    e("s_cmp_ge_u32 s25, 2")
    e("s_cbranch_scc1 KM_BONLY")
    e("s_lshr_b32 s36, s24, 5")
    e("s_and_b32 s37, s24, 31")
    e("s_lshl_b32 s37, s37, 1")
    e("s_add_u32 s37, s37, s25")
    e("s_lshl_b32 s40, s36, 23")
    e("s_lshl_b32 s27, s37, 17")
    e("s_add_u32 s40, s40, s27")
    e("s_lshl_b32 s41, s26, 15")
    e("s_add_u32 s40, s40, s41")
    e("s_lshl_b32 s27, s36, 15")
    e("s_lshl_b32 s28, s26, 13")
    e("s_add_u32 s27, s27, s28")
    for part in range(1 if HIONLY else 2):
        for s in range(8):
            if s % 4 == 0:
                e(f"s_add_u32 s28, s27, {part * QA_LO + s * 1024}")
            e(f"buffer_load_dwordx4 {ar(32 * part + 4 * s, 4)}, v16, s[20:23], s28 offen offset:{(s % 4) * 1024}")
    tile_loads()
    e("v_and_b32 v56, 31, v1")
    e("v_lshrrev_b32 v57, 5, v1")
    e("v_and_b32 v58, 3, v1")
    e("v_lshlrev_b32 v58, 2, v58")
    e("v_bfe_u32 v59, v1, 2, 2")
    e("v_or_b32 v58, v58, v59")
    e("v_xor_b32 v58, v58, v57")
    e("v_lshlrev_b32 v58, 4, v58")
    for k in range(8):
        e(f"v_xor_b32 v{28 + k}, {32 * k}, v58")
    e("v_lshlrev_b32 v59, 10, v56")
    e("s_lshl_b32 s27, s26, 8")
    e("v_add_u32 v59, s27, v59")
    for j in range(4):
        e(f"s_add_u32 s27, s26, {j}")
        e("s_and_b32 s27, s27, 3")
        e("s_lshl_b32 s27, s27, 15")
        e(f"v_add_u32 v{24 + j}, s27, v59")
        e(f"s_sub_u32 s27, s26, {j}")
        e("s_and_b32 s27, s27, 3")
        e("s_lshl_b32 s27, s27, 12")
        e(f"s_add_u32 s27, s27, {RS}")
        e(f"v_add_u32 v{36 + j}, s27, v16")
    e("v_lshrrev_b32 v60, 4, v1")
    e("v_lshrrev_b32 v61, 5, v1")
    e("v_bfe_u32 v62, v1, 2, 2")
    e("v_and_b32 v63, 3, v1")
    e("v_and_b32 v64, 1, v60")
    e("v_lshlrev_b32 v64, 1, v64")
    e("v_lshrrev_b32 v65, 1, v63")
    e("v_add_u32 v64, v64, v65")
    e("v_lshl_or_b32 v65, v62, 2, v61")
    e("v_xor_b32 v64, v64, v65")
    e("v_lshlrev_b32 v64, 4, v64")
    e("v_and_b32 v65, 1, v63")
    e("v_lshl_add_u32 v64, v65, 3, v64")
    e("v_lshl_add_u32 v65, v61, 2, v62")
    e("v_lshl_add_u32 v64, v65, 10, v64")
    e("s_lshl_b32 s27, s26, 8")
    e("v_add_u32 v64, s27, v64")
    for cc in range(4):
        for v in range(2):
            e(f"v_xor_b32 v{40 + 2 * cc + v}, {64 * cc + 32 * v}, v64")
            e(f"v_add_u32 v{48 + 2 * cc + v}, 0x10000, v{40 + 2 * cc + v}")
    e("v_lshlrev_b32 v18, 2, v56")
    e(f"v_add_u32 v18, {MX}, v18")
    e("s_lshl_b32 s27, s26, 7")
    e("v_add_u32 v17, s27, v18")
    e(f"v_add_u32 v20, {PX}, v16")
    e("s_lshl_b32 s27, s26, 11")
    e("v_add_u32 v19, s27, v20")
    e("v_mov_b32 v8, 0xff800000")
    e("v_mov_b32 v9, 0")
    tile_to_lds()
    e("s_lshl_b32 s27, s25, 15")
    e("s_add_u32 s31, s30, s27")
    e("s_add_u32 s31, s31, 327680")
    for (base, srdn) in ((128, 12), (160, 16)):
        for i in range(8):
            va = 6 if i < 4 else 7
            filler.append([f"buffer_load_dwordx4 {vr(base + 4 * i, 4)}, v{va}, s[{srdn}:{srdn+3}], s31 offen offset:{(i % 4) * 1024} nt"])
            filler.append([])
    e("s_barrier")
    prof_mark(0)
    a_tile(True)
    prof_mark(1)
    e("v_mov_b32 v13, v9")
    e("s_nop 1")
    e("v_permlane32_swap_b32 v9, v13")
    e("s_nop 1")
    e("v_add_f32 v9, v9, v13")
    e(f"ds_write_b32 v17, v9 offset:{LX - MX}")
    e("s_nop 7")
    e("s_barrier")
    e("v_and_b32 v11, 31, v1")
    e("v_lshrrev_b32 v12, 5, v1")
    e("s_movk_i32 s27, 1040")
    e("v_mul_lo_u32 v14, v11, s27")
    e("v_lshl_add_u32 v14, v12, 3, v14")
    e("s_lshl_b32 s28, s26, 8")
    e("v_add_u32 v14, s28, v14")
    for cc in range(4):
        for q in range(4):
            r0 = 192 + 16 * cc + 4 * q
            e(f"v_cvt_pk_bf16_f32 v{r0}, v{r0}, v{r0 + 1}")
            e(f"v_cvt_pk_bf16_f32 v{r0 + 1}, v{r0 + 2}, v{r0 + 3}")
            e(f"ds_write_b64 v14, {vr(r0, 2)} offset:{cc * 64 + q * 16}")
    e("s_waitcnt lgkmcnt(0)")
    e("s_barrier")
    e("s_mul_i32 s28, s26, 8320")
    e("v_add_u32 v14, s28, v16")
    for i in range(8):
        e(f"ds_read_b128 {vr(192 + 4 * i, 4)}, v14 offset:{1040 * i}")
    e("s_lshl_b32 s27, s36, 6")
    e("s_add_u32 s27, s27, s37")
    e("s_lshl_b32 s27, s27, 15")
    e("s_lshl_b32 s28, s26, 13")
    e("s_add_u32 s27, s27, s28")
    e(f"s_add_u32 s27, s27, {APART}")
    for i in range(8):
        if i == 4:
            e("s_add_u32 s27, s27, 4096")
        e(f"s_waitcnt lgkmcnt({7 - i})")
        e(f"buffer_store_dwordx4 {vr(192 + 4 * i, 4)}, v16, s[20:23], s27 offen offset:{(i % 4) * 1024}")
    e("s_cmp_lg_u32 s26, 0")
    e("s_cbranch_scc1 KM_ASTAT_DONE")
    for w in range(4):
        e(f"ds_read_b32 v{12 + w}, v18 offset:{LX - MX + 128 * w}")
    e("s_waitcnt lgkmcnt(0)")
    e("v_add_f32 v12, v12, v13")
    e("v_add_f32 v14, v14, v15")
    e("v_add_f32 v9, v12, v14")
    e("v_lshlrev_b32 v14, 9, v11")
    e("s_lshl_b32 s27, s36, 14")
    e("s_lshl_b32 s28, s37, 3")
    e("s_add_u32 s27, s27, s28")
    e(f"s_add_u32 s27, s27, {ASTAT}")
    e(f"buffer_store_dwordx2 v[8:9], v14, s[20:23], s27 offen")
    lab("KM_ASTAT_DONE")
    prof_mark(2)
    e("v_mov_b32 v8, 0xff800000")
    for j in range(9, 18):
        e(f"v_mov_b32 v{j}, 0")
    e("s_waitcnt vmcnt(0)")
    bscore(128)
    bpv(160)
    e("s_branch KM_BFIN")
    lab("KM_BONLY")
    e("s_sub_u32 s27, s25, 2")
    e("s_mul_i32 s27, s27, 163840")
    e("s_add_u32 s31, s30, s27")
    e("s_sub_u32 s31, s31, 32768")
    e("v_mov_b32 v8, 0xff800000")
    for j in range(9, 18):
        e(f"v_mov_b32 v{j}, 0")
    bsched(5, lambda c: 3)
    lab("KM_BFIN")
    prof_mark(3)
    e("s_add_u32 s25, s25, 2")
    bcombine(BO, BS, "KM_BDONE")
    lab("KM_BDONE")
    lab("KM_END")
    e("s_endpgm")
    kernel_desc(L, 512, 256)
    return f"; @launch kernel={L} grid=(256,1,1) block=(256,1,1) lds={KM_LDS}"


OPA = 0xA00000


def k3():
    L = "k3_kernel"
    kernel_header(L)
    e("s_cmp_ge_u32 s2, 512")
    e("s_cbranch_scc1 K3_END")
    srd(20, "ws")
    e("v_and_b32 v1, 63, v0")
    e("v_lshrrev_b32 v2, 6, v0")
    e("s_nop 0")
    e("v_readfirstlane_b32 s26, v2")
    e("s_bfe_u32 s52, s2, 0x20006")
    e("s_and_b32 s53, s2, 63")
    e("s_and_b32 s54, s2, 31")
    e("s_bfe_u32 s55, s2, 0x10005")
    e("s_lshr_b32 s56, s2, 8")
    e("s_cmp_lg_u32 s56, 0")
    e("s_cbranch_scc1 K3_LB")
    srd(16, "A_wo"); srd(12, "A_wuv")
    e("s_branch K3_LD")
    lab("K3_LB")
    srd(16, "B_wo")
    lab("K3_LD")
    e("v_lshrrev_b32 v44, 2, v0")
    e("v_and_b32 v45, 3, v0")
    e("v_lshlrev_b32 v46, 16, v44")
    e("v_lshl_add_u32 v46, v45, 4, v46")
    e("v_lshlrev_b32 v16, 4, v1")
    e("s_waitcnt lgkmcnt(0)")
    srd_fin(16, "A_wo"); srd_fin(20, "ws")
    e("s_lshl_b32 s28, s54, 17")
    e("s_lshl_b32 s29, s52, 15")
    e("s_add_u32 s28, s28, s29")
    e("s_lshl_b32 s29, s26, 13")
    e("s_add_u32 s28, s28, s29")
    for i in range(8):
        if i == 4:
            e("s_add_u32 s28, s28, 4096")
        e(f"buffer_load_dwordx4 {vr(224 + 4 * i, 4)}, v16, s[16:19], s28 offen offset:{(i % 4) * 1024} nt")
    e("s_cmp_lg_u32 s56, 0")
    e("s_cbranch_scc1 K3_B")
    srd_fin(12, "A_wuv")
    e("s_lshl_b32 s28, s54, 8")
    e("s_lshl_b32 s29, s52, 6")
    e("s_add_u32 s28, s28, s29")
    for i in range(8):
        e(f"buffer_load_dwordx4 {vr(192 + 4 * i, 4)}, v46, s[12:15], s28 offen nt")
        e("s_add_u32 s28, s28, 8192")
    e("v_lshlrev_b32 v4, 3, v0")
    e("v_lshlrev_b32 v5, 3, v1")
    e("s_lshl_b32 s28, s53, 9")
    e(f"s_add_u32 s28, s28, {ASTAT}")
    e("buffer_load_dwordx2 v[8:9], v5, s[20:23], s28 offen")
    e("v_and_b32 v12, 127, v0")
    e("v_lshrrev_b32 v13, 7, v0")
    e("v_lshlrev_b32 v12, 3, v12")
    e("v_lshl_add_u32 v12, v13, 20, v12")
    e("s_lshl_b32 s28, s55, 21")
    e("s_lshl_b32 s29, s54, 10")
    e("s_add_u32 s28, s28, s29")
    e(f"s_add_u32 s28, s28, {APART}")
    for s in range(32):
        e(f"buffer_load_dwordx2 {vr(64 + 2 * s, 2)}, v12, s[20:23], s28 offen")
        e("s_add_u32 s28, s28, 0x8000")
    e("s_waitcnt vmcnt(32)")
    e("v_mov_b32 v10, v8")
    for sh in (8, 4, 2, 1):
        e("s_nop 1")
        e(f"v_max_f32_dpp v10, v10, v10 row_ror:{sh} row_mask:0xf bank_mask:0xf")
    e("v_mov_b32 v11, v10")
    e("s_nop 1")
    e("v_permlane16_swap_b32 v10, v11")
    e("s_nop 1")
    e("v_max_f32 v10, v10, v11")
    e("v_mov_b32 v11, v10")
    e("s_nop 1")
    e("v_permlane32_swap_b32 v10, v11")
    e("s_nop 1")
    e("v_max_f32 v10, v10, v11")
    e("v_sub_f32 v8, v8, v10")
    e("v_exp_f32 v8, v8")
    e("s_nop 0")
    e("v_mul_f32 v10, v8, v9")
    for sh in (8, 4, 2, 1):
        e("s_nop 1")
        e(f"v_add_f32_dpp v10, v10, v10 row_ror:{sh} row_mask:0xf bank_mask:0xf")
    e("v_mov_b32 v11, v10")
    e("s_nop 1")
    e("v_permlane16_swap_b32 v10, v11")
    e("s_nop 1")
    e("v_add_f32 v10, v10, v11")
    e("v_mov_b32 v11, v10")
    e("s_nop 1")
    e("v_permlane32_swap_b32 v10, v11")
    e("s_nop 1")
    e("v_add_f32 v10, v10, v11")
    e("v_rcp_f32 v6, v10")
    for k in range(4):
        e(f"v_mov_b32 v{40 + k}, 0")
    e("s_lshr_b32 s30, s26, 1")
    e("s_lshl_b32 s30, s30, 5")
    for s in range(32):
        e(f"s_add_u32 s31, s30, {s}")
        e(f"v_readlane_b32 s{60 + (s & 3)}, v8, s31")
        e(f"s_waitcnt vmcnt({31 - s})")
        unpack2(48, 49, 64 + 2 * s)
        unpack2(50, 51, 65 + 2 * s)
        for k in range(4):
            e(f"v_fmac_f32 v{40 + k}, s{60 + (s & 3)}, v{48 + k}")
    for k in range(4):
        e(f"v_mul_f32 v{40 + k}, v{40 + k}, v6")
    e("v_lshlrev_b32 v4, 4, v0")
    e(f"ds_write_b128 v4, {vr(40, 4)} offset:10240")
    e("s_waitcnt lgkmcnt(0)")
    e("s_barrier")
    e("v_lshlrev_b32 v5, 5, v44")
    e(f"ds_read_b128 {vr(8, 4)}, v5 offset:10240")
    e(f"ds_read_b128 {vr(12, 4)}, v5 offset:10256")
    e(f"ds_read_b128 {vr(16, 4)}, v5 offset:12288")
    e(f"ds_read_b128 {vr(20, 4)}, v5 offset:12304")
    for k in range(8):
        e(f"v_mov_b32 v{24 + k}, 0")
    e("s_waitcnt lgkmcnt(0)")
    for k in range(8):
        e(f"v_add_f32 v{8 + k}, v{8 + k}, v{16 + k}")
    for i in range(8):
        for k in range(4):
            unpack2(32 + 2 * k, 33 + 2 * k, 192 + 4 * i + k)
        for k in range(8):
            e(f"v_fmac_f32 v{24 + k}, v{32 + k}, v{8 + i}")
    e("v_lshlrev_b32 v5, 7, v44")
    e("v_lshl_add_u32 v5, v45, 5, v5")
    e(f"ds_write_b128 v5, {vr(24, 4)} offset:2048")
    e(f"ds_write_b128 v5, {vr(28, 4)} offset:2064")
    e("s_waitcnt lgkmcnt(0)")
    e("s_barrier")
    e("v_and_b32 v5, 31, v1")
    e("v_lshrrev_b32 v6, 5, v1")
    e("v_lshlrev_b32 v5, 2, v5")
    e("v_lshl_add_u32 v5, v6, 12, v5")
    for g in range(32):
        e(f"ds_read_b32 v{64 + g}, v5 offset:{2048 + 128 * g}")
    e("s_waitcnt lgkmcnt(0)")
    for n in (16, 8, 4, 2, 1):
        for g in range(n):
            e(f"v_add_f32 v{64 + g}, v{64 + g}, v{64 + n + g}")
    e("v_mov_b32 v65, v64")
    e("s_nop 1")
    e("v_permlane32_swap_b32 v64, v65")
    e("s_nop 1")
    e("v_add_f32 v64, v64, v65")
    e("v_cvt_pk_bf16_f32 v64, v64, v64")
    e("v_lshlrev_b32 v64, 16, v64")
    e("s_branch K3_OUT")
    lab("K3_B")
    e("v_mov_b32 v5, 0")
    e("s_lshl_b32 s28, s53, 6")
    e(f"s_add_u32 s28, s28, {BSTAT}")
    for k in range(3):
        e(f"buffer_load_dwordx4 {vr(8 + 4 * k, 4)}, v5, s[20:23], s28 offen offset:{16 * k}")
    e("v_and_b32 v5, 31, v1")
    e("v_lshlrev_b32 v5, 2, v5")
    e("s_lshl_b32 s28, s53, 12")
    e("s_lshl_b32 s29, s52, 7")
    e("s_add_u32 s28, s28, s29")
    e(f"s_add_u32 s28, s28, {BPART}")
    for r in range(6):
        e(f"buffer_load_dword v{64 + r}, v5, s[20:23], s28 offen offset:{512 * r}")
    e("s_waitcnt vmcnt(0)")
    e("v_max3_f32 v56, v8, v10, v12")
    e("v_max3_f32 v56, v56, v14, v16")
    e("v_max_f32 v56, v56, v18")
    for r in range(6):
        e(f"v_sub_f32 v{8 + 2 * r}, v{8 + 2 * r}, v56")
    for r in range(6):
        e(f"v_exp_f32 v{8 + 2 * r}, v{8 + 2 * r}")
    e("s_nop 0")
    e("v_mul_f32 v57, v8, v9")
    e("v_mul_f32 v58, v8, v64")
    for r in range(1, 6):
        e(f"v_fmac_f32 v57, v{8 + 2 * r}, v{9 + 2 * r}")
        e(f"v_fmac_f32 v58, v{8 + 2 * r}, v{64 + r}")
    e("v_rcp_f32 v57, v57")
    e("s_nop 0")
    e("v_mul_f32 v58, v58, v57")
    e("v_cvt_pk_bf16_f32 v58, v58, v58")
    e("v_lshlrev_b32 v64, 16, v58")
    lab("K3_OUT")
    e("s_lshl_b32 s30, s26, 3")
    for k in range(8):
        e(f"v_mov_b32 v{24 + k}, 0")
    e("s_waitcnt vmcnt(0)")
    for i in range(8):
        e(f"s_add_u32 s31, s30, {i}")
        e(f"v_readlane_b32 s{60 + i}, v64, s31")
    for i in range(8):
        for k in range(4):
            unpack2(32 + 2 * k, 33 + 2 * k, 224 + 4 * i + k)
        for k in range(8):
            e(f"v_fmac_f32 v{24 + k}, s{60 + i}, v{32 + k}")
    e("s_barrier")
    e("v_lshlrev_b32 v5, 5, v1")
    e("s_lshl_b32 s30, s26, 11")
    e("v_add_u32 v5, s30, v5")
    e(f"ds_write_b128 v5, {vr(24, 4)}")
    e(f"ds_write_b128 v5, {vr(28, 4)} offset:16")
    e("s_waitcnt lgkmcnt(0)")
    e("s_barrier")
    e("v_lshlrev_b32 v5, 3, v0")
    for w in range(4):
        e(f"ds_read_b64 {vr(8 + 2 * w, 2)}, v5 offset:{2048 * w}")
    e("s_waitcnt lgkmcnt(0)")
    e("v_add_f32 v8, v8, v10")
    e("v_add_f32 v9, v9, v11")
    e("v_add_f32 v12, v12, v14")
    e("v_add_f32 v13, v13, v15")
    e("v_add_f32 v8, v8, v12")
    e("v_add_f32 v9, v9, v13")
    e("s_lshl_b32 s28, s56, 19")
    e("s_lshl_b32 s29, s55, 18")
    e("s_add_u32 s28, s28, s29")
    e("s_lshl_b32 s29, s54, 13")
    e("s_add_u32 s28, s28, s29")
    e("s_lshl_b32 s29, s52, 11")
    e("s_add_u32 s28, s28, s29")
    e(f"s_add_u32 s28, s28, {OPA}")
    e("buffer_store_dwordx2 v[8:9], v5, s[20:23], s28 offen")
    lab("K3_END")
    e("s_endpgm")
    kernel_desc(L, 256, 256)
    return f"; @launch kernel={L} grid=(512,1,1) block=(256,1,1) lds=14336"


def k4():
    L = "k4_kernel"
    kernel_header(L)
    e("s_cmp_ge_u32 s2, 32")
    e("s_cbranch_scc1 K4_END")
    srd(20, "ws"); srd(8, "out")
    e("s_lshr_b32 s24, s2, 3")
    e("s_and_b32 s25, s2, 7")
    e("v_and_b32 v1, 15, v0")
    e("v_lshrrev_b32 v2, 4, v0")
    e("v_lshlrev_b32 v3, 14, v2")
    e("v_lshl_add_u32 v3, v1, 4, v3")
    e("s_lshl_b32 s26, s24, 18")
    e("s_lshl_b32 s27, s25, 8")
    e("s_add_u32 s26, s26, s27")
    e(f"s_add_u32 s26, s26, {OPA}")
    e("s_waitcnt lgkmcnt(0)")
    srd_fin(20, "ws"); srd_fin(8, "out")
    for i in range(8):
        if i % 2 == 0 and i:
            e("s_add_u32 s26, s26, 4096")
        e(f"buffer_load_dwordx4 {vr(8 + 4 * i, 4)}, v3, s[20:23], s26 offen offset:{(i % 2) * 2048}")
    e("s_waitcnt vmcnt(0)")
    for n in (4, 2, 1):
        for i in range(n):
            for k in range(4):
                e(f"v_add_f32 v{8 + 4 * i + k}, v{8 + 4 * i + k}, v{8 + 4 * (i + n) + k}")
    e("v_lshlrev_b32 v4, 4, v0")
    e(f"ds_write_b128 v4, {vr(8, 4)}")
    e("s_waitcnt lgkmcnt(0)")
    e("s_barrier")
    e("v_cmp_gt_u32 vcc, 64, v0")
    e("s_and_saveexec_b64 s[28:29], vcc")
    e("s_cbranch_execz K4_END")
    e("v_lshlrev_b32 v4, 2, v0")
    for g in range(16):
        e(f"ds_read_b32 v{8 + g}, v4 offset:{256 * g}")
    e("s_waitcnt lgkmcnt(0)")
    for n in (8, 4, 2, 1):
        for g in range(n):
            e(f"v_add_f32 v{8 + g}, v{8 + g}, v{8 + n + g}")
    e("v_cvt_pk_bf16_f32 v8, v8, v8")
    e("s_and_b32 s26, s24, 1")
    e("s_lshl_b32 s26, s26, 11")
    e("s_lshr_b32 s27, s24, 1")
    e("s_lshl_b32 s27, s27, 10")
    e("s_add_u32 s26, s26, s27")
    e("s_lshl_b32 s27, s25, 7")
    e("s_add_u32 s26, s26, s27")
    e("v_lshlrev_b32 v4, 1, v0")
    e("buffer_store_short v8, v4, s[8:11], s26 offen")
    lab("K4_END")
    e("s_endpgm")
    kernel_desc(L, 48, 48)
    return f"; @launch kernel={L} grid=(32,1,1) block=(256,1,1) lds=4096"


LAUNCHES = []


def main():
    LAUNCHES.append(k1())
    LAUNCHES.append(km())
    LAUNCHES.append(k3())
    LAUNCHES.append(k4())
    head = open(f"cdna_kernels/{NAME}.s.ref").read().split("; Override launch")[0]
    txt = head + "\n".join(LAUNCHES) + "\n"
    txt += '.amdgcn_target "amdgcn-amd-amdhsa--gfx950"\n.text\n'
    txt += "\n".join(out) + "\n"
    txt += '.section .rodata,"a"\n' + "\n".join(descs) + "\n"
    path = sys.argv[1] if len(sys.argv) > 1 else f"cdna_kernels/{NAME}.s"
    open(path, "w").write(txt)


if __name__ == "__main__":
    main()
```

```python
import sys

NAME = "concat_heads__compressed_kv_cla__sliding_block_cached__decode"

KA = dict(A_x=0, A_ckv=8, A_wq=16, A_wuk=24, A_wuv=32, A_wo=40, B_x=48, B_k=56, B_v=64,
          B_wq=72, B_wo=80, out=88, dbg=96, ws=104)
SZ = dict(A_x=2048, A_ckv=16777216, A_wq=4194304, A_wuk=4194304, A_wuv=4194304, A_wo=4194304,
          B_x=2048, B_k=134217728, B_v=134217728, B_wq=4194304, B_wo=4194304, out=4096, dbg=256,
          ws=536870912)

QA_HI = 0x00000
QA_LO = 0x10000
QB = 0x20000
ASTAT = 0x30000
BPART = 0x40000
BSTAT = 0x80000
CTX = 0x70000
OPART = 0x80000
APART = 0x100000

SCALE_BITS = 0x3DB504F3
LOG2E_BITS = 0x3FB8AA3B

out = []
import os
DEBUG = bool(os.environ.get('DEBUG'))
PROF = bool(os.environ.get('PROF'))
PST = os.environ.get('PST', '')
HIONLY = bool(os.environ.get('HIONLY'))
PROFBASE = 0xC00000


def prof_start():
    if PROF:
        e("s_memrealtime s[90:91]")


def prof_mark(slot, t=21):
    if PROF:
        e("s_memrealtime s[92:93]")
        e("s_waitcnt lgkmcnt(0)")
        e("s_sub_u32 s92, s92, s90")
        e(f"v_mov_b32 v{t}, s92")
        e("s_lshl_b32 s94, s2, 7")
        e(f"s_add_u32 s94, s94, {PROFBASE + prof_kernel[0] * 0x10000 + slot * 4}")
        e(f"v_lshrrev_b32 v{t+1}, 6, v0")
        e(f"v_lshlrev_b32 v{t+1}, 5, v{t+1}")
        e(f"buffer_store_dword v{t}, v{t+1}, s[20:23], s94 offen")


prof_kernel = [0]


def e(s):
    out.append("    " + s)


def lab(s):
    out.append(s + ":")


def srd(dst, name):
    e(f"s_load_dwordx2 s[{dst}:{dst+1}], s[0:1], {KA[name]}")


def srd_fin(dst, name):
    e(f"s_mov_b32 s{dst+2}, {SZ[name]}")
    e(f"s_mov_b32 s{dst+3}, 0x20000")


def vr(a, n):
    return f"v[{a}:{a+n-1}]"


def ar(a, n):
    return f"a[{a}:{a+n-1}]"


def kernel_header(label):
    out.append(f".globl {label}")
    out.append(".p2align 8")
    out.append(f".type {label},@function")
    lab(label)


descs = []


def kernel_desc(label, vgpr, accum, sgpr=102):
    descs.append(f""".p2align 6
.amdhsa_kernel {label}
  .amdhsa_next_free_vgpr {vgpr}
  .amdhsa_next_free_sgpr {sgpr}
  .amdhsa_accum_offset {accum}
  .amdhsa_group_segment_fixed_size 0
  .amdhsa_kernarg_size 112
  .amdhsa_user_sgpr_count 2
  .amdhsa_user_sgpr_kernarg_segment_ptr 1
  .amdhsa_system_sgpr_workgroup_id_x 1
.end_amdhsa_kernel""")


def unpack2(dlo, dhi, src):
    e(f"v_lshlrev_b32 v{dlo}, 16, v{src}")
    e(f"v_and_b32 v{dhi}, 0xffff0000, v{src}")


def gemv_rows(nrows, wbase, xbase0, xbase1, acc, tmp, xt, vm_after):
    for i in range(nrows):
        e(f"s_waitcnt vmcnt({nrows - 1 - i + vm_after})")
        if i % 2 == 0:
            e(f"v_lshlrev_b32 v{xt}, 16, v{xbase0 + i // 2}")
            e(f"v_lshlrev_b32 v{xt+1}, 16, v{xbase1 + i // 2}")
        else:
            e(f"v_and_b32 v{xt}, 0xffff0000, v{xbase0 + i // 2}")
            e(f"v_and_b32 v{xt+1}, 0xffff0000, v{xbase1 + i // 2}")
        for k in range(4):
            unpack2(tmp + 2 * k, tmp + 2 * k + 1, wbase + 4 * i + k)
        for k in range(8):
            e(f"v_fmac_f32 v{acc + k}, v{tmp + k}, v{xt}")
            e(f"v_fmac_f32 v{acc + 8 + k}, v{tmp + k}, v{xt+1}")


def k1():
    L = "k1_kernel"
    kernel_header(L)
    e("s_cmp_ge_u32 s2, 256")
    e("s_cbranch_scc1 K1_END")
    e("s_cmp_ge_u32 s2, 64")
    e("s_cbranch_scc1 K1_B")
    srd(8, "A_x"); srd(12, "A_wq"); srd(16, "A_wuk"); srd(20, "ws")
    e("s_and_b32 s24, s2, 31")
    e("s_lshr_b32 s25, s2, 5")
    e("v_and_b32 v1, 15, v0")
    e("v_lshrrev_b32 v2, 4, v0")
    e("v_lshlrev_b32 v3, 18, v2")
    e("v_lshl_add_u32 v3, v1, 4, v3")
    e("v_lshlrev_b32 v4, 6, v2")
    e("v_lshlrev_b32 v5, 13, v2")
    e("v_lshl_add_u32 v5, v1, 4, v5")
    e("s_lshl_b32 s26, s24, 8")
    e("s_waitcnt lgkmcnt(0)")
    srd_fin(8, "A_x"); srd_fin(12, "A_wq"); srd_fin(16, "A_wuk"); srd_fin(20, "ws")
    for b in range(2):
        for k in range(4):
            e(f"buffer_load_dwordx4 {vr(8 + 16 * b + 4 * k, 4)}, v4, s[8:11], 0 offen offset:{1024 * b + 16 * k}")
    e("s_mov_b32 s27, s26")
    for i in range(32):
        e(f"buffer_load_dwordx4 {vr(40 + 4 * i, 4)}, v3, s[12:15], s27 offen nt")
        e("s_add_u32 s27, s27, 8192")
    e("s_lshl_b32 s27, s25, 21")
    e("s_add_u32 s27, s27, s26")
    for i in range(16):
        e(f"buffer_load_dwordx4 {vr(168 + 4 * i, 4)}, v5, s[16:19], s27 offen nt")
        e("s_add_u32 s27, s27, 0x20000")
    for k in range(16):
        e(f"v_mov_b32 v{232 + k}, 0")
    for i in range(32):
        e(f"s_waitcnt vmcnt({31 - i + 16})")
        if i % 2 == 0:
            e(f"v_lshlrev_b32 v6, 16, v{8 + i // 2}")
            e(f"v_lshlrev_b32 v7, 16, v{24 + i // 2}")
        else:
            e(f"v_and_b32 v6, 0xffff0000, v{8 + i // 2}")
            e(f"v_and_b32 v7, 0xffff0000, v{24 + i // 2}")
        for k in range(4):
            unpack2(248 + 2 * k, 249 + 2 * k, 40 + 4 * i + k)
        for k in range(8):
            e(f"v_fmac_f32 v{232 + k}, v{248 + k}, v6")
            e(f"v_fmac_f32 v{240 + k}, v{248 + k}, v7")
    e("v_lshlrev_b32 v6, 10, v2")
    e("v_lshl_add_u32 v6, v1, 5, v6")
    e(f"ds_write_b128 v6, {vr(232, 4)}")
    e(f"ds_write_b128 v6, {vr(236, 4)} offset:16")
    e(f"ds_write_b128 v6, {vr(240, 4)} offset:512")
    e(f"ds_write_b128 v6, {vr(244, 4)} offset:528")
    e("s_waitcnt lgkmcnt(0)")
    e("s_barrier")
    e("v_lshlrev_b32 v6, 2, v0")
    for g in range(16):
        e(f"ds_read_b32 v{8 + g}, v6 offset:{1024 * g}")
    e("s_waitcnt lgkmcnt(0)")
    for n in (8, 4, 2, 1):
        for g in range(n):
            e(f"v_add_f32 v{8 + g}, v{8 + g}, v{8 + n + g}")
    e("v_cvt_pk_bf16_f32 v8, v8, v8")
    e("v_lshlrev_b32 v6, 1, v0")
    e("ds_write_b16 v6, v8 offset:16384")
    e("s_waitcnt lgkmcnt(0)")
    e("s_barrier")
    e("v_lshlrev_b32 v6, 4, v1")
    e(f"ds_read_b128 {vr(8, 4)}, v6 offset:16384")
    e(f"ds_read_b128 {vr(12, 4)}, v6 offset:16640")
    e("s_waitcnt vmcnt(0) lgkmcnt(0)")
    for k in range(4):
        for i in range(16):
            for b in range(2):
                d = 24 + 2 * i + b
                c = "0" if k == 0 else f"v{d}"
                e(f"v_dot2_f32_bf16 v{d}, v{168 + 4 * i + k}, v{8 + 4 * b + k}, {c}")
    e("s_nop 3")
    for sh in (8, 4, 2, 1):
        for d in range(24, 56):
            e(f"v_add_f32_dpp v{d}, v{d}, v{d} row_ror:{sh} row_mask:0xf bank_mask:0xf")
    e("v_lshlrev_b32 v6, 2, v2")
    for i in range(16):
        for b in range(2):
            e(f"ds_write_b32 v6, v{24 + 2 * i + b} offset:{16896 + 1024 * b + 64 * i}")
    e("s_waitcnt lgkmcnt(0)")
    e("s_barrier")
    e("v_cmp_gt_u32 vcc, 64, v0")
    e("s_and_saveexec_b64 s[28:29], vcc")
    e("s_cbranch_execz K1_END")
    e("v_lshlrev_b32 v6, 5, v0")
    e(f"ds_read_b128 {vr(8, 4)}, v6 offset:16896")
    e(f"ds_read_b128 {vr(12, 4)}, v6 offset:16912")
    e("s_waitcnt lgkmcnt(0)")
    for k in range(4):
        a_, b_ = 8 + 2 * k, 9 + 2 * k
        e(f"v_cvt_pk_bf16_f32 v{16 + k}, v{a_}, v{b_}")
        unpack2(24, 25, 16 + k)
        e(f"v_sub_f32 v24, v{a_}, v24")
        e(f"v_sub_f32 v25, v{b_}, v25")
        e(f"v_cvt_pk_bf16_f32 v{20 + k}, v24, v25")
    e("v_lshrrev_b32 v6, 5, v0")
    e("v_and_b32 v7, 31, v0")
    e("v_lshrrev_b32 v24, 1, v7")
    e("v_and_b32 v25, 1, v7")
    e("v_lshlrev_b32 v6, 15, v6")
    e("v_lshl_add_u32 v6, v24, 10, v6")
    e("v_lshl_add_u32 v6, v25, 9, v6")
    e("s_lshl_b32 s27, s25, 14")
    e("s_lshl_b32 s28, s24, 4")
    e("s_add_u32 s27, s27, s28")
    e(f"buffer_store_dwordx4 {vr(16, 4)}, v6, s[20:23], s27 offen")
    e(f"s_add_u32 s27, s27, {QA_LO}")
    e(f"buffer_store_dwordx4 {vr(20, 4)}, v6, s[20:23], s27 offen")
    e("s_branch K1_END")
    lab("K1_B")
    srd(8, "B_x"); srd(44, "B_wq"); srd(20, "ws"); srd(12, "B_k"); srd(16, "B_v")
    e("s_sub_u32 s3, s2, 64")
    e("s_and_b32 s4, s3, 31")
    e("s_bfe_u32 s5, s3, 0x10005")
    e("s_lshr_b32 s25, s3, 6")
    e("s_lshl_b32 s24, s5, 5")
    e("s_add_u32 s24, s24, s4")
    e("v_and_b32 v1, 63, v0")
    e("v_lshrrev_b32 v2, 6, v0")
    e("s_nop 0")
    e("v_readfirstlane_b32 s26, v2")
    e(f"s_mov_b32 s34, {SCALE_BITS:#x}")
    e(f"s_mov_b32 s35, {LOG2E_BITS:#x}")
    e("v_and_b32 v42, 15, v0")
    e("v_lshrrev_b32 v43, 4, v0")
    e("v_lshlrev_b32 v3, 18, v43")
    e("v_lshl_add_u32 v3, v42, 4, v3")
    e("v_lshlrev_b32 v4, 6, v43")
    e("v_lshlrev_b32 v16, 4, v1")
    e("s_lshl_b32 s27, s26, 13")
    e("v_add_u32 v6, s27, v16")
    e("v_add_u32 v7, 4096, v6")
    e("s_lshl_b32 s30, s24, 21")
    e("s_lshl_b32 s27, s25, 16")
    e("s_add_u32 s30, s30, s27")
    e("s_add_u32 s31, s30, 1900544")
    e("s_lshl_b32 s36, s4, 8")
    e("s_lshl_b32 s37, s5, 10")
    e("s_waitcnt lgkmcnt(0)")
    srd_fin(8, "B_x"); srd_fin(44, "B_wq"); srd_fin(20, "ws"); srd_fin(12, "B_k"); srd_fin(16, "B_v")
    for k in range(4):
        e(f"buffer_load_dwordx4 {vr(44 + 4 * k, 4)}, v4, s[8:11], s37 offen offset:{16 * k}")
    e("s_mov_b32 s27, s36")
    for i in range(32):
        e(f"buffer_load_dwordx4 {vr(64 + 4 * i, 4)}, v3, s[44:47], s27 offen nt")
        e("s_add_u32 s27, s27, 8192")
    bloads(192, 224, 31)
    for k in range(8):
        e(f"v_mov_b32 v{20 + k}, 0")
    for i in range(32):
        e(f"s_waitcnt vmcnt({31 - i + 16})")
        if i % 2 == 0:
            e(f"v_lshlrev_b32 v18, 16, v{44 + i // 2}")
        else:
            e(f"v_and_b32 v18, 0xffff0000, v{44 + i // 2}")
        for k in range(4):
            unpack2(28 + 2 * k, 29 + 2 * k, 64 + 4 * i + k)
        for k in range(8):
            e(f"v_fmac_f32 v{20 + k}, v{28 + k}, v18")
    e("s_add_u32 s31, s31, 32768")
    bloads(64, 96, 31)
    e("v_lshlrev_b32 v18, 9, v43")
    e("v_lshl_add_u32 v18, v42, 5, v18")
    e(f"ds_write_b128 v18, {vr(20, 4)}")
    e(f"ds_write_b128 v18, {vr(24, 4)} offset:16")
    e("s_waitcnt lgkmcnt(0)")
    e("s_barrier")
    e("v_and_b32 v18, 127, v0")
    e("v_lshlrev_b32 v19, 2, v18")
    for g in range(16):
        e(f"ds_read_b32 v{20 + g}, v19 offset:{512 * g}")
    e("s_waitcnt lgkmcnt(0)")
    for n in (8, 4, 2, 1):
        for g in range(n):
            e(f"v_add_f32 v{20 + g}, v{20 + g}, v{20 + n + g}")
    e("v_cvt_pk_bf16_f32 v20, v20, v20")
    e("v_lshlrev_b32 v19, 1, v18")
    e("ds_write_b16 v19, v20 offset:8192")
    e("s_cmp_lg_u32 s25, 0")
    e("s_cbranch_scc1 K1_NOQB")
    e("s_lshl_b32 s27, s24, 8")
    e(f"s_add_u32 s27, s27, {QB}")
    e("buffer_store_short v20, v19, s[20:23], s27 offen")
    lab("K1_NOQB")
    e("s_waitcnt lgkmcnt(0)")
    e("s_barrier")
    e("v_and_b32 v18, 15, v1")
    e("v_lshlrev_b32 v18, 4, v18")
    e(f"ds_read_b128 {vr(2, 4)}, v18 offset:8192")
    e("v_mov_b32 v8, 0xff800000")
    for j in range(9, 18):
        e(f"v_mov_b32 v{j}, 0")
    e("s_waitcnt vmcnt(16) lgkmcnt(0)")
    bscore(192)
    bpv(224)
    e("s_waitcnt vmcnt(0)")
    bscore(64)
    bpv(96)
    bcombine(8704, 8704 + 8192, "K1_END")
    lab("K1_END")
    e("s_endpgm")
    kernel_desc(L, 256, 256)
    return f"; @launch kernel={L} grid=(256,1,1) block=(256,1,1) lds=19456"


MX = 131072
LX = 131584
PX = 132096
BO = 140288
RS = PX
BS = BO + 8192
KM_LDS = BS + 128
C3 = 132
C4 = 136
C5 = 168
C6 = 200
SC = " sc1"


def fsw(r):
    return ((r & 3) << 2) | ((r >> 2) & 3)


def bloads(K, V, soff):
    for (base, srdn) in ((K, 12), (V, 16)):
        for i in range(8):
            va = 6 if i < 4 else 7
            e(f"buffer_load_dwordx4 {vr(base + 4 * i, 4)}, v{va}, s[{srdn}:{srdn+3}], s{soff} offen offset:{(i % 4) * 1024} nt")


def round_scale(a, b, t):
    e(f"v_cvt_pk_bf16_f32 v{t}, v{a}, v{b}")
    unpack2(a, b, t)
    e(f"v_mul_f32 v{a}, s34, v{a}")
    e(f"v_mul_f32 v{b}, s34, v{b}")
    e(f"v_cvt_pk_bf16_f32 v{t}, v{a}, v{b}")
    unpack2(a, b, t)
    e(f"v_mul_f32 v{a}, s35, v{a}")
    e(f"v_mul_f32 v{b}, s35, v{b}")


def bscore(K):
    for k in range(4):
        for i in range(8):
            c = "0" if k == 0 else f"v{18+i}"
            e(f"v_dot2_f32_bf16 v{18+i}, v{K + 4*i + k}, v{2+k}, {c}")
    for sh in (8, 4, 2, 1):
        for i in range(8):
            e(f"v_add_f32_dpp v{18+i}, v{18+i}, v{18+i} row_ror:{sh} row_mask:0xf bank_mask:0xf")
    for i in range(0, 8, 2):
        round_scale(18 + i, 19 + i, 26)
    e("v_max3_f32 v26, v18, v19, v20")
    e("v_max3_f32 v26, v26, v21, v22")
    e("v_max3_f32 v26, v26, v23, v24")
    e("v_max3_f32 v26, v26, v25, v8")
    e("v_sub_f32 v27, v8, v26")
    e("v_exp_f32 v27, v27")
    e("v_mov_b32 v8, v26")
    for i in range(8):
        e(f"v_sub_f32 v{18+i}, v{18+i}, v26")
    for i in range(8):
        e(f"v_exp_f32 v{18+i}, v{18+i}")
    e("v_mul_f32 v9, v9, v27")
    for j in range(8):
        e(f"v_mul_f32 v{10+j}, v{10+j}, v27")
    for i in range(8):
        e(f"v_add_f32 v9, v9, v{18+i}")


def bpv(V):
    for i in range(8):
        for k in range(4):
            unpack2(34 + 2 * k, 35 + 2 * k, V + 4 * i + k)
        for j in range(8):
            e(f"v_fmac_f32 v{10+j}, v{34+j}, v{18+i}")


def bload1(base, srdn, soff):
    for i in range(8):
        va = 6 if i < 4 else 7
        e(f"buffer_load_dwordx4 {vr(base + 4 * i, 4)}, v{va}, s[{srdn}:{srdn+3}], s{soff} offen offset:{(i % 4) * 1024} nt")


def bsched(nunits, ahead):
    bufs = [(128, 160), (192, 224)]
    n = 2 * nunits
    issued = 0
    for c in range(n):
        while issued < n and issued <= c + min(ahead(c), 3):
            u, isv = issued >> 1, issued & 1
            if not isv:
                e("s_add_u32 s31, s31, 32768")
                e("s_mov_b32 s33, s31") if False else None
            e(f"s_mov_b32 s{60 + (u & 1)}, s31") if not isv else None
            bload1(bufs[u & 1][isv], 16 if isv else 12, 60 + (u & 1))
            issued += 1
        e(f"s_waitcnt vmcnt({8 * (issued - 1 - c)})")
        u, isv = c >> 1, c & 1
        if isv:
            bpv(bufs[u & 1][1])
        else:
            if u < 3:
                prof_mark(u)
            bscore(bufs[u & 1][0])


def bcombine(BO, BS, done):
    e("v_lshrrev_b32 v18, 4, v1")
    e("s_lshl_b32 s27, s26, 2")
    e("v_add_u32 v18, s27, v18")
    e("v_and_b32 v19, 15, v1")
    e("v_lshlrev_b32 v20, 9, v18")
    e("v_lshl_add_u32 v20, v19, 5, v20")
    e(f"v_add_u32 v20, {BO}, v20")
    e(f"ds_write_b128 v20, {vr(10, 4)}")
    e(f"ds_write_b128 v20, {vr(14, 4)} offset:16")
    e("v_lshlrev_b32 v21, 3, v18")
    e(f"v_add_u32 v21, {BS}, v21")
    e("ds_write_b64 v21, v[8:9]")
    e("s_waitcnt lgkmcnt(0)")
    e("s_barrier")
    e("s_cmp_ge_u32 s26, 2")
    e(f"s_cbranch_scc1 {done}")
    e(f"v_mov_b32 v21, {BS}")
    for s in range(16):
        e(f"ds_read_b64 {vr(64 + 2 * s, 2)}, v21 offset:{8 * s}")
    e("v_lshlrev_b32 v20, 2, v0")
    e(f"v_add_u32 v20, {BO}, v20")
    for s in range(16):
        e(f"ds_read_b32 v{96 + s}, v20 offset:{512 * s}")
    e("s_waitcnt lgkmcnt(0)")
    e("v_max3_f32 v8, v64, v66, v68")
    for s in range(3, 15, 2):
        e(f"v_max3_f32 v8, v8, v{64 + 2 * s}, v{66 + 2 * s}")
    e("v_max_f32 v8, v8, v94")
    for s in range(16):
        e(f"v_sub_f32 v{64 + 2 * s}, v{64 + 2 * s}, v8")
    for s in range(16):
        e(f"v_exp_f32 v{64 + 2 * s}, v{64 + 2 * s}")
    e("s_nop 0")
    e("v_mul_f32 v9, v64, v65")
    e("v_mul_f32 v10, v64, v96")
    for s in range(1, 16):
        e(f"v_fmac_f32 v9, v{64 + 2 * s}, v{65 + 2 * s}")
        e(f"v_fmac_f32 v10, v{64 + 2 * s}, v{96 + s}")
    e("s_lshl_b32 s27, s24, 3")
    e("s_add_u32 s27, s27, s25")
    e("s_lshl_b32 s28, s27, 9")
    e(f"s_add_u32 s28, s28, {BPART}")
    e("v_lshlrev_b32 v20, 2, v0")
    e(f"buffer_store_dword v10, v20, s[20:23], s28 offen")
    e("s_lshl_b32 s28, s27, 3")
    e(f"s_add_u32 s28, s28, {BSTAT}")
    e("v_mov_b32 v20, 0")
    e(f"buffer_store_dwordx2 v[8:9], v20, s[20:23], s28 offen")


def dma_tile():
    for i in range(32):
        if i % 4 == 0:
            e(f"s_add_u32 m0, s41, {i * 1024}")
            e(f"s_add_u32 s42, s40, {i * 1024}")
        e(f"v_xor_b32 v11, {fsw(i & 15) * 16}, v16")
        e(f"buffer_load_dwordx4 v11, s[8:11], s42 offen offset:{(i % 4) * 1024} nt lds")


npoll = [0]


def poll(off, target, soff=None):
    n = npoll[0]
    npoll[0] += 1
    e("s_cmp_lg_u32 s26, 0")
    e(f"s_cbranch_scc1 POLL_DONE{n}")
    e("v_mov_b32 v22, 0")
    e("s_mov_b32 s44, 0x40000")
    if soff is None:
        e(f"s_mov_b32 s45, {off}")
        soff = 45
    lab(f"POLL{n}")
    e(f"buffer_load_dword v21, v22, s[48:51], s{soff} offen{SC}")
    e("s_waitcnt vmcnt(0)")
    e("v_readfirstlane_b32 s43, v21")
    e(f"s_cmp_ge_u32 s43, {target}")
    e(f"s_cbranch_scc1 POLL_DONE{n}")
    e("s_sleep 4")
    e("s_sub_u32 s44, s44, 1")
    e("s_cmp_lg_u32 s44, 0")
    e(f"s_cbranch_scc1 POLL{n}")
    lab(f"POLL_DONE{n}")
    e("s_barrier")


def signal(soffs):
    n = npoll[0]
    npoll[0] += 1
    e("s_waitcnt vmcnt(0)")
    e("s_barrier")
    e("s_cmp_lg_u32 s26, 0")
    e(f"s_cbranch_scc1 SIG_DONE{n}")
    e("v_mov_b32 v21, 1")
    e("v_mov_b32 v22, 0")
    e("s_mov_b64 s[46:47], exec")
    e("s_mov_b64 exec, 1")
    for so in soffs:
        e(f"buffer_atomic_add v21, v22, s[48:51], s{so} offen sc1")
    e("s_mov_b64 exec, s[46:47]")
    lab(f"SIG_DONE{n}")


filler = []


def fill(n=1):
    for _ in range(n):
        if filler:
            for ins in filler.pop(0):
                e(ins)


def tile_loads(defer=False):
    for i in range(32):
        g = []
        if i % 4 == 0:
            g.append(f"s_add_u32 s42, s40, {i * 1024}")
        g.append(f"buffer_load_dwordx4 {ar(128 + 4 * i, 4)}, v16, s[8:11], s42 offen offset:{(i % 4) * 1024} nt")
        filler.append(g)
    if not defer:
        fill(32)


def tile_to_lds():
    e("v_add_u32 v12, s41, v16")
    for i in range(32):
        e(f"v_xor_b32 v{13 + (i & 1)}, {fsw(i & 15) * 16}, v12")
        e(f"s_waitcnt vmcnt({31 - i})")
        e(f"ds_write_b128 v{13 + (i & 1)}, {ar(128 + 4 * i, 4)} offset:{i * 1024}")
    e("s_waitcnt lgkmcnt(0)")


def a_tile(first):
    seq = [(j, k) for j in range(4) for k in range(8)]

    def sread(n):
        j, k = seq[n]
        t = 22 + (n & 1)
        e(f"v_add_u32 v{t}, v{24 + j}, v{28 + k}")
        e(f"ds_read_b128 {vr(72 + 4 * (n % 8), 4)}, v{t}")
    for n in range(8):
        sread(n)
    for n in range(32):
        j, k = seq[n]
        e(f"s_waitcnt lgkmcnt({min(7, 31 - n)})")
        f = vr(72 + 4 * (n % 8), 4)
        acc = ar(64 + 16 * j, 16)
        c = "0" if k == 0 else acc
        e(f"v_mfma_f32_32x32x16_bf16 {acc}, {f}, {ar(4 * k, 4)}, {c}")
        if not HIONLY:
            e(f"v_mfma_f32_32x32x16_bf16 {acc}, {f}, {ar(32 + 4 * k, 4)}, {acc}")
        if n + 8 < 32:
            sread(n + 8)
        if n % 2 == 1:
            fill(1)
    e("s_nop 15")
    for i in range(16):
        e(f"v_accvgpr_read_b32 v{56 + i}, a{64 + i}")
    for j in range(1, 4):
        for q in range(4):
            e(f"ds_write_b128 v36, {ar(64 + 16 * j + 4 * q, 4)} offset:{1024 * q}")
        e("s_waitcnt lgkmcnt(0)")
        e("s_barrier")
        for q in range(4):
            e(f"ds_read_b128 {vr(72 + 4 * q, 4)}, v{36 + j} offset:{1024 * q}")
        e("s_waitcnt lgkmcnt(0)")
        if j < 3:
            e("s_barrier")
        fill(1)
        for i in range(16):
            e(f"v_add_f32 v{56 + i}, v{56 + i}, v{72 + i}")
    for i in range(0, 16, 2):
        round_scale(56 + i, 57 + i, 11)
        if i % 4 == 0:
            fill(1)
    e("v_max3_f32 v12, v56, v57, v58")
    for i in range(59, 71, 2):
        e(f"v_max3_f32 v12, v12, v{i}, v{i+1}")
    e("v_max_f32 v12, v12, v71")
    e("v_mov_b32 v13, v12")
    e("s_nop 1")
    e("v_permlane32_swap_b32 v12, v13")
    e("s_nop 1")
    e("v_max_f32 v12, v12, v13")
    e("ds_write_b32 v17, v12")
    e("s_waitcnt lgkmcnt(0)")
    e("s_barrier")
    for w in range(4):
        e(f"ds_read_b32 v{12 + w}, v18 offset:{128 * w}")
    e("s_waitcnt lgkmcnt(0)")
    e("v_max3_f32 v12, v12, v13, v14")
    e("v_max3_f32 v12, v12, v15, v8")
    e("v_sub_f32 v10, v8, v12")
    e("v_exp_f32 v10, v10")
    e("v_mov_b32 v8, v12")
    for i in range(16):
        e(f"v_sub_f32 v{56+i}, v{56+i}, v12")
    for i in range(16):
        e(f"v_exp_f32 v{56+i}, v{56+i}")
    e("v_mul_f32 v9, v9, v10")
    for i in range(16):
        e(f"v_add_f32 v9, v9, v{56+i}")
    for i in range(8):
        e(f"v_cvt_pk_bf16_f32 v{96+i}, v{56+2*i}, v{57+2*i}")
    e(f"ds_write_b128 v19, {vr(96, 4)}")
    e(f"ds_write_b128 v19, {vr(100, 4)} offset:1024")
    e("s_waitcnt lgkmcnt(0)")
    e("s_barrier")
    for tu in range(8):
        e(f"ds_read_b128 {vr(64 + 4 * tu, 4)}, v20 offset:{(tu >> 1) * 2048 + (tu & 1) * 1024}")
    if not first:
        for i in range(64):
            e(f"v_mul_f32 v{192+i}, v{192+i}, v10")

    def trreads(tu):
        t, u = tu >> 1, tu & 1
        bufb = 96 + 16 * (tu & 1)
        for cc in range(4):
            for v in range(2):
                a = 40 + 8 * (t >> 1) + 2 * cc + v
                off = (32 * (t & 1) + 16 * u + 8 * v) * 1024
                e(f"ds_read_b64_tr_b16 {vr(bufb + 4 * cc + 2 * v, 2)}, v{a} offset:{off}")
    trreads(0)
    for tu in range(8):
        if tu + 1 < 8:
            trreads(tu + 1)
            e("s_waitcnt lgkmcnt(8)")
        else:
            e("s_waitcnt lgkmcnt(0)")
        bufb = 96 + 16 * (tu & 1)
        for cc in range(4):
            acc = vr(192 + 16 * cc, 16)
            c = "0" if (first and tu == 0) else acc
            e(f"v_mfma_f32_32x32x16_bf16 {acc}, {vr(bufb + 4 * cc, 4)}, {vr(64 + 4 * tu, 4)}, {c}")
        fill(1)
    fill(99)


def km():
    L = "km_kernel"
    kernel_header(L)
    e("s_cmp_ge_u32 s2, 256")
    e("s_cbranch_scc1 KM_END")
    prof_kernel[0] = 1
    prof_start()
    srd(8, "A_ckv"); srd(12, "B_k"); srd(16, "B_v"); srd(20, "ws"); srd(48, "dbg")
    e("s_and_b32 s3, s2, 7")
    e("s_lshr_b32 s4, s2, 3")
    e("s_lshr_b32 s5, s3, 2")
    e("s_lshl_b32 s24, s4, 1")
    e("s_or_b32 s24, s24, s5")
    e("s_add_u32 s25, s3, s4")
    e("s_and_b32 s25, s25, 3")
    e("v_and_b32 v1, 63, v0")
    e("v_lshrrev_b32 v2, 6, v0")
    e("s_nop 0")
    e("v_readfirstlane_b32 s26, v2")
    e(f"s_mov_b32 s34, {SCALE_BITS:#x}")
    e(f"s_mov_b32 s35, {LOG2E_BITS:#x}")
    e("v_lshlrev_b32 v16, 4, v1")
    e("s_lshl_b32 s27, s26, 13")
    e("v_add_u32 v6, s27, v16")
    e("v_add_u32 v7, 4096, v6")
    e("v_and_b32 v8, 15, v1")
    e("v_lshlrev_b32 v8, 4, v8")
    e("s_lshl_b32 s27, s24, 8")
    e(f"s_add_u32 s27, s27, {QB}")
    e("s_lshl_b32 s30, s24, 21")
    e("s_add_u32 s30, s30, 1572864")
    e("s_waitcnt lgkmcnt(0)")
    srd_fin(8, "A_ckv"); srd_fin(12, "B_k"); srd_fin(16, "B_v"); srd_fin(20, "ws"); srd_fin(48, "dbg")
    e(f"buffer_load_dwordx4 {vr(2, 4)}, v8, s[20:23], s27 offen")
    e("s_cmp_ge_u32 s25, 2")
    e("s_cbranch_scc1 KM_BONLY")
    e("s_lshr_b32 s36, s24, 5")
    e("s_and_b32 s37, s24, 31")
    e("s_lshl_b32 s37, s37, 1")
    e("s_add_u32 s37, s37, s25")
    e("s_lshl_b32 s40, s36, 23")
    e("s_lshl_b32 s27, s37, 17")
    e("s_add_u32 s40, s40, s27")
    e("s_lshl_b32 s41, s26, 15")
    e("s_add_u32 s40, s40, s41")
    e("s_lshl_b32 s27, s36, 15")
    e("s_lshl_b32 s28, s26, 13")
    e("s_add_u32 s27, s27, s28")
    for part in range(1 if HIONLY else 2):
        for s in range(8):
            if s % 4 == 0:
                e(f"s_add_u32 s28, s27, {part * QA_LO + s * 1024}")
            e(f"buffer_load_dwordx4 {ar(32 * part + 4 * s, 4)}, v16, s[20:23], s28 offen offset:{(s % 4) * 1024}")
    tile_loads()
    e("v_and_b32 v56, 31, v1")
    e("v_lshrrev_b32 v57, 5, v1")
    e("v_and_b32 v58, 3, v1")
    e("v_lshlrev_b32 v58, 2, v58")
    e("v_bfe_u32 v59, v1, 2, 2")
    e("v_or_b32 v58, v58, v59")
    e("v_xor_b32 v58, v58, v57")
    e("v_lshlrev_b32 v58, 4, v58")
    for k in range(8):
        e(f"v_xor_b32 v{28 + k}, {32 * k}, v58")
    e("v_lshlrev_b32 v59, 10, v56")
    e("s_lshl_b32 s27, s26, 8")
    e("v_add_u32 v59, s27, v59")
    for j in range(4):
        e(f"s_add_u32 s27, s26, {j}")
        e("s_and_b32 s27, s27, 3")
        e("s_lshl_b32 s27, s27, 15")
        e(f"v_add_u32 v{24 + j}, s27, v59")
        e(f"s_sub_u32 s27, s26, {j}")
        e("s_and_b32 s27, s27, 3")
        e("s_lshl_b32 s27, s27, 12")
        e(f"s_add_u32 s27, s27, {RS}")
        e(f"v_add_u32 v{36 + j}, s27, v16")
    e("v_lshrrev_b32 v60, 4, v1")
    e("v_lshrrev_b32 v61, 5, v1")
    e("v_bfe_u32 v62, v1, 2, 2")
    e("v_and_b32 v63, 3, v1")
    e("v_and_b32 v64, 1, v60")
    e("v_lshlrev_b32 v64, 1, v64")
    e("v_lshrrev_b32 v65, 1, v63")
    e("v_add_u32 v64, v64, v65")
    e("v_lshl_or_b32 v65, v62, 2, v61")
    e("v_xor_b32 v64, v64, v65")
    e("v_lshlrev_b32 v64, 4, v64")
    e("v_and_b32 v65, 1, v63")
    e("v_lshl_add_u32 v64, v65, 3, v64")
    e("v_lshl_add_u32 v65, v61, 2, v62")
    e("v_lshl_add_u32 v64, v65, 10, v64")
    e("s_lshl_b32 s27, s26, 8")
    e("v_add_u32 v64, s27, v64")
    for cc in range(4):
        for v in range(2):
            e(f"v_xor_b32 v{40 + 2 * cc + v}, {64 * cc + 32 * v}, v64")
            e(f"v_add_u32 v{48 + 2 * cc + v}, 0x10000, v{40 + 2 * cc + v}")
    e("v_lshlrev_b32 v18, 2, v56")
    e(f"v_add_u32 v18, {MX}, v18")
    e("s_lshl_b32 s27, s26, 7")
    e("v_add_u32 v17, s27, v18")
    e(f"v_add_u32 v20, {PX}, v16")
    e("s_lshl_b32 s27, s26, 11")
    e("v_add_u32 v19, s27, v20")
    e("v_mov_b32 v8, 0xff800000")
    e("v_mov_b32 v9, 0")
    tile_to_lds()
    e("s_lshl_b32 s27, s25, 15")
    e("s_add_u32 s31, s30, s27")
    e("s_add_u32 s31, s31, 262144")
    for (base, srdn) in ((128, 12), (160, 16)):
        for i in range(8):
            va = 6 if i < 4 else 7
            filler.append([f"buffer_load_dwordx4 {vr(base + 4 * i, 4)}, v{va}, s[{srdn}:{srdn+3}], s31 offen offset:{(i % 4) * 1024} nt"])
            filler.append([])
    e("s_barrier")
    prof_mark(0)
    a_tile(True)
    prof_mark(1)
    e("v_mov_b32 v13, v9")
    e("s_nop 1")
    e("v_permlane32_swap_b32 v9, v13")
    e("s_nop 1")
    e("v_add_f32 v9, v9, v13")
    e(f"ds_write_b32 v17, v9 offset:{LX - MX}")
    e("s_nop 7")
    e("s_barrier")
    e("v_and_b32 v11, 31, v1")
    e("v_lshrrev_b32 v12, 5, v1")
    e("s_movk_i32 s27, 1040")
    e("v_mul_lo_u32 v14, v11, s27")
    e("v_lshl_add_u32 v14, v12, 3, v14")
    e("s_lshl_b32 s28, s26, 8")
    e("v_add_u32 v14, s28, v14")
    for cc in range(4):
        for q in range(4):
            r0 = 192 + 16 * cc + 4 * q
            e(f"v_cvt_pk_bf16_f32 v{r0}, v{r0}, v{r0 + 1}")
            e(f"v_cvt_pk_bf16_f32 v{r0 + 1}, v{r0 + 2}, v{r0 + 3}")
            e(f"ds_write_b64 v14, {vr(r0, 2)} offset:{cc * 64 + q * 16}")
    e("s_waitcnt lgkmcnt(0)")
    e("s_barrier")
    e("s_mul_i32 s28, s26, 8320")
    e("v_add_u32 v14, s28, v16")
    for i in range(8):
        e(f"ds_read_b128 {vr(192 + 4 * i, 4)}, v14 offset:{1040 * i}")
    e("s_lshl_b32 s27, s36, 6")
    e("s_add_u32 s27, s27, s37")
    e("s_lshl_b32 s27, s27, 15")
    e("s_lshl_b32 s28, s26, 13")
    e("s_add_u32 s27, s27, s28")
    e(f"s_add_u32 s27, s27, {APART}")
    for i in range(8):
        if i == 4:
            e("s_add_u32 s27, s27, 4096")
        e(f"s_waitcnt lgkmcnt({7 - i})")
        e(f"buffer_store_dwordx4 {vr(192 + 4 * i, 4)}, v16, s[20:23], s27 offen offset:{(i % 4) * 1024}")
    e("s_cmp_lg_u32 s26, 0")
    e("s_cbranch_scc1 KM_ASTAT_DONE")
    for w in range(4):
        e(f"ds_read_b32 v{12 + w}, v18 offset:{LX - MX + 128 * w}")
    e("s_waitcnt lgkmcnt(0)")
    e("v_add_f32 v12, v12, v13")
    e("v_add_f32 v14, v14, v15")
    e("v_add_f32 v9, v12, v14")
    e("v_lshlrev_b32 v14, 9, v11")
    e("s_lshl_b32 s27, s36, 14")
    e("s_lshl_b32 s28, s37, 3")
    e("s_add_u32 s27, s27, s28")
    e(f"s_add_u32 s27, s27, {ASTAT}")
    e(f"buffer_store_dwordx2 v[8:9], v14, s[20:23], s27 offen")
    lab("KM_ASTAT_DONE")
    prof_mark(2)
    e("v_mov_b32 v8, 0xff800000")
    for j in range(9, 18):
        e(f"v_mov_b32 v{j}, 0")
    e("s_waitcnt vmcnt(0)")
    bscore(128)
    bpv(160)
    e("s_branch KM_BFIN")
    lab("KM_BONLY")
    e("s_sub_u32 s27, s25, 2")
    e("s_mul_i32 s27, s27, 131072")
    e("s_add_u32 s31, s30, s27")
    e("s_sub_u32 s31, s31, 32768")
    e("v_mov_b32 v8, 0xff800000")
    for j in range(9, 18):
        e(f"v_mov_b32 v{j}, 0")
    bsched(4, lambda c: 3)
    lab("KM_BFIN")
    prof_mark(3)
    e("s_add_u32 s25, s25, 3")
    bcombine(BO, BS, "KM_BDONE")
    lab("KM_BDONE")
    lab("KM_END")
    e("s_endpgm")
    kernel_desc(L, 512, 256)
    return f"; @launch kernel={L} grid=(256,1,1) block=(256,1,1) lds={KM_LDS}"


OPA = 0xA00000


def k3():
    L = "k3_kernel"
    kernel_header(L)
    e("s_cmp_ge_u32 s2, 512")
    e("s_cbranch_scc1 K3_END")
    srd(20, "ws")
    e("v_and_b32 v1, 63, v0")
    e("v_lshrrev_b32 v2, 6, v0")
    e("s_nop 0")
    e("v_readfirstlane_b32 s26, v2")
    e("s_bfe_u32 s52, s2, 0x20006")
    e("s_and_b32 s53, s2, 63")
    e("s_and_b32 s54, s2, 31")
    e("s_bfe_u32 s55, s2, 0x10005")
    e("s_lshr_b32 s56, s2, 8")
    e("s_cmp_lg_u32 s56, 0")
    e("s_cbranch_scc1 K3_LB")
    srd(16, "A_wo"); srd(12, "A_wuv")
    e("s_branch K3_LD")
    lab("K3_LB")
    srd(16, "B_wo")
    lab("K3_LD")
    e("v_lshrrev_b32 v44, 2, v0")
    e("v_and_b32 v45, 3, v0")
    e("v_lshlrev_b32 v46, 16, v44")
    e("v_lshl_add_u32 v46, v45, 4, v46")
    e("v_lshlrev_b32 v16, 4, v1")
    e("s_waitcnt lgkmcnt(0)")
    srd_fin(16, "A_wo"); srd_fin(20, "ws")
    e("s_lshl_b32 s28, s54, 17")
    e("s_lshl_b32 s29, s52, 15")
    e("s_add_u32 s28, s28, s29")
    e("s_lshl_b32 s29, s26, 13")
    e("s_add_u32 s28, s28, s29")
    for i in range(8):
        if i == 4:
            e("s_add_u32 s28, s28, 4096")
        e(f"buffer_load_dwordx4 {vr(224 + 4 * i, 4)}, v16, s[16:19], s28 offen offset:{(i % 4) * 1024} nt")
    e("s_cmp_lg_u32 s56, 0")
    e("s_cbranch_scc1 K3_B")
    srd_fin(12, "A_wuv")
    e("s_lshl_b32 s28, s54, 8")
    e("s_lshl_b32 s29, s52, 6")
    e("s_add_u32 s28, s28, s29")
    for i in range(8):
        e(f"buffer_load_dwordx4 {vr(192 + 4 * i, 4)}, v46, s[12:15], s28 offen nt")
        e("s_add_u32 s28, s28, 8192")
    e("v_lshlrev_b32 v4, 3, v0")
    e("v_lshlrev_b32 v5, 3, v1")
    e("s_lshl_b32 s28, s53, 9")
    e(f"s_add_u32 s28, s28, {ASTAT}")
    e("buffer_load_dwordx2 v[8:9], v5, s[20:23], s28 offen")
    e("v_and_b32 v12, 127, v0")
    e("v_lshrrev_b32 v13, 7, v0")
    e("v_lshlrev_b32 v12, 3, v12")
    e("v_lshl_add_u32 v12, v13, 20, v12")
    e("s_lshl_b32 s28, s55, 21")
    e("s_lshl_b32 s29, s54, 10")
    e("s_add_u32 s28, s28, s29")
    e(f"s_add_u32 s28, s28, {APART}")
    for s in range(32):
        e(f"buffer_load_dwordx2 {vr(64 + 2 * s, 2)}, v12, s[20:23], s28 offen")
        e("s_add_u32 s28, s28, 0x8000")
    e("s_waitcnt vmcnt(32)")
    e("v_mov_b32 v10, v8")
    for sh in (8, 4, 2, 1):
        e("s_nop 1")
        e(f"v_max_f32_dpp v10, v10, v10 row_ror:{sh} row_mask:0xf bank_mask:0xf")
    e("v_mov_b32 v11, v10")
    e("s_nop 1")
    e("v_permlane16_swap_b32 v10, v11")
    e("s_nop 1")
    e("v_max_f32 v10, v10, v11")
    e("v_mov_b32 v11, v10")
    e("s_nop 1")
    e("v_permlane32_swap_b32 v10, v11")
    e("s_nop 1")
    e("v_max_f32 v10, v10, v11")
    e("v_sub_f32 v8, v8, v10")
    e("v_exp_f32 v8, v8")
    e("s_nop 0")
    e("v_mul_f32 v10, v8, v9")
    for sh in (8, 4, 2, 1):
        e("s_nop 1")
        e(f"v_add_f32_dpp v10, v10, v10 row_ror:{sh} row_mask:0xf bank_mask:0xf")
    e("v_mov_b32 v11, v10")
    e("s_nop 1")
    e("v_permlane16_swap_b32 v10, v11")
    e("s_nop 1")
    e("v_add_f32 v10, v10, v11")
    e("v_mov_b32 v11, v10")
    e("s_nop 1")
    e("v_permlane32_swap_b32 v10, v11")
    e("s_nop 1")
    e("v_add_f32 v10, v10, v11")
    e("v_rcp_f32 v6, v10")
    for k in range(4):
        e(f"v_mov_b32 v{40 + k}, 0")
    e("s_lshr_b32 s30, s26, 1")
    e("s_lshl_b32 s30, s30, 5")
    for s in range(32):
        e(f"s_add_u32 s31, s30, {s}")
        e(f"v_readlane_b32 s{60 + (s & 3)}, v8, s31")
        e(f"s_waitcnt vmcnt({31 - s})")
        unpack2(48, 49, 64 + 2 * s)
        unpack2(50, 51, 65 + 2 * s)
        for k in range(4):
            e(f"v_fmac_f32 v{40 + k}, s{60 + (s & 3)}, v{48 + k}")
    for k in range(4):
        e(f"v_mul_f32 v{40 + k}, v{40 + k}, v6")
    e("v_lshlrev_b32 v4, 4, v0")
    e(f"ds_write_b128 v4, {vr(40, 4)} offset:10240")
    e("s_waitcnt lgkmcnt(0)")
    e("s_barrier")
    e("v_lshlrev_b32 v5, 5, v44")
    e(f"ds_read_b128 {vr(8, 4)}, v5 offset:10240")
    e(f"ds_read_b128 {vr(12, 4)}, v5 offset:10256")
    e(f"ds_read_b128 {vr(16, 4)}, v5 offset:12288")
    e(f"ds_read_b128 {vr(20, 4)}, v5 offset:12304")
    for k in range(8):
        e(f"v_mov_b32 v{24 + k}, 0")
    e("s_waitcnt lgkmcnt(0)")
    for k in range(8):
        e(f"v_add_f32 v{8 + k}, v{8 + k}, v{16 + k}")
    for i in range(8):
        for k in range(4):
            unpack2(32 + 2 * k, 33 + 2 * k, 192 + 4 * i + k)
        for k in range(8):
            e(f"v_fmac_f32 v{24 + k}, v{32 + k}, v{8 + i}")
    e("v_lshlrev_b32 v5, 7, v44")
    e("v_lshl_add_u32 v5, v45, 5, v5")
    e(f"ds_write_b128 v5, {vr(24, 4)} offset:2048")
    e(f"ds_write_b128 v5, {vr(28, 4)} offset:2064")
    e("s_waitcnt lgkmcnt(0)")
    e("s_barrier")
    e("v_and_b32 v5, 31, v1")
    e("v_lshrrev_b32 v6, 5, v1")
    e("v_lshlrev_b32 v5, 2, v5")
    e("v_lshl_add_u32 v5, v6, 12, v5")
    for g in range(32):
        e(f"ds_read_b32 v{64 + g}, v5 offset:{2048 + 128 * g}")
    e("s_waitcnt lgkmcnt(0)")
    for n in (16, 8, 4, 2, 1):
        for g in range(n):
            e(f"v_add_f32 v{64 + g}, v{64 + g}, v{64 + n + g}")
    e("v_mov_b32 v65, v64")
    e("s_nop 1")
    e("v_permlane32_swap_b32 v64, v65")
    e("s_nop 1")
    e("v_add_f32 v64, v64, v65")
    e("v_cvt_pk_bf16_f32 v64, v64, v64")
    e("v_lshlrev_b32 v64, 16, v64")
    e("s_branch K3_OUT")
    lab("K3_B")
    e("v_mov_b32 v5, 0")
    e("s_lshl_b32 s28, s53, 6")
    e(f"s_add_u32 s28, s28, {BSTAT}")
    for k in range(3):
        e(f"buffer_load_dwordx4 {vr(8 + 4 * k, 4)}, v5, s[20:23], s28 offen offset:{16 * k}")
    e("buffer_load_dwordx2 v[20:21], v5, s[20:23], s28 offen offset:48")
    e("v_and_b32 v5, 31, v1")
    e("v_lshlrev_b32 v5, 2, v5")
    e("s_lshl_b32 s28, s53, 12")
    e("s_lshl_b32 s29, s52, 7")
    e("s_add_u32 s28, s28, s29")
    e(f"s_add_u32 s28, s28, {BPART}")
    for r in range(7):
        e(f"buffer_load_dword v{64 + r}, v5, s[20:23], s28 offen offset:{512 * r}")
    e("s_waitcnt vmcnt(0)")
    e("v_max3_f32 v56, v8, v10, v12")
    e("v_max3_f32 v56, v56, v14, v16")
    e("v_max3_f32 v56, v56, v18, v20")
    for r in range(7):
        e(f"v_sub_f32 v{8 + 2 * r}, v{8 + 2 * r}, v56")
    for r in range(7):
        e(f"v_exp_f32 v{8 + 2 * r}, v{8 + 2 * r}")
    e("s_nop 0")
    e("v_mul_f32 v57, v8, v9")
    e("v_mul_f32 v58, v8, v64")
    for r in range(1, 7):
        e(f"v_fmac_f32 v57, v{8 + 2 * r}, v{9 + 2 * r}")
        e(f"v_fmac_f32 v58, v{8 + 2 * r}, v{64 + r}")
    e("v_rcp_f32 v57, v57")
    e("s_nop 0")
    e("v_mul_f32 v58, v58, v57")
    e("v_cvt_pk_bf16_f32 v58, v58, v58")
    e("v_lshlrev_b32 v64, 16, v58")
    lab("K3_OUT")
    e("s_lshl_b32 s30, s26, 3")
    for k in range(8):
        e(f"v_mov_b32 v{24 + k}, 0")
    e("s_waitcnt vmcnt(0)")
    for i in range(8):
        e(f"s_add_u32 s31, s30, {i}")
        e(f"v_readlane_b32 s{60 + i}, v64, s31")
    for i in range(8):
        for k in range(4):
            unpack2(32 + 2 * k, 33 + 2 * k, 224 + 4 * i + k)
        for k in range(8):
            e(f"v_fmac_f32 v{24 + k}, s{60 + i}, v{32 + k}")
    e("s_barrier")
    e("v_lshlrev_b32 v5, 5, v1")
    e("s_lshl_b32 s30, s26, 11")
    e("v_add_u32 v5, s30, v5")
    e(f"ds_write_b128 v5, {vr(24, 4)}")
    e(f"ds_write_b128 v5, {vr(28, 4)} offset:16")
    e("s_waitcnt lgkmcnt(0)")
    e("s_barrier")
    e("v_lshlrev_b32 v5, 3, v0")
    for w in range(4):
        e(f"ds_read_b64 {vr(8 + 2 * w, 2)}, v5 offset:{2048 * w}")
    e("s_waitcnt lgkmcnt(0)")
    e("v_add_f32 v8, v8, v10")
    e("v_add_f32 v9, v9, v11")
    e("v_add_f32 v12, v12, v14")
    e("v_add_f32 v13, v13, v15")
    e("v_add_f32 v8, v8, v12")
    e("v_add_f32 v9, v9, v13")
    e("s_lshl_b32 s28, s56, 19")
    e("s_lshl_b32 s29, s55, 18")
    e("s_add_u32 s28, s28, s29")
    e("s_lshl_b32 s29, s54, 13")
    e("s_add_u32 s28, s28, s29")
    e("s_lshl_b32 s29, s52, 11")
    e("s_add_u32 s28, s28, s29")
    e(f"s_add_u32 s28, s28, {OPA}")
    e("buffer_store_dwordx2 v[8:9], v5, s[20:23], s28 offen")
    lab("K3_END")
    e("s_endpgm")
    kernel_desc(L, 256, 256)
    return f"; @launch kernel={L} grid=(512,1,1) block=(256,1,1) lds=14336"


def k4():
    L = "k4_kernel"
    kernel_header(L)
    e("s_cmp_ge_u32 s2, 32")
    e("s_cbranch_scc1 K4_END")
    srd(20, "ws"); srd(8, "out")
    e("s_lshr_b32 s24, s2, 3")
    e("s_and_b32 s25, s2, 7")
    e("v_and_b32 v1, 15, v0")
    e("v_lshrrev_b32 v2, 4, v0")
    e("v_lshlrev_b32 v3, 14, v2")
    e("v_lshl_add_u32 v3, v1, 4, v3")
    e("s_lshl_b32 s26, s24, 18")
    e("s_lshl_b32 s27, s25, 8")
    e("s_add_u32 s26, s26, s27")
    e(f"s_add_u32 s26, s26, {OPA}")
    e("s_waitcnt lgkmcnt(0)")
    srd_fin(20, "ws"); srd_fin(8, "out")
    for i in range(8):
        if i % 2 == 0 and i:
            e("s_add_u32 s26, s26, 4096")
        e(f"buffer_load_dwordx4 {vr(8 + 4 * i, 4)}, v3, s[20:23], s26 offen offset:{(i % 2) * 2048}")
    e("s_waitcnt vmcnt(0)")
    for n in (4, 2, 1):
        for i in range(n):
            for k in range(4):
                e(f"v_add_f32 v{8 + 4 * i + k}, v{8 + 4 * i + k}, v{8 + 4 * (i + n) + k}")
    e("v_lshlrev_b32 v4, 4, v0")
    e(f"ds_write_b128 v4, {vr(8, 4)}")
    e("s_waitcnt lgkmcnt(0)")
    e("s_barrier")
    e("v_cmp_gt_u32 vcc, 64, v0")
    e("s_and_saveexec_b64 s[28:29], vcc")
    e("s_cbranch_execz K4_END")
    e("v_lshlrev_b32 v4, 2, v0")
    for g in range(16):
        e(f"ds_read_b32 v{8 + g}, v4 offset:{256 * g}")
    e("s_waitcnt lgkmcnt(0)")
    for n in (8, 4, 2, 1):
        for g in range(n):
            e(f"v_add_f32 v{8 + g}, v{8 + g}, v{8 + n + g}")
    e("v_cvt_pk_bf16_f32 v8, v8, v8")
    e("s_and_b32 s26, s24, 1")
    e("s_lshl_b32 s26, s26, 11")
    e("s_lshr_b32 s27, s24, 1")
    e("s_lshl_b32 s27, s27, 10")
    e("s_add_u32 s26, s26, s27")
    e("s_lshl_b32 s27, s25, 7")
    e("s_add_u32 s26, s26, s27")
    e("v_lshlrev_b32 v4, 1, v0")
    e("buffer_store_short v8, v4, s[8:11], s26 offen")
    lab("K4_END")
    e("s_endpgm")
    kernel_desc(L, 48, 48)
    return f"; @launch kernel={L} grid=(32,1,1) block=(256,1,1) lds=4096"


LAUNCHES = []


def main():
    LAUNCHES.append(k1())
    LAUNCHES.append(km())
    LAUNCHES.append(k3())
    LAUNCHES.append(k4())
    head = open(f"cdna_kernels/{NAME}.s.ref").read().split("; Override launch")[0]
    txt = head + "\n".join(LAUNCHES) + "\n"
    txt += '.amdgcn_target "amdgcn-amd-amdhsa--gfx950"\n.text\n'
    txt += "\n".join(out) + "\n"
    txt += '.section .rodata,"a"\n' + "\n".join(descs) + "\n"
    path = sys.argv[1] if len(sys.argv) > 1 else f"cdna_kernels/{NAME}.s"
    open(path, "w").write(txt)


if __name__ == "__main__":
    main()
```

```python
import sys

NAME = "concat_heads__compressed_kv_cla__sliding_block_cached__decode"

KA = dict(A_x=0, A_ckv=8, A_wq=16, A_wuk=24, A_wuv=32, A_wo=40, B_x=48, B_k=56, B_v=64,
          B_wq=72, B_wo=80, out=88, dbg=96, ws=104)
SZ = dict(A_x=2048, A_ckv=16777216, A_wq=4194304, A_wuk=4194304, A_wuv=4194304, A_wo=4194304,
          B_x=2048, B_k=134217728, B_v=134217728, B_wq=4194304, B_wo=4194304, out=4096, dbg=256,
          ws=536870912)

QA_HI = 0x00000
QA_LO = 0x10000
QB = 0x20000
ASTAT = 0x30000
BPART = 0x40000
BSTAT = 0x80000
CTX = 0x70000
OPART = 0x80000
APART = 0x100000

OPA = 0xA00000
SCALE_BITS = 0x3DB504F3
LOG2E_BITS = 0x3FB8AA3B

out = []
import os
DEBUG = bool(os.environ.get('DEBUG'))
PROF = bool(os.environ.get('PROF'))
PST = os.environ.get('PST', '')
HIONLY = bool(os.environ.get('HIONLY'))
PROFBASE = 0xC00000


def prof_start():
    if PROF:
        e("s_memrealtime s[90:91]")


def prof_mark(slot, t=21):
    if PROF:
        e("s_memrealtime s[92:93]")
        e("s_waitcnt lgkmcnt(0)")
        e("s_sub_u32 s92, s92, s90")
        e(f"v_mov_b32 v{t}, s92")
        e("s_lshl_b32 s94, s2, 7")
        e(f"s_add_u32 s94, s94, {PROFBASE + prof_kernel[0] * 0x10000 + slot * 4}")
        e(f"v_lshrrev_b32 v{t+1}, 6, v0")
        e(f"v_lshlrev_b32 v{t+1}, 5, v{t+1}")
        e(f"buffer_store_dword v{t}, v{t+1}, s[20:23], s94 offen")


prof_kernel = [0]


def e(s):
    out.append("    " + s)


def lab(s):
    out.append(s + ":")


def srd(dst, name):
    e(f"s_load_dwordx2 s[{dst}:{dst+1}], s[0:1], {KA[name]}")


def srd_fin(dst, name):
    e(f"s_mov_b32 s{dst+2}, {SZ[name]}")
    e(f"s_mov_b32 s{dst+3}, 0x20000")


def vr(a, n):
    return f"v[{a}:{a+n-1}]"


def ar(a, n):
    return f"a[{a}:{a+n-1}]"


def kernel_header(label):
    out.append(f".globl {label}")
    out.append(".p2align 8")
    out.append(f".type {label},@function")
    lab(label)


descs = []


def kernel_desc(label, vgpr, accum, sgpr=102):
    descs.append(f""".p2align 6
.amdhsa_kernel {label}
  .amdhsa_next_free_vgpr {vgpr}
  .amdhsa_next_free_sgpr {sgpr}
  .amdhsa_accum_offset {accum}
  .amdhsa_group_segment_fixed_size 0
  .amdhsa_kernarg_size 112
  .amdhsa_user_sgpr_count 2
  .amdhsa_user_sgpr_kernarg_segment_ptr 1
  .amdhsa_system_sgpr_workgroup_id_x 1
.end_amdhsa_kernel""")


def unpack2(dlo, dhi, src):
    e(f"v_lshlrev_b32 v{dlo}, 16, v{src}")
    e(f"v_and_b32 v{dhi}, 0xffff0000, v{src}")


def gemv_rows(nrows, wbase, xbase0, xbase1, acc, tmp, xt, vm_after):
    for i in range(nrows):
        e(f"s_waitcnt vmcnt({nrows - 1 - i + vm_after})")
        if i % 2 == 0:
            e(f"v_lshlrev_b32 v{xt}, 16, v{xbase0 + i // 2}")
            e(f"v_lshlrev_b32 v{xt+1}, 16, v{xbase1 + i // 2}")
        else:
            e(f"v_and_b32 v{xt}, 0xffff0000, v{xbase0 + i // 2}")
            e(f"v_and_b32 v{xt+1}, 0xffff0000, v{xbase1 + i // 2}")
        for k in range(4):
            unpack2(tmp + 2 * k, tmp + 2 * k + 1, wbase + 4 * i + k)
        for k in range(8):
            e(f"v_fmac_f32 v{acc + k}, v{tmp + k}, v{xt}")
            e(f"v_fmac_f32 v{acc + 8 + k}, v{tmp + k}, v{xt+1}")


def k1():
    L = "k1_kernel"
    kernel_header(L)
    e("s_cmp_ge_u32 s2, 256")
    e("s_cbranch_scc1 K1_END")
    e("s_cmp_ge_u32 s2, 128")
    e("s_cbranch_scc1 K1_B")
    srd(8, "A_x"); srd(12, "A_wq"); srd(16, "A_wuk"); srd(20, "ws")
    e("s_and_b32 s24, s2, 31")
    e("s_lshr_b32 s25, s2, 5")
    e("v_and_b32 v1, 15, v0")
    e("v_lshrrev_b32 v2, 4, v0")
    e("v_lshlrev_b32 v3, 18, v2")
    e("v_lshl_add_u32 v3, v1, 4, v3")
    e("v_lshlrev_b32 v4, 6, v2")
    e("v_lshlrev_b32 v5, 13, v2")
    e("v_lshl_add_u32 v5, v1, 4, v5")
    e("s_lshl_b32 s26, s24, 8")
    e("s_waitcnt lgkmcnt(0)")
    srd_fin(8, "A_x"); srd_fin(12, "A_wq"); srd_fin(16, "A_wuk"); srd_fin(20, "ws")
    e("v_mov_b32 v248, 0")
    e("v_mov_b32 v249, 0")
    e("v_mov_b32 v250, 0")
    e("v_mov_b32 v251, 0")
    e("v_lshlrev_b32 v252, 4, v0")
    e("s_lshl_b32 s40, s2, 12")
    e(f"s_add_u32 s40, s40, {OPA}")
    e("buffer_store_dwordx4 v[248:251], v252, s[20:23], s40 offen")
    for b in range(2):
        for k in range(4):
            e(f"buffer_load_dwordx4 {vr(8 + 16 * b + 4 * k, 4)}, v4, s[8:11], 0 offen offset:{1024 * b + 16 * k}")
    e("s_mov_b32 s27, s26")
    for i in range(32):
        e(f"buffer_load_dwordx4 {vr(40 + 4 * i, 4)}, v3, s[12:15], s27 offen nt")
        e("s_add_u32 s27, s27, 8192")
    e("s_lshl_b32 s27, s25, 20")
    e("s_add_u32 s27, s27, s26")
    for i in range(8):
        e(f"buffer_load_dwordx4 {vr(168 + 4 * i, 4)}, v5, s[16:19], s27 offen nt")
        e("s_add_u32 s27, s27, 0x20000")
    for k in range(16):
        e(f"v_mov_b32 v{200 + k}, 0")
    gemv_rows(32, 40, 8, 24, 200, 218, 216, 8)
    e("v_lshlrev_b32 v6, 10, v2")
    e("v_lshl_add_u32 v6, v1, 5, v6")
    e(f"ds_write_b128 v6, {vr(200, 4)}")
    e(f"ds_write_b128 v6, {vr(204, 4)} offset:16")
    e(f"ds_write_b128 v6, {vr(208, 4)} offset:512")
    e(f"ds_write_b128 v6, {vr(212, 4)} offset:528")
    e("s_waitcnt lgkmcnt(0)")
    e("s_barrier")
    e("v_lshlrev_b32 v6, 2, v0")
    for g in range(16):
        e(f"ds_read_b32 v{8 + g}, v6 offset:{1024 * g}")
    e("s_waitcnt lgkmcnt(0)")
    for g in range(1, 16):
        e(f"v_add_f32 v8, v8, v{8 + g}")
    e("v_cvt_pk_bf16_f32 v8, v8, v8")
    e("v_lshlrev_b32 v6, 1, v0")
    e("ds_write_b16 v6, v8 offset:16384")
    e("s_waitcnt lgkmcnt(0)")
    e("s_barrier")
    e("v_lshlrev_b32 v6, 4, v1")
    e(f"ds_read_b128 {vr(8, 4)}, v6 offset:16384")
    e(f"ds_read_b128 {vr(12, 4)}, v6 offset:16640")
    e("s_waitcnt vmcnt(0) lgkmcnt(0)")
    for k in range(4):
        for i in range(8):
            for b in range(2):
                d = 24 + 2 * i + b
                c = "0" if k == 0 else f"v{d}"
                e(f"v_dot2_f32_bf16 v{d}, v{168 + 4 * i + k}, v{8 + 4 * b + k}, {c}")
    e("s_nop 3")
    for sh in (8, 4, 2, 1):
        for d in range(24, 40):
            e(f"v_add_f32_dpp v{d}, v{d}, v{d} row_ror:{sh} row_mask:0xf bank_mask:0xf")
        e("s_nop 1")
    e("v_lshlrev_b32 v6, 2, v2")
    for i in range(8):
        for b in range(2):
            e(f"ds_write_b32 v6, v{24 + 2 * i + b} offset:{16896 + 512 * b + 64 * i}")
    e("s_waitcnt lgkmcnt(0)")
    e("s_barrier")
    e("v_cmp_gt_u32 vcc, 32, v0")
    e("s_and_saveexec_b64 s[28:29], vcc")
    e("s_cbranch_execz K1_END")
    e("v_lshlrev_b32 v6, 5, v0")
    e(f"ds_read_b128 {vr(8, 4)}, v6 offset:16896")
    e(f"ds_read_b128 {vr(12, 4)}, v6 offset:16912")
    e("s_waitcnt lgkmcnt(0)")
    for k in range(4):
        a, b_ = 8 + 2 * k, 9 + 2 * k
        e(f"v_cvt_pk_bf16_f32 v{16 + k}, v{a}, v{b_}")
        unpack2(24, 25, 16 + k)
        e(f"v_sub_f32 v24, v{a}, v24")
        e(f"v_sub_f32 v25, v{b_}, v25")
        e(f"v_cvt_pk_bf16_f32 v{20 + k}, v24, v25")
    e("v_lshrrev_b32 v6, 4, v0")
    e("v_and_b32 v7, 15, v0")
    e("v_lshrrev_b32 v24, 1, v7")
    e("v_and_b32 v25, 1, v7")
    e("v_lshlrev_b32 v6, 15, v6")
    e("v_lshl_add_u32 v6, v24, 10, v6")
    e("v_lshl_add_u32 v6, v25, 9, v6")
    e("s_lshl_b32 s27, s25, 13")
    e("s_lshl_b32 s28, s24, 4")
    e("s_add_u32 s27, s27, s28")
    e(f"buffer_store_dwordx4 {vr(16, 4)}, v6, s[20:23], s27 offen")
    e(f"s_add_u32 s27, s27, {QA_LO}")
    e(f"buffer_store_dwordx4 {vr(20, 4)}, v6, s[20:23], s27 offen")
    e("s_branch K1_END")
    lab("K1_B")
    srd(8, "B_x"); srd(44, "B_wq"); srd(20, "ws"); srd(12, "B_k"); srd(16, "B_v")
    e("s_sub_u32 s3, s2, 128")
    e("s_and_b32 s4, s3, 31")
    e("s_bfe_u32 s5, s3, 0x10005")
    e("s_lshr_b32 s25, s3, 6")
    e("s_lshl_b32 s24, s5, 5")
    e("s_add_u32 s24, s24, s4")
    e("v_and_b32 v1, 63, v0")
    e("v_lshrrev_b32 v2, 6, v0")
    e("s_nop 0")
    e("v_readfirstlane_b32 s26, v2")
    e(f"s_mov_b32 s34, {SCALE_BITS:#x}")
    e(f"s_mov_b32 s35, {LOG2E_BITS:#x}")
    e("v_and_b32 v42, 15, v0")
    e("v_lshrrev_b32 v43, 4, v0")
    e("v_lshlrev_b32 v3, 18, v43")
    e("v_lshl_add_u32 v3, v42, 4, v3")
    e("v_lshlrev_b32 v4, 6, v43")
    e("v_lshlrev_b32 v16, 4, v1")
    e("s_lshl_b32 s27, s26, 13")
    e("v_add_u32 v6, s27, v16")
    e("v_add_u32 v7, 4096, v6")
    e("s_lshl_b32 s30, s24, 21")
    e("s_lshl_b32 s27, s25, 16")
    e("s_add_u32 s30, s30, s27")
    e("s_add_u32 s31, s30, 1966080")
    e("s_lshl_b32 s36, s4, 8")
    e("s_lshl_b32 s37, s5, 10")
    e("s_waitcnt lgkmcnt(0)")
    srd_fin(8, "B_x"); srd_fin(44, "B_wq"); srd_fin(20, "ws"); srd_fin(12, "B_k"); srd_fin(16, "B_v")
    e("v_mov_b32 v248, 0")
    e("v_mov_b32 v249, 0")
    e("v_mov_b32 v250, 0")
    e("v_mov_b32 v251, 0")
    e("v_lshlrev_b32 v252, 4, v0")
    e("s_lshl_b32 s40, s2, 12")
    e(f"s_add_u32 s40, s40, {OPA}")
    e("buffer_store_dwordx4 v[248:251], v252, s[20:23], s40 offen")
    for k in range(4):
        e(f"buffer_load_dwordx4 {vr(44 + 4 * k, 4)}, v4, s[8:11], s37 offen offset:{16 * k}")
    e("s_mov_b32 s27, s36")
    for i in range(32):
        e(f"buffer_load_dwordx4 {vr(64 + 4 * i, 4)}, v3, s[44:47], s27 offen nt")
        e("s_add_u32 s27, s27, 8192")
    bloads(192, 224, 31)
    for k in range(8):
        e(f"v_mov_b32 v{20 + k}, 0")
    for i in range(32):
        e(f"s_waitcnt vmcnt({31 - i + 16})")
        if i % 2 == 0:
            e(f"v_lshlrev_b32 v18, 16, v{44 + i // 2}")
        else:
            e(f"v_and_b32 v18, 0xffff0000, v{44 + i // 2}")
        for k in range(4):
            unpack2(28 + 2 * k, 29 + 2 * k, 64 + 4 * i + k)
        for k in range(8):
            e(f"v_fmac_f32 v{20 + k}, v{28 + k}, v18")
    e("s_add_u32 s31, s31, 32768")
    bloads(64, 96, 31)
    e("v_lshlrev_b32 v18, 9, v43")
    e("v_lshl_add_u32 v18, v42, 5, v18")
    e(f"ds_write_b128 v18, {vr(20, 4)}")
    e(f"ds_write_b128 v18, {vr(24, 4)} offset:16")
    e("s_waitcnt lgkmcnt(0)")
    e("s_barrier")
    e("v_and_b32 v18, 127, v0")
    e("v_lshlrev_b32 v19, 2, v18")
    for g in range(16):
        e(f"ds_read_b32 v{20 + g}, v19 offset:{512 * g}")
    e("s_waitcnt lgkmcnt(0)")
    for n in (8, 4, 2, 1):
        for g in range(n):
            e(f"v_add_f32 v{20 + g}, v{20 + g}, v{20 + n + g}")
    e("v_cvt_pk_bf16_f32 v20, v20, v20")
    e("v_lshlrev_b32 v19, 1, v18")
    e("ds_write_b16 v19, v20 offset:8192")
    e("s_cmp_lg_u32 s25, 0")
    e("s_cbranch_scc1 K1_NOQB")
    e("s_lshl_b32 s27, s24, 8")
    e(f"s_add_u32 s27, s27, {QB}")
    e("buffer_store_short v20, v19, s[20:23], s27 offen")
    lab("K1_NOQB")
    e("s_waitcnt lgkmcnt(0)")
    e("s_barrier")
    e("v_and_b32 v18, 15, v1")
    e("v_lshlrev_b32 v18, 4, v18")
    e(f"ds_read_b128 {vr(2, 4)}, v18 offset:8192")
    e("v_mov_b32 v8, 0xff800000")
    for j in range(9, 18):
        e(f"v_mov_b32 v{j}, 0")
    e("s_waitcnt vmcnt(16) lgkmcnt(0)")
    bscore(192)
    bpv(224)
    e("s_waitcnt vmcnt(0)")
    bscore(64)
    bpv(96)
    bcombine(8704, 8704 + 8192, "K1_END")
    lab("K1_END")
    e("s_endpgm")
    kernel_desc(L, 256, 256)
    return f"; @launch kernel={L} grid=(256,1,1) block=(256,1,1) lds=18432"


MX = 131072
LX = 131584
PX = 132096
BO = 140288
RS = PX
BS = BO + 8192
KM_LDS = BS + 128
C3 = 132
C4 = 136
C5 = 168
C6 = 200
SC = " sc1"


def fsw(r):
    return ((r & 3) << 2) | ((r >> 2) & 3)


def bloads(K, V, soff):
    for (base, srdn) in ((K, 12), (V, 16)):
        for i in range(8):
            va = 6 if i < 4 else 7
            e(f"buffer_load_dwordx4 {vr(base + 4 * i, 4)}, v{va}, s[{srdn}:{srdn+3}], s{soff} offen offset:{(i % 4) * 1024} nt")


def round_scale(a, b, t):
    e(f"v_cvt_pk_bf16_f32 v{t}, v{a}, v{b}")
    unpack2(a, b, t)
    e(f"v_mul_f32 v{a}, s34, v{a}")
    e(f"v_mul_f32 v{b}, s34, v{b}")
    e(f"v_cvt_pk_bf16_f32 v{t}, v{a}, v{b}")
    unpack2(a, b, t)
    e(f"v_mul_f32 v{a}, s35, v{a}")
    e(f"v_mul_f32 v{b}, s35, v{b}")


def bscore(K):
    for k in range(4):
        for i in range(8):
            c = "0" if k == 0 else f"v{18+i}"
            e(f"v_dot2_f32_bf16 v{18+i}, v{K + 4*i + k}, v{2+k}, {c}")
    for sh in (8, 4, 2, 1):
        for i in range(8):
            e(f"v_add_f32_dpp v{18+i}, v{18+i}, v{18+i} row_ror:{sh} row_mask:0xf bank_mask:0xf")
    for i in range(0, 8, 2):
        round_scale(18 + i, 19 + i, 26)
    e("v_max3_f32 v26, v18, v19, v20")
    e("v_max3_f32 v26, v26, v21, v22")
    e("v_max3_f32 v26, v26, v23, v24")
    e("v_max3_f32 v26, v26, v25, v8")
    e("v_sub_f32 v27, v8, v26")
    e("v_exp_f32 v27, v27")
    e("v_mov_b32 v8, v26")
    for i in range(8):
        e(f"v_sub_f32 v{18+i}, v{18+i}, v26")
    for i in range(8):
        e(f"v_exp_f32 v{18+i}, v{18+i}")
    e("v_mul_f32 v9, v9, v27")
    for j in range(8):
        e(f"v_mul_f32 v{10+j}, v{10+j}, v27")
    for i in range(8):
        e(f"v_add_f32 v9, v9, v{18+i}")


def bpv(V):
    for i in range(8):
        for k in range(4):
            unpack2(34 + 2 * k, 35 + 2 * k, V + 4 * i + k)
        for j in range(8):
            e(f"v_fmac_f32 v{10+j}, v{34+j}, v{18+i}")


def bload1(base, srdn, soff):
    for i in range(8):
        va = 6 if i < 4 else 7
        e(f"buffer_load_dwordx4 {vr(base + 4 * i, 4)}, v{va}, s[{srdn}:{srdn+3}], s{soff} offen offset:{(i % 4) * 1024} nt")


def bsched(nunits, ahead):
    bufs = [(128, 160), (192, 224)]
    n = 2 * nunits
    issued = 0
    for c in range(n):
        while issued < n and issued <= c + min(ahead(c), 3):
            u, isv = issued >> 1, issued & 1
            if not isv:
                e("s_add_u32 s31, s31, 32768")
                e("s_mov_b32 s33, s31") if False else None
            e(f"s_mov_b32 s{60 + (u & 1)}, s31") if not isv else None
            bload1(bufs[u & 1][isv], 16 if isv else 12, 60 + (u & 1))
            issued += 1
        e(f"s_waitcnt vmcnt({8 * (issued - 1 - c)})")
        u, isv = c >> 1, c & 1
        if isv:
            bpv(bufs[u & 1][1])
        else:
            if u < 3:
                prof_mark(u)
            bscore(bufs[u & 1][0])


def bcombine(BO, BS, done):
    e("v_lshrrev_b32 v18, 4, v1")
    e("s_lshl_b32 s27, s26, 2")
    e("v_add_u32 v18, s27, v18")
    e("v_and_b32 v19, 15, v1")
    e("v_lshlrev_b32 v20, 9, v18")
    e("v_lshl_add_u32 v20, v19, 5, v20")
    e(f"v_add_u32 v20, {BO}, v20")
    e(f"ds_write_b128 v20, {vr(10, 4)}")
    e(f"ds_write_b128 v20, {vr(14, 4)} offset:16")
    e("v_lshlrev_b32 v21, 3, v18")
    e(f"v_add_u32 v21, {BS}, v21")
    e("ds_write_b64 v21, v[8:9]")
    e("s_waitcnt lgkmcnt(0)")
    e("s_barrier")
    e("s_cmp_ge_u32 s26, 2")
    e(f"s_cbranch_scc1 {done}")
    e(f"v_mov_b32 v21, {BS}")
    for s in range(16):
        e(f"ds_read_b64 {vr(64 + 2 * s, 2)}, v21 offset:{8 * s}")
    e("v_lshlrev_b32 v20, 2, v0")
    e(f"v_add_u32 v20, {BO}, v20")
    for s in range(16):
        e(f"ds_read_b32 v{96 + s}, v20 offset:{512 * s}")
    e("s_waitcnt lgkmcnt(0)")
    e("v_max3_f32 v8, v64, v66, v68")
    for s in range(3, 15, 2):
        e(f"v_max3_f32 v8, v8, v{64 + 2 * s}, v{66 + 2 * s}")
    e("v_max_f32 v8, v8, v94")
    for s in range(16):
        e(f"v_sub_f32 v{64 + 2 * s}, v{64 + 2 * s}, v8")
    for s in range(16):
        e(f"v_exp_f32 v{64 + 2 * s}, v{64 + 2 * s}")
    e("s_nop 0")
    e("v_mul_f32 v9, v64, v65")
    e("v_mul_f32 v10, v64, v96")
    for s in range(1, 16):
        e(f"v_fmac_f32 v9, v{64 + 2 * s}, v{65 + 2 * s}")
        e(f"v_fmac_f32 v10, v{64 + 2 * s}, v{96 + s}")
    e("s_lshl_b32 s27, s24, 3")
    e("s_add_u32 s27, s27, s25")
    e("s_lshl_b32 s28, s27, 9")
    e(f"s_add_u32 s28, s28, {BPART}")
    e("v_lshlrev_b32 v20, 2, v0")
    e(f"buffer_store_dword v10, v20, s[20:23], s28 offen")
    e("s_lshl_b32 s28, s27, 3")
    e(f"s_add_u32 s28, s28, {BSTAT}")
    e("v_mov_b32 v20, 0")
    e(f"buffer_store_dwordx2 v[8:9], v20, s[20:23], s28 offen")


def dma_tile():
    for i in range(32):
        if i % 4 == 0:
            e(f"s_add_u32 m0, s41, {i * 1024}")
            e(f"s_add_u32 s42, s40, {i * 1024}")
        e(f"v_xor_b32 v11, {fsw(i & 15) * 16}, v16")
        e(f"buffer_load_dwordx4 v11, s[8:11], s42 offen offset:{(i % 4) * 1024} nt lds")


npoll = [0]


def poll(off, target, soff=None):
    n = npoll[0]
    npoll[0] += 1
    e("s_cmp_lg_u32 s26, 0")
    e(f"s_cbranch_scc1 POLL_DONE{n}")
    e("v_mov_b32 v22, 0")
    e("s_mov_b32 s44, 0x40000")
    if soff is None:
        e(f"s_mov_b32 s45, {off}")
        soff = 45
    lab(f"POLL{n}")
    e(f"buffer_load_dword v21, v22, s[48:51], s{soff} offen{SC}")
    e("s_waitcnt vmcnt(0)")
    e("v_readfirstlane_b32 s43, v21")
    e(f"s_cmp_ge_u32 s43, {target}")
    e(f"s_cbranch_scc1 POLL_DONE{n}")
    e("s_sleep 4")
    e("s_sub_u32 s44, s44, 1")
    e("s_cmp_lg_u32 s44, 0")
    e(f"s_cbranch_scc1 POLL{n}")
    lab(f"POLL_DONE{n}")
    e("s_barrier")


def signal(soffs):
    n = npoll[0]
    npoll[0] += 1
    e("s_waitcnt vmcnt(0)")
    e("s_barrier")
    e("s_cmp_lg_u32 s26, 0")
    e(f"s_cbranch_scc1 SIG_DONE{n}")
    e("v_mov_b32 v21, 1")
    e("v_mov_b32 v22, 0")
    e("s_mov_b64 s[46:47], exec")
    e("s_mov_b64 exec, 1")
    for so in soffs:
        e(f"buffer_atomic_add v21, v22, s[48:51], s{so} offen sc1")
    e("s_mov_b64 exec, s[46:47]")
    lab(f"SIG_DONE{n}")


filler = []


def fill(n=1):
    for _ in range(n):
        if filler:
            for ins in filler.pop(0):
                e(ins)


def tile_loads(defer=False):
    for i in range(32):
        g = []
        if i % 4 == 0:
            g.append(f"s_add_u32 s42, s40, {i * 1024}")
        g.append(f"buffer_load_dwordx4 {ar(128 + 4 * i, 4)}, v16, s[8:11], s42 offen offset:{(i % 4) * 1024} nt")
        filler.append(g)
    if not defer:
        fill(32)


def tile_to_lds():
    e("v_add_u32 v12, s41, v16")
    for i in range(32):
        e(f"v_xor_b32 v{13 + (i & 1)}, {fsw(i & 15) * 16}, v12")
        e(f"s_waitcnt vmcnt({31 - i})")
        e(f"ds_write_b128 v{13 + (i & 1)}, {ar(128 + 4 * i, 4)} offset:{i * 1024}")
    e("s_waitcnt lgkmcnt(0)")


def a_tile(first):
    seq = [(j, k) for j in range(4) for k in range(8)]

    def sread(n):
        j, k = seq[n]
        t = 22 + (n & 1)
        e(f"v_add_u32 v{t}, v{24 + j}, v{28 + k}")
        e(f"ds_read_b128 {vr(72 + 4 * (n % 8), 4)}, v{t}")
    for n in range(8):
        sread(n)
    for n in range(32):
        j, k = seq[n]
        e(f"s_waitcnt lgkmcnt({min(7, 31 - n)})")
        f = vr(72 + 4 * (n % 8), 4)
        acc = ar(64 + 16 * j, 16)
        c = "0" if k == 0 else acc
        e(f"v_mfma_f32_32x32x16_bf16 {acc}, {f}, {ar(4 * k, 4)}, {c}")
        if not HIONLY:
            e(f"v_mfma_f32_32x32x16_bf16 {acc}, {f}, {ar(32 + 4 * k, 4)}, {acc}")
        if n + 8 < 32:
            sread(n + 8)
        if n % 2 == 1:
            fill(1)
    e("s_nop 15")
    for i in range(16):
        e(f"v_accvgpr_read_b32 v{56 + i}, a{64 + i}")
    for j in range(1, 4):
        for q in range(4):
            e(f"ds_write_b128 v36, {ar(64 + 16 * j + 4 * q, 4)} offset:{1024 * q}")
        e("s_waitcnt lgkmcnt(0)")
        e("s_barrier")
        for q in range(4):
            e(f"ds_read_b128 {vr(72 + 4 * q, 4)}, v{36 + j} offset:{1024 * q}")
        e("s_waitcnt lgkmcnt(0)")
        if j < 3:
            e("s_barrier")
        fill(1)
        for i in range(16):
            e(f"v_add_f32 v{56 + i}, v{56 + i}, v{72 + i}")
    for i in range(0, 16, 2):
        round_scale(56 + i, 57 + i, 11)
        if i % 4 == 0:
            fill(1)
    e("v_max3_f32 v12, v56, v57, v58")
    for i in range(59, 71, 2):
        e(f"v_max3_f32 v12, v12, v{i}, v{i+1}")
    e("v_max_f32 v12, v12, v71")
    e("v_mov_b32 v13, v12")
    e("s_nop 1")
    e("v_permlane32_swap_b32 v12, v13")
    e("s_nop 1")
    e("v_max_f32 v12, v12, v13")
    e("ds_write_b32 v17, v12")
    e("s_waitcnt lgkmcnt(0)")
    e("s_barrier")
    for w in range(4):
        e(f"ds_read_b32 v{12 + w}, v18 offset:{128 * w}")
    e("s_waitcnt lgkmcnt(0)")
    e("v_max3_f32 v12, v12, v13, v14")
    e("v_max3_f32 v12, v12, v15, v8")
    e("v_sub_f32 v10, v8, v12")
    e("v_exp_f32 v10, v10")
    e("v_mov_b32 v8, v12")
    for i in range(16):
        e(f"v_sub_f32 v{56+i}, v{56+i}, v12")
    for i in range(16):
        e(f"v_exp_f32 v{56+i}, v{56+i}")
    e("v_mul_f32 v9, v9, v10")
    for i in range(16):
        e(f"v_add_f32 v9, v9, v{56+i}")
    for i in range(8):
        e(f"v_cvt_pk_bf16_f32 v{96+i}, v{56+2*i}, v{57+2*i}")
    e(f"ds_write_b128 v19, {vr(96, 4)}")
    e(f"ds_write_b128 v19, {vr(100, 4)} offset:1024")
    e("s_waitcnt lgkmcnt(0)")
    e("s_barrier")
    for tu in range(8):
        e(f"ds_read_b128 {vr(64 + 4 * tu, 4)}, v20 offset:{(tu >> 1) * 2048 + (tu & 1) * 1024}")
    if not first:
        for i in range(64):
            e(f"v_mul_f32 v{192+i}, v{192+i}, v10")

    def trreads(tu):
        t, u = tu >> 1, tu & 1
        bufb = 96 + 16 * (tu & 1)
        for cc in range(4):
            for v in range(2):
                a = 40 + 8 * (t >> 1) + 2 * cc + v
                off = (32 * (t & 1) + 16 * u + 8 * v) * 1024
                e(f"ds_read_b64_tr_b16 {vr(bufb + 4 * cc + 2 * v, 2)}, v{a} offset:{off}")
    trreads(0)
    for tu in range(8):
        if tu + 1 < 8:
            trreads(tu + 1)
            e("s_waitcnt lgkmcnt(8)")
        else:
            e("s_waitcnt lgkmcnt(0)")
        bufb = 96 + 16 * (tu & 1)
        for cc in range(4):
            acc = vr(192 + 16 * cc, 16)
            c = "0" if (first and tu == 0) else acc
            e(f"v_mfma_f32_32x32x16_bf16 {acc}, {vr(bufb + 4 * cc, 4)}, {vr(64 + 4 * tu, 4)}, {c}")
        fill(1)
    fill(99)


def km():
    L = "km_kernel"
    kernel_header(L)
    e("s_cmp_ge_u32 s2, 256")
    e("s_cbranch_scc1 KM_END")
    prof_kernel[0] = 1
    prof_start()
    srd(8, "A_ckv"); srd(12, "B_k"); srd(16, "B_v"); srd(20, "ws"); srd(48, "dbg")
    e("s_and_b32 s3, s2, 7")
    e("s_lshr_b32 s4, s2, 3")
    e("s_lshr_b32 s5, s3, 2")
    e("s_lshl_b32 s24, s4, 1")
    e("s_or_b32 s24, s24, s5")
    e("s_add_u32 s25, s3, s4")
    e("s_and_b32 s25, s25, 3")
    e("v_and_b32 v1, 63, v0")
    e("v_lshrrev_b32 v2, 6, v0")
    e("s_nop 0")
    e("v_readfirstlane_b32 s26, v2")
    e(f"s_mov_b32 s34, {SCALE_BITS:#x}")
    e(f"s_mov_b32 s35, {LOG2E_BITS:#x}")
    e("v_lshlrev_b32 v16, 4, v1")
    e("s_lshl_b32 s27, s26, 13")
    e("v_add_u32 v6, s27, v16")
    e("v_add_u32 v7, 4096, v6")
    e("v_and_b32 v8, 15, v1")
    e("v_lshlrev_b32 v8, 4, v8")
    e("s_lshl_b32 s27, s24, 8")
    e(f"s_add_u32 s27, s27, {QB}")
    e("s_lshl_b32 s30, s24, 21")
    e("s_add_u32 s30, s30, 1572864")
    e("s_waitcnt lgkmcnt(0)")
    srd_fin(8, "A_ckv"); srd_fin(12, "B_k"); srd_fin(16, "B_v"); srd_fin(20, "ws"); srd_fin(48, "dbg")
    e(f"buffer_load_dwordx4 {vr(2, 4)}, v8, s[20:23], s27 offen")
    e("s_cmp_ge_u32 s25, 2")
    e("s_cbranch_scc1 KM_BONLY")
    e("s_lshr_b32 s36, s24, 5")
    e("s_and_b32 s37, s24, 31")
    e("s_lshl_b32 s37, s37, 1")
    e("s_add_u32 s37, s37, s25")
    e("s_lshl_b32 s40, s36, 23")
    e("s_lshl_b32 s27, s37, 17")
    e("s_add_u32 s40, s40, s27")
    e("s_lshl_b32 s41, s26, 15")
    e("s_add_u32 s40, s40, s41")
    e("s_lshl_b32 s27, s36, 15")
    e("s_lshl_b32 s28, s26, 13")
    e("s_add_u32 s27, s27, s28")
    for part in range(1 if HIONLY else 2):
        for s in range(8):
            if s % 4 == 0:
                e(f"s_add_u32 s28, s27, {part * QA_LO + s * 1024}")
            e(f"buffer_load_dwordx4 {ar(32 * part + 4 * s, 4)}, v16, s[20:23], s28 offen offset:{(s % 4) * 1024}")
    tile_loads()
    e("v_and_b32 v56, 31, v1")
    e("v_lshrrev_b32 v57, 5, v1")
    e("v_and_b32 v58, 3, v1")
    e("v_lshlrev_b32 v58, 2, v58")
    e("v_bfe_u32 v59, v1, 2, 2")
    e("v_or_b32 v58, v58, v59")
    e("v_xor_b32 v58, v58, v57")
    e("v_lshlrev_b32 v58, 4, v58")
    for k in range(8):
        e(f"v_xor_b32 v{28 + k}, {32 * k}, v58")
    e("v_lshlrev_b32 v59, 10, v56")
    e("s_lshl_b32 s27, s26, 8")
    e("v_add_u32 v59, s27, v59")
    for j in range(4):
        e(f"s_add_u32 s27, s26, {j}")
        e("s_and_b32 s27, s27, 3")
        e("s_lshl_b32 s27, s27, 15")
        e(f"v_add_u32 v{24 + j}, s27, v59")
        e(f"s_sub_u32 s27, s26, {j}")
        e("s_and_b32 s27, s27, 3")
        e("s_lshl_b32 s27, s27, 12")
        e(f"s_add_u32 s27, s27, {RS}")
        e(f"v_add_u32 v{36 + j}, s27, v16")
    e("v_lshrrev_b32 v60, 4, v1")
    e("v_lshrrev_b32 v61, 5, v1")
    e("v_bfe_u32 v62, v1, 2, 2")
    e("v_and_b32 v63, 3, v1")
    e("v_and_b32 v64, 1, v60")
    e("v_lshlrev_b32 v64, 1, v64")
    e("v_lshrrev_b32 v65, 1, v63")
    e("v_add_u32 v64, v64, v65")
    e("v_lshl_or_b32 v65, v62, 2, v61")
    e("v_xor_b32 v64, v64, v65")
    e("v_lshlrev_b32 v64, 4, v64")
    e("v_and_b32 v65, 1, v63")
    e("v_lshl_add_u32 v64, v65, 3, v64")
    e("v_lshl_add_u32 v65, v61, 2, v62")
    e("v_lshl_add_u32 v64, v65, 10, v64")
    e("s_lshl_b32 s27, s26, 8")
    e("v_add_u32 v64, s27, v64")
    for cc in range(4):
        for v in range(2):
            e(f"v_xor_b32 v{40 + 2 * cc + v}, {64 * cc + 32 * v}, v64")
            e(f"v_add_u32 v{48 + 2 * cc + v}, 0x10000, v{40 + 2 * cc + v}")
    e("v_lshlrev_b32 v18, 2, v56")
    e(f"v_add_u32 v18, {MX}, v18")
    e("s_lshl_b32 s27, s26, 7")
    e("v_add_u32 v17, s27, v18")
    e(f"v_add_u32 v20, {PX}, v16")
    e("s_lshl_b32 s27, s26, 11")
    e("v_add_u32 v19, s27, v20")
    e("v_mov_b32 v8, 0xff800000")
    e("v_mov_b32 v9, 0")
    tile_to_lds()
    e("s_lshl_b32 s27, s25, 15")
    e("s_add_u32 s31, s30, s27")
    e("s_add_u32 s31, s31, 327680")
    for (base, srdn) in ((128, 12), (160, 16)):
        for i in range(8):
            va = 6 if i < 4 else 7
            filler.append([f"buffer_load_dwordx4 {vr(base + 4 * i, 4)}, v{va}, s[{srdn}:{srdn+3}], s31 offen offset:{(i % 4) * 1024} nt"])
            filler.append([])
    e("s_barrier")
    prof_mark(0)
    a_tile(True)
    prof_mark(1)
    e("v_mov_b32 v13, v9")
    e("s_nop 1")
    e("v_permlane32_swap_b32 v9, v13")
    e("s_nop 1")
    e("v_add_f32 v9, v9, v13")
    e(f"ds_write_b32 v17, v9 offset:{LX - MX}")
    e("s_nop 7")
    e("s_barrier")
    e("v_and_b32 v11, 31, v1")
    e("v_lshrrev_b32 v12, 5, v1")
    e("s_movk_i32 s27, 1040")
    e("v_mul_lo_u32 v14, v11, s27")
    e("v_lshl_add_u32 v14, v12, 3, v14")
    e("s_lshl_b32 s28, s26, 8")
    e("v_add_u32 v14, s28, v14")
    for cc in range(4):
        for q in range(4):
            r0 = 192 + 16 * cc + 4 * q
            e(f"v_cvt_pk_bf16_f32 v{r0}, v{r0}, v{r0 + 1}")
            e(f"v_cvt_pk_bf16_f32 v{r0 + 1}, v{r0 + 2}, v{r0 + 3}")
            e(f"ds_write_b64 v14, {vr(r0, 2)} offset:{cc * 64 + q * 16}")
    e("s_waitcnt lgkmcnt(0)")
    e("s_barrier")
    e("s_mul_i32 s28, s26, 8320")
    e("v_add_u32 v14, s28, v16")
    for i in range(8):
        e(f"ds_read_b128 {vr(192 + 4 * i, 4)}, v14 offset:{1040 * i}")
    e("s_lshl_b32 s27, s36, 6")
    e("s_add_u32 s27, s27, s37")
    e("s_lshl_b32 s27, s27, 15")
    e("s_lshl_b32 s28, s26, 13")
    e("s_add_u32 s27, s27, s28")
    e(f"s_add_u32 s27, s27, {APART}")
    for i in range(8):
        if i == 4:
            e("s_add_u32 s27, s27, 4096")
        e(f"s_waitcnt lgkmcnt({7 - i})")
        e(f"buffer_store_dwordx4 {vr(192 + 4 * i, 4)}, v16, s[20:23], s27 offen offset:{(i % 4) * 1024}")
    e("s_cmp_lg_u32 s26, 0")
    e("s_cbranch_scc1 KM_ASTAT_DONE")
    for w in range(4):
        e(f"ds_read_b32 v{12 + w}, v18 offset:{LX - MX + 128 * w}")
    e("s_waitcnt lgkmcnt(0)")
    e("v_add_f32 v12, v12, v13")
    e("v_add_f32 v14, v14, v15")
    e("v_add_f32 v9, v12, v14")
    e("v_lshlrev_b32 v14, 9, v11")
    e("s_lshl_b32 s27, s36, 14")
    e("s_lshl_b32 s28, s37, 3")
    e("s_add_u32 s27, s27, s28")
    e(f"s_add_u32 s27, s27, {ASTAT}")
    e(f"buffer_store_dwordx2 v[8:9], v14, s[20:23], s27 offen")
    lab("KM_ASTAT_DONE")
    prof_mark(2)
    e("v_mov_b32 v8, 0xff800000")
    for j in range(9, 18):
        e(f"v_mov_b32 v{j}, 0")
    e("s_waitcnt vmcnt(0)")
    bscore(128)
    bpv(160)
    e("s_branch KM_BFIN")
    lab("KM_BONLY")
    e("s_sub_u32 s27, s25, 2")
    e("s_mul_i32 s27, s27, 163840")
    e("s_add_u32 s31, s30, s27")
    e("s_sub_u32 s31, s31, 32768")
    e("v_mov_b32 v8, 0xff800000")
    for j in range(9, 18):
        e(f"v_mov_b32 v{j}, 0")
    bsched(5, lambda c: 3)
    lab("KM_BFIN")
    prof_mark(3)
    e("s_add_u32 s25, s25, 2")
    bcombine(BO, BS, "KM_BDONE")
    lab("KM_BDONE")
    lab("KM_END")
    e("s_endpgm")
    kernel_desc(L, 512, 256)
    return f"; @launch kernel={L} grid=(256,1,1) block=(256,1,1) lds={KM_LDS}"


def k3():
    L = "k3_kernel"
    kernel_header(L)
    e("s_cmp_ge_u32 s2, 544")
    e("s_cbranch_scc1 K3_END")
    e("s_cmp_ge_u32 s2, 512")
    e("s_cbranch_scc1 K3_RED")
    srd(20, "ws")
    e("v_and_b32 v1, 63, v0")
    e("v_lshrrev_b32 v2, 6, v0")
    e("s_nop 0")
    e("v_readfirstlane_b32 s26, v2")
    e("s_bfe_u32 s52, s2, 0x20006")
    e("s_and_b32 s53, s2, 63")
    e("s_and_b32 s54, s2, 31")
    e("s_bfe_u32 s55, s2, 0x10005")
    e("s_lshr_b32 s56, s2, 8")
    e("s_cmp_lg_u32 s56, 0")
    e("s_cbranch_scc1 K3_LB")
    srd(16, "A_wo"); srd(12, "A_wuv")
    e("s_branch K3_LD")
    lab("K3_LB")
    srd(16, "B_wo")
    lab("K3_LD")
    e("v_lshrrev_b32 v44, 2, v0")
    e("v_and_b32 v45, 3, v0")
    e("v_lshlrev_b32 v46, 16, v44")
    e("v_lshl_add_u32 v46, v45, 4, v46")
    e("v_lshlrev_b32 v16, 4, v1")
    e("s_waitcnt lgkmcnt(0)")
    srd_fin(16, "A_wo"); srd_fin(20, "ws")
    e("s_lshl_b32 s28, s54, 17")
    e("s_lshl_b32 s29, s52, 15")
    e("s_add_u32 s28, s28, s29")
    e("s_lshl_b32 s29, s26, 13")
    e("s_add_u32 s28, s28, s29")
    for i in range(8):
        if i == 4:
            e("s_add_u32 s28, s28, 4096")
        e(f"buffer_load_dwordx4 {vr(224 + 4 * i, 4)}, v16, s[16:19], s28 offen offset:{(i % 4) * 1024} nt")
    e("s_cmp_lg_u32 s56, 0")
    e("s_cbranch_scc1 K3_B")
    srd_fin(12, "A_wuv")
    e("s_lshl_b32 s28, s54, 8")
    e("s_lshl_b32 s29, s52, 6")
    e("s_add_u32 s28, s28, s29")
    for i in range(8):
        e(f"buffer_load_dwordx4 {vr(192 + 4 * i, 4)}, v46, s[12:15], s28 offen nt")
        e("s_add_u32 s28, s28, 8192")
    e("v_lshlrev_b32 v4, 3, v0")
    e("v_lshlrev_b32 v5, 3, v1")
    e("s_lshl_b32 s28, s53, 9")
    e(f"s_add_u32 s28, s28, {ASTAT}")
    e("buffer_load_dwordx2 v[8:9], v5, s[20:23], s28 offen")
    e("v_and_b32 v12, 127, v0")
    e("v_lshrrev_b32 v13, 7, v0")
    e("v_lshlrev_b32 v12, 3, v12")
    e("v_lshl_add_u32 v12, v13, 20, v12")
    e("s_lshl_b32 s28, s55, 21")
    e("s_lshl_b32 s29, s54, 10")
    e("s_add_u32 s28, s28, s29")
    e(f"s_add_u32 s28, s28, {APART}")
    for s in range(32):
        e(f"buffer_load_dwordx2 {vr(64 + 2 * s, 2)}, v12, s[20:23], s28 offen")
        e("s_add_u32 s28, s28, 0x8000")
    e("s_waitcnt vmcnt(32)")
    e("v_mov_b32 v10, v8")
    for sh in (8, 4, 2, 1):
        e("s_nop 1")
        e(f"v_max_f32_dpp v10, v10, v10 row_ror:{sh} row_mask:0xf bank_mask:0xf")
    e("v_mov_b32 v11, v10")
    e("s_nop 1")
    e("v_permlane16_swap_b32 v10, v11")
    e("s_nop 1")
    e("v_max_f32 v10, v10, v11")
    e("v_mov_b32 v11, v10")
    e("s_nop 1")
    e("v_permlane32_swap_b32 v10, v11")
    e("s_nop 1")
    e("v_max_f32 v10, v10, v11")
    e("v_sub_f32 v8, v8, v10")
    e("v_exp_f32 v8, v8")
    e("s_nop 0")
    e("v_mul_f32 v10, v8, v9")
    for sh in (8, 4, 2, 1):
        e("s_nop 1")
        e(f"v_add_f32_dpp v10, v10, v10 row_ror:{sh} row_mask:0xf bank_mask:0xf")
    e("v_mov_b32 v11, v10")
    e("s_nop 1")
    e("v_permlane16_swap_b32 v10, v11")
    e("s_nop 1")
    e("v_add_f32 v10, v10, v11")
    e("v_mov_b32 v11, v10")
    e("s_nop 1")
    e("v_permlane32_swap_b32 v10, v11")
    e("s_nop 1")
    e("v_add_f32 v10, v10, v11")
    e("v_rcp_f32 v6, v10")
    for k in range(4):
        e(f"v_mov_b32 v{40 + k}, 0")
    e("s_lshr_b32 s30, s26, 1")
    e("s_lshl_b32 s30, s30, 5")
    for s in range(32):
        e(f"s_add_u32 s31, s30, {s}")
        e(f"v_readlane_b32 s{60 + (s & 3)}, v8, s31")
        e(f"s_waitcnt vmcnt({31 - s})")
        unpack2(48, 49, 64 + 2 * s)
        unpack2(50, 51, 65 + 2 * s)
        for k in range(4):
            e(f"v_fmac_f32 v{40 + k}, s{60 + (s & 3)}, v{48 + k}")
    for k in range(4):
        e(f"v_mul_f32 v{40 + k}, v{40 + k}, v6")
    e("v_lshlrev_b32 v4, 4, v0")
    e(f"ds_write_b128 v4, {vr(40, 4)} offset:10240")
    e("s_waitcnt lgkmcnt(0)")
    e("s_barrier")
    e("v_lshlrev_b32 v5, 5, v44")
    e(f"ds_read_b128 {vr(8, 4)}, v5 offset:10240")
    e(f"ds_read_b128 {vr(12, 4)}, v5 offset:10256")
    e(f"ds_read_b128 {vr(16, 4)}, v5 offset:12288")
    e(f"ds_read_b128 {vr(20, 4)}, v5 offset:12304")
    for k in range(8):
        e(f"v_mov_b32 v{24 + k}, 0")
    e("s_waitcnt lgkmcnt(0)")
    for k in range(8):
        e(f"v_add_f32 v{8 + k}, v{8 + k}, v{16 + k}")
    for i in range(8):
        for k in range(4):
            unpack2(32 + 2 * k, 33 + 2 * k, 192 + 4 * i + k)
        for k in range(8):
            e(f"v_fmac_f32 v{24 + k}, v{32 + k}, v{8 + i}")
    e("v_lshlrev_b32 v5, 7, v44")
    e("v_lshl_add_u32 v5, v45, 5, v5")
    e(f"ds_write_b128 v5, {vr(24, 4)} offset:2048")
    e(f"ds_write_b128 v5, {vr(28, 4)} offset:2064")
    e("s_waitcnt lgkmcnt(0)")
    e("s_barrier")
    e("v_and_b32 v5, 31, v1")
    e("v_lshrrev_b32 v6, 5, v1")
    e("v_lshlrev_b32 v5, 2, v5")
    e("v_lshl_add_u32 v5, v6, 12, v5")
    for g in range(32):
        e(f"ds_read_b32 v{64 + g}, v5 offset:{2048 + 128 * g}")
    e("s_waitcnt lgkmcnt(0)")
    for n in (16, 8, 4, 2, 1):
        for g in range(n):
            e(f"v_add_f32 v{64 + g}, v{64 + g}, v{64 + n + g}")
    e("v_mov_b32 v65, v64")
    e("s_nop 1")
    e("v_permlane32_swap_b32 v64, v65")
    e("s_nop 1")
    e("v_add_f32 v64, v64, v65")
    e("v_cvt_pk_bf16_f32 v64, v64, v64")
    e("v_lshlrev_b32 v64, 16, v64")
    e("s_branch K3_OUT")
    lab("K3_B")
    e("v_mov_b32 v5, 0")
    e("s_lshl_b32 s28, s53, 6")
    e(f"s_add_u32 s28, s28, {BSTAT}")
    for k in range(3):
        e(f"buffer_load_dwordx4 {vr(8 + 4 * k, 4)}, v5, s[20:23], s28 offen offset:{16 * k}")
    e("v_and_b32 v5, 31, v1")
    e("v_lshlrev_b32 v5, 2, v5")
    e("s_lshl_b32 s28, s53, 12")
    e("s_lshl_b32 s29, s52, 7")
    e("s_add_u32 s28, s28, s29")
    e(f"s_add_u32 s28, s28, {BPART}")
    for r in range(6):
        e(f"buffer_load_dword v{64 + r}, v5, s[20:23], s28 offen offset:{512 * r}")
    e("s_waitcnt vmcnt(0)")
    e("v_max3_f32 v56, v8, v10, v12")
    e("v_max3_f32 v56, v56, v14, v16")
    e("v_max_f32 v56, v56, v18")
    for r in range(6):
        e(f"v_sub_f32 v{8 + 2 * r}, v{8 + 2 * r}, v56")
    for r in range(6):
        e(f"v_exp_f32 v{8 + 2 * r}, v{8 + 2 * r}")
    e("s_nop 0")
    e("v_mul_f32 v57, v8, v9")
    e("v_mul_f32 v58, v8, v64")
    for r in range(1, 6):
        e(f"v_fmac_f32 v57, v{8 + 2 * r}, v{9 + 2 * r}")
        e(f"v_fmac_f32 v58, v{8 + 2 * r}, v{64 + r}")
    e("v_rcp_f32 v57, v57")
    e("s_nop 0")
    e("v_mul_f32 v58, v58, v57")
    e("v_cvt_pk_bf16_f32 v58, v58, v58")
    e("v_lshlrev_b32 v64, 16, v58")
    lab("K3_OUT")
    e("s_lshl_b32 s30, s26, 3")
    for k in range(8):
        e(f"v_mov_b32 v{24 + k}, 0")
    e("s_waitcnt vmcnt(0)")
    for i in range(8):
        e(f"s_add_u32 s31, s30, {i}")
        e(f"v_readlane_b32 s{60 + i}, v64, s31")
    for i in range(8):
        for k in range(4):
            unpack2(32 + 2 * k, 33 + 2 * k, 224 + 4 * i + k)
        for k in range(8):
            e(f"v_fmac_f32 v{24 + k}, s{60 + i}, v{32 + k}")
    e("s_barrier")
    e("v_lshlrev_b32 v5, 5, v1")
    e("s_lshl_b32 s30, s26, 11")
    e("v_add_u32 v5, s30, v5")
    e(f"ds_write_b128 v5, {vr(24, 4)}")
    e(f"ds_write_b128 v5, {vr(28, 4)} offset:16")
    e("s_waitcnt lgkmcnt(0)")
    e("s_barrier")
    e("v_lshlrev_b32 v5, 3, v0")
    for w in range(4):
        e(f"ds_read_b64 {vr(8 + 2 * w, 2)}, v5 offset:{2048 * w}")
    e("s_waitcnt lgkmcnt(0)")
    e("v_add_f32 v8, v8, v10")
    e("v_add_f32 v9, v9, v11")
    e("v_add_f32 v12, v12, v14")
    e("v_add_f32 v13, v13, v15")
    e("v_add_f32 v8, v8, v12")
    e("v_add_f32 v9, v9, v13")
    e("s_lshl_b32 s28, s56, 19")
    e("s_lshl_b32 s29, s55, 18")
    e("s_add_u32 s28, s28, s29")
    e("s_lshl_b32 s29, s54, 13")
    e("s_add_u32 s28, s28, s29")
    e("s_lshl_b32 s29, s52, 11")
    e("s_add_u32 s28, s28, s29")
    e(f"s_add_u32 s28, s28, {OPA}")
    e("v_or_b32 v8, 1, v8")
    e("v_or_b32 v9, 1, v9")
    e("buffer_store_dwordx2 v[8:9], v5, s[20:23], s28 offen sc1")
    e("s_branch K3_END")
    lab("K3_RED")
    srd(20, "ws"); srd(8, "out")
    e("s_sub_u32 s3, s2, 512")
    e("s_lshr_b32 s24, s3, 3")
    e("s_and_b32 s25, s3, 7")
    e("v_and_b32 v1, 15, v0")
    e("v_lshrrev_b32 v2, 4, v0")
    e("v_lshlrev_b32 v3, 14, v2")
    e("v_lshl_add_u32 v3, v1, 4, v3")
    e("s_lshl_b32 s26, s24, 18")
    e("s_lshl_b32 s27, s25, 8")
    e("s_add_u32 s26, s26, s27")
    e(f"s_add_u32 s26, s26, {OPA}")
    e("s_mov_b32 s30, 0x80000")
    e("s_waitcnt lgkmcnt(0)")
    srd_fin(20, "ws"); srd_fin(8, "out")
    lab("K3_RLOOP")
    e("s_mov_b32 s27, s26")
    for i in range(8):
        if i % 2 == 0 and i:
            e("s_add_u32 s27, s27, 4096")
        e(f"buffer_load_dwordx4 {vr(8 + 4 * i, 4)}, v3, s[20:23], s27 offen offset:{(i % 2) * 2048} sc1")
    e("s_waitcnt vmcnt(0)")
    e("v_and_b32 v40, v8, v9")
    for k in range(10, 40):
        e(f"v_and_b32 v40, v40, v{k}")
    e("v_and_b32 v40, 1, v40")
    e("v_cmp_eq_u32 vcc, 0, v40")
    e("s_cbranch_vccz K3_ROK")
    e("s_sleep 2")
    e("s_sub_u32 s30, s30, 1")
    e("s_cmp_lg_u32 s30, 0")
    e("s_cbranch_scc1 K3_RLOOP")
    lab("K3_ROK")
    for n in (4, 2, 1):
        for i in range(n):
            for k in range(4):
                e(f"v_add_f32 v{8 + 4 * i + k}, v{8 + 4 * i + k}, v{8 + 4 * (i + n) + k}")
    e("v_lshlrev_b32 v4, 4, v0")
    e(f"ds_write_b128 v4, {vr(8, 4)}")
    e("s_waitcnt lgkmcnt(0)")
    e("s_barrier")
    e("v_cmp_gt_u32 vcc, 64, v0")
    e("s_and_saveexec_b64 s[28:29], vcc")
    e("s_cbranch_execz K3_END")
    e("v_lshlrev_b32 v4, 2, v0")
    for g in range(16):
        e(f"ds_read_b32 v{8 + g}, v4 offset:{256 * g}")
    e("s_waitcnt lgkmcnt(0)")
    for n in (8, 4, 2, 1):
        for g in range(n):
            e(f"v_add_f32 v{8 + g}, v{8 + g}, v{8 + n + g}")
    e("v_cvt_pk_bf16_f32 v8, v8, v8")
    e("s_and_b32 s26, s24, 1")
    e("s_lshl_b32 s26, s26, 11")
    e("s_lshr_b32 s27, s24, 1")
    e("s_lshl_b32 s27, s27, 10")
    e("s_add_u32 s26, s26, s27")
    e("s_lshl_b32 s27, s25, 7")
    e("s_add_u32 s26, s26, s27")
    e("v_lshlrev_b32 v4, 1, v0")
    e("buffer_store_short v8, v4, s[8:11], s26 offen")
    lab("K3_END")
    e("s_endpgm")
    kernel_desc(L, 256, 256)
    return f"; @launch kernel={L} grid=(544,1,1) block=(256,1,1) lds=14336"


def k4():
    L = "k4_kernel"
    kernel_header(L)
    e("s_cmp_ge_u32 s2, 32")
    e("s_cbranch_scc1 K4_END")
    srd(20, "ws"); srd(8, "out")
    e("s_lshr_b32 s24, s2, 3")
    e("s_and_b32 s25, s2, 7")
    e("v_and_b32 v1, 15, v0")
    e("v_lshrrev_b32 v2, 4, v0")
    e("v_lshlrev_b32 v3, 14, v2")
    e("v_lshl_add_u32 v3, v1, 4, v3")
    e("s_lshl_b32 s26, s24, 18")
    e("s_lshl_b32 s27, s25, 8")
    e("s_add_u32 s26, s26, s27")
    e(f"s_add_u32 s26, s26, {OPA}")
    e("s_waitcnt lgkmcnt(0)")
    srd_fin(20, "ws"); srd_fin(8, "out")
    for i in range(8):
        if i % 2 == 0 and i:
            e("s_add_u32 s26, s26, 4096")
        e(f"buffer_load_dwordx4 {vr(8 + 4 * i, 4)}, v3, s[20:23], s26 offen offset:{(i % 2) * 2048}")
    e("s_waitcnt vmcnt(0)")
    for n in (4, 2, 1):
        for i in range(n):
            for k in range(4):
                e(f"v_add_f32 v{8 + 4 * i + k}, v{8 + 4 * i + k}, v{8 + 4 * (i + n) + k}")
    e("v_lshlrev_b32 v4, 4, v0")
    e(f"ds_write_b128 v4, {vr(8, 4)}")
    e("s_waitcnt lgkmcnt(0)")
    e("s_barrier")
    e("v_cmp_gt_u32 vcc, 64, v0")
    e("s_and_saveexec_b64 s[28:29], vcc")
    e("s_cbranch_execz K4_END")
    e("v_lshlrev_b32 v4, 2, v0")
    for g in range(16):
        e(f"ds_read_b32 v{8 + g}, v4 offset:{256 * g}")
    e("s_waitcnt lgkmcnt(0)")
    for n in (8, 4, 2, 1):
        for g in range(n):
            e(f"v_add_f32 v{8 + g}, v{8 + g}, v{8 + n + g}")
    e("v_cvt_pk_bf16_f32 v8, v8, v8")
    e("s_and_b32 s26, s24, 1")
    e("s_lshl_b32 s26, s26, 11")
    e("s_lshr_b32 s27, s24, 1")
    e("s_lshl_b32 s27, s27, 10")
    e("s_add_u32 s26, s26, s27")
    e("s_lshl_b32 s27, s25, 7")
    e("s_add_u32 s26, s26, s27")
    e("v_lshlrev_b32 v4, 1, v0")
    e("buffer_store_short v8, v4, s[8:11], s26 offen")
    lab("K4_END")
    e("s_endpgm")
    kernel_desc(L, 48, 48)
    return f"; @launch kernel={L} grid=(32,1,1) block=(256,1,1) lds=4096"


LAUNCHES = []


def main():
    LAUNCHES.append(k1())
    LAUNCHES.append(km())
    LAUNCHES.append(k3())
    head = open(f"cdna_kernels/{NAME}.s.ref").read().split("; Override launch")[0]
    txt = head + "\n".join(LAUNCHES) + "\n"
    txt += '.amdgcn_target "amdgcn-amd-amdhsa--gfx950"\n.text\n'
    txt += "\n".join(out) + "\n"
    txt += '.section .rodata,"a"\n' + "\n".join(descs) + "\n"
    path = sys.argv[1] if len(sys.argv) > 1 else f"cdna_kernels/{NAME}.s"
    open(path, "w").write(txt)


if __name__ == "__main__":
    main()
```

```python
import sys

NAME = "concat_heads__compressed_kv_cla__sliding_block_cached__decode"

KA = dict(A_x=0, A_ckv=8, A_wq=16, A_wuk=24, A_wuv=32, A_wo=40, B_x=48, B_k=56, B_v=64,
          B_wq=72, B_wo=80, out=88, dbg=96, ws=104)
SZ = dict(A_x=2048, A_ckv=16777216, A_wq=4194304, A_wuk=4194304, A_wuv=4194304, A_wo=4194304,
          B_x=2048, B_k=134217728, B_v=134217728, B_wq=4194304, B_wo=4194304, out=4096, dbg=256,
          ws=536870912)

QA_HI = 0x00000
QA_LO = 0x10000
QB = 0x20000
ASTAT = 0x30000
BPART = 0x40000
BSTAT = 0x80000
CTX = 0x70000
OPART = 0x80000
APART = 0x100000

OPA = 0xA00000
SCALE_BITS = 0x3DB504F3
LOG2E_BITS = 0x3FB8AA3B

out = []
import os
DEBUG = bool(os.environ.get('DEBUG'))
PROF = bool(os.environ.get('PROF'))
PST = os.environ.get('PST', '')
HIONLY = bool(os.environ.get('HIONLY'))
PROFBASE = 0xC00000


def prof_start():
    if PROF:
        e("s_memrealtime s[90:91]")


def prof_mark(slot, t=21):
    if PROF:
        e("s_memrealtime s[92:93]")
        e("s_waitcnt lgkmcnt(0)")
        e("s_sub_u32 s92, s92, s90")
        e(f"v_mov_b32 v{t}, s92")
        e("s_lshl_b32 s94, s2, 7")
        e(f"s_add_u32 s94, s94, {PROFBASE + prof_kernel[0] * 0x10000 + slot * 4}")
        e(f"v_lshrrev_b32 v{t+1}, 6, v0")
        e(f"v_lshlrev_b32 v{t+1}, 5, v{t+1}")
        e(f"buffer_store_dword v{t}, v{t+1}, s[20:23], s94 offen")


prof_kernel = [0]


def e(s):
    out.append("    " + s)


def lab(s):
    out.append(s + ":")


def srd(dst, name):
    e(f"s_load_dwordx2 s[{dst}:{dst+1}], s[0:1], {KA[name]}")


def srd_fin(dst, name):
    e(f"s_mov_b32 s{dst+2}, {SZ[name]}")
    e(f"s_mov_b32 s{dst+3}, 0x20000")


def vr(a, n):
    return f"v[{a}:{a+n-1}]"


def ar(a, n):
    return f"a[{a}:{a+n-1}]"


def kernel_header(label):
    out.append(f".globl {label}")
    out.append(".p2align 8")
    out.append(f".type {label},@function")
    lab(label)


descs = []


def kernel_desc(label, vgpr, accum, sgpr=102):
    descs.append(f""".p2align 6
.amdhsa_kernel {label}
  .amdhsa_next_free_vgpr {vgpr}
  .amdhsa_next_free_sgpr {sgpr}
  .amdhsa_accum_offset {accum}
  .amdhsa_group_segment_fixed_size 0
  .amdhsa_kernarg_size 112
  .amdhsa_user_sgpr_count 2
  .amdhsa_user_sgpr_kernarg_segment_ptr 1
  .amdhsa_system_sgpr_workgroup_id_x 1
.end_amdhsa_kernel""")


def unpack2(dlo, dhi, src):
    e(f"v_lshlrev_b32 v{dlo}, 16, v{src}")
    e(f"v_and_b32 v{dhi}, 0xffff0000, v{src}")


def gemv_rows(nrows, wbase, xbase0, xbase1, acc, tmp, xt, vm_after):
    for i in range(nrows):
        e(f"s_waitcnt vmcnt({nrows - 1 - i + vm_after})")
        if i % 2 == 0:
            e(f"v_lshlrev_b32 v{xt}, 16, v{xbase0 + i // 2}")
            e(f"v_lshlrev_b32 v{xt+1}, 16, v{xbase1 + i // 2}")
        else:
            e(f"v_and_b32 v{xt}, 0xffff0000, v{xbase0 + i // 2}")
            e(f"v_and_b32 v{xt+1}, 0xffff0000, v{xbase1 + i // 2}")
        for k in range(4):
            unpack2(tmp + 2 * k, tmp + 2 * k + 1, wbase + 4 * i + k)
        for k in range(8):
            e(f"v_fmac_f32 v{acc + k}, v{tmp + k}, v{xt}")
            e(f"v_fmac_f32 v{acc + 8 + k}, v{tmp + k}, v{xt+1}")


QP = 0x90000


def k1():
    L = "k0_kernel"
    kernel_header(L)
    e("s_cmp_ge_u32 s2, 256")
    e("s_cbranch_scc1 K0_END")
    srd(20, "ws")
    e("s_and_b32 s24, s2, 31")
    e("s_bfe_u32 s25, s2, 0x20005")
    e("s_lshr_b32 s26, s2, 7")
    e("s_cmp_lg_u32 s26, 0")
    e("s_cbranch_scc1 K0_LB")
    srd(8, "A_x"); srd(12, "A_wq")
    e("s_branch K0_LD")
    lab("K0_LB")
    srd(8, "B_x"); srd(12, "B_wq")
    lab("K0_LD")
    e("v_and_b32 v1, 15, v0")
    e("v_lshrrev_b32 v2, 4, v0")
    e("v_lshlrev_b32 v3, 16, v2")
    e("v_lshl_add_u32 v3, v1, 4, v3")
    e("v_lshlrev_b32 v4, 4, v2")
    e("s_lshl_b32 s27, s25, 20")
    e("s_lshl_b32 s28, s24, 8")
    e("s_add_u32 s27, s27, s28")
    e("s_lshl_b32 s28, s25, 8")
    e("s_waitcnt lgkmcnt(0)")
    srd_fin(8, "A_x"); srd_fin(12, "A_wq"); srd_fin(20, "ws")
    e("buffer_load_dwordx4 v[8:11], v4, s[8:11], s28 offen")
    e("buffer_load_dwordx4 v[12:15], v4, s[8:11], s28 offen offset:1024")
    for i in range(8):
        e(f"buffer_load_dwordx4 {vr(40 + 4 * i, 4)}, v3, s[12:15], s27 offen nt")
        e("s_add_u32 s27, s27, 8192")
    for k in range(4):
        e(f"v_mov_b32 v{76 + k}, 0")
    e("v_lshlrev_b32 v80, 4, v0")
    e("s_lshl_b32 s29, s2, 12")
    e(f"s_add_u32 s29, s29, {OPA}")
    e("buffer_store_dwordx4 v[76:79], v80, s[20:23], s29 offen")
    e("v_lshlrev_b32 v80, 1, v0")
    e("s_lshl_b32 s29, s2, 9")
    e("buffer_store_short v76, v80, s[20:23], s29 offen")
    for k in range(16):
        e(f"v_mov_b32 v{16 + k}, 0")
    gemv_rows(8, 40, 8, 12, 16, 32, 6, 2)
    e("v_lshlrev_b32 v6, 10, v2")
    e("v_lshl_add_u32 v6, v1, 5, v6")
    e(f"ds_write_b128 v6, {vr(16, 4)}")
    e(f"ds_write_b128 v6, {vr(20, 4)} offset:16")
    e(f"ds_write_b128 v6, {vr(24, 4)} offset:512")
    e(f"ds_write_b128 v6, {vr(28, 4)} offset:528")
    e("s_waitcnt lgkmcnt(0)")
    e("s_barrier")
    e("v_lshlrev_b32 v6, 2, v0")
    for g in range(16):
        e(f"ds_read_b32 v{8 + g}, v6 offset:{1024 * g}")
    e("s_waitcnt lgkmcnt(0)")
    for n in (8, 4, 2, 1):
        for g in range(n):
            e(f"v_add_f32 v{8 + g}, v{8 + g}, v{8 + n + g}")
    e("s_lshl_b32 s27, s26, 17")
    e("s_lshl_b32 s28, s24, 12")
    e("s_add_u32 s27, s27, s28")
    e("s_lshl_b32 s28, s25, 10")
    e("s_add_u32 s27, s27, s28")
    e(f"s_add_u32 s27, s27, {QP}")
    e("buffer_store_dword v8, v6, s[20:23], s27 offen")
    lab("K0_END")
    e("s_endpgm")
    kernel_desc(L, 88, 88)
    return f"; @launch kernel={L} grid=(256,1,1) block=(256,1,1) lds=16384"


MX = 131072
LX = 131584
PX = 132096
BO = 140288
SCR = PX
RS = PX
BS = BO + 8192
KM_LDS = BS + 128
C3 = 132
C4 = 136
C5 = 168
C6 = 200
SC = " sc1"


def fsw(r):
    return ((r & 3) << 2) | ((r >> 2) & 3)


def bloads(K, V, soff):
    for (base, srdn) in ((K, 12), (V, 16)):
        for i in range(8):
            va = 6 if i < 4 else 7
            e(f"buffer_load_dwordx4 {vr(base + 4 * i, 4)}, v{va}, s[{srdn}:{srdn+3}], s{soff} offen offset:{(i % 4) * 1024} nt")


def round_scale(a, b, t):
    e(f"v_cvt_pk_bf16_f32 v{t}, v{a}, v{b}")
    unpack2(a, b, t)
    e(f"v_mul_f32 v{a}, s34, v{a}")
    e(f"v_mul_f32 v{b}, s34, v{b}")
    e(f"v_cvt_pk_bf16_f32 v{t}, v{a}, v{b}")
    unpack2(a, b, t)
    e(f"v_mul_f32 v{a}, s35, v{a}")
    e(f"v_mul_f32 v{b}, s35, v{b}")


def bscore(K):
    for k in range(4):
        for i in range(8):
            c = "0" if k == 0 else f"v{18+i}"
            e(f"v_dot2_f32_bf16 v{18+i}, v{K + 4*i + k}, v{2+k}, {c}")
    for sh in (8, 4, 2, 1):
        for i in range(8):
            e(f"v_add_f32_dpp v{18+i}, v{18+i}, v{18+i} row_ror:{sh} row_mask:0xf bank_mask:0xf")
    for i in range(0, 8, 2):
        round_scale(18 + i, 19 + i, 26)
    e("v_max3_f32 v26, v18, v19, v20")
    e("v_max3_f32 v26, v26, v21, v22")
    e("v_max3_f32 v26, v26, v23, v24")
    e("v_max3_f32 v26, v26, v25, v8")
    e("v_sub_f32 v27, v8, v26")
    e("v_exp_f32 v27, v27")
    e("v_mov_b32 v8, v26")
    for i in range(8):
        e(f"v_sub_f32 v{18+i}, v{18+i}, v26")
    for i in range(8):
        e(f"v_exp_f32 v{18+i}, v{18+i}")
    e("v_mul_f32 v9, v9, v27")
    for j in range(8):
        e(f"v_mul_f32 v{10+j}, v{10+j}, v27")
    for i in range(8):
        e(f"v_add_f32 v9, v9, v{18+i}")


def bpv(V):
    for i in range(8):
        for k in range(4):
            unpack2(34 + 2 * k, 35 + 2 * k, V + 4 * i + k)
        for j in range(8):
            e(f"v_fmac_f32 v{10+j}, v{34+j}, v{18+i}")


def bload1(base, srdn, soff):
    for i in range(8):
        va = 6 if i < 4 else 7
        e(f"buffer_load_dwordx4 {vr(base + 4 * i, 4)}, v{va}, s[{srdn}:{srdn+3}], s{soff} offen offset:{(i % 4) * 1024} nt")


def bsched(nunits, ahead, hook=None):
    bufs = [(128, 160), (192, 224)]
    n = 2 * nunits
    issued = 0
    for c in range(n):
        while issued < n and issued <= c + min(ahead(c), 3):
            u, isv = issued >> 1, issued & 1
            if not isv:
                e("s_add_u32 s31, s31, 32768")
                e("s_mov_b32 s33, s31") if False else None
            e(f"s_mov_b32 s{60 + (u & 1)}, s31") if not isv else None
            bload1(bufs[u & 1][isv], 16 if isv else 12, 60 + (u & 1))
            issued += 1
        if c == 0 and hook:
            hook()
        e(f"s_waitcnt vmcnt({8 * (issued - 1 - c)})")
        u, isv = c >> 1, c & 1
        if isv:
            bpv(bufs[u & 1][1])
        else:
            if u < 3:
                prof_mark(u)
            bscore(bufs[u & 1][0])


def bcombine(BO, BS, done):
    e("v_lshrrev_b32 v18, 4, v1")
    e("s_lshl_b32 s27, s26, 2")
    e("v_add_u32 v18, s27, v18")
    e("v_and_b32 v19, 15, v1")
    e("v_lshlrev_b32 v20, 9, v18")
    e("v_lshl_add_u32 v20, v19, 5, v20")
    e(f"v_add_u32 v20, {BO}, v20")
    e(f"ds_write_b128 v20, {vr(10, 4)}")
    e(f"ds_write_b128 v20, {vr(14, 4)} offset:16")
    e("v_lshlrev_b32 v21, 3, v18")
    e(f"v_add_u32 v21, {BS}, v21")
    e("ds_write_b64 v21, v[8:9]")
    e("s_waitcnt lgkmcnt(0)")
    e("s_barrier")
    e("s_cmp_ge_u32 s26, 2")
    e(f"s_cbranch_scc1 {done}")
    e(f"v_mov_b32 v21, {BS}")
    for s in range(16):
        e(f"ds_read_b64 {vr(64 + 2 * s, 2)}, v21 offset:{8 * s}")
    e("v_lshlrev_b32 v20, 2, v0")
    e(f"v_add_u32 v20, {BO}, v20")
    for s in range(16):
        e(f"ds_read_b32 v{96 + s}, v20 offset:{512 * s}")
    e("s_waitcnt lgkmcnt(0)")
    e("v_max3_f32 v8, v64, v66, v68")
    for s in range(3, 15, 2):
        e(f"v_max3_f32 v8, v8, v{64 + 2 * s}, v{66 + 2 * s}")
    e("v_max_f32 v8, v8, v94")
    for s in range(16):
        e(f"v_sub_f32 v{64 + 2 * s}, v{64 + 2 * s}, v8")
    for s in range(16):
        e(f"v_exp_f32 v{64 + 2 * s}, v{64 + 2 * s}")
    e("s_nop 0")
    e("v_mul_f32 v9, v64, v65")
    e("v_mul_f32 v10, v64, v96")
    for s in range(1, 16):
        e(f"v_fmac_f32 v9, v{64 + 2 * s}, v{65 + 2 * s}")
        e(f"v_fmac_f32 v10, v{64 + 2 * s}, v{96 + s}")
    e("s_lshl_b32 s27, s24, 3")
    e("s_add_u32 s27, s27, s25")
    e("s_lshl_b32 s28, s27, 9")
    e(f"s_add_u32 s28, s28, {BPART}")
    e("v_lshlrev_b32 v20, 2, v0")
    e(f"buffer_store_dword v10, v20, s[20:23], s28 offen")
    e("s_lshl_b32 s28, s27, 3")
    e(f"s_add_u32 s28, s28, {BSTAT}")
    e("v_mov_b32 v20, 0")
    e(f"buffer_store_dwordx2 v[8:9], v20, s[20:23], s28 offen")


def dma_tile():
    for i in range(32):
        if i % 4 == 0:
            e(f"s_add_u32 m0, s41, {i * 1024}")
            e(f"s_add_u32 s42, s40, {i * 1024}")
        e(f"v_xor_b32 v11, {fsw(i & 15) * 16}, v16")
        e(f"buffer_load_dwordx4 v11, s[8:11], s42 offen offset:{(i % 4) * 1024} nt lds")


npoll = [0]


def poll(off, target, soff=None):
    n = npoll[0]
    npoll[0] += 1
    e("s_cmp_lg_u32 s26, 0")
    e(f"s_cbranch_scc1 POLL_DONE{n}")
    e("v_mov_b32 v22, 0")
    e("s_mov_b32 s44, 0x40000")
    if soff is None:
        e(f"s_mov_b32 s45, {off}")
        soff = 45
    lab(f"POLL{n}")
    e(f"buffer_load_dword v21, v22, s[48:51], s{soff} offen{SC}")
    e("s_waitcnt vmcnt(0)")
    e("v_readfirstlane_b32 s43, v21")
    e(f"s_cmp_ge_u32 s43, {target}")
    e(f"s_cbranch_scc1 POLL_DONE{n}")
    e("s_sleep 4")
    e("s_sub_u32 s44, s44, 1")
    e("s_cmp_lg_u32 s44, 0")
    e(f"s_cbranch_scc1 POLL{n}")
    lab(f"POLL_DONE{n}")
    e("s_barrier")


def signal(soffs):
    n = npoll[0]
    npoll[0] += 1
    e("s_waitcnt vmcnt(0)")
    e("s_barrier")
    e("s_cmp_lg_u32 s26, 0")
    e(f"s_cbranch_scc1 SIG_DONE{n}")
    e("v_mov_b32 v21, 1")
    e("v_mov_b32 v22, 0")
    e("s_mov_b64 s[46:47], exec")
    e("s_mov_b64 exec, 1")
    for so in soffs:
        e(f"buffer_atomic_add v21, v22, s[48:51], s{so} offen sc1")
    e("s_mov_b64 exec, s[46:47]")
    lab(f"SIG_DONE{n}")


filler = []


def fill(n=1):
    for _ in range(n):
        if filler:
            for ins in filler.pop(0):
                e(ins)


def tile_loads(defer=False):
    for i in range(32):
        g = []
        if i % 4 == 0:
            g.append(f"s_add_u32 s42, s40, {i * 1024}")
        g.append(f"buffer_load_dwordx4 {ar(128 + 4 * i, 4)}, v16, s[8:11], s42 offen offset:{(i % 4) * 1024} nt")
        filler.append(g)
    if not defer:
        fill(32)


def tile_to_lds():
    e("v_add_u32 v12, s41, v16")
    for i in range(32):
        e(f"v_xor_b32 v{13 + (i & 1)}, {fsw(i & 15) * 16}, v12")
        e(f"s_waitcnt vmcnt({31 - i})")
        e(f"ds_write_b128 v{13 + (i & 1)}, {ar(128 + 4 * i, 4)} offset:{i * 1024}")
    e("s_waitcnt lgkmcnt(0)")


def a_tile(first):
    seq = [(j, k) for j in range(4) for k in range(8)]

    def sread(n):
        j, k = seq[n]
        t = 22 + (n & 1)
        e(f"v_add_u32 v{t}, v{24 + j}, v{28 + k}")
        e(f"ds_read_b128 {vr(72 + 4 * (n % 8), 4)}, v{t}")
    for n in range(8):
        sread(n)
    for n in range(32):
        j, k = seq[n]
        e(f"s_waitcnt lgkmcnt({min(7, 31 - n)})")
        f = vr(72 + 4 * (n % 8), 4)
        acc = ar(64 + 16 * j, 16)
        c = "0" if k == 0 else acc
        e(f"v_mfma_f32_32x32x16_bf16 {acc}, {f}, {vr(192 + 4 * k, 4)}, {c}")
        if not HIONLY:
            e(f"v_mfma_f32_32x32x16_bf16 {acc}, {f}, {vr(224 + 4 * k, 4)}, {acc}")
        if n + 8 < 32:
            sread(n + 8)
        if n % 2 == 1:
            fill(1)
    e("s_nop 15")
    for i in range(16):
        e(f"v_accvgpr_read_b32 v{56 + i}, a{64 + i}")
    for j in range(1, 4):
        for q in range(4):
            e(f"ds_write_b128 v36, {ar(64 + 16 * j + 4 * q, 4)} offset:{1024 * q}")
        e("s_waitcnt lgkmcnt(0)")
        e("s_barrier")
        for q in range(4):
            e(f"ds_read_b128 {vr(72 + 4 * q, 4)}, v{36 + j} offset:{1024 * q}")
        e("s_waitcnt lgkmcnt(0)")
        if j < 3:
            e("s_barrier")
        fill(1)
        for i in range(16):
            e(f"v_add_f32 v{56 + i}, v{56 + i}, v{72 + i}")
    for i in range(0, 16, 2):
        round_scale(56 + i, 57 + i, 11)
        if i % 4 == 0:
            fill(1)
    e("v_max3_f32 v12, v56, v57, v58")
    for i in range(59, 71, 2):
        e(f"v_max3_f32 v12, v12, v{i}, v{i+1}")
    e("v_max_f32 v12, v12, v71")
    e("v_mov_b32 v13, v12")
    e("s_nop 1")
    e("v_permlane32_swap_b32 v12, v13")
    e("s_nop 1")
    e("v_max_f32 v12, v12, v13")
    e("ds_write_b32 v17, v12")
    e("s_waitcnt lgkmcnt(0)")
    e("s_barrier")
    for w in range(4):
        e(f"ds_read_b32 v{12 + w}, v18 offset:{128 * w}")
    e("s_waitcnt lgkmcnt(0)")
    e("v_max3_f32 v12, v12, v13, v14")
    e("v_max3_f32 v12, v12, v15, v8")
    e("v_sub_f32 v10, v8, v12")
    e("v_exp_f32 v10, v10")
    e("v_mov_b32 v8, v12")
    for i in range(16):
        e(f"v_sub_f32 v{56+i}, v{56+i}, v12")
    for i in range(16):
        e(f"v_exp_f32 v{56+i}, v{56+i}")
    e("v_mul_f32 v9, v9, v10")
    for i in range(16):
        e(f"v_add_f32 v9, v9, v{56+i}")
    for i in range(8):
        e(f"v_cvt_pk_bf16_f32 v{96+i}, v{56+2*i}, v{57+2*i}")
    e(f"ds_write_b128 v19, {vr(96, 4)}")
    e(f"ds_write_b128 v19, {vr(100, 4)} offset:1024")
    e("s_waitcnt lgkmcnt(0)")
    e("s_barrier")
    for tu in range(8):
        e(f"ds_read_b128 {vr(64 + 4 * tu, 4)}, v20 offset:{(tu >> 1) * 2048 + (tu & 1) * 1024}")
    if not first:
        for i in range(64):
            e(f"v_mul_f32 v{192+i}, v{192+i}, v10")

    def trreads(tu):
        t, u = tu >> 1, tu & 1
        bufb = 96 + 16 * (tu & 1)
        for cc in range(4):
            for v in range(2):
                a = 40 + 8 * (t >> 1) + 2 * cc + v
                off = (32 * (t & 1) + 16 * u + 8 * v) * 1024
                e(f"ds_read_b64_tr_b16 {vr(bufb + 4 * cc + 2 * v, 2)}, v{a} offset:{off}")
    trreads(0)
    for tu in range(8):
        if tu + 1 < 8:
            trreads(tu + 1)
            e("s_waitcnt lgkmcnt(8)")
        else:
            e("s_waitcnt lgkmcnt(0)")
        bufb = 96 + 16 * (tu & 1)
        for cc in range(4):
            acc = vr(192 + 16 * cc, 16)
            c = "0" if (first and tu == 0) else acc
            e(f"v_mfma_f32_32x32x16_bf16 {acc}, {vr(bufb + 4 * cc, 4)}, {vr(64 + 4 * tu, 4)}, {c}")
        fill(1)
    fill(99)


def km():
    L = "km_kernel"
    kernel_header(L)
    e("s_cmp_ge_u32 s2, 256")
    e("s_cbranch_scc1 KM_END")
    prof_kernel[0] = 1
    prof_start()
    srd(8, "A_ckv"); srd(12, "B_k"); srd(16, "B_v"); srd(20, "ws"); srd(48, "dbg")
    e("s_and_b32 s3, s2, 7")
    e("s_lshr_b32 s4, s2, 3")
    e("s_lshr_b32 s5, s3, 2")
    e("s_lshl_b32 s24, s4, 1")
    e("s_or_b32 s24, s24, s5")
    e("s_add_u32 s25, s3, s4")
    e("s_and_b32 s25, s25, 3")
    e("v_and_b32 v1, 63, v0")
    e("v_lshrrev_b32 v2, 6, v0")
    e("s_nop 0")
    e("v_readfirstlane_b32 s26, v2")
    e(f"s_mov_b32 s34, {SCALE_BITS:#x}")
    e(f"s_mov_b32 s35, {LOG2E_BITS:#x}")
    e("v_lshlrev_b32 v16, 4, v1")
    e("s_lshl_b32 s27, s26, 13")
    e("v_add_u32 v6, s27, v16")
    e("v_add_u32 v7, 4096, v6")
    e("s_lshl_b32 s30, s24, 21")
    e("s_add_u32 s30, s30, 1572864")
    srd(52, "A_wuk")
    e("v_and_b32 v42, 127, v0")
    e("v_lshlrev_b32 v42, 2, v42")
    e("s_and_b32 s27, s24, 31")
    e("s_lshl_b32 s27, s27, 12")
    e("s_lshr_b32 s28, s24, 5")
    e("s_lshl_b32 s28, s28, 9")
    e("s_add_u32 s27, s27, s28")
    e(f"s_add_u32 s27, s27, {QP + 0x20000}")
    e("s_waitcnt lgkmcnt(0)")
    srd_fin(8, "A_ckv"); srd_fin(12, "B_k"); srd_fin(16, "B_v"); srd_fin(20, "ws"); srd_fin(48, "dbg"); srd_fin(52, "A_wuk")
    for mq in range(4):
        e(f"buffer_load_dword v{44 + mq}, v42, s[20:23], s27 offen offset:{1024 * mq}")
    e("s_cmp_ge_u32 s25, 2")
    e("s_cbranch_scc1 KM_BONLY")
    e("s_lshr_b32 s36, s24, 5")
    e("s_and_b32 s37, s24, 31")
    e("s_lshl_b32 s37, s37, 1")
    e("s_add_u32 s37, s37, s25")
    e("s_lshl_b32 s38, s24, 1")
    e("s_add_u32 s38, s38, s25")
    e("s_lshr_b32 s39, s38, 5")
    e("s_and_b32 s38, s38, 31")
    e("s_lshl_b32 s40, s36, 23")
    e("s_lshl_b32 s27, s37, 17")
    e("s_add_u32 s40, s40, s27")
    e("s_lshl_b32 s41, s26, 15")
    e("s_add_u32 s40, s40, s41")
    e("v_lshlrev_b32 v43, 2, v0")
    e("s_lshl_b32 s27, s38, 12")
    e(f"s_add_u32 s27, s27, {QP}")
    for mq in range(4):
        e(f"buffer_load_dword v{48 + mq}, v43, s[20:23], s27 offen offset:{1024 * mq}")
    e("v_and_b32 v52, 15, v0")
    e("v_lshrrev_b32 v53, 4, v0")
    e("v_lshlrev_b32 v54, 13, v53")
    e("v_lshl_add_u32 v54, v52, 4, v54")
    e("s_lshl_b32 s27, s39, 20")
    e("s_lshl_b32 s28, s38, 8")
    e("s_add_u32 s27, s27, s28")
    for i in range(8):
        e(f"buffer_load_dwordx4 {vr(64 + 4 * i, 4)}, v54, s[52:55], s27 offen nt")
        e("s_add_u32 s27, s27, 0x20000")
    tile_loads()
    e("s_waitcnt vmcnt(40)")
    e("v_add_f32 v44, v44, v45")
    e("v_add_f32 v46, v46, v47")
    e("v_add_f32 v48, v48, v49")
    e("v_add_f32 v50, v50, v51")
    e("v_add_f32 v44, v44, v46")
    e("v_add_f32 v48, v48, v50")
    e("v_cvt_pk_bf16_f32 v44, v44, v44")
    e("v_cvt_pk_bf16_f32 v48, v48, v48")
    e("v_lshrrev_b32 v42, 1, v42")
    e(f"v_add_u32 v42, {SCR + 2048}, v42")
    e("ds_write_b16 v42, v44")
    e("v_lshlrev_b32 v43, 1, v0")
    e(f"v_add_u32 v43, {SCR}, v43")
    e("ds_write_b16 v43, v48")
    e("s_waitcnt lgkmcnt(0)")
    e("s_barrier")
    e("v_lshlrev_b32 v43, 4, v52")
    e(f"v_add_u32 v43, {SCR}, v43")
    e(f"ds_read_b128 {vr(8, 4)}, v43")
    e(f"ds_read_b128 {vr(12, 4)}, v43 offset:256")
    e(f"ds_read_b128 {vr(2, 4)}, v43 offset:2048")
    e("s_waitcnt vmcnt(32) lgkmcnt(0)")
    for k in range(4):
        for i in range(8):
            for b in range(2):
                d = 24 + 2 * i + b
                c = "0" if k == 0 else f"v{d}"
                e(f"v_dot2_f32_bf16 v{d}, v{64 + 4 * i + k}, v{8 + 4 * b + k}, {c}")
    e("s_nop 3")
    for sh in (8, 4, 2, 1):
        for d in range(24, 40):
            e(f"v_add_f32_dpp v{d}, v{d}, v{d} row_ror:{sh} row_mask:0xf bank_mask:0xf")
    e("v_lshlrev_b32 v43, 2, v53")
    e(f"v_add_u32 v43, {SCR + 512}, v43")
    for i in range(8):
        for b in range(2):
            e(f"ds_write_b32 v43, v{24 + 2 * i + b} offset:{512 * b + 64 * i}")
    e("s_waitcnt lgkmcnt(0)")
    e("s_barrier")
    e("v_cmp_gt_u32 vcc, 32, v0")
    e("s_and_saveexec_b64 s[56:57], vcc")
    e("s_cbranch_execz KM_QDONE")
    e("v_lshlrev_b32 v43, 5, v0")
    e(f"v_add_u32 v43, {SCR + 512}, v43")
    e(f"ds_read_b128 {vr(8, 4)}, v43")
    e(f"ds_read_b128 {vr(12, 4)}, v43 offset:16")
    e("s_waitcnt lgkmcnt(0)")
    for k in range(4):
        a_, b_ = 8 + 2 * k, 9 + 2 * k
        e(f"v_cvt_pk_bf16_f32 v{24 + k}, v{a_}, v{b_}")
        e(f"v_or_b32 v{24 + k}, 1, v{24 + k}")
        unpack2(32, 33, 24 + k)
        e(f"v_sub_f32 v32, v{a_}, v32")
        e(f"v_sub_f32 v33, v{b_}, v33")
        e(f"v_cvt_pk_bf16_f32 v{28 + k}, v32, v33")
        e(f"v_or_b32 v{28 + k}, 1, v{28 + k}")
    e("v_lshrrev_b32 v43, 4, v0")
    e("v_and_b32 v32, 15, v0")
    e("v_lshrrev_b32 v33, 1, v32")
    e("v_and_b32 v32, 1, v32")
    e("v_lshlrev_b32 v43, 15, v43")
    e("v_lshl_add_u32 v43, v33, 10, v43")
    e("v_lshl_add_u32 v43, v32, 9, v43")
    e("s_lshl_b32 s27, s39, 13")
    e("s_lshl_b32 s28, s38, 4")
    e("s_add_u32 s27, s27, s28")
    e(f"buffer_store_dwordx4 {vr(24, 4)}, v43, s[20:23], s27 offen sc1")
    e(f"s_add_u32 s27, s27, {QA_LO}")
    e(f"buffer_store_dwordx4 {vr(28, 4)}, v43, s[20:23], s27 offen sc1")
    lab("KM_QDONE")
    e("s_mov_b64 exec, s[56:57]")
    e("v_and_b32 v56, 31, v1")
    e("v_lshrrev_b32 v57, 5, v1")
    e("v_and_b32 v58, 3, v1")
    e("v_lshlrev_b32 v58, 2, v58")
    e("v_bfe_u32 v59, v1, 2, 2")
    e("v_or_b32 v58, v58, v59")
    e("v_xor_b32 v58, v58, v57")
    e("v_lshlrev_b32 v58, 4, v58")
    for k in range(8):
        e(f"v_xor_b32 v{28 + k}, {32 * k}, v58")
    e("v_lshlrev_b32 v59, 10, v56")
    e("s_lshl_b32 s27, s26, 8")
    e("v_add_u32 v59, s27, v59")
    for j in range(4):
        e(f"s_add_u32 s27, s26, {j}")
        e("s_and_b32 s27, s27, 3")
        e("s_lshl_b32 s27, s27, 15")
        e(f"v_add_u32 v{24 + j}, s27, v59")
        e(f"s_sub_u32 s27, s26, {j}")
        e("s_and_b32 s27, s27, 3")
        e("s_lshl_b32 s27, s27, 12")
        e(f"s_add_u32 s27, s27, {RS}")
        e(f"v_add_u32 v{36 + j}, s27, v16")
    e("v_lshrrev_b32 v60, 4, v1")
    e("v_lshrrev_b32 v61, 5, v1")
    e("v_bfe_u32 v62, v1, 2, 2")
    e("v_and_b32 v63, 3, v1")
    e("v_and_b32 v64, 1, v60")
    e("v_lshlrev_b32 v64, 1, v64")
    e("v_lshrrev_b32 v65, 1, v63")
    e("v_add_u32 v64, v64, v65")
    e("v_lshl_or_b32 v65, v62, 2, v61")
    e("v_xor_b32 v64, v64, v65")
    e("v_lshlrev_b32 v64, 4, v64")
    e("v_and_b32 v65, 1, v63")
    e("v_lshl_add_u32 v64, v65, 3, v64")
    e("v_lshl_add_u32 v65, v61, 2, v62")
    e("v_lshl_add_u32 v64, v65, 10, v64")
    e("s_lshl_b32 s27, s26, 8")
    e("v_add_u32 v64, s27, v64")
    for cc in range(4):
        for v in range(2):
            e(f"v_xor_b32 v{40 + 2 * cc + v}, {64 * cc + 32 * v}, v64")
            e(f"v_add_u32 v{48 + 2 * cc + v}, 0x10000, v{40 + 2 * cc + v}")
    e("v_lshlrev_b32 v18, 2, v56")
    e(f"v_add_u32 v18, {MX}, v18")
    e("s_lshl_b32 s27, s26, 7")
    e("v_add_u32 v17, s27, v18")
    e(f"v_add_u32 v20, {PX}, v16")
    e("s_lshl_b32 s27, s26, 11")
    e("v_add_u32 v19, s27, v20")
    e("v_mov_b32 v8, 0xff800000")
    e("v_mov_b32 v9, 0")
    tile_to_lds()
    e("s_lshl_b32 s27, s36, 15")
    e("s_lshl_b32 s28, s26, 13")
    e("s_add_u32 s27, s27, s28")
    e("s_mov_b32 s44, 0x80000")
    lab("KM_QPOLL")
    for part in range(2):
        for s in range(8):
            if s % 4 == 0:
                e(f"s_add_u32 s28, s27, {part * QA_LO + s * 1024}")
            e(f"buffer_load_dwordx4 {vr(192 + 32 * part + 4 * s, 4)}, v16, s[20:23], s28 offen offset:{(s % 4) * 1024} sc1")
    e("s_waitcnt vmcnt(0)")
    e("v_and_b32 v11, v192, v193")
    for k in range(194, 256):
        e(f"v_and_b32 v11, v11, v{k}")
    e("v_and_b32 v11, 1, v11")
    e("v_cmp_eq_u32 vcc, 0, v11")
    e("s_cbranch_vccz KM_QOK")
    e("s_sleep 1")
    e("s_sub_u32 s44, s44, 1")
    e("s_cmp_lg_u32 s44, 0")
    e("s_cbranch_scc1 KM_QPOLL")
    lab("KM_QOK")
    e("s_lshl_b32 s27, s25, 16")
    e("s_add_u32 s31, s30, s27")
    e("s_add_u32 s31, s31, 393216")
    for (base, srdn) in ((128, 12), (160, 16)):
        for i in range(8):
            va = 6 if i < 4 else 7
            filler.append([f"buffer_load_dwordx4 {vr(base + 4 * i, 4)}, v{va}, s[{srdn}:{srdn+3}], s31 offen offset:{(i % 4) * 1024} nt"])
            filler.append([])
    e("s_barrier")
    prof_mark(0)
    a_tile(True)
    prof_mark(1)
    e("v_mov_b32 v13, v9")
    e("s_nop 1")
    e("v_permlane32_swap_b32 v9, v13")
    e("s_nop 1")
    e("v_add_f32 v9, v9, v13")
    e(f"ds_write_b32 v17, v9 offset:{LX - MX}")
    e("s_nop 7")
    e("s_barrier")
    e("v_and_b32 v11, 31, v1")
    e("v_lshrrev_b32 v12, 5, v1")
    e("s_movk_i32 s27, 1040")
    e("v_mul_lo_u32 v14, v11, s27")
    e("v_lshl_add_u32 v14, v12, 3, v14")
    e("s_lshl_b32 s28, s26, 8")
    e("v_add_u32 v14, s28, v14")
    for cc in range(4):
        for q in range(4):
            r0 = 192 + 16 * cc + 4 * q
            e(f"v_cvt_pk_bf16_f32 v{r0}, v{r0}, v{r0 + 1}")
            e(f"v_cvt_pk_bf16_f32 v{r0 + 1}, v{r0 + 2}, v{r0 + 3}")
            e(f"ds_write_b64 v14, {vr(r0, 2)} offset:{cc * 64 + q * 16}")
    e("s_waitcnt lgkmcnt(0)")
    e("s_barrier")
    e("s_mul_i32 s28, s26, 8320")
    e("v_add_u32 v14, s28, v16")
    for i in range(8):
        e(f"ds_read_b128 {vr(192 + 4 * i, 4)}, v14 offset:{1040 * i}")
    e("s_lshl_b32 s27, s36, 6")
    e("s_add_u32 s27, s27, s37")
    e("s_lshl_b32 s27, s27, 15")
    e("s_lshl_b32 s28, s26, 13")
    e("s_add_u32 s27, s27, s28")
    e(f"s_add_u32 s27, s27, {APART}")
    for i in range(8):
        if i == 4:
            e("s_add_u32 s27, s27, 4096")
        e(f"s_waitcnt lgkmcnt({7 - i})")
        e(f"buffer_store_dwordx4 {vr(192 + 4 * i, 4)}, v16, s[20:23], s27 offen offset:{(i % 4) * 1024}")
    e("s_cmp_lg_u32 s26, 0")
    e("s_cbranch_scc1 KM_ASTAT_DONE")
    for w in range(4):
        e(f"ds_read_b32 v{12 + w}, v18 offset:{LX - MX + 128 * w}")
    e("s_waitcnt lgkmcnt(0)")
    e("v_add_f32 v12, v12, v13")
    e("v_add_f32 v14, v14, v15")
    e("v_add_f32 v9, v12, v14")
    e("v_lshlrev_b32 v14, 9, v11")
    e("s_lshl_b32 s27, s36, 14")
    e("s_lshl_b32 s28, s37, 3")
    e("s_add_u32 s27, s27, s28")
    e(f"s_add_u32 s27, s27, {ASTAT}")
    e(f"buffer_store_dwordx2 v[8:9], v14, s[20:23], s27 offen")
    lab("KM_ASTAT_DONE")
    prof_mark(2)
    e("s_add_u32 s31, s31, 32768")
    e("s_nop 1")
    bloads(192, 224, 31)
    e("v_mov_b32 v8, 0xff800000")
    for j in range(9, 18):
        e(f"v_mov_b32 v{j}, 0")
    e("s_waitcnt vmcnt(16)")
    bscore(128)
    bpv(160)
    e("s_waitcnt vmcnt(0)")
    bscore(192)
    bpv(224)
    e("s_branch KM_BFIN")
    lab("KM_BONLY")
    e("s_sub_u32 s27, s25, 2")
    e("s_mul_i32 s27, s27, 196608")
    e("s_add_u32 s31, s30, s27")
    e("s_sub_u32 s31, s31, 32768")
    e("v_mov_b32 v8, 0xff800000")
    for j in range(9, 18):
        e(f"v_mov_b32 v{j}, 0")

    def qb_hook():
        e("s_waitcnt vmcnt(32)")
        e("v_add_f32 v44, v44, v45")
        e("v_add_f32 v46, v46, v47")
        e("v_add_f32 v44, v44, v46")
        e("v_cvt_pk_bf16_f32 v44, v44, v44")
        e("v_lshrrev_b32 v42, 1, v42")
        e(f"v_add_u32 v42, {SCR + 2048}, v42")
        e("ds_write_b16 v42, v44")
        e("s_waitcnt lgkmcnt(0)")
        e("s_barrier")
        e("v_and_b32 v43, 15, v1")
        e("v_lshlrev_b32 v43, 4, v43")
        e(f"v_add_u32 v43, {SCR + 2048}, v43")
        e(f"ds_read_b128 {vr(2, 4)}, v43")
        e("s_waitcnt lgkmcnt(0)")
    bsched(6, lambda c: 3, hook=qb_hook)
    lab("KM_BFIN")
    prof_mark(3)
    bcombine(BO, BS, "KM_BDONE")
    lab("KM_BDONE")
    lab("KM_END")
    e("s_endpgm")
    kernel_desc(L, 512, 256)
    return f"; @launch kernel={L} grid=(256,1,1) block=(256,1,1) lds={KM_LDS}"


def k3():
    L = "k3_kernel"
    kernel_header(L)
    e("s_cmp_ge_u32 s2, 544")
    e("s_cbranch_scc1 K3_END")
    e("s_cmp_ge_u32 s2, 512")
    e("s_cbranch_scc1 K3_RED")
    srd(20, "ws")
    e("v_and_b32 v1, 63, v0")
    e("v_lshrrev_b32 v2, 6, v0")
    e("s_nop 0")
    e("v_readfirstlane_b32 s26, v2")
    e("s_bfe_u32 s52, s2, 0x20006")
    e("s_and_b32 s53, s2, 63")
    e("s_and_b32 s54, s2, 31")
    e("s_bfe_u32 s55, s2, 0x10005")
    e("s_lshr_b32 s56, s2, 8")
    e("s_cmp_lg_u32 s56, 0")
    e("s_cbranch_scc1 K3_LB")
    srd(16, "A_wo"); srd(12, "A_wuv")
    e("s_branch K3_LD")
    lab("K3_LB")
    srd(16, "B_wo")
    lab("K3_LD")
    e("v_lshrrev_b32 v44, 2, v0")
    e("v_and_b32 v45, 3, v0")
    e("v_lshlrev_b32 v46, 16, v44")
    e("v_lshl_add_u32 v46, v45, 4, v46")
    e("v_lshlrev_b32 v16, 4, v1")
    e("s_waitcnt lgkmcnt(0)")
    srd_fin(16, "A_wo"); srd_fin(20, "ws")
    e("s_lshl_b32 s28, s54, 17")
    e("s_lshl_b32 s29, s52, 15")
    e("s_add_u32 s28, s28, s29")
    e("s_lshl_b32 s29, s26, 13")
    e("s_add_u32 s28, s28, s29")
    for i in range(8):
        if i == 4:
            e("s_add_u32 s28, s28, 4096")
        e(f"buffer_load_dwordx4 {vr(224 + 4 * i, 4)}, v16, s[16:19], s28 offen offset:{(i % 4) * 1024} nt")
    e("s_cmp_lg_u32 s56, 0")
    e("s_cbranch_scc1 K3_B")
    srd_fin(12, "A_wuv")
    e("s_lshl_b32 s28, s54, 8")
    e("s_lshl_b32 s29, s52, 6")
    e("s_add_u32 s28, s28, s29")
    for i in range(8):
        e(f"buffer_load_dwordx4 {vr(192 + 4 * i, 4)}, v46, s[12:15], s28 offen nt")
        e("s_add_u32 s28, s28, 8192")
    e("v_lshlrev_b32 v4, 3, v0")
    e("v_lshlrev_b32 v5, 3, v1")
    e("s_lshl_b32 s28, s53, 9")
    e(f"s_add_u32 s28, s28, {ASTAT}")
    e("buffer_load_dwordx2 v[8:9], v5, s[20:23], s28 offen")
    e("v_and_b32 v12, 127, v0")
    e("v_lshrrev_b32 v13, 7, v0")
    e("v_lshlrev_b32 v12, 3, v12")
    e("v_lshl_add_u32 v12, v13, 20, v12")
    e("s_lshl_b32 s28, s55, 21")
    e("s_lshl_b32 s29, s54, 10")
    e("s_add_u32 s28, s28, s29")
    e(f"s_add_u32 s28, s28, {APART}")
    for s in range(32):
        e(f"buffer_load_dwordx2 {vr(64 + 2 * s, 2)}, v12, s[20:23], s28 offen")
        e("s_add_u32 s28, s28, 0x8000")
    e("s_waitcnt vmcnt(32)")
    e("v_mov_b32 v10, v8")
    for sh in (8, 4, 2, 1):
        e("s_nop 1")
        e(f"v_max_f32_dpp v10, v10, v10 row_ror:{sh} row_mask:0xf bank_mask:0xf")
    e("v_mov_b32 v11, v10")
    e("s_nop 1")
    e("v_permlane16_swap_b32 v10, v11")
    e("s_nop 1")
    e("v_max_f32 v10, v10, v11")
    e("v_mov_b32 v11, v10")
    e("s_nop 1")
    e("v_permlane32_swap_b32 v10, v11")
    e("s_nop 1")
    e("v_max_f32 v10, v10, v11")
    e("v_sub_f32 v8, v8, v10")
    e("v_exp_f32 v8, v8")
    e("s_nop 0")
    e("v_mul_f32 v10, v8, v9")
    for sh in (8, 4, 2, 1):
        e("s_nop 1")
        e(f"v_add_f32_dpp v10, v10, v10 row_ror:{sh} row_mask:0xf bank_mask:0xf")
    e("v_mov_b32 v11, v10")
    e("s_nop 1")
    e("v_permlane16_swap_b32 v10, v11")
    e("s_nop 1")
    e("v_add_f32 v10, v10, v11")
    e("v_mov_b32 v11, v10")
    e("s_nop 1")
    e("v_permlane32_swap_b32 v10, v11")
    e("s_nop 1")
    e("v_add_f32 v10, v10, v11")
    e("v_rcp_f32 v6, v10")
    for k in range(4):
        e(f"v_mov_b32 v{40 + k}, 0")
    e("s_lshr_b32 s30, s26, 1")
    e("s_lshl_b32 s30, s30, 5")
    for s in range(32):
        e(f"s_add_u32 s31, s30, {s}")
        e(f"v_readlane_b32 s{60 + (s & 3)}, v8, s31")
        e(f"s_waitcnt vmcnt({31 - s})")
        unpack2(48, 49, 64 + 2 * s)
        unpack2(50, 51, 65 + 2 * s)
        for k in range(4):
            e(f"v_fmac_f32 v{40 + k}, s{60 + (s & 3)}, v{48 + k}")
    for k in range(4):
        e(f"v_mul_f32 v{40 + k}, v{40 + k}, v6")
    e("v_lshlrev_b32 v4, 4, v0")
    e(f"ds_write_b128 v4, {vr(40, 4)} offset:10240")
    e("s_waitcnt lgkmcnt(0)")
    e("s_barrier")
    e("v_lshlrev_b32 v5, 5, v44")
    e(f"ds_read_b128 {vr(8, 4)}, v5 offset:10240")
    e(f"ds_read_b128 {vr(12, 4)}, v5 offset:10256")
    e(f"ds_read_b128 {vr(16, 4)}, v5 offset:12288")
    e(f"ds_read_b128 {vr(20, 4)}, v5 offset:12304")
    for k in range(8):
        e(f"v_mov_b32 v{24 + k}, 0")
    e("s_waitcnt lgkmcnt(0)")
    for k in range(8):
        e(f"v_add_f32 v{8 + k}, v{8 + k}, v{16 + k}")
    for i in range(8):
        for k in range(4):
            unpack2(32 + 2 * k, 33 + 2 * k, 192 + 4 * i + k)
        for k in range(8):
            e(f"v_fmac_f32 v{24 + k}, v{32 + k}, v{8 + i}")
    e("v_lshlrev_b32 v5, 7, v44")
    e("v_lshl_add_u32 v5, v45, 5, v5")
    e(f"ds_write_b128 v5, {vr(24, 4)} offset:2048")
    e(f"ds_write_b128 v5, {vr(28, 4)} offset:2064")
    e("s_waitcnt lgkmcnt(0)")
    e("s_barrier")
    e("v_and_b32 v5, 31, v1")
    e("v_lshrrev_b32 v6, 5, v1")
    e("v_lshlrev_b32 v5, 2, v5")
    e("v_lshl_add_u32 v5, v6, 12, v5")
    for g in range(32):
        e(f"ds_read_b32 v{64 + g}, v5 offset:{2048 + 128 * g}")
    e("s_waitcnt lgkmcnt(0)")
    for n in (16, 8, 4, 2, 1):
        for g in range(n):
            e(f"v_add_f32 v{64 + g}, v{64 + g}, v{64 + n + g}")
    e("v_mov_b32 v65, v64")
    e("s_nop 1")
    e("v_permlane32_swap_b32 v64, v65")
    e("s_nop 1")
    e("v_add_f32 v64, v64, v65")
    e("v_cvt_pk_bf16_f32 v64, v64, v64")
    e("v_lshlrev_b32 v64, 16, v64")
    e("s_branch K3_OUT")
    lab("K3_B")
    e("v_mov_b32 v5, 0")
    e("s_lshl_b32 s28, s53, 6")
    e(f"s_add_u32 s28, s28, {BSTAT}")
    for k in range(2):
        e(f"buffer_load_dwordx4 {vr(8 + 4 * k, 4)}, v5, s[20:23], s28 offen offset:{16 * k}")
    e("v_and_b32 v5, 31, v1")
    e("v_lshlrev_b32 v5, 2, v5")
    e("s_lshl_b32 s28, s53, 12")
    e("s_lshl_b32 s29, s52, 7")
    e("s_add_u32 s28, s28, s29")
    e(f"s_add_u32 s28, s28, {BPART}")
    for r in range(4):
        e(f"buffer_load_dword v{64 + r}, v5, s[20:23], s28 offen offset:{512 * r}")
    e("s_waitcnt vmcnt(0)")
    e("v_max3_f32 v56, v8, v10, v12")
    e("v_max_f32 v56, v56, v14")
    for r in range(4):
        e(f"v_sub_f32 v{8 + 2 * r}, v{8 + 2 * r}, v56")
    for r in range(4):
        e(f"v_exp_f32 v{8 + 2 * r}, v{8 + 2 * r}")
    e("s_nop 0")
    e("v_mul_f32 v57, v8, v9")
    e("v_mul_f32 v58, v8, v64")
    for r in range(1, 4):
        e(f"v_fmac_f32 v57, v{8 + 2 * r}, v{9 + 2 * r}")
        e(f"v_fmac_f32 v58, v{8 + 2 * r}, v{64 + r}")
    e("v_rcp_f32 v57, v57")
    e("s_nop 0")
    e("v_mul_f32 v58, v58, v57")
    e("v_cvt_pk_bf16_f32 v58, v58, v58")
    e("v_lshlrev_b32 v64, 16, v58")
    lab("K3_OUT")
    e("s_lshl_b32 s30, s26, 3")
    for k in range(8):
        e(f"v_mov_b32 v{24 + k}, 0")
    e("s_waitcnt vmcnt(0)")
    for i in range(8):
        e(f"s_add_u32 s31, s30, {i}")
        e(f"v_readlane_b32 s{60 + i}, v64, s31")
    for i in range(8):
        for k in range(4):
            unpack2(32 + 2 * k, 33 + 2 * k, 224 + 4 * i + k)
        for k in range(8):
            e(f"v_fmac_f32 v{24 + k}, s{60 + i}, v{32 + k}")
    e("s_barrier")
    e("v_lshlrev_b32 v5, 5, v1")
    e("s_lshl_b32 s30, s26, 11")
    e("v_add_u32 v5, s30, v5")
    e(f"ds_write_b128 v5, {vr(24, 4)}")
    e(f"ds_write_b128 v5, {vr(28, 4)} offset:16")
    e("s_waitcnt lgkmcnt(0)")
    e("s_barrier")
    e("v_lshlrev_b32 v5, 3, v0")
    for w in range(4):
        e(f"ds_read_b64 {vr(8 + 2 * w, 2)}, v5 offset:{2048 * w}")
    e("s_waitcnt lgkmcnt(0)")
    e("v_add_f32 v8, v8, v10")
    e("v_add_f32 v9, v9, v11")
    e("v_add_f32 v12, v12, v14")
    e("v_add_f32 v13, v13, v15")
    e("v_add_f32 v8, v8, v12")
    e("v_add_f32 v9, v9, v13")
    e("s_lshl_b32 s28, s56, 19")
    e("s_lshl_b32 s29, s55, 18")
    e("s_add_u32 s28, s28, s29")
    e("s_lshl_b32 s29, s54, 13")
    e("s_add_u32 s28, s28, s29")
    e("s_lshl_b32 s29, s52, 11")
    e("s_add_u32 s28, s28, s29")
    e(f"s_add_u32 s28, s28, {OPA}")
    e("v_or_b32 v8, 1, v8")
    e("v_or_b32 v9, 1, v9")
    e("buffer_store_dwordx2 v[8:9], v5, s[20:23], s28 offen sc1")
    e("s_branch K3_END")
    lab("K3_RED")
    srd(20, "ws"); srd(8, "out")
    e("s_sub_u32 s3, s2, 512")
    e("s_lshr_b32 s24, s3, 3")
    e("s_and_b32 s25, s3, 7")
    e("v_and_b32 v1, 15, v0")
    e("v_lshrrev_b32 v2, 4, v0")
    e("v_lshlrev_b32 v3, 14, v2")
    e("v_lshl_add_u32 v3, v1, 4, v3")
    e("s_lshl_b32 s26, s24, 18")
    e("s_lshl_b32 s27, s25, 8")
    e("s_add_u32 s26, s26, s27")
    e(f"s_add_u32 s26, s26, {OPA}")
    e("s_mov_b32 s30, 0x80000")
    e("s_waitcnt lgkmcnt(0)")
    srd_fin(20, "ws"); srd_fin(8, "out")
    lab("K3_RLOOP")
    e("s_mov_b32 s27, s26")
    for i in range(8):
        if i % 2 == 0 and i:
            e("s_add_u32 s27, s27, 4096")
        e(f"buffer_load_dwordx4 {vr(8 + 4 * i, 4)}, v3, s[20:23], s27 offen offset:{(i % 2) * 2048} sc1")
    e("s_waitcnt vmcnt(0)")
    e("v_and_b32 v40, v8, v9")
    for k in range(10, 40):
        e(f"v_and_b32 v40, v40, v{k}")
    e("v_and_b32 v40, 1, v40")
    e("v_cmp_eq_u32 vcc, 0, v40")
    e("s_cbranch_vccz K3_ROK")
    e("s_sleep 2")
    e("s_sub_u32 s30, s30, 1")
    e("s_cmp_lg_u32 s30, 0")
    e("s_cbranch_scc1 K3_RLOOP")
    lab("K3_ROK")
    for n in (4, 2, 1):
        for i in range(n):
            for k in range(4):
                e(f"v_add_f32 v{8 + 4 * i + k}, v{8 + 4 * i + k}, v{8 + 4 * (i + n) + k}")
    e("v_lshlrev_b32 v4, 4, v0")
    e(f"ds_write_b128 v4, {vr(8, 4)}")
    e("s_waitcnt lgkmcnt(0)")
    e("s_barrier")
    e("v_cmp_gt_u32 vcc, 64, v0")
    e("s_and_saveexec_b64 s[28:29], vcc")
    e("s_cbranch_execz K3_END")
    e("v_lshlrev_b32 v4, 2, v0")
    for g in range(16):
        e(f"ds_read_b32 v{8 + g}, v4 offset:{256 * g}")
    e("s_waitcnt lgkmcnt(0)")
    for n in (8, 4, 2, 1):
        for g in range(n):
            e(f"v_add_f32 v{8 + g}, v{8 + g}, v{8 + n + g}")
    e("v_cvt_pk_bf16_f32 v8, v8, v8")
    e("s_and_b32 s26, s24, 1")
    e("s_lshl_b32 s26, s26, 11")
    e("s_lshr_b32 s27, s24, 1")
    e("s_lshl_b32 s27, s27, 10")
    e("s_add_u32 s26, s26, s27")
    e("s_lshl_b32 s27, s25, 7")
    e("s_add_u32 s26, s26, s27")
    e("v_lshlrev_b32 v4, 1, v0")
    e("buffer_store_short v8, v4, s[8:11], s26 offen")
    lab("K3_END")
    e("s_endpgm")
    kernel_desc(L, 256, 256)
    return f"; @launch kernel={L} grid=(544,1,1) block=(256,1,1) lds=14336"


def k4():
    L = "k4_kernel"
    kernel_header(L)
    e("s_cmp_ge_u32 s2, 32")
    e("s_cbranch_scc1 K4_END")
    srd(20, "ws"); srd(8, "out")
    e("s_lshr_b32 s24, s2, 3")
    e("s_and_b32 s25, s2, 7")
    e("v_and_b32 v1, 15, v0")
    e("v_lshrrev_b32 v2, 4, v0")
    e("v_lshlrev_b32 v3, 14, v2")
    e("v_lshl_add_u32 v3, v1, 4, v3")
    e("s_lshl_b32 s26, s24, 18")
    e("s_lshl_b32 s27, s25, 8")
    e("s_add_u32 s26, s26, s27")
    e(f"s_add_u32 s26, s26, {OPA}")
    e("s_waitcnt lgkmcnt(0)")
    srd_fin(20, "ws"); srd_fin(8, "out")
    for i in range(8):
        if i % 2 == 0 and i:
            e("s_add_u32 s26, s26, 4096")
        e(f"buffer_load_dwordx4 {vr(8 + 4 * i, 4)}, v3, s[20:23], s26 offen offset:{(i % 2) * 2048}")
    e("s_waitcnt vmcnt(0)")
    for n in (4, 2, 1):
        for i in range(n):
            for k in range(4):
                e(f"v_add_f32 v{8 + 4 * i + k}, v{8 + 4 * i + k}, v{8 + 4 * (i + n) + k}")
    e("v_lshlrev_b32 v4, 4, v0")
    e(f"ds_write_b128 v4, {vr(8, 4)}")
    e("s_waitcnt lgkmcnt(0)")
    e("s_barrier")
    e("v_cmp_gt_u32 vcc, 64, v0")
    e("s_and_saveexec_b64 s[28:29], vcc")
    e("s_cbranch_execz K4_END")
    e("v_lshlrev_b32 v4, 2, v0")
    for g in range(16):
        e(f"ds_read_b32 v{8 + g}, v4 offset:{256 * g}")
    e("s_waitcnt lgkmcnt(0)")
    for n in (8, 4, 2, 1):
        for g in range(n):
            e(f"v_add_f32 v{8 + g}, v{8 + g}, v{8 + n + g}")
    e("v_cvt_pk_bf16_f32 v8, v8, v8")
    e("s_and_b32 s26, s24, 1")
    e("s_lshl_b32 s26, s26, 11")
    e("s_lshr_b32 s27, s24, 1")
    e("s_lshl_b32 s27, s27, 10")
    e("s_add_u32 s26, s26, s27")
    e("s_lshl_b32 s27, s25, 7")
    e("s_add_u32 s26, s26, s27")
    e("v_lshlrev_b32 v4, 1, v0")
    e("buffer_store_short v8, v4, s[8:11], s26 offen")
    lab("K4_END")
    e("s_endpgm")
    kernel_desc(L, 48, 48)
    return f"; @launch kernel={L} grid=(32,1,1) block=(256,1,1) lds=4096"


LAUNCHES = []


def main():
    LAUNCHES.append(k1())
    LAUNCHES.append(km())
    LAUNCHES.append(k3())
    head = open(f"cdna_kernels/{NAME}.s.ref").read().split("; Override launch")[0]
    txt = head + "\n".join(LAUNCHES) + "\n"
    txt += '.amdgcn_target "amdgcn-amd-amdhsa--gfx950"\n.text\n'
    txt += "\n".join(out) + "\n"
    txt += '.section .rodata,"a"\n' + "\n".join(descs) + "\n"
    path = sys.argv[1] if len(sys.argv) > 1 else f"cdna_kernels/{NAME}.s"
    open(path, "w").write(txt)


if __name__ == "__main__":
    main()
```

```python
import sys

NAME = "concat_heads__compressed_kv_cla__sliding_block_cached__decode"

KA = dict(A_x=0, A_ckv=8, A_wq=16, A_wuk=24, A_wuv=32, A_wo=40, B_x=48, B_k=56, B_v=64,
          B_wq=72, B_wo=80, out=88, dbg=96, ws=104)
SZ = dict(A_x=2048, A_ckv=16777216, A_wq=4194304, A_wuk=4194304, A_wuv=4194304, A_wo=4194304,
          B_x=2048, B_k=134217728, B_v=134217728, B_wq=4194304, B_wo=4194304, out=4096, dbg=256,
          ws=536870912)

QA_HI = 0x00000
QA_LO = 0x10000
QB = 0x20000
ASTAT = 0x30000
BPART = 0x40000
BSTAT = 0x80000
CTX = 0x70000
OPART = 0x80000
APART = 0x100000

OPA = 0xA00000
SCALE_BITS = 0x3DB504F3
LOG2E_BITS = 0x3FB8AA3B

out = []
import os
DEBUG = bool(os.environ.get('DEBUG'))
PROF = bool(os.environ.get('PROF'))
PST = os.environ.get('PST', '')
HIONLY = bool(os.environ.get('HIONLY'))
PROFBASE = 0xC00000


def prof_start():
    if PROF:
        e("s_memrealtime s[90:91]")


def prof_mark(slot, t=21):
    if PROF:
        e("s_memrealtime s[92:93]")
        e("s_waitcnt lgkmcnt(0)")
        e("s_sub_u32 s92, s92, s90")
        e(f"v_mov_b32 v{t}, s92")
        e("s_lshl_b32 s94, s2, 7")
        e(f"s_add_u32 s94, s94, {PROFBASE + prof_kernel[0] * 0x10000 + slot * 4}")
        e(f"v_lshrrev_b32 v{t+1}, 6, v0")
        e(f"v_lshlrev_b32 v{t+1}, 5, v{t+1}")
        e(f"buffer_store_dword v{t}, v{t+1}, s[20:23], s94 offen")


prof_kernel = [0]


def e(s):
    out.append("    " + s)


def lab(s):
    out.append(s + ":")


def srd(dst, name):
    e(f"s_load_dwordx2 s[{dst}:{dst+1}], s[0:1], {KA[name]}")


def srd_fin(dst, name):
    e(f"s_mov_b32 s{dst+2}, {SZ[name]}")
    e(f"s_mov_b32 s{dst+3}, 0x20000")


def vr(a, n):
    return f"v[{a}:{a+n-1}]"


def ar(a, n):
    return f"a[{a}:{a+n-1}]"


def kernel_header(label):
    out.append(f".globl {label}")
    out.append(".p2align 8")
    out.append(f".type {label},@function")
    lab(label)


descs = []


def kernel_desc(label, vgpr, accum, sgpr=102):
    descs.append(f""".p2align 6
.amdhsa_kernel {label}
  .amdhsa_next_free_vgpr {vgpr}
  .amdhsa_next_free_sgpr {sgpr}
  .amdhsa_accum_offset {accum}
  .amdhsa_group_segment_fixed_size 0
  .amdhsa_kernarg_size 112
  .amdhsa_user_sgpr_count 2
  .amdhsa_user_sgpr_kernarg_segment_ptr 1
  .amdhsa_system_sgpr_workgroup_id_x 1
.end_amdhsa_kernel""")


def unpack2(dlo, dhi, src):
    e(f"v_lshlrev_b32 v{dlo}, 16, v{src}")
    e(f"v_and_b32 v{dhi}, 0xffff0000, v{src}")


def gemv_rows(nrows, wbase, xbase0, xbase1, acc, tmp, xt, vm_after):
    for i in range(nrows):
        e(f"s_waitcnt vmcnt({nrows - 1 - i + vm_after})")
        if i % 2 == 0:
            e(f"v_lshlrev_b32 v{xt}, 16, v{xbase0 + i // 2}")
            e(f"v_lshlrev_b32 v{xt+1}, 16, v{xbase1 + i // 2}")
        else:
            e(f"v_and_b32 v{xt}, 0xffff0000, v{xbase0 + i // 2}")
            e(f"v_and_b32 v{xt+1}, 0xffff0000, v{xbase1 + i // 2}")
        for k in range(4):
            unpack2(tmp + 2 * k, tmp + 2 * k + 1, wbase + 4 * i + k)
        for k in range(8):
            e(f"v_fmac_f32 v{acc + k}, v{tmp + k}, v{xt}")
            e(f"v_fmac_f32 v{acc + 8 + k}, v{tmp + k}, v{xt+1}")


QP = 0x90000


def k1():
    L = "k0_kernel"
    kernel_header(L)
    e("s_cmp_ge_u32 s2, 256")
    e("s_cbranch_scc1 K0_END")
    srd(20, "ws")
    e("s_and_b32 s24, s2, 31")
    e("s_bfe_u32 s25, s2, 0x20005")
    e("s_lshr_b32 s26, s2, 7")
    e("s_cmp_lg_u32 s26, 0")
    e("s_cbranch_scc1 K0_LB")
    srd(8, "A_x"); srd(12, "A_wq")
    e("s_branch K0_LD")
    lab("K0_LB")
    srd(8, "B_x"); srd(12, "B_wq")
    lab("K0_LD")
    e("v_and_b32 v1, 15, v0")
    e("v_lshrrev_b32 v2, 4, v0")
    e("v_lshlrev_b32 v3, 16, v2")
    e("v_lshl_add_u32 v3, v1, 4, v3")
    e("v_lshlrev_b32 v4, 4, v2")
    e("s_lshl_b32 s27, s25, 20")
    e("s_lshl_b32 s28, s24, 8")
    e("s_add_u32 s27, s27, s28")
    e("s_lshl_b32 s28, s25, 8")
    e("s_waitcnt lgkmcnt(0)")
    srd_fin(8, "A_x"); srd_fin(12, "A_wq"); srd_fin(20, "ws")
    e("buffer_load_dwordx4 v[8:11], v4, s[8:11], s28 offen")
    e("buffer_load_dwordx4 v[12:15], v4, s[8:11], s28 offen offset:1024")
    for i in range(8):
        e(f"buffer_load_dwordx4 {vr(40 + 4 * i, 4)}, v3, s[12:15], s27 offen nt")
        e("s_add_u32 s27, s27, 8192")
    for k in range(4):
        e(f"v_mov_b32 v{76 + k}, 0")
    e("v_lshlrev_b32 v80, 4, v0")
    e("s_lshl_b32 s29, s2, 12")
    e(f"s_add_u32 s29, s29, {OPA}")
    e("buffer_store_dwordx4 v[76:79], v80, s[20:23], s29 offen")
    e("v_lshlrev_b32 v80, 1, v0")
    e("s_lshl_b32 s29, s2, 9")
    e("buffer_store_short v76, v80, s[20:23], s29 offen")
    for k in range(16):
        e(f"v_mov_b32 v{16 + k}, 0")
    gemv_rows(8, 40, 8, 12, 16, 32, 6, 2)
    e("v_lshlrev_b32 v6, 10, v2")
    e("v_lshl_add_u32 v6, v1, 5, v6")
    e(f"ds_write_b128 v6, {vr(16, 4)}")
    e(f"ds_write_b128 v6, {vr(20, 4)} offset:16")
    e(f"ds_write_b128 v6, {vr(24, 4)} offset:512")
    e(f"ds_write_b128 v6, {vr(28, 4)} offset:528")
    e("s_waitcnt lgkmcnt(0)")
    e("s_barrier")
    e("v_lshlrev_b32 v6, 2, v0")
    for g in range(16):
        e(f"ds_read_b32 v{8 + g}, v6 offset:{1024 * g}")
    e("s_waitcnt lgkmcnt(0)")
    for n in (8, 4, 2, 1):
        for g in range(n):
            e(f"v_add_f32 v{8 + g}, v{8 + g}, v{8 + n + g}")
    e("s_lshl_b32 s27, s26, 17")
    e("s_lshl_b32 s28, s24, 12")
    e("s_add_u32 s27, s27, s28")
    e("s_lshl_b32 s28, s25, 10")
    e("s_add_u32 s27, s27, s28")
    e(f"s_add_u32 s27, s27, {QP}")
    e("buffer_store_dword v8, v6, s[20:23], s27 offen")
    lab("K0_END")
    e("s_endpgm")
    kernel_desc(L, 88, 88)
    return f"; @launch kernel={L} grid=(256,1,1) block=(256,1,1) lds=16384"


MX = 131072
LX = 131584
PX = 132096
BO = 140288
SCR = PX
RS = PX
BS = BO + 8192
KM_LDS = BS + 128
C3 = 132
C4 = 136
C5 = 168
C6 = 200
SC = " sc1"


def fsw(r):
    return ((r & 3) << 2) | ((r >> 2) & 3)


def bloads(K, V, soff):
    for (base, srdn) in ((K, 12), (V, 16)):
        for i in range(8):
            va = 6 if i < 4 else 7
            e(f"buffer_load_dwordx4 {vr(base + 4 * i, 4)}, v{va}, s[{srdn}:{srdn+3}], s{soff} offen offset:{(i % 4) * 1024} nt")


def round_scale(a, b, t):
    e(f"v_cvt_pk_bf16_f32 v{t}, v{a}, v{b}")
    unpack2(a, b, t)
    e(f"v_mul_f32 v{a}, s34, v{a}")
    e(f"v_mul_f32 v{b}, s34, v{b}")
    e(f"v_cvt_pk_bf16_f32 v{t}, v{a}, v{b}")
    unpack2(a, b, t)
    e(f"v_mul_f32 v{a}, s35, v{a}")
    e(f"v_mul_f32 v{b}, s35, v{b}")


def bscore(K):
    for k in range(4):
        for i in range(8):
            c = "0" if k == 0 else f"v{18+i}"
            e(f"v_dot2_f32_bf16 v{18+i}, v{K + 4*i + k}, v{2+k}, {c}")
    for sh in (8, 4, 2, 1):
        for i in range(8):
            e(f"v_add_f32_dpp v{18+i}, v{18+i}, v{18+i} row_ror:{sh} row_mask:0xf bank_mask:0xf")
    for i in range(0, 8, 2):
        round_scale(18 + i, 19 + i, 26)
    e("v_max3_f32 v26, v18, v19, v20")
    e("v_max3_f32 v26, v26, v21, v22")
    e("v_max3_f32 v26, v26, v23, v24")
    e("v_max3_f32 v26, v26, v25, v8")
    e("v_sub_f32 v27, v8, v26")
    e("v_exp_f32 v27, v27")
    e("v_mov_b32 v8, v26")
    for i in range(8):
        e(f"v_sub_f32 v{18+i}, v{18+i}, v26")
    for i in range(8):
        e(f"v_exp_f32 v{18+i}, v{18+i}")
    e("v_mul_f32 v9, v9, v27")
    for j in range(8):
        e(f"v_mul_f32 v{10+j}, v{10+j}, v27")
    for i in range(8):
        e(f"v_add_f32 v9, v9, v{18+i}")


def bpv(V):
    for i in range(8):
        for k in range(4):
            unpack2(34 + 2 * k, 35 + 2 * k, V + 4 * i + k)
        for j in range(8):
            e(f"v_fmac_f32 v{10+j}, v{34+j}, v{18+i}")


def bload1(base, srdn, soff):
    for i in range(8):
        va = 6 if i < 4 else 7
        e(f"buffer_load_dwordx4 {vr(base + 4 * i, 4)}, v{va}, s[{srdn}:{srdn+3}], s{soff} offen offset:{(i % 4) * 1024} nt")


def bsched(nunits, ahead, hook=None):
    bufs = [(128, 160), (192, 224)]
    n = 2 * nunits
    issued = 0
    for c in range(n):
        while issued < n and issued <= c + min(ahead(c), 3):
            u, isv = issued >> 1, issued & 1
            if not isv:
                e("s_add_u32 s31, s31, 32768")
                e("s_mov_b32 s33, s31") if False else None
            e(f"s_mov_b32 s{60 + (u & 1)}, s31") if not isv else None
            bload1(bufs[u & 1][isv], 16 if isv else 12, 60 + (u & 1))
            issued += 1
        if c == 0 and hook:
            hook()
        e(f"s_waitcnt vmcnt({8 * (issued - 1 - c)})")
        u, isv = c >> 1, c & 1
        if isv:
            bpv(bufs[u & 1][1])
        else:
            if u < 3:
                prof_mark(u)
            bscore(bufs[u & 1][0])


def bcombine(BO, BS, done):
    e("v_lshrrev_b32 v18, 4, v1")
    e("s_lshl_b32 s27, s26, 2")
    e("v_add_u32 v18, s27, v18")
    e("v_and_b32 v19, 15, v1")
    e("v_lshlrev_b32 v20, 9, v18")
    e("v_lshl_add_u32 v20, v19, 5, v20")
    e(f"v_add_u32 v20, {BO}, v20")
    e(f"ds_write_b128 v20, {vr(10, 4)}")
    e(f"ds_write_b128 v20, {vr(14, 4)} offset:16")
    e("v_lshlrev_b32 v21, 3, v18")
    e(f"v_add_u32 v21, {BS}, v21")
    e("ds_write_b64 v21, v[8:9]")
    e("s_waitcnt lgkmcnt(0)")
    e("s_barrier")
    e("s_cmp_ge_u32 s26, 2")
    e(f"s_cbranch_scc1 {done}")
    e(f"v_mov_b32 v21, {BS}")
    for s in range(16):
        e(f"ds_read_b64 {vr(64 + 2 * s, 2)}, v21 offset:{8 * s}")
    e("v_lshlrev_b32 v20, 2, v0")
    e(f"v_add_u32 v20, {BO}, v20")
    for s in range(16):
        e(f"ds_read_b32 v{96 + s}, v20 offset:{512 * s}")
    e("s_waitcnt lgkmcnt(0)")
    e("v_max3_f32 v8, v64, v66, v68")
    for s in range(3, 15, 2):
        e(f"v_max3_f32 v8, v8, v{64 + 2 * s}, v{66 + 2 * s}")
    e("v_max_f32 v8, v8, v94")
    for s in range(16):
        e(f"v_sub_f32 v{64 + 2 * s}, v{64 + 2 * s}, v8")
    for s in range(16):
        e(f"v_exp_f32 v{64 + 2 * s}, v{64 + 2 * s}")
    e("s_nop 0")
    e("v_mul_f32 v9, v64, v65")
    e("v_mul_f32 v10, v64, v96")
    for s in range(1, 16):
        e(f"v_fmac_f32 v9, v{64 + 2 * s}, v{65 + 2 * s}")
        e(f"v_fmac_f32 v10, v{64 + 2 * s}, v{96 + s}")
    e("s_lshl_b32 s27, s24, 3")
    e("s_add_u32 s27, s27, s25")
    e("s_lshl_b32 s28, s27, 9")
    e(f"s_add_u32 s28, s28, {BPART}")
    e("v_lshlrev_b32 v20, 2, v0")
    e(f"buffer_store_dword v10, v20, s[20:23], s28 offen")
    e("s_lshl_b32 s28, s27, 3")
    e(f"s_add_u32 s28, s28, {BSTAT}")
    e("v_mov_b32 v20, 0")
    e(f"buffer_store_dwordx2 v[8:9], v20, s[20:23], s28 offen")


def dma_tile():
    for i in range(32):
        if i % 4 == 0:
            e(f"s_add_u32 m0, s41, {i * 1024}")
            e(f"s_add_u32 s42, s40, {i * 1024}")
        e(f"v_xor_b32 v11, {fsw(i & 15) * 16}, v16")
        e(f"buffer_load_dwordx4 v11, s[8:11], s42 offen offset:{(i % 4) * 1024} nt lds")


npoll = [0]


def poll(off, target, soff=None):
    n = npoll[0]
    npoll[0] += 1
    e("s_cmp_lg_u32 s26, 0")
    e(f"s_cbranch_scc1 POLL_DONE{n}")
    e("v_mov_b32 v22, 0")
    e("s_mov_b32 s44, 0x40000")
    if soff is None:
        e(f"s_mov_b32 s45, {off}")
        soff = 45
    lab(f"POLL{n}")
    e(f"buffer_load_dword v21, v22, s[48:51], s{soff} offen{SC}")
    e("s_waitcnt vmcnt(0)")
    e("v_readfirstlane_b32 s43, v21")
    e(f"s_cmp_ge_u32 s43, {target}")
    e(f"s_cbranch_scc1 POLL_DONE{n}")
    e("s_sleep 4")
    e("s_sub_u32 s44, s44, 1")
    e("s_cmp_lg_u32 s44, 0")
    e(f"s_cbranch_scc1 POLL{n}")
    lab(f"POLL_DONE{n}")
    e("s_barrier")


def signal(soffs):
    n = npoll[0]
    npoll[0] += 1
    e("s_waitcnt vmcnt(0)")
    e("s_barrier")
    e("s_cmp_lg_u32 s26, 0")
    e(f"s_cbranch_scc1 SIG_DONE{n}")
    e("v_mov_b32 v21, 1")
    e("v_mov_b32 v22, 0")
    e("s_mov_b64 s[46:47], exec")
    e("s_mov_b64 exec, 1")
    for so in soffs:
        e(f"buffer_atomic_add v21, v22, s[48:51], s{so} offen sc1")
    e("s_mov_b64 exec, s[46:47]")
    lab(f"SIG_DONE{n}")


filler = []


def fill(n=1):
    for _ in range(n):
        if filler:
            for ins in filler.pop(0):
                e(ins)


def tile_loads(defer=False):
    for i in range(32):
        g = []
        if i % 4 == 0:
            g.append(f"s_add_u32 s42, s40, {i * 1024}")
        g.append(f"buffer_load_dwordx4 {ar(128 + 4 * i, 4)}, v16, s[8:11], s42 offen offset:{(i % 4) * 1024} nt")
        filler.append(g)
    if not defer:
        fill(32)


def tile_to_lds():
    e("v_add_u32 v12, s41, v16")
    for i in range(32):
        e(f"v_xor_b32 v{13 + (i & 1)}, {fsw(i & 15) * 16}, v12")
        e(f"s_waitcnt vmcnt({31 - i})")
        e(f"ds_write_b128 v{13 + (i & 1)}, {ar(128 + 4 * i, 4)} offset:{i * 1024}")
    e("s_waitcnt lgkmcnt(0)")


def a_tile(first):
    seq = [(j, k) for j in range(4) for k in range(8)]

    def sread(n):
        j, k = seq[n]
        t = 22 + (n & 1)
        e(f"v_add_u32 v{t}, v{24 + j}, v{28 + k}")
        e(f"ds_read_b128 {vr(72 + 4 * (n % 8), 4)}, v{t}")
    for n in range(8):
        sread(n)
    for n in range(32):
        j, k = seq[n]
        e(f"s_waitcnt lgkmcnt({min(7, 31 - n)})")
        f = vr(72 + 4 * (n % 8), 4)
        acc = ar(64 + 16 * j, 16)
        c = "0" if k == 0 else acc
        e(f"v_mfma_f32_32x32x16_bf16 {acc}, {f}, {vr(192 + 4 * k, 4)}, {c}")
        if not HIONLY:
            e(f"v_mfma_f32_32x32x16_bf16 {acc}, {f}, {vr(224 + 4 * k, 4)}, {acc}")
        if n + 8 < 32:
            sread(n + 8)
        if n % 2 == 1:
            fill(1)
    e("s_nop 15")
    for i in range(16):
        e(f"v_accvgpr_read_b32 v{56 + i}, a{64 + i}")
    for j in range(1, 4):
        for q in range(4):
            e(f"ds_write_b128 v36, {ar(64 + 16 * j + 4 * q, 4)} offset:{1024 * q}")
        e("s_waitcnt lgkmcnt(0)")
        e("s_barrier")
        for q in range(4):
            e(f"ds_read_b128 {vr(72 + 4 * q, 4)}, v{36 + j} offset:{1024 * q}")
        e("s_waitcnt lgkmcnt(0)")
        if j < 3:
            e("s_barrier")
        fill(1)
        for i in range(16):
            e(f"v_add_f32 v{56 + i}, v{56 + i}, v{72 + i}")
    for i in range(0, 16, 2):
        round_scale(56 + i, 57 + i, 11)
        if i % 4 == 0:
            fill(1)
    e("v_max3_f32 v12, v56, v57, v58")
    for i in range(59, 71, 2):
        e(f"v_max3_f32 v12, v12, v{i}, v{i+1}")
    e("v_max_f32 v12, v12, v71")
    e("v_mov_b32 v13, v12")
    e("s_nop 1")
    e("v_permlane32_swap_b32 v12, v13")
    e("s_nop 1")
    e("v_max_f32 v12, v12, v13")
    e("ds_write_b32 v17, v12")
    e("s_waitcnt lgkmcnt(0)")
    e("s_barrier")
    for w in range(4):
        e(f"ds_read_b32 v{12 + w}, v18 offset:{128 * w}")
    e("s_waitcnt lgkmcnt(0)")
    e("v_max3_f32 v12, v12, v13, v14")
    e("v_max3_f32 v12, v12, v15, v8")
    e("v_sub_f32 v10, v8, v12")
    e("v_exp_f32 v10, v10")
    e("v_mov_b32 v8, v12")
    for i in range(16):
        e(f"v_sub_f32 v{56+i}, v{56+i}, v12")
    for i in range(16):
        e(f"v_exp_f32 v{56+i}, v{56+i}")
    e("v_mul_f32 v9, v9, v10")
    for i in range(16):
        e(f"v_add_f32 v9, v9, v{56+i}")
    for i in range(8):
        e(f"v_cvt_pk_bf16_f32 v{96+i}, v{56+2*i}, v{57+2*i}")
    e(f"ds_write_b128 v19, {vr(96, 4)}")
    e(f"ds_write_b128 v19, {vr(100, 4)} offset:1024")
    e("s_waitcnt lgkmcnt(0)")
    e("s_barrier")
    for tu in range(8):
        e(f"ds_read_b128 {vr(64 + 4 * tu, 4)}, v20 offset:{(tu >> 1) * 2048 + (tu & 1) * 1024}")
    if not first:
        for i in range(64):
            e(f"v_mul_f32 v{192+i}, v{192+i}, v10")

    def trreads(tu):
        t, u = tu >> 1, tu & 1
        bufb = 96 + 16 * (tu & 1)
        for cc in range(4):
            for v in range(2):
                a = 40 + 8 * (t >> 1) + 2 * cc + v
                off = (32 * (t & 1) + 16 * u + 8 * v) * 1024
                e(f"ds_read_b64_tr_b16 {vr(bufb + 4 * cc + 2 * v, 2)}, v{a} offset:{off}")
    trreads(0)
    for tu in range(8):
        if tu + 1 < 8:
            trreads(tu + 1)
            e("s_waitcnt lgkmcnt(8)")
        else:
            e("s_waitcnt lgkmcnt(0)")
        bufb = 96 + 16 * (tu & 1)
        for cc in range(4):
            acc = vr(192 + 16 * cc, 16)
            c = "0" if (first and tu == 0) else acc
            e(f"v_mfma_f32_32x32x16_bf16 {acc}, {vr(bufb + 4 * cc, 4)}, {vr(64 + 4 * tu, 4)}, {c}")
        fill(1)
    fill(99)


def km():
    L = "km_kernel"
    kernel_header(L)
    e("s_cmp_ge_u32 s2, 256")
    e("s_cbranch_scc1 KM_END")
    prof_kernel[0] = 1
    prof_start()
    srd(8, "A_ckv"); srd(12, "B_k"); srd(16, "B_v"); srd(20, "ws"); srd(48, "dbg")
    e("s_and_b32 s3, s2, 7")
    e("s_lshr_b32 s4, s2, 3")
    e("s_lshr_b32 s5, s3, 2")
    e("s_lshl_b32 s24, s4, 1")
    e("s_or_b32 s24, s24, s5")
    e("s_add_u32 s25, s3, s4")
    e("s_and_b32 s25, s25, 3")
    e("v_and_b32 v1, 63, v0")
    e("v_lshrrev_b32 v2, 6, v0")
    e("s_nop 0")
    e("v_readfirstlane_b32 s26, v2")
    e(f"s_mov_b32 s34, {SCALE_BITS:#x}")
    e(f"s_mov_b32 s35, {LOG2E_BITS:#x}")
    e("v_lshlrev_b32 v16, 4, v1")
    e("s_lshl_b32 s27, s26, 13")
    e("v_add_u32 v6, s27, v16")
    e("v_add_u32 v7, 4096, v6")
    e("s_lshl_b32 s30, s24, 21")
    e("s_add_u32 s30, s30, 1572864")
    srd(52, "A_wuk")
    e("v_and_b32 v42, 127, v0")
    e("v_lshlrev_b32 v42, 2, v42")
    e("s_and_b32 s27, s24, 31")
    e("s_lshl_b32 s27, s27, 12")
    e("s_lshr_b32 s28, s24, 5")
    e("s_lshl_b32 s28, s28, 9")
    e("s_add_u32 s27, s27, s28")
    e(f"s_add_u32 s27, s27, {QP + 0x20000}")
    e("s_waitcnt lgkmcnt(0)")
    srd_fin(8, "A_ckv"); srd_fin(12, "B_k"); srd_fin(16, "B_v"); srd_fin(20, "ws"); srd_fin(48, "dbg"); srd_fin(52, "A_wuk")
    for mq in range(4):
        e(f"buffer_load_dword v{44 + mq}, v42, s[20:23], s27 offen offset:{1024 * mq}")
    e("s_cmp_ge_u32 s25, 2")
    e("s_cbranch_scc1 KM_BONLY")
    e("s_lshr_b32 s36, s24, 5")
    e("s_and_b32 s37, s24, 31")
    e("s_lshl_b32 s37, s37, 1")
    e("s_add_u32 s37, s37, s25")
    e("s_lshl_b32 s38, s24, 1")
    e("s_add_u32 s38, s38, s25")
    e("s_lshr_b32 s39, s38, 5")
    e("s_and_b32 s38, s38, 31")
    e("s_lshl_b32 s40, s36, 23")
    e("s_lshl_b32 s27, s37, 17")
    e("s_add_u32 s40, s40, s27")
    e("s_lshl_b32 s41, s26, 15")
    e("s_add_u32 s40, s40, s41")
    e("v_lshlrev_b32 v43, 2, v0")
    e("s_lshl_b32 s27, s38, 12")
    e(f"s_add_u32 s27, s27, {QP}")
    for mq in range(4):
        e(f"buffer_load_dword v{48 + mq}, v43, s[20:23], s27 offen offset:{1024 * mq}")
    e("v_and_b32 v52, 15, v0")
    e("v_lshrrev_b32 v53, 4, v0")
    e("v_lshlrev_b32 v54, 13, v53")
    e("v_lshl_add_u32 v54, v52, 4, v54")
    e("s_lshl_b32 s27, s39, 20")
    e("s_lshl_b32 s28, s38, 8")
    e("s_add_u32 s27, s27, s28")
    for i in range(8):
        e(f"buffer_load_dwordx4 {vr(64 + 4 * i, 4)}, v54, s[52:55], s27 offen nt")
        e("s_add_u32 s27, s27, 0x20000")
    tile_loads(defer=True)
    fill(6)
    e("s_waitcnt vmcnt(14)")
    e("v_add_f32 v44, v44, v45")
    e("v_add_f32 v46, v46, v47")
    e("v_add_f32 v48, v48, v49")
    e("v_add_f32 v50, v50, v51")
    e("v_add_f32 v44, v44, v46")
    e("v_add_f32 v48, v48, v50")
    e("v_cvt_pk_bf16_f32 v44, v44, v44")
    e("v_cvt_pk_bf16_f32 v48, v48, v48")
    e("v_lshrrev_b32 v42, 1, v42")
    e(f"v_add_u32 v42, {SCR + 2048}, v42")
    e("ds_write_b16 v42, v44")
    e("v_lshlrev_b32 v43, 1, v0")
    e(f"v_add_u32 v43, {SCR}, v43")
    e("ds_write_b16 v43, v48")
    fill(2)
    e("s_waitcnt lgkmcnt(0)")
    e("s_barrier")
    e("v_lshlrev_b32 v43, 4, v52")
    e(f"v_add_u32 v43, {SCR}, v43")
    e(f"ds_read_b128 {vr(8, 4)}, v43")
    e(f"ds_read_b128 {vr(12, 4)}, v43 offset:256")
    e(f"ds_read_b128 {vr(2, 4)}, v43 offset:2048")
    e("s_waitcnt vmcnt(8) lgkmcnt(0)")
    for k in range(4):
        for i in range(8):
            for b in range(2):
                d = 24 + 2 * i + b
                c = "0" if k == 0 else f"v{d}"
                e(f"v_dot2_f32_bf16 v{d}, v{64 + 4 * i + k}, v{8 + 4 * b + k}, {c}")
    e("s_nop 3")
    for sh in (8, 4, 2, 1):
        for d in range(24, 40):
            e(f"v_add_f32_dpp v{d}, v{d}, v{d} row_ror:{sh} row_mask:0xf bank_mask:0xf")
    e("v_lshlrev_b32 v43, 2, v53")
    e(f"v_add_u32 v43, {SCR + 512}, v43")
    for i in range(8):
        for b in range(2):
            e(f"ds_write_b32 v43, v{24 + 2 * i + b} offset:{512 * b + 64 * i}")
    e("s_waitcnt lgkmcnt(0)")
    e("s_barrier")
    e("v_cmp_gt_u32 vcc, 32, v0")
    e("s_and_saveexec_b64 s[56:57], vcc")
    e("s_cbranch_execz KM_QDONE")
    e("v_lshlrev_b32 v43, 5, v0")
    e(f"v_add_u32 v43, {SCR + 512}, v43")
    e(f"ds_read_b128 {vr(8, 4)}, v43")
    e(f"ds_read_b128 {vr(12, 4)}, v43 offset:16")
    e("s_waitcnt lgkmcnt(0)")
    for k in range(4):
        a_, b_ = 8 + 2 * k, 9 + 2 * k
        e(f"v_cvt_pk_bf16_f32 v{24 + k}, v{a_}, v{b_}")
        e(f"v_or_b32 v{24 + k}, 1, v{24 + k}")
        unpack2(32, 33, 24 + k)
        e(f"v_sub_f32 v32, v{a_}, v32")
        e(f"v_sub_f32 v33, v{b_}, v33")
        e(f"v_cvt_pk_bf16_f32 v{28 + k}, v32, v33")
        e(f"v_or_b32 v{28 + k}, 1, v{28 + k}")
    e("v_lshrrev_b32 v43, 4, v0")
    e("v_and_b32 v32, 15, v0")
    e("v_lshrrev_b32 v33, 1, v32")
    e("v_and_b32 v32, 1, v32")
    e("v_lshlrev_b32 v43, 15, v43")
    e("v_lshl_add_u32 v43, v33, 10, v43")
    e("v_lshl_add_u32 v43, v32, 9, v43")
    e("s_lshl_b32 s27, s39, 13")
    e("s_lshl_b32 s28, s38, 4")
    e("s_add_u32 s27, s27, s28")
    e(f"buffer_store_dwordx4 {vr(24, 4)}, v43, s[20:23], s27 offen sc1")
    e(f"s_add_u32 s27, s27, {QA_LO}")
    e(f"buffer_store_dwordx4 {vr(28, 4)}, v43, s[20:23], s27 offen sc1")
    lab("KM_QDONE")
    e("s_mov_b64 exec, s[56:57]")
    fill(99)
    e("v_and_b32 v56, 31, v1")
    e("v_lshrrev_b32 v57, 5, v1")
    e("v_and_b32 v58, 3, v1")
    e("v_lshlrev_b32 v58, 2, v58")
    e("v_bfe_u32 v59, v1, 2, 2")
    e("v_or_b32 v58, v58, v59")
    e("v_xor_b32 v58, v58, v57")
    e("v_lshlrev_b32 v58, 4, v58")
    for k in range(8):
        e(f"v_xor_b32 v{28 + k}, {32 * k}, v58")
    e("v_lshlrev_b32 v59, 10, v56")
    e("s_lshl_b32 s27, s26, 8")
    e("v_add_u32 v59, s27, v59")
    for j in range(4):
        e(f"s_add_u32 s27, s26, {j}")
        e("s_and_b32 s27, s27, 3")
        e("s_lshl_b32 s27, s27, 15")
        e(f"v_add_u32 v{24 + j}, s27, v59")
        e(f"s_sub_u32 s27, s26, {j}")
        e("s_and_b32 s27, s27, 3")
        e("s_lshl_b32 s27, s27, 12")
        e(f"s_add_u32 s27, s27, {RS}")
        e(f"v_add_u32 v{36 + j}, s27, v16")
    e("v_lshrrev_b32 v60, 4, v1")
    e("v_lshrrev_b32 v61, 5, v1")
    e("v_bfe_u32 v62, v1, 2, 2")
    e("v_and_b32 v63, 3, v1")
    e("v_and_b32 v64, 1, v60")
    e("v_lshlrev_b32 v64, 1, v64")
    e("v_lshrrev_b32 v65, 1, v63")
    e("v_add_u32 v64, v64, v65")
    e("v_lshl_or_b32 v65, v62, 2, v61")
    e("v_xor_b32 v64, v64, v65")
    e("v_lshlrev_b32 v64, 4, v64")
    e("v_and_b32 v65, 1, v63")
    e("v_lshl_add_u32 v64, v65, 3, v64")
    e("v_lshl_add_u32 v65, v61, 2, v62")
    e("v_lshl_add_u32 v64, v65, 10, v64")
    e("s_lshl_b32 s27, s26, 8")
    e("v_add_u32 v64, s27, v64")
    for cc in range(4):
        for v in range(2):
            e(f"v_xor_b32 v{40 + 2 * cc + v}, {64 * cc + 32 * v}, v64")
            e(f"v_add_u32 v{48 + 2 * cc + v}, 0x10000, v{40 + 2 * cc + v}")
    e("v_lshlrev_b32 v18, 2, v56")
    e(f"v_add_u32 v18, {MX}, v18")
    e("s_lshl_b32 s27, s26, 7")
    e("v_add_u32 v17, s27, v18")
    e(f"v_add_u32 v20, {PX}, v16")
    e("s_lshl_b32 s27, s26, 11")
    e("v_add_u32 v19, s27, v20")
    e("v_mov_b32 v8, 0xff800000")
    e("v_mov_b32 v9, 0")
    tile_to_lds()
    e("s_lshl_b32 s27, s36, 15")
    e("s_lshl_b32 s28, s26, 13")
    e("s_add_u32 s27, s27, s28")
    e("s_mov_b32 s44, 0x80000")
    lab("KM_QPOLL")
    for part in range(1 if HIONLY else 2):
        for s in range(8):
            if s % 4 == 0:
                e(f"s_add_u32 s28, s27, {part * QA_LO + s * 1024}")
            e(f"buffer_load_dwordx4 {vr(192 + 32 * part + 4 * s, 4)}, v16, s[20:23], s28 offen offset:{(s % 4) * 1024} sc1")
    e("s_waitcnt vmcnt(0)")
    e("v_and_b32 v11, v192, v193")
    for k in range(194, 224 if HIONLY else 256):
        e(f"v_and_b32 v11, v11, v{k}")
    e("v_and_b32 v11, 1, v11")
    e("v_cmp_eq_u32 vcc, 0, v11")
    e("s_cbranch_vccz KM_QOK")
    e("s_sleep 1")
    e("s_sub_u32 s44, s44, 1")
    e("s_cmp_lg_u32 s44, 0")
    e("s_cbranch_scc1 KM_QPOLL")
    lab("KM_QOK")
    e("s_lshl_b32 s27, s25, 16")
    e("s_add_u32 s31, s30, s27")
    e("s_add_u32 s31, s31, 393216")
    for (base, srdn) in ((128, 12), (160, 16)):
        for i in range(8):
            va = 6 if i < 4 else 7
            filler.append([f"buffer_load_dwordx4 {vr(base + 4 * i, 4)}, v{va}, s[{srdn}:{srdn+3}], s31 offen offset:{(i % 4) * 1024} nt"])
            filler.append([])
    e("s_barrier")
    prof_mark(0)
    a_tile(True)
    prof_mark(1)
    e("v_mov_b32 v13, v9")
    e("s_nop 1")
    e("v_permlane32_swap_b32 v9, v13")
    e("s_nop 1")
    e("v_add_f32 v9, v9, v13")
    e(f"ds_write_b32 v17, v9 offset:{LX - MX}")
    e("s_nop 7")
    e("s_barrier")
    e("v_and_b32 v11, 31, v1")
    e("v_lshrrev_b32 v12, 5, v1")
    e("s_movk_i32 s27, 1040")
    e("v_mul_lo_u32 v14, v11, s27")
    e("v_lshl_add_u32 v14, v12, 3, v14")
    e("s_lshl_b32 s28, s26, 8")
    e("v_add_u32 v14, s28, v14")
    for cc in range(4):
        for q in range(4):
            r0 = 192 + 16 * cc + 4 * q
            e(f"v_cvt_pk_bf16_f32 v{r0}, v{r0}, v{r0 + 1}")
            e(f"v_cvt_pk_bf16_f32 v{r0 + 1}, v{r0 + 2}, v{r0 + 3}")
            e(f"ds_write_b64 v14, {vr(r0, 2)} offset:{cc * 64 + q * 16}")
    e("s_waitcnt lgkmcnt(0)")
    e("s_barrier")
    e("s_mul_i32 s28, s26, 8320")
    e("v_add_u32 v14, s28, v16")
    for i in range(8):
        e(f"ds_read_b128 {vr(192 + 4 * i, 4)}, v14 offset:{1040 * i}")
    e("s_lshl_b32 s27, s36, 6")
    e("s_add_u32 s27, s27, s37")
    e("s_lshl_b32 s27, s27, 15")
    e("s_lshl_b32 s28, s26, 13")
    e("s_add_u32 s27, s27, s28")
    e(f"s_add_u32 s27, s27, {APART}")
    for i in range(8):
        if i == 4:
            e("s_add_u32 s27, s27, 4096")
        e(f"s_waitcnt lgkmcnt({7 - i})")
        e(f"buffer_store_dwordx4 {vr(192 + 4 * i, 4)}, v16, s[20:23], s27 offen offset:{(i % 4) * 1024}")
    e("s_cmp_lg_u32 s26, 0")
    e("s_cbranch_scc1 KM_ASTAT_DONE")
    for w in range(4):
        e(f"ds_read_b32 v{12 + w}, v18 offset:{LX - MX + 128 * w}")
    e("s_waitcnt lgkmcnt(0)")
    e("v_add_f32 v12, v12, v13")
    e("v_add_f32 v14, v14, v15")
    e("v_add_f32 v9, v12, v14")
    e("v_lshlrev_b32 v14, 9, v11")
    e("s_lshl_b32 s27, s36, 14")
    e("s_lshl_b32 s28, s37, 3")
    e("s_add_u32 s27, s27, s28")
    e(f"s_add_u32 s27, s27, {ASTAT}")
    e(f"buffer_store_dwordx2 v[8:9], v14, s[20:23], s27 offen")
    lab("KM_ASTAT_DONE")
    prof_mark(2)
    e("s_add_u32 s31, s31, 32768")
    e("s_nop 1")
    bloads(192, 224, 31)
    e("v_mov_b32 v8, 0xff800000")
    for j in range(9, 18):
        e(f"v_mov_b32 v{j}, 0")
    e("s_waitcnt vmcnt(16)")
    bscore(128)
    bpv(160)
    e("s_waitcnt vmcnt(0)")
    bscore(192)
    bpv(224)
    e("s_branch KM_BFIN")
    lab("KM_BONLY")
    e("s_sub_u32 s27, s25, 2")
    e("s_mul_i32 s27, s27, 196608")
    e("s_add_u32 s31, s30, s27")
    e("s_sub_u32 s31, s31, 32768")
    e("v_mov_b32 v8, 0xff800000")
    for j in range(9, 18):
        e(f"v_mov_b32 v{j}, 0")

    def qb_hook():
        e("s_waitcnt vmcnt(32)")
        e("v_add_f32 v44, v44, v45")
        e("v_add_f32 v46, v46, v47")
        e("v_add_f32 v44, v44, v46")
        e("v_cvt_pk_bf16_f32 v44, v44, v44")
        e("v_lshrrev_b32 v42, 1, v42")
        e(f"v_add_u32 v42, {SCR + 2048}, v42")
        e("ds_write_b16 v42, v44")
        e("s_waitcnt lgkmcnt(0)")
        e("s_barrier")
        e("v_and_b32 v43, 15, v1")
        e("v_lshlrev_b32 v43, 4, v43")
        e(f"v_add_u32 v43, {SCR + 2048}, v43")
        e(f"ds_read_b128 {vr(2, 4)}, v43")
        e("s_waitcnt lgkmcnt(0)")
    bsched(6, lambda c: 3, hook=qb_hook)
    lab("KM_BFIN")
    prof_mark(3)
    bcombine(BO, BS, "KM_BDONE")
    lab("KM_BDONE")
    lab("KM_END")
    e("s_endpgm")
    kernel_desc(L, 512, 256)
    return f"; @launch kernel={L} grid=(256,1,1) block=(256,1,1) lds={KM_LDS}"


def k3():
    L = "k3_kernel"
    kernel_header(L)
    e("s_cmp_ge_u32 s2, 544")
    e("s_cbranch_scc1 K3_END")
    e("s_cmp_ge_u32 s2, 512")
    e("s_cbranch_scc1 K3_RED")
    srd(20, "ws")
    e("v_and_b32 v1, 63, v0")
    e("v_lshrrev_b32 v2, 6, v0")
    e("s_nop 0")
    e("v_readfirstlane_b32 s26, v2")
    e("s_bfe_u32 s52, s2, 0x20006")
    e("s_and_b32 s53, s2, 63")
    e("s_and_b32 s54, s2, 31")
    e("s_bfe_u32 s55, s2, 0x10005")
    e("s_lshr_b32 s56, s2, 8")
    e("s_cmp_lg_u32 s56, 0")
    e("s_cbranch_scc1 K3_LB")
    srd(16, "A_wo"); srd(12, "A_wuv")
    e("s_branch K3_LD")
    lab("K3_LB")
    srd(16, "B_wo")
    lab("K3_LD")
    e("v_lshrrev_b32 v44, 2, v0")
    e("v_and_b32 v45, 3, v0")
    e("v_lshlrev_b32 v46, 16, v44")
    e("v_lshl_add_u32 v46, v45, 4, v46")
    e("v_lshlrev_b32 v16, 4, v1")
    e("s_waitcnt lgkmcnt(0)")
    srd_fin(16, "A_wo"); srd_fin(20, "ws")
    e("s_lshl_b32 s28, s54, 17")
    e("s_lshl_b32 s29, s52, 15")
    e("s_add_u32 s28, s28, s29")
    e("s_lshl_b32 s29, s26, 13")
    e("s_add_u32 s28, s28, s29")
    for i in range(8):
        if i == 4:
            e("s_add_u32 s28, s28, 4096")
        e(f"buffer_load_dwordx4 {vr(224 + 4 * i, 4)}, v16, s[16:19], s28 offen offset:{(i % 4) * 1024} nt")
    e("s_cmp_lg_u32 s56, 0")
    e("s_cbranch_scc1 K3_B")
    srd_fin(12, "A_wuv")
    e("s_lshl_b32 s28, s54, 8")
    e("s_lshl_b32 s29, s52, 6")
    e("s_add_u32 s28, s28, s29")
    for i in range(8):
        e(f"buffer_load_dwordx4 {vr(192 + 4 * i, 4)}, v46, s[12:15], s28 offen nt")
        e("s_add_u32 s28, s28, 8192")
    e("v_lshlrev_b32 v4, 3, v0")
    e("v_lshlrev_b32 v5, 3, v1")
    e("s_lshl_b32 s28, s53, 9")
    e(f"s_add_u32 s28, s28, {ASTAT}")
    e("buffer_load_dwordx2 v[8:9], v5, s[20:23], s28 offen")
    e("v_and_b32 v12, 127, v0")
    e("v_lshrrev_b32 v13, 7, v0")
    e("v_lshlrev_b32 v12, 3, v12")
    e("v_lshl_add_u32 v12, v13, 20, v12")
    e("s_lshl_b32 s28, s55, 21")
    e("s_lshl_b32 s29, s54, 10")
    e("s_add_u32 s28, s28, s29")
    e(f"s_add_u32 s28, s28, {APART}")
    for s in range(32):
        e(f"buffer_load_dwordx2 {vr(64 + 2 * s, 2)}, v12, s[20:23], s28 offen")
        e("s_add_u32 s28, s28, 0x8000")
    e("s_waitcnt vmcnt(32)")
    e("v_mov_b32 v10, v8")
    for sh in (8, 4, 2, 1):
        e("s_nop 1")
        e(f"v_max_f32_dpp v10, v10, v10 row_ror:{sh} row_mask:0xf bank_mask:0xf")
    e("v_mov_b32 v11, v10")
    e("s_nop 1")
    e("v_permlane16_swap_b32 v10, v11")
    e("s_nop 1")
    e("v_max_f32 v10, v10, v11")
    e("v_mov_b32 v11, v10")
    e("s_nop 1")
    e("v_permlane32_swap_b32 v10, v11")
    e("s_nop 1")
    e("v_max_f32 v10, v10, v11")
    e("v_sub_f32 v8, v8, v10")
    e("v_exp_f32 v8, v8")
    e("s_nop 0")
    e("v_mul_f32 v10, v8, v9")
    for sh in (8, 4, 2, 1):
        e("s_nop 1")
        e(f"v_add_f32_dpp v10, v10, v10 row_ror:{sh} row_mask:0xf bank_mask:0xf")
    e("v_mov_b32 v11, v10")
    e("s_nop 1")
    e("v_permlane16_swap_b32 v10, v11")
    e("s_nop 1")
    e("v_add_f32 v10, v10, v11")
    e("v_mov_b32 v11, v10")
    e("s_nop 1")
    e("v_permlane32_swap_b32 v10, v11")
    e("s_nop 1")
    e("v_add_f32 v10, v10, v11")
    e("v_rcp_f32 v6, v10")
    for k in range(4):
        e(f"v_mov_b32 v{40 + k}, 0")
    e("s_lshr_b32 s30, s26, 1")
    e("s_lshl_b32 s30, s30, 5")
    for s in range(32):
        e(f"s_add_u32 s31, s30, {s}")
        e(f"v_readlane_b32 s{60 + (s & 3)}, v8, s31")
        e(f"s_waitcnt vmcnt({31 - s})")
        unpack2(48, 49, 64 + 2 * s)
        unpack2(50, 51, 65 + 2 * s)
        for k in range(4):
            e(f"v_fmac_f32 v{40 + k}, s{60 + (s & 3)}, v{48 + k}")
    for k in range(4):
        e(f"v_mul_f32 v{40 + k}, v{40 + k}, v6")
    e("v_lshlrev_b32 v4, 4, v0")
    e(f"ds_write_b128 v4, {vr(40, 4)} offset:10240")
    e("s_waitcnt lgkmcnt(0)")
    e("s_barrier")
    e("v_lshlrev_b32 v5, 5, v44")
    e(f"ds_read_b128 {vr(8, 4)}, v5 offset:10240")
    e(f"ds_read_b128 {vr(12, 4)}, v5 offset:10256")
    e(f"ds_read_b128 {vr(16, 4)}, v5 offset:12288")
    e(f"ds_read_b128 {vr(20, 4)}, v5 offset:12304")
    for k in range(8):
        e(f"v_mov_b32 v{24 + k}, 0")
    e("s_waitcnt lgkmcnt(0)")
    for k in range(8):
        e(f"v_add_f32 v{8 + k}, v{8 + k}, v{16 + k}")
    for i in range(8):
        for k in range(4):
            unpack2(32 + 2 * k, 33 + 2 * k, 192 + 4 * i + k)
        for k in range(8):
            e(f"v_fmac_f32 v{24 + k}, v{32 + k}, v{8 + i}")
    e("v_lshlrev_b32 v5, 7, v44")
    e("v_lshl_add_u32 v5, v45, 5, v5")
    e(f"ds_write_b128 v5, {vr(24, 4)} offset:2048")
    e(f"ds_write_b128 v5, {vr(28, 4)} offset:2064")
    e("s_waitcnt lgkmcnt(0)")
    e("s_barrier")
    e("v_and_b32 v5, 31, v1")
    e("v_lshrrev_b32 v6, 5, v1")
    e("v_lshlrev_b32 v5, 2, v5")
    e("v_lshl_add_u32 v5, v6, 12, v5")
    for g in range(32):
        e(f"ds_read_b32 v{64 + g}, v5 offset:{2048 + 128 * g}")
    e("s_waitcnt lgkmcnt(0)")
    for n in (16, 8, 4, 2, 1):
        for g in range(n):
            e(f"v_add_f32 v{64 + g}, v{64 + g}, v{64 + n + g}")
    e("v_mov_b32 v65, v64")
    e("s_nop 1")
    e("v_permlane32_swap_b32 v64, v65")
    e("s_nop 1")
    e("v_add_f32 v64, v64, v65")
    e("v_cvt_pk_bf16_f32 v64, v64, v64")
    e("v_lshlrev_b32 v64, 16, v64")
    e("s_branch K3_OUT")
    lab("K3_B")
    e("v_mov_b32 v5, 0")
    e("s_lshl_b32 s28, s53, 6")
    e(f"s_add_u32 s28, s28, {BSTAT}")
    for k in range(2):
        e(f"buffer_load_dwordx4 {vr(8 + 4 * k, 4)}, v5, s[20:23], s28 offen offset:{16 * k}")
    e("v_and_b32 v5, 31, v1")
    e("v_lshlrev_b32 v5, 2, v5")
    e("s_lshl_b32 s28, s53, 12")
    e("s_lshl_b32 s29, s52, 7")
    e("s_add_u32 s28, s28, s29")
    e(f"s_add_u32 s28, s28, {BPART}")
    for r in range(4):
        e(f"buffer_load_dword v{64 + r}, v5, s[20:23], s28 offen offset:{512 * r}")
    e("s_waitcnt vmcnt(0)")
    e("v_max3_f32 v56, v8, v10, v12")
    e("v_max_f32 v56, v56, v14")
    for r in range(4):
        e(f"v_sub_f32 v{8 + 2 * r}, v{8 + 2 * r}, v56")
    for r in range(4):
        e(f"v_exp_f32 v{8 + 2 * r}, v{8 + 2 * r}")
    e("s_nop 0")
    e("v_mul_f32 v57, v8, v9")
    e("v_mul_f32 v58, v8, v64")
    for r in range(1, 4):
        e(f"v_fmac_f32 v57, v{8 + 2 * r}, v{9 + 2 * r}")
        e(f"v_fmac_f32 v58, v{8 + 2 * r}, v{64 + r}")
    e("v_rcp_f32 v57, v57")
    e("s_nop 0")
    e("v_mul_f32 v58, v58, v57")
    e("v_cvt_pk_bf16_f32 v58, v58, v58")
    e("v_lshlrev_b32 v64, 16, v58")
    lab("K3_OUT")
    e("s_lshl_b32 s30, s26, 3")
    for k in range(8):
        e(f"v_mov_b32 v{24 + k}, 0")
    e("s_waitcnt vmcnt(0)")
    for i in range(8):
        e(f"s_add_u32 s31, s30, {i}")
        e(f"v_readlane_b32 s{60 + i}, v64, s31")
    for i in range(8):
        for k in range(4):
            unpack2(32 + 2 * k, 33 + 2 * k, 224 + 4 * i + k)
        for k in range(8):
            e(f"v_fmac_f32 v{24 + k}, s{60 + i}, v{32 + k}")
    e("s_barrier")
    e("v_lshlrev_b32 v5, 5, v1")
    e("s_lshl_b32 s30, s26, 11")
    e("v_add_u32 v5, s30, v5")
    e(f"ds_write_b128 v5, {vr(24, 4)}")
    e(f"ds_write_b128 v5, {vr(28, 4)} offset:16")
    e("s_waitcnt lgkmcnt(0)")
    e("s_barrier")
    e("v_lshlrev_b32 v5, 3, v0")
    for w in range(4):
        e(f"ds_read_b64 {vr(8 + 2 * w, 2)}, v5 offset:{2048 * w}")
    e("s_waitcnt lgkmcnt(0)")
    e("v_add_f32 v8, v8, v10")
    e("v_add_f32 v9, v9, v11")
    e("v_add_f32 v12, v12, v14")
    e("v_add_f32 v13, v13, v15")
    e("v_add_f32 v8, v8, v12")
    e("v_add_f32 v9, v9, v13")
    e("s_lshl_b32 s28, s56, 19")
    e("s_lshl_b32 s29, s55, 18")
    e("s_add_u32 s28, s28, s29")
    e("s_lshl_b32 s29, s54, 13")
    e("s_add_u32 s28, s28, s29")
    e("s_lshl_b32 s29, s52, 11")
    e("s_add_u32 s28, s28, s29")
    e(f"s_add_u32 s28, s28, {OPA}")
    e("v_or_b32 v8, 1, v8")
    e("v_or_b32 v9, 1, v9")
    e("buffer_store_dwordx2 v[8:9], v5, s[20:23], s28 offen sc1")
    e("s_branch K3_END")
    lab("K3_RED")
    srd(20, "ws"); srd(8, "out")
    e("s_sub_u32 s3, s2, 512")
    e("s_lshr_b32 s24, s3, 3")
    e("s_and_b32 s25, s3, 7")
    e("v_and_b32 v1, 15, v0")
    e("v_lshrrev_b32 v2, 4, v0")
    e("v_lshlrev_b32 v3, 14, v2")
    e("v_lshl_add_u32 v3, v1, 4, v3")
    e("s_lshl_b32 s26, s24, 18")
    e("s_lshl_b32 s27, s25, 8")
    e("s_add_u32 s26, s26, s27")
    e(f"s_add_u32 s26, s26, {OPA}")
    e("s_mov_b32 s30, 0x80000")
    e("s_waitcnt lgkmcnt(0)")
    srd_fin(20, "ws"); srd_fin(8, "out")
    lab("K3_RLOOP")
    e("s_mov_b32 s27, s26")
    for i in range(8):
        if i % 2 == 0 and i:
            e("s_add_u32 s27, s27, 4096")
        e(f"buffer_load_dwordx4 {vr(8 + 4 * i, 4)}, v3, s[20:23], s27 offen offset:{(i % 2) * 2048} sc1")
    e("s_waitcnt vmcnt(0)")
    e("v_and_b32 v40, v8, v9")
    for k in range(10, 40):
        e(f"v_and_b32 v40, v40, v{k}")
    e("v_and_b32 v40, 1, v40")
    e("v_cmp_eq_u32 vcc, 0, v40")
    e("s_cbranch_vccz K3_ROK")
    e("s_sleep 2")
    e("s_sub_u32 s30, s30, 1")
    e("s_cmp_lg_u32 s30, 0")
    e("s_cbranch_scc1 K3_RLOOP")
    lab("K3_ROK")
    for n in (4, 2, 1):
        for i in range(n):
            for k in range(4):
                e(f"v_add_f32 v{8 + 4 * i + k}, v{8 + 4 * i + k}, v{8 + 4 * (i + n) + k}")
    e("v_lshlrev_b32 v4, 4, v0")
    e(f"ds_write_b128 v4, {vr(8, 4)}")
    e("s_waitcnt lgkmcnt(0)")
    e("s_barrier")
    e("v_cmp_gt_u32 vcc, 64, v0")
    e("s_and_saveexec_b64 s[28:29], vcc")
    e("s_cbranch_execz K3_END")
    e("v_lshlrev_b32 v4, 2, v0")
    for g in range(16):
        e(f"ds_read_b32 v{8 + g}, v4 offset:{256 * g}")
    e("s_waitcnt lgkmcnt(0)")
    for n in (8, 4, 2, 1):
        for g in range(n):
            e(f"v_add_f32 v{8 + g}, v{8 + g}, v{8 + n + g}")
    e("v_cvt_pk_bf16_f32 v8, v8, v8")
    e("s_and_b32 s26, s24, 1")
    e("s_lshl_b32 s26, s26, 11")
    e("s_lshr_b32 s27, s24, 1")
    e("s_lshl_b32 s27, s27, 10")
    e("s_add_u32 s26, s26, s27")
    e("s_lshl_b32 s27, s25, 7")
    e("s_add_u32 s26, s26, s27")
    e("v_lshlrev_b32 v4, 1, v0")
    e("buffer_store_short v8, v4, s[8:11], s26 offen")
    lab("K3_END")
    e("s_endpgm")
    kernel_desc(L, 256, 256)
    return f"; @launch kernel={L} grid=(544,1,1) block=(256,1,1) lds=14336"


def k4():
    L = "k4_kernel"
    kernel_header(L)
    e("s_cmp_ge_u32 s2, 32")
    e("s_cbranch_scc1 K4_END")
    srd(20, "ws"); srd(8, "out")
    e("s_lshr_b32 s24, s2, 3")
    e("s_and_b32 s25, s2, 7")
    e("v_and_b32 v1, 15, v0")
    e("v_lshrrev_b32 v2, 4, v0")
    e("v_lshlrev_b32 v3, 14, v2")
    e("v_lshl_add_u32 v3, v1, 4, v3")
    e("s_lshl_b32 s26, s24, 18")
    e("s_lshl_b32 s27, s25, 8")
    e("s_add_u32 s26, s26, s27")
    e(f"s_add_u32 s26, s26, {OPA}")
    e("s_waitcnt lgkmcnt(0)")
    srd_fin(20, "ws"); srd_fin(8, "out")
    for i in range(8):
        if i % 2 == 0 and i:
            e("s_add_u32 s26, s26, 4096")
        e(f"buffer_load_dwordx4 {vr(8 + 4 * i, 4)}, v3, s[20:23], s26 offen offset:{(i % 2) * 2048}")
    e("s_waitcnt vmcnt(0)")
    for n in (4, 2, 1):
        for i in range(n):
            for k in range(4):
                e(f"v_add_f32 v{8 + 4 * i + k}, v{8 + 4 * i + k}, v{8 + 4 * (i + n) + k}")
    e("v_lshlrev_b32 v4, 4, v0")
    e(f"ds_write_b128 v4, {vr(8, 4)}")
    e("s_waitcnt lgkmcnt(0)")
    e("s_barrier")
    e("v_cmp_gt_u32 vcc, 64, v0")
    e("s_and_saveexec_b64 s[28:29], vcc")
    e("s_cbranch_execz K4_END")
    e("v_lshlrev_b32 v4, 2, v0")
    for g in range(16):
        e(f"ds_read_b32 v{8 + g}, v4 offset:{256 * g}")
    e("s_waitcnt lgkmcnt(0)")
    for n in (8, 4, 2, 1):
        for g in range(n):
            e(f"v_add_f32 v{8 + g}, v{8 + g}, v{8 + n + g}")
    e("v_cvt_pk_bf16_f32 v8, v8, v8")
    e("s_and_b32 s26, s24, 1")
    e("s_lshl_b32 s26, s26, 11")
    e("s_lshr_b32 s27, s24, 1")
    e("s_lshl_b32 s27, s27, 10")
    e("s_add_u32 s26, s26, s27")
    e("s_lshl_b32 s27, s25, 7")
    e("s_add_u32 s26, s26, s27")
    e("v_lshlrev_b32 v4, 1, v0")
    e("buffer_store_short v8, v4, s[8:11], s26 offen")
    lab("K4_END")
    e("s_endpgm")
    kernel_desc(L, 48, 48)
    return f"; @launch kernel={L} grid=(32,1,1) block=(256,1,1) lds=4096"


LAUNCHES = []


def main():
    LAUNCHES.append(k1())
    LAUNCHES.append(km())
    LAUNCHES.append(k3())
    head = open(f"cdna_kernels/{NAME}.s.ref").read().split("; Override launch")[0]
    txt = head + "\n".join(LAUNCHES) + "\n"
    txt += '.amdgcn_target "amdgcn-amd-amdhsa--gfx950"\n.text\n'
    txt += "\n".join(out) + "\n"
    txt += '.section .rodata,"a"\n' + "\n".join(descs) + "\n"
    path = sys.argv[1] if len(sys.argv) > 1 else f"cdna_kernels/{NAME}.s"
    open(path, "w").write(txt)


if __name__ == "__main__":
    main()
```

```python
import sys

NAME = "concat_heads__compressed_kv_cla__sliding_block_cached__decode"

KA = dict(A_x=0, A_ckv=8, A_wq=16, A_wuk=24, A_wuv=32, A_wo=40, B_x=48, B_k=56, B_v=64,
          B_wq=72, B_wo=80, out=88, dbg=96, ws=104)
SZ = dict(A_x=2048, A_ckv=16777216, A_wq=4194304, A_wuk=4194304, A_wuv=4194304, A_wo=4194304,
          B_x=2048, B_k=134217728, B_v=134217728, B_wq=4194304, B_wo=4194304, out=4096, dbg=256,
          ws=536870912)

QA_HI = 0x00000
QA_LO = 0x10000
QB = 0x20000
ASTAT = 0x30000
BPART = 0x40000
BSTAT = 0x80000
CTX = 0x70000
OPART = 0x80000
APART = 0x100000

OPA = 0xA00000
SCALE_BITS = 0x3DB504F3
LOG2E_BITS = 0x3FB8AA3B

out = []
import os
DEBUG = bool(os.environ.get('DEBUG'))
PROF = bool(os.environ.get('PROF'))
PST = os.environ.get('PST', '')
HIONLY = bool(os.environ.get('HIONLY'))
PROFBASE = 0xC00000


def prof_start():
    if PROF:
        e("s_memrealtime s[90:91]")


def prof_mark(slot, t=21):
    if PROF:
        e("s_memrealtime s[92:93]")
        e("s_waitcnt lgkmcnt(0)")
        e("s_sub_u32 s92, s92, s90")
        e(f"v_mov_b32 v{t}, s92")
        e("s_lshl_b32 s94, s2, 7")
        e(f"s_add_u32 s94, s94, {PROFBASE + prof_kernel[0] * 0x10000 + slot * 4}")
        e(f"v_lshrrev_b32 v{t+1}, 6, v0")
        e(f"v_lshlrev_b32 v{t+1}, 5, v{t+1}")
        e(f"buffer_store_dword v{t}, v{t+1}, s[20:23], s94 offen")


prof_kernel = [0]


def e(s):
    out.append("    " + s)


def lab(s):
    out.append(s + ":")


def srd(dst, name):
    e(f"s_load_dwordx2 s[{dst}:{dst+1}], s[0:1], {KA[name]}")


def srd_fin(dst, name):
    e(f"s_mov_b32 s{dst+2}, {SZ[name]}")
    e(f"s_mov_b32 s{dst+3}, 0x20000")


def vr(a, n):
    return f"v[{a}:{a+n-1}]"


def ar(a, n):
    return f"a[{a}:{a+n-1}]"


def kernel_header(label):
    out.append(f".globl {label}")
    out.append(".p2align 8")
    out.append(f".type {label},@function")
    lab(label)


descs = []


def kernel_desc(label, vgpr, accum, sgpr=102):
    descs.append(f""".p2align 6
.amdhsa_kernel {label}
  .amdhsa_next_free_vgpr {vgpr}
  .amdhsa_next_free_sgpr {sgpr}
  .amdhsa_accum_offset {accum}
  .amdhsa_group_segment_fixed_size 0
  .amdhsa_kernarg_size 112
  .amdhsa_user_sgpr_count 2
  .amdhsa_user_sgpr_kernarg_segment_ptr 1
  .amdhsa_system_sgpr_workgroup_id_x 1
.end_amdhsa_kernel""")


def unpack2(dlo, dhi, src):
    e(f"v_lshlrev_b32 v{dlo}, 16, v{src}")
    e(f"v_and_b32 v{dhi}, 0xffff0000, v{src}")


def gemv_rows(nrows, wbase, xbase0, xbase1, acc, tmp, xt, vm_after):
    for i in range(nrows):
        e(f"s_waitcnt vmcnt({nrows - 1 - i + vm_after})")
        if i % 2 == 0:
            e(f"v_lshlrev_b32 v{xt}, 16, v{xbase0 + i // 2}")
            e(f"v_lshlrev_b32 v{xt+1}, 16, v{xbase1 + i // 2}")
        else:
            e(f"v_and_b32 v{xt}, 0xffff0000, v{xbase0 + i // 2}")
            e(f"v_and_b32 v{xt+1}, 0xffff0000, v{xbase1 + i // 2}")
        for k in range(4):
            unpack2(tmp + 2 * k, tmp + 2 * k + 1, wbase + 4 * i + k)
        for k in range(8):
            e(f"v_fmac_f32 v{acc + k}, v{tmp + k}, v{xt}")
            e(f"v_fmac_f32 v{acc + 8 + k}, v{tmp + k}, v{xt+1}")


QP = 0x90000


def k1():
    L = "k0_kernel"
    kernel_header(L)
    e("s_cmp_ge_u32 s2, 256")
    e("s_cbranch_scc1 K0_END")
    srd(20, "ws")
    e("s_and_b32 s24, s2, 31")
    e("s_bfe_u32 s25, s2, 0x20005")
    e("s_lshr_b32 s26, s2, 7")
    e("s_cmp_lg_u32 s26, 0")
    e("s_cbranch_scc1 K0_LB")
    srd(8, "A_x"); srd(12, "A_wq")
    e("s_branch K0_LD")
    lab("K0_LB")
    srd(8, "B_x"); srd(12, "B_wq")
    lab("K0_LD")
    e("v_and_b32 v1, 15, v0")
    e("v_lshrrev_b32 v2, 4, v0")
    e("v_lshlrev_b32 v3, 16, v2")
    e("v_lshl_add_u32 v3, v1, 4, v3")
    e("v_lshlrev_b32 v4, 4, v2")
    e("s_lshl_b32 s27, s25, 20")
    e("s_lshl_b32 s28, s24, 8")
    e("s_add_u32 s27, s27, s28")
    e("s_lshl_b32 s28, s25, 8")
    e("s_waitcnt lgkmcnt(0)")
    srd_fin(8, "A_x"); srd_fin(12, "A_wq"); srd_fin(20, "ws")
    e("buffer_load_dwordx4 v[8:11], v4, s[8:11], s28 offen")
    e("buffer_load_dwordx4 v[12:15], v4, s[8:11], s28 offen offset:1024")
    for i in range(8):
        e(f"buffer_load_dwordx4 {vr(40 + 4 * i, 4)}, v3, s[12:15], s27 offen nt")
        e("s_add_u32 s27, s27, 8192")
    for k in range(4):
        e(f"v_mov_b32 v{76 + k}, 0")
    e("v_lshlrev_b32 v80, 4, v0")
    e("s_lshl_b32 s29, s2, 12")
    e(f"s_add_u32 s29, s29, {OPA}")
    e("buffer_store_dwordx4 v[76:79], v80, s[20:23], s29 offen")
    e("v_lshlrev_b32 v80, 1, v0")
    e("s_lshl_b32 s29, s2, 9")
    e("buffer_store_short v76, v80, s[20:23], s29 offen")
    e("v_lshlrev_b32 v80, 2, v0")
    e("s_lshl_b32 s29, s2, 10")
    e(f"s_add_u32 s29, s29, {BPART}")
    e("buffer_store_dword v76, v80, s[20:23], s29 offen")
    e("v_and_b32 v80, 3, v0")
    e("v_lshlrev_b32 v80, 2, v80")
    e("s_lshl_b32 s29, s2, 4")
    e(f"s_add_u32 s29, s29, {BSTAT}")
    e("buffer_store_dword v76, v80, s[20:23], s29 offen")
    for k in range(16):
        e(f"v_mov_b32 v{16 + k}, 0")
    gemv_rows(8, 40, 8, 12, 16, 32, 6, 4)
    e("v_lshlrev_b32 v6, 10, v2")
    e("v_lshl_add_u32 v6, v1, 5, v6")
    e(f"ds_write_b128 v6, {vr(16, 4)}")
    e(f"ds_write_b128 v6, {vr(20, 4)} offset:16")
    e(f"ds_write_b128 v6, {vr(24, 4)} offset:512")
    e(f"ds_write_b128 v6, {vr(28, 4)} offset:528")
    e("s_waitcnt lgkmcnt(0)")
    e("s_barrier")
    e("v_lshlrev_b32 v6, 2, v0")
    for g in range(16):
        e(f"ds_read_b32 v{8 + g}, v6 offset:{1024 * g}")
    e("s_waitcnt lgkmcnt(0)")
    for n in (8, 4, 2, 1):
        for g in range(n):
            e(f"v_add_f32 v{8 + g}, v{8 + g}, v{8 + n + g}")
    e("s_lshl_b32 s27, s26, 17")
    e("s_lshl_b32 s28, s24, 12")
    e("s_add_u32 s27, s27, s28")
    e("s_lshl_b32 s28, s25, 10")
    e("s_add_u32 s27, s27, s28")
    e(f"s_add_u32 s27, s27, {QP}")
    e("buffer_store_dword v8, v6, s[20:23], s27 offen")
    lab("K0_END")
    e("s_endpgm")
    kernel_desc(L, 88, 88)
    return f"; @launch kernel={L} grid=(256,1,1) block=(256,1,1) lds=16384"


MX = 131072
LX = 131584
PX = 132096
BO = 140288
SCR = PX
RS = PX
BS = BO + 8192
KM_LDS = BS + 128
C3 = 132
C4 = 136
C5 = 168
C6 = 200
SC = " sc1"


def fsw(r):
    return ((r & 3) << 2) | ((r >> 2) & 3)


def bloads(K, V, soff):
    for (base, srdn) in ((K, 12), (V, 16)):
        for i in range(8):
            va = 6 if i < 4 else 7
            e(f"buffer_load_dwordx4 {vr(base + 4 * i, 4)}, v{va}, s[{srdn}:{srdn+3}], s{soff} offen offset:{(i % 4) * 1024} nt")


def round_scale(a, b, t):
    e(f"v_cvt_pk_bf16_f32 v{t}, v{a}, v{b}")
    unpack2(a, b, t)
    e(f"v_mul_f32 v{a}, s34, v{a}")
    e(f"v_mul_f32 v{b}, s34, v{b}")
    e(f"v_cvt_pk_bf16_f32 v{t}, v{a}, v{b}")
    unpack2(a, b, t)
    e(f"v_mul_f32 v{a}, s35, v{a}")
    e(f"v_mul_f32 v{b}, s35, v{b}")


def bscore(K):
    for k in range(4):
        for i in range(8):
            c = "0" if k == 0 else f"v{18+i}"
            e(f"v_dot2_f32_bf16 v{18+i}, v{K + 4*i + k}, v{2+k}, {c}")
    for sh in (8, 4, 2, 1):
        for i in range(8):
            e(f"v_add_f32_dpp v{18+i}, v{18+i}, v{18+i} row_ror:{sh} row_mask:0xf bank_mask:0xf")
    for i in range(0, 8, 2):
        round_scale(18 + i, 19 + i, 26)
    e("v_max3_f32 v26, v18, v19, v20")
    e("v_max3_f32 v26, v26, v21, v22")
    e("v_max3_f32 v26, v26, v23, v24")
    e("v_max3_f32 v26, v26, v25, v8")
    e("v_sub_f32 v27, v8, v26")
    e("v_exp_f32 v27, v27")
    e("v_mov_b32 v8, v26")
    for i in range(8):
        e(f"v_sub_f32 v{18+i}, v{18+i}, v26")
    for i in range(8):
        e(f"v_exp_f32 v{18+i}, v{18+i}")
    e("v_mul_f32 v9, v9, v27")
    for j in range(8):
        e(f"v_mul_f32 v{10+j}, v{10+j}, v27")
    for i in range(8):
        e(f"v_add_f32 v9, v9, v{18+i}")


def bpv(V):
    for i in range(8):
        for k in range(4):
            unpack2(34 + 2 * k, 35 + 2 * k, V + 4 * i + k)
        for j in range(8):
            e(f"v_fmac_f32 v{10+j}, v{34+j}, v{18+i}")


def bload1(base, srdn, soff):
    for i in range(8):
        va = 6 if i < 4 else 7
        e(f"buffer_load_dwordx4 {vr(base + 4 * i, 4)}, v{va}, s[{srdn}:{srdn+3}], s{soff} offen offset:{(i % 4) * 1024} nt")


def bsched(nunits, ahead, hook=None):
    bufs = [(128, 160), (192, 224)]
    n = 2 * nunits
    issued = 0
    for c in range(n):
        while issued < n and issued <= c + min(ahead(c), 3):
            u, isv = issued >> 1, issued & 1
            if not isv:
                e("s_add_u32 s31, s31, 32768")
                e("s_mov_b32 s33, s31") if False else None
            e(f"s_mov_b32 s{60 + (u & 1)}, s31") if not isv else None
            bload1(bufs[u & 1][isv], 16 if isv else 12, 60 + (u & 1))
            issued += 1
        if c == 0 and hook:
            hook()
        e(f"s_waitcnt vmcnt({8 * (issued - 1 - c)})")
        u, isv = c >> 1, c & 1
        if isv:
            bpv(bufs[u & 1][1])
        else:
            if u < 3:
                prof_mark(u)
            bscore(bufs[u & 1][0])


def bcombine(BO, BS, done, tag=False):
    e("v_lshrrev_b32 v18, 4, v1")
    e("s_lshl_b32 s27, s26, 2")
    e("v_add_u32 v18, s27, v18")
    e("v_and_b32 v19, 15, v1")
    e("v_lshlrev_b32 v20, 9, v18")
    e("v_lshl_add_u32 v20, v19, 5, v20")
    e(f"v_add_u32 v20, {BO}, v20")
    e(f"ds_write_b128 v20, {vr(10, 4)}")
    e(f"ds_write_b128 v20, {vr(14, 4)} offset:16")
    e("v_lshlrev_b32 v21, 3, v18")
    e(f"v_add_u32 v21, {BS}, v21")
    e("ds_write_b64 v21, v[8:9]")
    e("s_waitcnt lgkmcnt(0)")
    e("s_barrier")
    e("s_cmp_ge_u32 s26, 2")
    e(f"s_cbranch_scc1 {done}")
    e(f"v_mov_b32 v21, {BS}")
    for s in range(16):
        e(f"ds_read_b64 {vr(64 + 2 * s, 2)}, v21 offset:{8 * s}")
    e("v_lshlrev_b32 v20, 2, v0")
    e(f"v_add_u32 v20, {BO}, v20")
    for s in range(16):
        e(f"ds_read_b32 v{96 + s}, v20 offset:{512 * s}")
    e("s_waitcnt lgkmcnt(0)")
    e("v_max3_f32 v8, v64, v66, v68")
    for s in range(3, 15, 2):
        e(f"v_max3_f32 v8, v8, v{64 + 2 * s}, v{66 + 2 * s}")
    e("v_max_f32 v8, v8, v94")
    for s in range(16):
        e(f"v_sub_f32 v{64 + 2 * s}, v{64 + 2 * s}, v8")
    for s in range(16):
        e(f"v_exp_f32 v{64 + 2 * s}, v{64 + 2 * s}")
    e("s_nop 0")
    e("v_mul_f32 v9, v64, v65")
    e("v_mul_f32 v10, v64, v96")
    for s in range(1, 16):
        e(f"v_fmac_f32 v9, v{64 + 2 * s}, v{65 + 2 * s}")
        e(f"v_fmac_f32 v10, v{64 + 2 * s}, v{96 + s}")
    e("s_lshl_b32 s27, s24, 3")
    e("s_add_u32 s27, s27, s25")
    e("s_lshl_b32 s28, s27, 9")
    e(f"s_add_u32 s28, s28, {BPART}")
    e("v_lshlrev_b32 v20, 2, v0")
    if tag:
        e("v_or_b32 v8, 1, v8")
        e("v_or_b32 v9, 1, v9")
        e("v_or_b32 v10, 1, v10")
    e(f"buffer_store_dword v10, v20, s[20:23], s28 offen{' sc1' if tag else ''}")
    e("s_lshl_b32 s28, s27, 3")
    e(f"s_add_u32 s28, s28, {BSTAT}")
    e("v_mov_b32 v20, 0")
    e(f"buffer_store_dwordx2 v[8:9], v20, s[20:23], s28 offen{' sc1' if tag else ''}")


def dma_tile():
    for i in range(32):
        if i % 4 == 0:
            e(f"s_add_u32 m0, s41, {i * 1024}")
            e(f"s_add_u32 s42, s40, {i * 1024}")
        e(f"v_xor_b32 v11, {fsw(i & 15) * 16}, v16")
        e(f"buffer_load_dwordx4 v11, s[8:11], s42 offen offset:{(i % 4) * 1024} nt lds")


npoll = [0]


def poll(off, target, soff=None):
    n = npoll[0]
    npoll[0] += 1
    e("s_cmp_lg_u32 s26, 0")
    e(f"s_cbranch_scc1 POLL_DONE{n}")
    e("v_mov_b32 v22, 0")
    e("s_mov_b32 s44, 0x40000")
    if soff is None:
        e(f"s_mov_b32 s45, {off}")
        soff = 45
    lab(f"POLL{n}")
    e(f"buffer_load_dword v21, v22, s[48:51], s{soff} offen{SC}")
    e("s_waitcnt vmcnt(0)")
    e("v_readfirstlane_b32 s43, v21")
    e(f"s_cmp_ge_u32 s43, {target}")
    e(f"s_cbranch_scc1 POLL_DONE{n}")
    e("s_sleep 4")
    e("s_sub_u32 s44, s44, 1")
    e("s_cmp_lg_u32 s44, 0")
    e(f"s_cbranch_scc1 POLL{n}")
    lab(f"POLL_DONE{n}")
    e("s_barrier")


def signal(soffs):
    n = npoll[0]
    npoll[0] += 1
    e("s_waitcnt vmcnt(0)")
    e("s_barrier")
    e("s_cmp_lg_u32 s26, 0")
    e(f"s_cbranch_scc1 SIG_DONE{n}")
    e("v_mov_b32 v21, 1")
    e("v_mov_b32 v22, 0")
    e("s_mov_b64 s[46:47], exec")
    e("s_mov_b64 exec, 1")
    for so in soffs:
        e(f"buffer_atomic_add v21, v22, s[48:51], s{so} offen sc1")
    e("s_mov_b64 exec, s[46:47]")
    lab(f"SIG_DONE{n}")


filler = []


def fill(n=1):
    for _ in range(n):
        if filler:
            for ins in filler.pop(0):
                e(ins)


def tile_loads(defer=False):
    for i in range(32):
        g = []
        if i % 4 == 0:
            g.append(f"s_add_u32 s42, s40, {i * 1024}")
        g.append(f"buffer_load_dwordx4 {ar(128 + 4 * i, 4)}, v16, s[8:11], s42 offen offset:{(i % 4) * 1024} nt")
        filler.append(g)
    if not defer:
        fill(32)


def tile_to_lds():
    e("v_add_u32 v12, s41, v16")
    for i in range(32):
        e(f"v_xor_b32 v{13 + (i & 1)}, {fsw(i & 15) * 16}, v12")
        e(f"s_waitcnt vmcnt({31 - i})")
        e(f"ds_write_b128 v{13 + (i & 1)}, {ar(128 + 4 * i, 4)} offset:{i * 1024}")
    e("s_waitcnt lgkmcnt(0)")


def a_tile(first):
    seq = [(j, k) for j in range(4) for k in range(8)]

    def sread(n):
        j, k = seq[n]
        t = 22 + (n & 1)
        e(f"v_add_u32 v{t}, v{24 + j}, v{28 + k}")
        e(f"ds_read_b128 {vr(72 + 4 * (n % 8), 4)}, v{t}")
    for n in range(8):
        sread(n)
    for n in range(32):
        j, k = seq[n]
        e(f"s_waitcnt lgkmcnt({min(7, 31 - n)})")
        f = vr(72 + 4 * (n % 8), 4)
        acc = ar(64 + 16 * j, 16)
        c = "0" if k == 0 else acc
        e(f"v_mfma_f32_32x32x16_bf16 {acc}, {f}, {vr(192 + 4 * k, 4)}, {c}")
        if not HIONLY:
            e(f"v_mfma_f32_32x32x16_bf16 {acc}, {f}, {vr(224 + 4 * k, 4)}, {acc}")
        if n + 8 < 32:
            sread(n + 8)
        if n % 2 == 1:
            fill(1)
    e("s_nop 15")
    for i in range(16):
        e(f"v_accvgpr_read_b32 v{56 + i}, a{64 + i}")
    for j in range(1, 4):
        for q in range(4):
            e(f"ds_write_b128 v36, {ar(64 + 16 * j + 4 * q, 4)} offset:{1024 * q}")
        e("s_waitcnt lgkmcnt(0)")
        e("s_barrier")
        for q in range(4):
            e(f"ds_read_b128 {vr(72 + 4 * q, 4)}, v{36 + j} offset:{1024 * q}")
        e("s_waitcnt lgkmcnt(0)")
        if j < 3:
            e("s_barrier")
        fill(1)
        for i in range(16):
            e(f"v_add_f32 v{56 + i}, v{56 + i}, v{72 + i}")
    for i in range(0, 16, 2):
        round_scale(56 + i, 57 + i, 11)
        if i % 4 == 0:
            fill(1)
    e("v_max3_f32 v12, v56, v57, v58")
    for i in range(59, 71, 2):
        e(f"v_max3_f32 v12, v12, v{i}, v{i+1}")
    e("v_max_f32 v12, v12, v71")
    e("v_mov_b32 v13, v12")
    e("s_nop 1")
    e("v_permlane32_swap_b32 v12, v13")
    e("s_nop 1")
    e("v_max_f32 v12, v12, v13")
    e("ds_write_b32 v17, v12")
    e("s_waitcnt lgkmcnt(0)")
    e("s_barrier")
    for w in range(4):
        e(f"ds_read_b32 v{12 + w}, v18 offset:{128 * w}")
    e("s_waitcnt lgkmcnt(0)")
    e("v_max3_f32 v12, v12, v13, v14")
    e("v_max3_f32 v12, v12, v15, v8")
    e("v_sub_f32 v10, v8, v12")
    e("v_exp_f32 v10, v10")
    e("v_mov_b32 v8, v12")
    for i in range(16):
        e(f"v_sub_f32 v{56+i}, v{56+i}, v12")
    for i in range(16):
        e(f"v_exp_f32 v{56+i}, v{56+i}")
    e("v_mul_f32 v9, v9, v10")
    for i in range(16):
        e(f"v_add_f32 v9, v9, v{56+i}")
    for i in range(8):
        e(f"v_cvt_pk_bf16_f32 v{96+i}, v{56+2*i}, v{57+2*i}")
    e(f"ds_write_b128 v19, {vr(96, 4)}")
    e(f"ds_write_b128 v19, {vr(100, 4)} offset:1024")
    e("s_waitcnt lgkmcnt(0)")
    e("s_barrier")
    for tu in range(8):
        e(f"ds_read_b128 {vr(64 + 4 * tu, 4)}, v20 offset:{(tu >> 1) * 2048 + (tu & 1) * 1024}")
    if not first:
        for i in range(64):
            e(f"v_mul_f32 v{192+i}, v{192+i}, v10")

    def trreads(tu):
        t, u = tu >> 1, tu & 1
        bufb = 96 + 16 * (tu & 1)
        for cc in range(4):
            for v in range(2):
                a = 40 + 8 * (t >> 1) + 2 * cc + v
                off = (32 * (t & 1) + 16 * u + 8 * v) * 1024
                e(f"ds_read_b64_tr_b16 {vr(bufb + 4 * cc + 2 * v, 2)}, v{a} offset:{off}")
    trreads(0)
    for tu in range(8):
        if tu + 1 < 8:
            trreads(tu + 1)
            e("s_waitcnt lgkmcnt(8)")
        else:
            e("s_waitcnt lgkmcnt(0)")
        bufb = 96 + 16 * (tu & 1)
        for cc in range(4):
            acc = vr(192 + 16 * cc, 16)
            c = "0" if (first and tu == 0) else acc
            e(f"v_mfma_f32_32x32x16_bf16 {acc}, {vr(bufb + 4 * cc, 4)}, {vr(64 + 4 * tu, 4)}, {c}")
        fill(1)
    fill(99)


def km():
    L = "km_kernel"
    kernel_header(L)
    e("s_cmp_ge_u32 s2, 256")
    e("s_cbranch_scc1 KM_END")
    prof_kernel[0] = 1
    prof_start()
    srd(8, "A_ckv"); srd(12, "B_k"); srd(16, "B_v"); srd(20, "ws"); srd(48, "dbg")
    e("s_and_b32 s3, s2, 7")
    e("s_lshr_b32 s4, s2, 3")
    e("s_lshr_b32 s5, s3, 2")
    e("s_lshl_b32 s24, s4, 1")
    e("s_or_b32 s24, s24, s5")
    e("s_add_u32 s25, s3, s4")
    e("s_and_b32 s25, s25, 3")
    e("v_and_b32 v1, 63, v0")
    e("v_lshrrev_b32 v2, 6, v0")
    e("s_nop 0")
    e("v_readfirstlane_b32 s26, v2")
    e(f"s_mov_b32 s34, {SCALE_BITS:#x}")
    e(f"s_mov_b32 s35, {LOG2E_BITS:#x}")
    e("v_lshlrev_b32 v16, 4, v1")
    e("s_lshl_b32 s27, s26, 13")
    e("v_add_u32 v6, s27, v16")
    e("v_add_u32 v7, 4096, v6")
    e("s_lshl_b32 s30, s24, 21")
    e("s_add_u32 s30, s30, 1572864")
    srd(52, "A_wuk")
    e("v_and_b32 v42, 127, v0")
    e("v_lshlrev_b32 v42, 2, v42")
    e("s_and_b32 s27, s24, 31")
    e("s_lshl_b32 s27, s27, 12")
    e("s_lshr_b32 s28, s24, 5")
    e("s_lshl_b32 s28, s28, 9")
    e("s_add_u32 s27, s27, s28")
    e(f"s_add_u32 s27, s27, {QP + 0x20000}")
    e("s_waitcnt lgkmcnt(0)")
    srd_fin(8, "A_ckv"); srd_fin(12, "B_k"); srd_fin(16, "B_v"); srd_fin(20, "ws"); srd_fin(48, "dbg"); srd_fin(52, "A_wuk")
    for mq in range(4):
        e(f"buffer_load_dword v{44 + mq}, v42, s[20:23], s27 offen offset:{1024 * mq}")
    e("s_cmp_ge_u32 s25, 2")
    e("s_cbranch_scc1 KM_BONLY")
    e("s_lshr_b32 s36, s24, 5")
    e("s_and_b32 s37, s24, 31")
    e("s_lshl_b32 s37, s37, 1")
    e("s_add_u32 s37, s37, s25")
    e("s_lshl_b32 s38, s24, 1")
    e("s_add_u32 s38, s38, s25")
    e("s_lshr_b32 s39, s38, 5")
    e("s_and_b32 s38, s38, 31")
    e("s_lshl_b32 s40, s36, 23")
    e("s_lshl_b32 s27, s37, 17")
    e("s_add_u32 s40, s40, s27")
    e("s_lshl_b32 s41, s26, 15")
    e("s_add_u32 s40, s40, s41")
    e("v_lshlrev_b32 v43, 2, v0")
    e("s_lshl_b32 s27, s38, 12")
    e(f"s_add_u32 s27, s27, {QP}")
    for mq in range(4):
        e(f"buffer_load_dword v{48 + mq}, v43, s[20:23], s27 offen offset:{1024 * mq}")
    e("v_and_b32 v52, 15, v0")
    e("v_lshrrev_b32 v53, 4, v0")
    e("v_lshlrev_b32 v54, 13, v53")
    e("v_lshl_add_u32 v54, v52, 4, v54")
    e("s_lshl_b32 s27, s39, 20")
    e("s_lshl_b32 s28, s38, 8")
    e("s_add_u32 s27, s27, s28")
    for i in range(8):
        e(f"buffer_load_dwordx4 {vr(64 + 4 * i, 4)}, v54, s[52:55], s27 offen nt")
        e("s_add_u32 s27, s27, 0x20000")
    tile_loads(defer=True)
    fill(6)
    e("s_waitcnt vmcnt(14)")
    e("v_add_f32 v44, v44, v45")
    e("v_add_f32 v46, v46, v47")
    e("v_add_f32 v48, v48, v49")
    e("v_add_f32 v50, v50, v51")
    e("v_add_f32 v44, v44, v46")
    e("v_add_f32 v48, v48, v50")
    e("v_cvt_pk_bf16_f32 v44, v44, v44")
    e("v_cvt_pk_bf16_f32 v48, v48, v48")
    e("v_lshrrev_b32 v42, 1, v42")
    e(f"v_add_u32 v42, {SCR + 2048}, v42")
    e("ds_write_b16 v42, v44")
    e("v_lshlrev_b32 v43, 1, v0")
    e(f"v_add_u32 v43, {SCR}, v43")
    e("ds_write_b16 v43, v48")
    fill(2)
    e("s_waitcnt lgkmcnt(0)")
    e("s_barrier")
    e("v_lshlrev_b32 v43, 4, v52")
    e(f"v_add_u32 v43, {SCR}, v43")
    e(f"ds_read_b128 {vr(8, 4)}, v43")
    e(f"ds_read_b128 {vr(12, 4)}, v43 offset:256")
    e(f"ds_read_b128 {vr(2, 4)}, v43 offset:2048")
    e("s_waitcnt vmcnt(8) lgkmcnt(0)")
    for k in range(4):
        for i in range(8):
            for b in range(2):
                d = 24 + 2 * i + b
                c = "0" if k == 0 else f"v{d}"
                e(f"v_dot2_f32_bf16 v{d}, v{64 + 4 * i + k}, v{8 + 4 * b + k}, {c}")
    e("s_nop 3")
    for sh in (8, 4, 2, 1):
        for d in range(24, 40):
            e(f"v_add_f32_dpp v{d}, v{d}, v{d} row_ror:{sh} row_mask:0xf bank_mask:0xf")
    e("v_lshlrev_b32 v43, 2, v53")
    e(f"v_add_u32 v43, {SCR + 512}, v43")
    for i in range(8):
        for b in range(2):
            e(f"ds_write_b32 v43, v{24 + 2 * i + b} offset:{512 * b + 64 * i}")
    e("s_waitcnt lgkmcnt(0)")
    e("s_barrier")
    e("v_cmp_gt_u32 vcc, 32, v0")
    e("s_and_saveexec_b64 s[56:57], vcc")
    e("s_cbranch_execz KM_QDONE")
    e("v_lshlrev_b32 v43, 5, v0")
    e(f"v_add_u32 v43, {SCR + 512}, v43")
    e(f"ds_read_b128 {vr(8, 4)}, v43")
    e(f"ds_read_b128 {vr(12, 4)}, v43 offset:16")
    e("s_waitcnt lgkmcnt(0)")
    for k in range(4):
        a_, b_ = 8 + 2 * k, 9 + 2 * k
        e(f"v_cvt_pk_bf16_f32 v{24 + k}, v{a_}, v{b_}")
        e(f"v_or_b32 v{24 + k}, 1, v{24 + k}")
        unpack2(32, 33, 24 + k)
        e(f"v_sub_f32 v32, v{a_}, v32")
        e(f"v_sub_f32 v33, v{b_}, v33")
        e(f"v_cvt_pk_bf16_f32 v{28 + k}, v32, v33")
        e(f"v_or_b32 v{28 + k}, 1, v{28 + k}")
    e("v_lshrrev_b32 v43, 4, v0")
    e("v_and_b32 v32, 15, v0")
    e("v_lshrrev_b32 v33, 1, v32")
    e("v_and_b32 v32, 1, v32")
    e("v_lshlrev_b32 v43, 15, v43")
    e("v_lshl_add_u32 v43, v33, 10, v43")
    e("v_lshl_add_u32 v43, v32, 9, v43")
    e("s_lshl_b32 s27, s39, 13")
    e("s_lshl_b32 s28, s38, 4")
    e("s_add_u32 s27, s27, s28")
    e(f"buffer_store_dwordx4 {vr(24, 4)}, v43, s[20:23], s27 offen sc1")
    e(f"s_add_u32 s27, s27, {QA_LO}")
    e(f"buffer_store_dwordx4 {vr(28, 4)}, v43, s[20:23], s27 offen sc1")
    lab("KM_QDONE")
    e("s_mov_b64 exec, s[56:57]")
    fill(99)
    e("v_and_b32 v56, 31, v1")
    e("v_lshrrev_b32 v57, 5, v1")
    e("v_and_b32 v58, 3, v1")
    e("v_lshlrev_b32 v58, 2, v58")
    e("v_bfe_u32 v59, v1, 2, 2")
    e("v_or_b32 v58, v58, v59")
    e("v_xor_b32 v58, v58, v57")
    e("v_lshlrev_b32 v58, 4, v58")
    for k in range(8):
        e(f"v_xor_b32 v{28 + k}, {32 * k}, v58")
    e("v_lshlrev_b32 v59, 10, v56")
    e("s_lshl_b32 s27, s26, 8")
    e("v_add_u32 v59, s27, v59")
    for j in range(4):
        e(f"s_add_u32 s27, s26, {j}")
        e("s_and_b32 s27, s27, 3")
        e("s_lshl_b32 s27, s27, 15")
        e(f"v_add_u32 v{24 + j}, s27, v59")
        e(f"s_sub_u32 s27, s26, {j}")
        e("s_and_b32 s27, s27, 3")
        e("s_lshl_b32 s27, s27, 12")
        e(f"s_add_u32 s27, s27, {RS}")
        e(f"v_add_u32 v{36 + j}, s27, v16")
    e("v_lshrrev_b32 v60, 4, v1")
    e("v_lshrrev_b32 v61, 5, v1")
    e("v_bfe_u32 v62, v1, 2, 2")
    e("v_and_b32 v63, 3, v1")
    e("v_and_b32 v64, 1, v60")
    e("v_lshlrev_b32 v64, 1, v64")
    e("v_lshrrev_b32 v65, 1, v63")
    e("v_add_u32 v64, v64, v65")
    e("v_lshl_or_b32 v65, v62, 2, v61")
    e("v_xor_b32 v64, v64, v65")
    e("v_lshlrev_b32 v64, 4, v64")
    e("v_and_b32 v65, 1, v63")
    e("v_lshl_add_u32 v64, v65, 3, v64")
    e("v_lshl_add_u32 v65, v61, 2, v62")
    e("v_lshl_add_u32 v64, v65, 10, v64")
    e("s_lshl_b32 s27, s26, 8")
    e("v_add_u32 v64, s27, v64")
    for cc in range(4):
        for v in range(2):
            e(f"v_xor_b32 v{40 + 2 * cc + v}, {64 * cc + 32 * v}, v64")
            e(f"v_add_u32 v{48 + 2 * cc + v}, 0x10000, v{40 + 2 * cc + v}")
    e("v_lshlrev_b32 v18, 2, v56")
    e(f"v_add_u32 v18, {MX}, v18")
    e("s_lshl_b32 s27, s26, 7")
    e("v_add_u32 v17, s27, v18")
    e(f"v_add_u32 v20, {PX}, v16")
    e("s_lshl_b32 s27, s26, 11")
    e("v_add_u32 v19, s27, v20")
    e("v_mov_b32 v8, 0xff800000")
    e("v_mov_b32 v9, 0")
    tile_to_lds()
    e("s_lshl_b32 s27, s36, 15")
    e("s_lshl_b32 s28, s26, 13")
    e("s_add_u32 s27, s27, s28")
    e("s_mov_b32 s44, 0x80000")
    lab("KM_QPOLL")
    for part in range(1 if HIONLY else 2):
        for s in range(8):
            if s % 4 == 0:
                e(f"s_add_u32 s28, s27, {part * QA_LO + s * 1024}")
            e(f"buffer_load_dwordx4 {vr(192 + 32 * part + 4 * s, 4)}, v16, s[20:23], s28 offen offset:{(s % 4) * 1024} sc1")
    e("s_waitcnt vmcnt(0)")
    e("v_and_b32 v11, v192, v193")
    for k in range(194, 224 if HIONLY else 256):
        e(f"v_and_b32 v11, v11, v{k}")
    e("v_and_b32 v11, 1, v11")
    e("v_cmp_eq_u32 vcc, 0, v11")
    e("s_cbranch_vccz KM_QOK")
    e("s_sleep 1")
    e("s_sub_u32 s44, s44, 1")
    e("s_cmp_lg_u32 s44, 0")
    e("s_cbranch_scc1 KM_QPOLL")
    lab("KM_QOK")
    e("s_lshl_b32 s27, s25, 15")
    e("s_add_u32 s31, s30, s27")
    e("s_add_u32 s31, s31, 327680")
    for (base, srdn) in ((128, 12), (160, 16)):
        for i in range(8):
            va = 6 if i < 4 else 7
            filler.append([f"buffer_load_dwordx4 {vr(base + 4 * i, 4)}, v{va}, s[{srdn}:{srdn+3}], s31 offen offset:{(i % 4) * 1024} nt"])
            filler.append([])
    e("s_barrier")
    prof_mark(0)
    a_tile(True)
    prof_mark(1)
    e("v_mov_b32 v13, v9")
    e("s_nop 1")
    e("v_permlane32_swap_b32 v9, v13")
    e("s_nop 1")
    e("v_add_f32 v9, v9, v13")
    e(f"ds_write_b32 v17, v9 offset:{LX - MX}")
    e("s_nop 7")
    e("s_barrier")
    e("v_and_b32 v11, 31, v1")
    e("v_lshrrev_b32 v12, 5, v1")
    e("s_movk_i32 s27, 1040")
    e("v_mul_lo_u32 v14, v11, s27")
    e("v_lshl_add_u32 v14, v12, 3, v14")
    e("s_lshl_b32 s28, s26, 8")
    e("v_add_u32 v14, s28, v14")
    for cc in range(4):
        for q in range(4):
            r0 = 192 + 16 * cc + 4 * q
            e(f"v_cvt_pk_bf16_f32 v{r0}, v{r0}, v{r0 + 1}")
            e(f"v_cvt_pk_bf16_f32 v{r0 + 1}, v{r0 + 2}, v{r0 + 3}")
            e(f"ds_write_b64 v14, {vr(r0, 2)} offset:{cc * 64 + q * 16}")
    e("s_waitcnt lgkmcnt(0)")
    e("s_barrier")
    e("s_mul_i32 s28, s26, 8320")
    e("v_add_u32 v14, s28, v16")
    for i in range(8):
        e(f"ds_read_b128 {vr(192 + 4 * i, 4)}, v14 offset:{1040 * i}")
    e("s_lshl_b32 s27, s36, 6")
    e("s_add_u32 s27, s27, s37")
    e("s_lshl_b32 s27, s27, 15")
    e("s_lshl_b32 s28, s26, 13")
    e("s_add_u32 s27, s27, s28")
    e(f"s_add_u32 s27, s27, {APART}")
    for i in range(8):
        if i == 4:
            e("s_add_u32 s27, s27, 4096")
        e(f"s_waitcnt lgkmcnt({7 - i})")
        e(f"buffer_store_dwordx4 {vr(192 + 4 * i, 4)}, v16, s[20:23], s27 offen offset:{(i % 4) * 1024}")
    e("s_cmp_lg_u32 s26, 0")
    e("s_cbranch_scc1 KM_ASTAT_DONE")
    for w in range(4):
        e(f"ds_read_b32 v{12 + w}, v18 offset:{LX - MX + 128 * w}")
    e("s_waitcnt lgkmcnt(0)")
    e("v_add_f32 v12, v12, v13")
    e("v_add_f32 v14, v14, v15")
    e("v_add_f32 v9, v12, v14")
    e("v_lshlrev_b32 v14, 9, v11")
    e("s_lshl_b32 s27, s36, 14")
    e("s_lshl_b32 s28, s37, 3")
    e("s_add_u32 s27, s27, s28")
    e(f"s_add_u32 s27, s27, {ASTAT}")
    e(f"buffer_store_dwordx2 v[8:9], v14, s[20:23], s27 offen")
    lab("KM_ASTAT_DONE")
    prof_mark(2)
    e("v_mov_b32 v8, 0xff800000")
    for j in range(9, 18):
        e(f"v_mov_b32 v{j}, 0")
    e("s_waitcnt vmcnt(0)")
    bscore(128)
    bpv(160)
    e("s_branch KM_BFIN")
    lab("KM_BONLY")
    e("s_sub_u32 s27, s25, 2")
    e("s_mul_i32 s27, s27, 163840")
    e("s_add_u32 s31, s30, s27")
    e("s_sub_u32 s31, s31, 32768")
    e("v_mov_b32 v8, 0xff800000")
    for j in range(9, 18):
        e(f"v_mov_b32 v{j}, 0")

    def qb_hook():
        e("s_waitcnt vmcnt(32)")
        e("v_add_f32 v44, v44, v45")
        e("v_add_f32 v46, v46, v47")
        e("v_add_f32 v44, v44, v46")
        e("v_cvt_pk_bf16_f32 v44, v44, v44")
        e("v_lshrrev_b32 v42, 1, v42")
        e(f"v_add_u32 v42, {SCR + 2048}, v42")
        e("ds_write_b16 v42, v44")
        e("s_waitcnt lgkmcnt(0)")
        e("s_barrier")
        e("v_and_b32 v43, 15, v1")
        e("v_lshlrev_b32 v43, 4, v43")
        e(f"v_add_u32 v43, {SCR + 2048}, v43")
        e(f"ds_read_b128 {vr(2, 4)}, v43")
        e("s_waitcnt lgkmcnt(0)")
    bsched(5, lambda c: 3, hook=qb_hook)
    lab("KM_BFIN")
    prof_mark(3)
    bcombine(BO, BS, "KM_BDONE")
    lab("KM_BDONE")
    lab("KM_END")
    e("s_endpgm")
    kernel_desc(L, 512, 256)
    return f"; @launch kernel={L} grid=(256,1,1) block=(256,1,1) lds={KM_LDS}"


def k3():
    L = "k3_kernel"
    kernel_header(L)
    e("s_cmp_ge_u32 s2, 672")
    e("s_cbranch_scc1 K3_END")
    e("s_cmp_lt_u32 s2, 128")
    e("s_cbranch_scc1 K3_LATE")
    e("s_sub_u32 s2, s2, 128")
    e("s_cmp_ge_u32 s2, 512")
    e("s_cbranch_scc1 K3_RED")
    srd(20, "ws")
    e("v_and_b32 v1, 63, v0")
    e("v_lshrrev_b32 v2, 6, v0")
    e("s_nop 0")
    e("v_readfirstlane_b32 s26, v2")
    e("s_bfe_u32 s52, s2, 0x20006")
    e("s_and_b32 s53, s2, 63")
    e("s_and_b32 s54, s2, 31")
    e("s_bfe_u32 s55, s2, 0x10005")
    e("s_lshr_b32 s56, s2, 8")
    e("s_cmp_lg_u32 s56, 0")
    e("s_cbranch_scc1 K3_LB")
    srd(16, "A_wo"); srd(12, "A_wuv")
    e("s_branch K3_LD")
    lab("K3_LB")
    srd(16, "B_wo")
    lab("K3_LD")
    e("v_lshrrev_b32 v44, 2, v0")
    e("v_and_b32 v45, 3, v0")
    e("v_lshlrev_b32 v46, 16, v44")
    e("v_lshl_add_u32 v46, v45, 4, v46")
    e("v_lshlrev_b32 v16, 4, v1")
    e("s_waitcnt lgkmcnt(0)")
    srd_fin(16, "A_wo"); srd_fin(20, "ws")
    e("s_lshl_b32 s28, s54, 17")
    e("s_lshl_b32 s29, s52, 15")
    e("s_add_u32 s28, s28, s29")
    e("s_lshl_b32 s29, s26, 13")
    e("s_add_u32 s28, s28, s29")
    for i in range(8):
        if i == 4:
            e("s_add_u32 s28, s28, 4096")
        e(f"buffer_load_dwordx4 {vr(224 + 4 * i, 4)}, v16, s[16:19], s28 offen offset:{(i % 4) * 1024} nt")
    e("s_cmp_lg_u32 s56, 0")
    e("s_cbranch_scc1 K3_B")
    srd_fin(12, "A_wuv")
    e("s_lshl_b32 s28, s54, 8")
    e("s_lshl_b32 s29, s52, 6")
    e("s_add_u32 s28, s28, s29")
    for i in range(8):
        e(f"buffer_load_dwordx4 {vr(192 + 4 * i, 4)}, v46, s[12:15], s28 offen nt")
        e("s_add_u32 s28, s28, 8192")
    e("v_lshlrev_b32 v4, 3, v0")
    e("v_lshlrev_b32 v5, 3, v1")
    e("s_lshl_b32 s28, s53, 9")
    e(f"s_add_u32 s28, s28, {ASTAT}")
    e("buffer_load_dwordx2 v[8:9], v5, s[20:23], s28 offen")
    e("v_and_b32 v12, 127, v0")
    e("v_lshrrev_b32 v13, 7, v0")
    e("v_lshlrev_b32 v12, 3, v12")
    e("v_lshl_add_u32 v12, v13, 20, v12")
    e("s_lshl_b32 s28, s55, 21")
    e("s_lshl_b32 s29, s54, 10")
    e("s_add_u32 s28, s28, s29")
    e(f"s_add_u32 s28, s28, {APART}")
    for s in range(32):
        e(f"buffer_load_dwordx2 {vr(64 + 2 * s, 2)}, v12, s[20:23], s28 offen")
        e("s_add_u32 s28, s28, 0x8000")
    e("s_waitcnt vmcnt(32)")
    e("v_mov_b32 v10, v8")
    for sh in (8, 4, 2, 1):
        e("s_nop 1")
        e(f"v_max_f32_dpp v10, v10, v10 row_ror:{sh} row_mask:0xf bank_mask:0xf")
    e("v_mov_b32 v11, v10")
    e("s_nop 1")
    e("v_permlane16_swap_b32 v10, v11")
    e("s_nop 1")
    e("v_max_f32 v10, v10, v11")
    e("v_mov_b32 v11, v10")
    e("s_nop 1")
    e("v_permlane32_swap_b32 v10, v11")
    e("s_nop 1")
    e("v_max_f32 v10, v10, v11")
    e("v_sub_f32 v8, v8, v10")
    e("v_exp_f32 v8, v8")
    e("s_nop 0")
    e("v_mul_f32 v10, v8, v9")
    for sh in (8, 4, 2, 1):
        e("s_nop 1")
        e(f"v_add_f32_dpp v10, v10, v10 row_ror:{sh} row_mask:0xf bank_mask:0xf")
    e("v_mov_b32 v11, v10")
    e("s_nop 1")
    e("v_permlane16_swap_b32 v10, v11")
    e("s_nop 1")
    e("v_add_f32 v10, v10, v11")
    e("v_mov_b32 v11, v10")
    e("s_nop 1")
    e("v_permlane32_swap_b32 v10, v11")
    e("s_nop 1")
    e("v_add_f32 v10, v10, v11")
    e("v_rcp_f32 v6, v10")
    for k in range(4):
        e(f"v_mov_b32 v{40 + k}, 0")
    e("s_lshr_b32 s30, s26, 1")
    e("s_lshl_b32 s30, s30, 5")
    for s in range(32):
        e(f"s_add_u32 s31, s30, {s}")
        e(f"v_readlane_b32 s{60 + (s & 3)}, v8, s31")
        e(f"s_waitcnt vmcnt({31 - s})")
        unpack2(48, 49, 64 + 2 * s)
        unpack2(50, 51, 65 + 2 * s)
        for k in range(4):
            e(f"v_fmac_f32 v{40 + k}, s{60 + (s & 3)}, v{48 + k}")
    for k in range(4):
        e(f"v_mul_f32 v{40 + k}, v{40 + k}, v6")
    e("v_lshlrev_b32 v4, 4, v0")
    e(f"ds_write_b128 v4, {vr(40, 4)} offset:10240")
    e("s_waitcnt lgkmcnt(0)")
    e("s_barrier")
    e("v_lshlrev_b32 v5, 5, v44")
    e(f"ds_read_b128 {vr(8, 4)}, v5 offset:10240")
    e(f"ds_read_b128 {vr(12, 4)}, v5 offset:10256")
    e(f"ds_read_b128 {vr(16, 4)}, v5 offset:12288")
    e(f"ds_read_b128 {vr(20, 4)}, v5 offset:12304")
    for k in range(8):
        e(f"v_mov_b32 v{24 + k}, 0")
    e("s_waitcnt lgkmcnt(0)")
    for k in range(8):
        e(f"v_add_f32 v{8 + k}, v{8 + k}, v{16 + k}")
    for i in range(8):
        for k in range(4):
            unpack2(32 + 2 * k, 33 + 2 * k, 192 + 4 * i + k)
        for k in range(8):
            e(f"v_fmac_f32 v{24 + k}, v{32 + k}, v{8 + i}")
    e("v_lshlrev_b32 v5, 7, v44")
    e("v_lshl_add_u32 v5, v45, 5, v5")
    e(f"ds_write_b128 v5, {vr(24, 4)} offset:2048")
    e(f"ds_write_b128 v5, {vr(28, 4)} offset:2064")
    e("s_waitcnt lgkmcnt(0)")
    e("s_barrier")
    e("v_and_b32 v5, 31, v1")
    e("v_lshrrev_b32 v6, 5, v1")
    e("v_lshlrev_b32 v5, 2, v5")
    e("v_lshl_add_u32 v5, v6, 12, v5")
    for g in range(32):
        e(f"ds_read_b32 v{64 + g}, v5 offset:{2048 + 128 * g}")
    e("s_waitcnt lgkmcnt(0)")
    for n in (16, 8, 4, 2, 1):
        for g in range(n):
            e(f"v_add_f32 v{64 + g}, v{64 + g}, v{64 + n + g}")
    e("v_mov_b32 v65, v64")
    e("s_nop 1")
    e("v_permlane32_swap_b32 v64, v65")
    e("s_nop 1")
    e("v_add_f32 v64, v64, v65")
    e("v_cvt_pk_bf16_f32 v64, v64, v64")
    e("v_lshlrev_b32 v64, 16, v64")
    e("s_branch K3_OUT")
    lab("K3_B")
    e("v_mov_b32 v5, 0")
    e("s_lshl_b32 s28, s53, 6")
    e(f"s_add_u32 s28, s28, {BSTAT}")
    for k in range(2):
        e(f"buffer_load_dwordx4 {vr(8 + 4 * k, 4)}, v5, s[20:23], s28 offen offset:{16 * k}")
    e("v_and_b32 v6, 31, v1")
    e("v_lshlrev_b32 v6, 2, v6")
    e("s_lshl_b32 s30, s53, 12")
    e("s_lshl_b32 s29, s52, 7")
    e("s_add_u32 s30, s30, s29")
    e(f"s_add_u32 s30, s30, {BPART}")
    for r in range(4):
        e(f"buffer_load_dword v{64 + r}, v6, s[20:23], s30 offen offset:{512 * r}")
    e("s_mov_b32 s31, 0x80000")
    lab("K3_BPOLL")
    e(f"buffer_load_dwordx4 {vr(16, 4)}, v5, s[20:23], s28 offen offset:32 sc1")
    for r in range(4, 6):
        e(f"buffer_load_dword v{64 + r}, v6, s[20:23], s30 offen offset:{512 * r} sc1")
    e("s_waitcnt vmcnt(0)")
    e("v_and_b32 v56, v16, v17")
    e("v_and_b32 v56, v56, v18")
    e("v_and_b32 v56, v56, v19")
    e("v_and_b32 v56, v56, v68")
    e("v_and_b32 v56, v56, v69")
    e("v_and_b32 v56, 1, v56")
    e("v_cmp_eq_u32 vcc, 0, v56")
    e("s_cbranch_vccz K3_BOK")
    e("s_sleep 2")
    e("s_sub_u32 s31, s31, 1")
    e("s_cmp_lg_u32 s31, 0")
    e("s_cbranch_scc1 K3_BPOLL")
    lab("K3_BOK")
    e("v_max3_f32 v56, v8, v10, v12")
    e("v_max3_f32 v56, v56, v14, v16")
    e("v_max_f32 v56, v56, v18")
    for r in range(6):
        e(f"v_sub_f32 v{8 + 2 * r}, v{8 + 2 * r}, v56")
    for r in range(6):
        e(f"v_exp_f32 v{8 + 2 * r}, v{8 + 2 * r}")
    e("s_nop 0")
    e("v_mul_f32 v57, v8, v9")
    e("v_mul_f32 v58, v8, v64")
    for r in range(1, 6):
        e(f"v_fmac_f32 v57, v{8 + 2 * r}, v{9 + 2 * r}")
        e(f"v_fmac_f32 v58, v{8 + 2 * r}, v{64 + r}")
    e("v_rcp_f32 v57, v57")
    e("s_nop 0")
    e("v_mul_f32 v58, v58, v57")
    e("v_cvt_pk_bf16_f32 v58, v58, v58")
    e("v_lshlrev_b32 v64, 16, v58")
    lab("K3_OUT")
    e("s_lshl_b32 s30, s26, 3")
    for k in range(8):
        e(f"v_mov_b32 v{24 + k}, 0")
    e("s_waitcnt vmcnt(0)")
    for i in range(8):
        e(f"s_add_u32 s31, s30, {i}")
        e(f"v_readlane_b32 s{60 + i}, v64, s31")
    for i in range(8):
        for k in range(4):
            unpack2(32 + 2 * k, 33 + 2 * k, 224 + 4 * i + k)
        for k in range(8):
            e(f"v_fmac_f32 v{24 + k}, s{60 + i}, v{32 + k}")
    e("s_barrier")
    e("v_lshlrev_b32 v5, 5, v1")
    e("s_lshl_b32 s30, s26, 11")
    e("v_add_u32 v5, s30, v5")
    e(f"ds_write_b128 v5, {vr(24, 4)}")
    e(f"ds_write_b128 v5, {vr(28, 4)} offset:16")
    e("s_waitcnt lgkmcnt(0)")
    e("s_barrier")
    e("v_lshlrev_b32 v5, 3, v0")
    for w in range(4):
        e(f"ds_read_b64 {vr(8 + 2 * w, 2)}, v5 offset:{2048 * w}")
    e("s_waitcnt lgkmcnt(0)")
    e("v_add_f32 v8, v8, v10")
    e("v_add_f32 v9, v9, v11")
    e("v_add_f32 v12, v12, v14")
    e("v_add_f32 v13, v13, v15")
    e("v_add_f32 v8, v8, v12")
    e("v_add_f32 v9, v9, v13")
    e("s_lshl_b32 s28, s56, 19")
    e("s_lshl_b32 s29, s55, 18")
    e("s_add_u32 s28, s28, s29")
    e("s_lshl_b32 s29, s54, 13")
    e("s_add_u32 s28, s28, s29")
    e("s_lshl_b32 s29, s52, 11")
    e("s_add_u32 s28, s28, s29")
    e(f"s_add_u32 s28, s28, {OPA}")
    e("v_or_b32 v8, 1, v8")
    e("v_or_b32 v9, 1, v9")
    e("buffer_store_dwordx2 v[8:9], v5, s[20:23], s28 offen sc1")
    e("s_branch K3_END")
    lab("K3_LATE")
    srd(12, "B_k"); srd(16, "B_v"); srd(20, "ws")
    e("s_and_b32 s24, s2, 63")
    e("s_lshr_b32 s25, s2, 6")
    e("v_and_b32 v1, 63, v0")
    e("v_lshrrev_b32 v2, 6, v0")
    e("s_nop 0")
    e("v_readfirstlane_b32 s26, v2")
    e(f"s_mov_b32 s34, {SCALE_BITS:#x}")
    e(f"s_mov_b32 s35, {LOG2E_BITS:#x}")
    e("v_lshlrev_b32 v16, 4, v1")
    e("s_lshl_b32 s27, s26, 13")
    e("v_add_u32 v6, s27, v16")
    e("v_add_u32 v7, 4096, v6")
    e("s_lshl_b32 s31, s24, 21")
    e("s_lshl_b32 s27, s25, 16")
    e("s_add_u32 s31, s31, s27")
    e("s_add_u32 s31, s31, 1933312")
    e("v_and_b32 v42, 127, v0")
    e("v_lshlrev_b32 v42, 2, v42")
    e("s_and_b32 s27, s24, 31")
    e("s_lshl_b32 s27, s27, 12")
    e("s_lshr_b32 s28, s24, 5")
    e("s_lshl_b32 s28, s28, 9")
    e("s_add_u32 s27, s27, s28")
    e(f"s_add_u32 s27, s27, {QP + 0x20000}")
    e("s_add_u32 s25, s25, 4")
    e("s_waitcnt lgkmcnt(0)")
    srd_fin(12, "B_k"); srd_fin(16, "B_v"); srd_fin(20, "ws")
    for mq in range(4):
        e(f"buffer_load_dword v{44 + mq}, v42, s[20:23], s27 offen offset:{1024 * mq}")
    e("v_mov_b32 v8, 0xff800000")
    for j in range(9, 18):
        e(f"v_mov_b32 v{j}, 0")

    def qb_hook2():
        e("s_waitcnt vmcnt(32)")
        e("v_add_f32 v44, v44, v45")
        e("v_add_f32 v46, v46, v47")
        e("v_add_f32 v44, v44, v46")
        e("v_cvt_pk_bf16_f32 v44, v44, v44")
        e("v_lshrrev_b32 v42, 1, v42")
        e("ds_write_b16 v42, v44 offset:8448")
        e("s_waitcnt lgkmcnt(0)")
        e("s_barrier")
        e("v_and_b32 v43, 15, v1")
        e("v_lshlrev_b32 v43, 4, v43")
        e(f"ds_read_b128 {vr(2, 4)}, v43 offset:8448")
        e("s_waitcnt lgkmcnt(0)")
    bsched(2, lambda c: 3, hook=qb_hook2)
    bcombine(0, 8192, "K3_END", tag=True)
    e("s_branch K3_END")
    lab("K3_RED")
    srd(20, "ws"); srd(8, "out")
    e("s_sub_u32 s3, s2, 512")
    e("s_lshr_b32 s24, s3, 3")
    e("s_and_b32 s25, s3, 7")
    e("v_and_b32 v1, 15, v0")
    e("v_lshrrev_b32 v2, 4, v0")
    e("v_lshlrev_b32 v3, 14, v2")
    e("v_lshl_add_u32 v3, v1, 4, v3")
    e("s_lshl_b32 s26, s24, 18")
    e("s_lshl_b32 s27, s25, 8")
    e("s_add_u32 s26, s26, s27")
    e(f"s_add_u32 s26, s26, {OPA}")
    e("s_mov_b32 s30, 0x80000")
    e("s_waitcnt lgkmcnt(0)")
    srd_fin(20, "ws"); srd_fin(8, "out")
    lab("K3_RLOOP")
    e("s_mov_b32 s27, s26")
    for i in range(8):
        if i % 2 == 0 and i:
            e("s_add_u32 s27, s27, 4096")
        e(f"buffer_load_dwordx4 {vr(8 + 4 * i, 4)}, v3, s[20:23], s27 offen offset:{(i % 2) * 2048} sc1")
    e("s_waitcnt vmcnt(0)")
    e("v_and_b32 v40, v8, v9")
    for k in range(10, 40):
        e(f"v_and_b32 v40, v40, v{k}")
    e("v_and_b32 v40, 1, v40")
    e("v_cmp_eq_u32 vcc, 0, v40")
    e("s_cbranch_vccz K3_ROK")
    e("s_sleep 2")
    e("s_sub_u32 s30, s30, 1")
    e("s_cmp_lg_u32 s30, 0")
    e("s_cbranch_scc1 K3_RLOOP")
    lab("K3_ROK")
    for n in (4, 2, 1):
        for i in range(n):
            for k in range(4):
                e(f"v_add_f32 v{8 + 4 * i + k}, v{8 + 4 * i + k}, v{8 + 4 * (i + n) + k}")
    e("v_lshlrev_b32 v4, 4, v0")
    e(f"ds_write_b128 v4, {vr(8, 4)}")
    e("s_waitcnt lgkmcnt(0)")
    e("s_barrier")
    e("v_cmp_gt_u32 vcc, 64, v0")
    e("s_and_saveexec_b64 s[28:29], vcc")
    e("s_cbranch_execz K3_END")
    e("v_lshlrev_b32 v4, 2, v0")
    for g in range(16):
        e(f"ds_read_b32 v{8 + g}, v4 offset:{256 * g}")
    e("s_waitcnt lgkmcnt(0)")
    for n in (8, 4, 2, 1):
        for g in range(n):
            e(f"v_add_f32 v{8 + g}, v{8 + g}, v{8 + n + g}")
    e("v_cvt_pk_bf16_f32 v8, v8, v8")
    e("s_and_b32 s26, s24, 1")
    e("s_lshl_b32 s26, s26, 11")
    e("s_lshr_b32 s27, s24, 1")
    e("s_lshl_b32 s27, s27, 10")
    e("s_add_u32 s26, s26, s27")
    e("s_lshl_b32 s27, s25, 7")
    e("s_add_u32 s26, s26, s27")
    e("v_lshlrev_b32 v4, 1, v0")
    e("buffer_store_short v8, v4, s[8:11], s26 offen")
    lab("K3_END")
    e("s_endpgm")
    kernel_desc(L, 256, 256)
    return f"; @launch kernel={L} grid=(672,1,1) block=(256,1,1) lds=14336"


def k4():
    L = "k4_kernel"
    kernel_header(L)
    e("s_cmp_ge_u32 s2, 32")
    e("s_cbranch_scc1 K4_END")
    srd(20, "ws"); srd(8, "out")
    e("s_lshr_b32 s24, s2, 3")
    e("s_and_b32 s25, s2, 7")
    e("v_and_b32 v1, 15, v0")
    e("v_lshrrev_b32 v2, 4, v0")
    e("v_lshlrev_b32 v3, 14, v2")
    e("v_lshl_add_u32 v3, v1, 4, v3")
    e("s_lshl_b32 s26, s24, 18")
    e("s_lshl_b32 s27, s25, 8")
    e("s_add_u32 s26, s26, s27")
    e(f"s_add_u32 s26, s26, {OPA}")
    e("s_waitcnt lgkmcnt(0)")
    srd_fin(20, "ws"); srd_fin(8, "out")
    for i in range(8):
        if i % 2 == 0 and i:
            e("s_add_u32 s26, s26, 4096")
        e(f"buffer_load_dwordx4 {vr(8 + 4 * i, 4)}, v3, s[20:23], s26 offen offset:{(i % 2) * 2048}")
    e("s_waitcnt vmcnt(0)")
    for n in (4, 2, 1):
        for i in range(n):
            for k in range(4):
                e(f"v_add_f32 v{8 + 4 * i + k}, v{8 + 4 * i + k}, v{8 + 4 * (i + n) + k}")
    e("v_lshlrev_b32 v4, 4, v0")
    e(f"ds_write_b128 v4, {vr(8, 4)}")
    e("s_waitcnt lgkmcnt(0)")
    e("s_barrier")
    e("v_cmp_gt_u32 vcc, 64, v0")
    e("s_and_saveexec_b64 s[28:29], vcc")
    e("s_cbranch_execz K4_END")
    e("v_lshlrev_b32 v4, 2, v0")
    for g in range(16):
        e(f"ds_read_b32 v{8 + g}, v4 offset:{256 * g}")
    e("s_waitcnt lgkmcnt(0)")
    for n in (8, 4, 2, 1):
        for g in range(n):
            e(f"v_add_f32 v{8 + g}, v{8 + g}, v{8 + n + g}")
    e("v_cvt_pk_bf16_f32 v8, v8, v8")
    e("s_and_b32 s26, s24, 1")
    e("s_lshl_b32 s26, s26, 11")
    e("s_lshr_b32 s27, s24, 1")
    e("s_lshl_b32 s27, s27, 10")
    e("s_add_u32 s26, s26, s27")
    e("s_lshl_b32 s27, s25, 7")
    e("s_add_u32 s26, s26, s27")
    e("v_lshlrev_b32 v4, 1, v0")
    e("buffer_store_short v8, v4, s[8:11], s26 offen")
    lab("K4_END")
    e("s_endpgm")
    kernel_desc(L, 48, 48)
    return f"; @launch kernel={L} grid=(32,1,1) block=(256,1,1) lds=4096"


LAUNCHES = []


def main():
    LAUNCHES.append(k1())
    LAUNCHES.append(km())
    LAUNCHES.append(k3())
    head = open(f"cdna_kernels/{NAME}.s.ref").read().split("; Override launch")[0]
    txt = head + "\n".join(LAUNCHES) + "\n"
    txt += '.amdgcn_target "amdgcn-amd-amdhsa--gfx950"\n.text\n'
    txt += "\n".join(out) + "\n"
    txt += '.section .rodata,"a"\n' + "\n".join(descs) + "\n"
    path = sys.argv[1] if len(sys.argv) > 1 else f"cdna_kernels/{NAME}.s"
    open(path, "w").write(txt)


if __name__ == "__main__":
    main()
```

```python
import sys

NAME = "concat_heads__compressed_kv_cla__sliding_block_cached__decode"

KA = dict(A_x=0, A_ckv=8, A_wq=16, A_wuk=24, A_wuv=32, A_wo=40, B_x=48, B_k=56, B_v=64,
          B_wq=72, B_wo=80, out=88, dbg=96, ws=104)
SZ = dict(A_x=2048, A_ckv=16777216, A_wq=4194304, A_wuk=4194304, A_wuv=4194304, A_wo=4194304,
          B_x=2048, B_k=134217728, B_v=134217728, B_wq=4194304, B_wo=4194304, out=4096, dbg=256,
          ws=536870912)

QA_HI = 0x00000
QA_LO = 0x10000
QB = 0x20000
ASTAT = 0x30000
BPART = 0x40000
BSTAT = 0x80000
CTX = 0x70000
OPART = 0x80000
APART = 0x100000

OPA = 0xA00000
SCALE_BITS = 0x3DB504F3
LOG2E_BITS = 0x3FB8AA3B

out = []
import os
DEBUG = bool(os.environ.get('DEBUG'))
PROF = bool(os.environ.get('PROF'))
PST = os.environ.get('PST', '')
HIONLY = bool(os.environ.get('HIONLY'))
PROFBASE = 0xC00000


def prof_start():
    if PROF:
        e("s_memrealtime s[90:91]")


def prof_mark(slot, t=21):
    if PROF:
        e("s_memrealtime s[92:93]")
        e("s_waitcnt lgkmcnt(0)")
        e("s_sub_u32 s92, s92, s90")
        e(f"v_mov_b32 v{t}, s92")
        e("s_lshl_b32 s94, s2, 7")
        e(f"s_add_u32 s94, s94, {PROFBASE + prof_kernel[0] * 0x10000 + slot * 4}")
        e(f"v_lshrrev_b32 v{t+1}, 6, v0")
        e(f"v_lshlrev_b32 v{t+1}, 5, v{t+1}")
        e(f"buffer_store_dword v{t}, v{t+1}, s[20:23], s94 offen")


prof_kernel = [0]


def e(s):
    out.append("    " + s)


def lab(s):
    out.append(s + ":")


def srd(dst, name):
    e(f"s_load_dwordx2 s[{dst}:{dst+1}], s[0:1], {KA[name]}")


def srd_fin(dst, name):
    e(f"s_mov_b32 s{dst+2}, {SZ[name]}")
    e(f"s_mov_b32 s{dst+3}, 0x20000")


def vr(a, n):
    return f"v[{a}:{a+n-1}]"


def ar(a, n):
    return f"a[{a}:{a+n-1}]"


def kernel_header(label):
    out.append(f".globl {label}")
    out.append(".p2align 8")
    out.append(f".type {label},@function")
    lab(label)


descs = []


def kernel_desc(label, vgpr, accum, sgpr=102):
    descs.append(f""".p2align 6
.amdhsa_kernel {label}
  .amdhsa_next_free_vgpr {vgpr}
  .amdhsa_next_free_sgpr {sgpr}
  .amdhsa_accum_offset {accum}
  .amdhsa_group_segment_fixed_size 0
  .amdhsa_kernarg_size 112
  .amdhsa_user_sgpr_count 2
  .amdhsa_user_sgpr_kernarg_segment_ptr 1
  .amdhsa_system_sgpr_workgroup_id_x 1
.end_amdhsa_kernel""")


def unpack2(dlo, dhi, src):
    e(f"v_lshlrev_b32 v{dlo}, 16, v{src}")
    e(f"v_and_b32 v{dhi}, 0xffff0000, v{src}")


def gemv_rows(nrows, wbase, xbase0, xbase1, acc, tmp, xt, vm_after):
    for i in range(nrows):
        e(f"s_waitcnt vmcnt({nrows - 1 - i + vm_after})")
        if i % 2 == 0:
            e(f"v_lshlrev_b32 v{xt}, 16, v{xbase0 + i // 2}")
            e(f"v_lshlrev_b32 v{xt+1}, 16, v{xbase1 + i // 2}")
        else:
            e(f"v_and_b32 v{xt}, 0xffff0000, v{xbase0 + i // 2}")
            e(f"v_and_b32 v{xt+1}, 0xffff0000, v{xbase1 + i // 2}")
        for k in range(4):
            unpack2(tmp + 2 * k, tmp + 2 * k + 1, wbase + 4 * i + k)
        for k in range(8):
            e(f"v_fmac_f32 v{acc + k}, v{tmp + k}, v{xt}")
            e(f"v_fmac_f32 v{acc + 8 + k}, v{tmp + k}, v{xt+1}")


QP = 0x90000


def k1():
    L = "k0_kernel"
    kernel_header(L)
    e("s_cmp_ge_u32 s2, 256")
    e("s_cbranch_scc1 K0_END")
    srd(20, "ws")
    e("s_and_b32 s24, s2, 31")
    e("s_bfe_u32 s25, s2, 0x20005")
    e("s_lshr_b32 s26, s2, 7")
    e("s_cmp_lg_u32 s26, 0")
    e("s_cbranch_scc1 K0_LB")
    srd(8, "A_x"); srd(12, "A_wq")
    e("s_branch K0_LD")
    lab("K0_LB")
    srd(8, "B_x"); srd(12, "B_wq")
    lab("K0_LD")
    e("v_and_b32 v1, 15, v0")
    e("v_lshrrev_b32 v2, 4, v0")
    e("v_lshlrev_b32 v3, 16, v2")
    e("v_lshl_add_u32 v3, v1, 4, v3")
    e("v_lshlrev_b32 v4, 4, v2")
    e("s_lshl_b32 s27, s25, 20")
    e("s_lshl_b32 s28, s24, 8")
    e("s_add_u32 s27, s27, s28")
    e("s_lshl_b32 s28, s25, 8")
    e("s_waitcnt lgkmcnt(0)")
    srd_fin(8, "A_x"); srd_fin(12, "A_wq"); srd_fin(20, "ws")
    e("buffer_load_dwordx4 v[8:11], v4, s[8:11], s28 offen")
    e("buffer_load_dwordx4 v[12:15], v4, s[8:11], s28 offen offset:1024")
    for i in range(8):
        e(f"buffer_load_dwordx4 {vr(40 + 4 * i, 4)}, v3, s[12:15], s27 offen nt")
        e("s_add_u32 s27, s27, 8192")
    for k in range(4):
        e(f"v_mov_b32 v{76 + k}, 0")
    e("v_lshlrev_b32 v80, 4, v0")
    e("s_lshl_b32 s29, s2, 12")
    e(f"s_add_u32 s29, s29, {OPA}")
    e("buffer_store_dwordx4 v[76:79], v80, s[20:23], s29 offen")
    e("v_lshlrev_b32 v80, 1, v0")
    e("s_lshl_b32 s29, s2, 9")
    e("buffer_store_short v76, v80, s[20:23], s29 offen")
    for k in range(16):
        e(f"v_mov_b32 v{16 + k}, 0")
    gemv_rows(8, 40, 8, 12, 16, 32, 6, 2)
    e("v_lshlrev_b32 v6, 10, v2")
    e("v_lshl_add_u32 v6, v1, 5, v6")
    e(f"ds_write_b128 v6, {vr(16, 4)}")
    e(f"ds_write_b128 v6, {vr(20, 4)} offset:16")
    e(f"ds_write_b128 v6, {vr(24, 4)} offset:512")
    e(f"ds_write_b128 v6, {vr(28, 4)} offset:528")
    e("s_waitcnt lgkmcnt(0)")
    e("s_barrier")
    e("v_lshlrev_b32 v6, 2, v0")
    for g in range(16):
        e(f"ds_read_b32 v{8 + g}, v6 offset:{1024 * g}")
    e("s_waitcnt lgkmcnt(0)")
    for n in (8, 4, 2, 1):
        for g in range(n):
            e(f"v_add_f32 v{8 + g}, v{8 + g}, v{8 + n + g}")
    e("s_lshl_b32 s27, s26, 17")
    e("s_lshl_b32 s28, s24, 12")
    e("s_add_u32 s27, s27, s28")
    e("s_lshl_b32 s28, s25, 10")
    e("s_add_u32 s27, s27, s28")
    e(f"s_add_u32 s27, s27, {QP}")
    e("buffer_store_dword v8, v6, s[20:23], s27 offen")
    lab("K0_END")
    e("s_endpgm")
    kernel_desc(L, 88, 88)
    return f"; @launch kernel={L} grid=(256,1,1) block=(256,1,1) lds=16384"


MX = 131072
LX = 131584
PX = 132096
BO = 140288
SCR = PX
RS = PX
BS = BO + 8192
KM_LDS = BS + 128
C3 = 132
C4 = 136
C5 = 168
C6 = 200
SC = " sc1"


def fsw(r):
    return ((r & 3) << 2) | ((r >> 2) & 3)


def bloads(K, V, soff):
    for (base, srdn) in ((K, 12), (V, 16)):
        for i in range(8):
            va = 6 if i < 4 else 7
            e(f"buffer_load_dwordx4 {vr(base + 4 * i, 4)}, v{va}, s[{srdn}:{srdn+3}], s{soff} offen offset:{(i % 4) * 1024} nt")


def round_scale(a, b, t):
    e(f"v_cvt_pk_bf16_f32 v{t}, v{a}, v{b}")
    unpack2(a, b, t)
    e(f"v_mul_f32 v{a}, s34, v{a}")
    e(f"v_mul_f32 v{b}, s34, v{b}")
    e(f"v_cvt_pk_bf16_f32 v{t}, v{a}, v{b}")
    unpack2(a, b, t)
    e(f"v_mul_f32 v{a}, s35, v{a}")
    e(f"v_mul_f32 v{b}, s35, v{b}")


def bscore(K):
    for k in range(4):
        for i in range(8):
            c = "0" if k == 0 else f"v{18+i}"
            e(f"v_dot2_f32_bf16 v{18+i}, v{K + 4*i + k}, v{2+k}, {c}")
    for sh in (8, 4, 2, 1):
        for i in range(8):
            e(f"v_add_f32_dpp v{18+i}, v{18+i}, v{18+i} row_ror:{sh} row_mask:0xf bank_mask:0xf")
    for i in range(0, 8, 2):
        round_scale(18 + i, 19 + i, 26)
    e("v_max3_f32 v26, v18, v19, v20")
    e("v_max3_f32 v26, v26, v21, v22")
    e("v_max3_f32 v26, v26, v23, v24")
    e("v_max3_f32 v26, v26, v25, v8")
    e("v_sub_f32 v27, v8, v26")
    e("v_exp_f32 v27, v27")
    e("v_mov_b32 v8, v26")
    for i in range(8):
        e(f"v_sub_f32 v{18+i}, v{18+i}, v26")
    for i in range(8):
        e(f"v_exp_f32 v{18+i}, v{18+i}")
    e("v_mul_f32 v9, v9, v27")
    for j in range(8):
        e(f"v_mul_f32 v{10+j}, v{10+j}, v27")
    for i in range(8):
        e(f"v_add_f32 v9, v9, v{18+i}")


def bpv(V):
    for i in range(8):
        for k in range(4):
            unpack2(34 + 2 * k, 35 + 2 * k, V + 4 * i + k)
        for j in range(8):
            e(f"v_fmac_f32 v{10+j}, v{34+j}, v{18+i}")


def bload1(base, srdn, soff):
    for i in range(8):
        va = 6 if i < 4 else 7
        e(f"buffer_load_dwordx4 {vr(base + 4 * i, 4)}, v{va}, s[{srdn}:{srdn+3}], s{soff} offen offset:{(i % 4) * 1024} nt")


def bsched(nunits, ahead, hook=None):
    bufs = [(128, 160), (192, 224)]
    n = 2 * nunits
    issued = 0
    for c in range(n):
        while issued < n and issued <= c + min(ahead(c), 3):
            u, isv = issued >> 1, issued & 1
            if not isv:
                e("s_add_u32 s31, s31, 32768")
                e("s_mov_b32 s33, s31") if False else None
            e(f"s_mov_b32 s{60 + (u & 1)}, s31") if not isv else None
            bload1(bufs[u & 1][isv], 16 if isv else 12, 60 + (u & 1))
            issued += 1
        if c == 0 and hook:
            hook()
        e(f"s_waitcnt vmcnt({8 * (issued - 1 - c)})")
        u, isv = c >> 1, c & 1
        if isv:
            bpv(bufs[u & 1][1])
        else:
            if u < 3:
                prof_mark(u)
            bscore(bufs[u & 1][0])


def bcombine(BO, BS, done):
    e("v_lshrrev_b32 v18, 4, v1")
    e("s_lshl_b32 s27, s26, 2")
    e("v_add_u32 v18, s27, v18")
    e("v_and_b32 v19, 15, v1")
    e("v_lshlrev_b32 v20, 9, v18")
    e("v_lshl_add_u32 v20, v19, 5, v20")
    e(f"v_add_u32 v20, {BO}, v20")
    e(f"ds_write_b128 v20, {vr(10, 4)}")
    e(f"ds_write_b128 v20, {vr(14, 4)} offset:16")
    e("v_lshlrev_b32 v21, 3, v18")
    e(f"v_add_u32 v21, {BS}, v21")
    e("ds_write_b64 v21, v[8:9]")
    e("s_waitcnt lgkmcnt(0)")
    e("s_barrier")
    e("s_cmp_ge_u32 s26, 2")
    e(f"s_cbranch_scc1 {done}")
    e(f"v_mov_b32 v21, {BS}")
    for s in range(16):
        e(f"ds_read_b64 {vr(64 + 2 * s, 2)}, v21 offset:{8 * s}")
    e("v_lshlrev_b32 v20, 2, v0")
    e(f"v_add_u32 v20, {BO}, v20")
    for s in range(16):
        e(f"ds_read_b32 v{96 + s}, v20 offset:{512 * s}")
    e("s_waitcnt lgkmcnt(0)")
    e("v_max3_f32 v8, v64, v66, v68")
    for s in range(3, 15, 2):
        e(f"v_max3_f32 v8, v8, v{64 + 2 * s}, v{66 + 2 * s}")
    e("v_max_f32 v8, v8, v94")
    for s in range(16):
        e(f"v_sub_f32 v{64 + 2 * s}, v{64 + 2 * s}, v8")
    for s in range(16):
        e(f"v_exp_f32 v{64 + 2 * s}, v{64 + 2 * s}")
    e("s_nop 0")
    e("v_mul_f32 v9, v64, v65")
    e("v_mul_f32 v10, v64, v96")
    for s in range(1, 16):
        e(f"v_fmac_f32 v9, v{64 + 2 * s}, v{65 + 2 * s}")
        e(f"v_fmac_f32 v10, v{64 + 2 * s}, v{96 + s}")
    e("s_lshl_b32 s27, s24, 3")
    e("s_add_u32 s27, s27, s25")
    e("s_lshl_b32 s28, s27, 9")
    e(f"s_add_u32 s28, s28, {BPART}")
    e("v_lshlrev_b32 v20, 2, v0")
    e(f"buffer_store_dword v10, v20, s[20:23], s28 offen")
    e("s_lshl_b32 s28, s27, 3")
    e(f"s_add_u32 s28, s28, {BSTAT}")
    e("v_mov_b32 v20, 0")
    e(f"buffer_store_dwordx2 v[8:9], v20, s[20:23], s28 offen")


def dma_tile():
    for i in range(32):
        if i % 4 == 0:
            e(f"s_add_u32 m0, s41, {i * 1024}")
            e(f"s_add_u32 s42, s40, {i * 1024}")
        e(f"v_xor_b32 v11, {fsw(i & 15) * 16}, v16")
        e(f"buffer_load_dwordx4 v11, s[8:11], s42 offen offset:{(i % 4) * 1024} nt lds")


npoll = [0]


def poll(off, target, soff=None):
    n = npoll[0]
    npoll[0] += 1
    e("s_cmp_lg_u32 s26, 0")
    e(f"s_cbranch_scc1 POLL_DONE{n}")
    e("v_mov_b32 v22, 0")
    e("s_mov_b32 s44, 0x40000")
    if soff is None:
        e(f"s_mov_b32 s45, {off}")
        soff = 45
    lab(f"POLL{n}")
    e(f"buffer_load_dword v21, v22, s[48:51], s{soff} offen{SC}")
    e("s_waitcnt vmcnt(0)")
    e("v_readfirstlane_b32 s43, v21")
    e(f"s_cmp_ge_u32 s43, {target}")
    e(f"s_cbranch_scc1 POLL_DONE{n}")
    e("s_sleep 4")
    e("s_sub_u32 s44, s44, 1")
    e("s_cmp_lg_u32 s44, 0")
    e(f"s_cbranch_scc1 POLL{n}")
    lab(f"POLL_DONE{n}")
    e("s_barrier")


def signal(soffs):
    n = npoll[0]
    npoll[0] += 1
    e("s_waitcnt vmcnt(0)")
    e("s_barrier")
    e("s_cmp_lg_u32 s26, 0")
    e(f"s_cbranch_scc1 SIG_DONE{n}")
    e("v_mov_b32 v21, 1")
    e("v_mov_b32 v22, 0")
    e("s_mov_b64 s[46:47], exec")
    e("s_mov_b64 exec, 1")
    for so in soffs:
        e(f"buffer_atomic_add v21, v22, s[48:51], s{so} offen sc1")
    e("s_mov_b64 exec, s[46:47]")
    lab(f"SIG_DONE{n}")


filler = []


def fill(n=1):
    for _ in range(n):
        if filler:
            for ins in filler.pop(0):
                e(ins)


def tile_loads(defer=False):
    for i in range(32):
        g = []
        if i % 4 == 0:
            g.append(f"s_add_u32 s42, s40, {i * 1024}")
        g.append(f"buffer_load_dwordx4 {ar(128 + 4 * i, 4)}, v16, s[8:11], s42 offen offset:{(i % 4) * 1024} nt")
        filler.append(g)
    if not defer:
        fill(32)


def tile_to_lds():
    e("v_add_u32 v12, s41, v16")
    for i in range(32):
        e(f"v_xor_b32 v{13 + (i & 1)}, {fsw(i & 15) * 16}, v12")
        e(f"s_waitcnt vmcnt({31 - i})")
        e(f"ds_write_b128 v{13 + (i & 1)}, {ar(128 + 4 * i, 4)} offset:{i * 1024}")
    e("s_waitcnt lgkmcnt(0)")


def a_tile(first):
    seq = [(j, k) for j in range(4) for k in range(8)]

    def sread(n):
        j, k = seq[n]
        t = 22 + (n & 1)
        e(f"v_add_u32 v{t}, v{24 + j}, v{28 + k}")
        e(f"ds_read_b128 {vr(72 + 4 * (n % 8), 4)}, v{t}")
    for n in range(8):
        sread(n)
    for n in range(32):
        j, k = seq[n]
        e(f"s_waitcnt lgkmcnt({min(7, 31 - n)})")
        f = vr(72 + 4 * (n % 8), 4)
        acc = ar(64 + 16 * j, 16)
        c = "0" if k == 0 else acc
        e(f"v_mfma_f32_32x32x16_bf16 {acc}, {f}, {vr(192 + 4 * k, 4)}, {c}")
        if not HIONLY:
            e(f"v_mfma_f32_32x32x16_bf16 {acc}, {f}, {vr(224 + 4 * k, 4)}, {acc}")
        if n + 8 < 32:
            sread(n + 8)
        if n % 2 == 1:
            fill(1)
    e("s_nop 15")
    for i in range(16):
        e(f"v_accvgpr_read_b32 v{56 + i}, a{64 + i}")
    for j in range(1, 4):
        for q in range(4):
            e(f"ds_write_b128 v36, {ar(64 + 16 * j + 4 * q, 4)} offset:{1024 * q}")
        e("s_waitcnt lgkmcnt(0)")
        e("s_barrier")
        for q in range(4):
            e(f"ds_read_b128 {vr(72 + 4 * q, 4)}, v{36 + j} offset:{1024 * q}")
        e("s_waitcnt lgkmcnt(0)")
        if j < 3:
            e("s_barrier")
        fill(1)
        for i in range(16):
            e(f"v_add_f32 v{56 + i}, v{56 + i}, v{72 + i}")
    for i in range(0, 16, 2):
        round_scale(56 + i, 57 + i, 11)
        if i % 4 == 0:
            fill(1)
    e("v_max3_f32 v12, v56, v57, v58")
    for i in range(59, 71, 2):
        e(f"v_max3_f32 v12, v12, v{i}, v{i+1}")
    e("v_max_f32 v12, v12, v71")
    e("v_mov_b32 v13, v12")
    e("s_nop 1")
    e("v_permlane32_swap_b32 v12, v13")
    e("s_nop 1")
    e("v_max_f32 v12, v12, v13")
    e("ds_write_b32 v17, v12")
    e("s_waitcnt lgkmcnt(0)")
    e("s_barrier")
    for w in range(4):
        e(f"ds_read_b32 v{12 + w}, v18 offset:{128 * w}")
    e("s_waitcnt lgkmcnt(0)")
    e("v_max3_f32 v12, v12, v13, v14")
    e("v_max3_f32 v12, v12, v15, v8")
    e("v_sub_f32 v10, v8, v12")
    e("v_exp_f32 v10, v10")
    e("v_mov_b32 v8, v12")
    for i in range(16):
        e(f"v_sub_f32 v{56+i}, v{56+i}, v12")
    for i in range(16):
        e(f"v_exp_f32 v{56+i}, v{56+i}")
    e("v_mul_f32 v9, v9, v10")
    for i in range(16):
        e(f"v_add_f32 v9, v9, v{56+i}")
    for i in range(8):
        e(f"v_cvt_pk_bf16_f32 v{96+i}, v{56+2*i}, v{57+2*i}")
    e(f"ds_write_b128 v19, {vr(96, 4)}")
    e(f"ds_write_b128 v19, {vr(100, 4)} offset:1024")
    e("s_waitcnt lgkmcnt(0)")
    e("s_barrier")
    for tu in range(8):
        e(f"ds_read_b128 {vr(64 + 4 * tu, 4)}, v20 offset:{(tu >> 1) * 2048 + (tu & 1) * 1024}")
    if not first:
        for i in range(64):
            e(f"v_mul_f32 v{192+i}, v{192+i}, v10")

    def trreads(tu):
        t, u = tu >> 1, tu & 1
        bufb = 96 + 16 * (tu & 1)
        for cc in range(4):
            for v in range(2):
                a = 40 + 8 * (t >> 1) + 2 * cc + v
                off = (32 * (t & 1) + 16 * u + 8 * v) * 1024
                e(f"ds_read_b64_tr_b16 {vr(bufb + 4 * cc + 2 * v, 2)}, v{a} offset:{off}")
    trreads(0)
    for tu in range(8):
        if tu + 1 < 8:
            trreads(tu + 1)
            e("s_waitcnt lgkmcnt(8)")
        else:
            e("s_waitcnt lgkmcnt(0)")
        bufb = 96 + 16 * (tu & 1)
        for cc in range(4):
            acc = vr(192 + 16 * cc, 16)
            c = "0" if (first and tu == 0) else acc
            e(f"v_mfma_f32_32x32x16_bf16 {acc}, {vr(bufb + 4 * cc, 4)}, {vr(64 + 4 * tu, 4)}, {c}")
        fill(1)
    fill(99)


def km():
    L = "km_kernel"
    kernel_header(L)
    e("s_cmp_ge_u32 s2, 256")
    e("s_cbranch_scc1 KM_END")
    prof_kernel[0] = 1
    prof_start()
    srd(8, "A_ckv"); srd(12, "B_k"); srd(16, "B_v"); srd(20, "ws"); srd(48, "dbg")
    e("s_and_b32 s3, s2, 7")
    e("s_lshr_b32 s4, s2, 3")
    e("s_lshr_b32 s5, s3, 2")
    e("s_lshl_b32 s24, s4, 1")
    e("s_or_b32 s24, s24, s5")
    e("s_add_u32 s25, s3, s4")
    e("s_and_b32 s25, s25, 3")
    e("v_and_b32 v1, 63, v0")
    e("v_lshrrev_b32 v2, 6, v0")
    e("s_nop 0")
    e("v_readfirstlane_b32 s26, v2")
    e(f"s_mov_b32 s34, {SCALE_BITS:#x}")
    e(f"s_mov_b32 s35, {LOG2E_BITS:#x}")
    e("v_lshlrev_b32 v16, 4, v1")
    e("s_lshl_b32 s27, s26, 13")
    e("v_add_u32 v6, s27, v16")
    e("v_add_u32 v7, 4096, v6")
    e("s_lshl_b32 s30, s24, 21")
    e("s_add_u32 s30, s30, 1572864")
    srd(52, "A_wuk")
    e("v_and_b32 v42, 127, v0")
    e("v_lshlrev_b32 v42, 2, v42")
    e("s_and_b32 s27, s24, 31")
    e("s_lshl_b32 s27, s27, 12")
    e("s_lshr_b32 s28, s24, 5")
    e("s_lshl_b32 s28, s28, 9")
    e("s_add_u32 s27, s27, s28")
    e(f"s_add_u32 s27, s27, {QP + 0x20000}")
    e("s_waitcnt lgkmcnt(0)")
    srd_fin(8, "A_ckv"); srd_fin(12, "B_k"); srd_fin(16, "B_v"); srd_fin(20, "ws"); srd_fin(48, "dbg"); srd_fin(52, "A_wuk")
    for mq in range(4):
        e(f"buffer_load_dword v{44 + mq}, v42, s[20:23], s27 offen offset:{1024 * mq}")
    e("s_cmp_ge_u32 s25, 2")
    e("s_cbranch_scc1 KM_BONLY")
    e("s_lshr_b32 s36, s24, 5")
    e("s_and_b32 s37, s24, 31")
    e("s_lshl_b32 s37, s37, 1")
    e("s_add_u32 s37, s37, s25")
    e("s_lshl_b32 s38, s24, 1")
    e("s_add_u32 s38, s38, s25")
    e("s_lshr_b32 s39, s38, 5")
    e("s_and_b32 s38, s38, 31")
    e("s_lshl_b32 s40, s36, 23")
    e("s_lshl_b32 s27, s37, 17")
    e("s_add_u32 s40, s40, s27")
    e("s_lshl_b32 s41, s26, 15")
    e("s_add_u32 s40, s40, s41")
    e("v_lshlrev_b32 v43, 2, v0")
    e("s_lshl_b32 s27, s38, 12")
    e(f"s_add_u32 s27, s27, {QP}")
    for mq in range(4):
        e(f"buffer_load_dword v{48 + mq}, v43, s[20:23], s27 offen offset:{1024 * mq}")
    e("v_and_b32 v52, 15, v0")
    e("v_lshrrev_b32 v53, 4, v0")
    e("v_lshlrev_b32 v54, 13, v53")
    e("v_lshl_add_u32 v54, v52, 4, v54")
    e("s_lshl_b32 s27, s39, 20")
    e("s_lshl_b32 s28, s38, 8")
    e("s_add_u32 s27, s27, s28")
    for i in range(8):
        e(f"buffer_load_dwordx4 {vr(64 + 4 * i, 4)}, v54, s[52:55], s27 offen nt")
        e("s_add_u32 s27, s27, 0x20000")
    tile_loads(defer=True)
    fill(6)
    e("s_waitcnt vmcnt(14)")
    e("v_add_f32 v44, v44, v45")
    e("v_add_f32 v46, v46, v47")
    e("v_add_f32 v48, v48, v49")
    e("v_add_f32 v50, v50, v51")
    e("v_add_f32 v44, v44, v46")
    e("v_add_f32 v48, v48, v50")
    e("v_cvt_pk_bf16_f32 v44, v44, v44")
    e("v_cvt_pk_bf16_f32 v48, v48, v48")
    e("v_lshrrev_b32 v42, 1, v42")
    e(f"v_add_u32 v42, {SCR + 2048}, v42")
    e("ds_write_b16 v42, v44")
    e("v_lshlrev_b32 v43, 1, v0")
    e(f"v_add_u32 v43, {SCR}, v43")
    e("ds_write_b16 v43, v48")
    fill(2)
    e("s_waitcnt lgkmcnt(0)")
    e("s_barrier")
    e("v_lshlrev_b32 v43, 4, v52")
    e(f"v_add_u32 v43, {SCR}, v43")
    e(f"ds_read_b128 {vr(8, 4)}, v43")
    e(f"ds_read_b128 {vr(12, 4)}, v43 offset:256")
    e(f"ds_read_b128 {vr(2, 4)}, v43 offset:2048")
    e("s_waitcnt vmcnt(8) lgkmcnt(0)")
    for k in range(4):
        for i in range(8):
            for b in range(2):
                d = 24 + 2 * i + b
                c = "0" if k == 0 else f"v{d}"
                e(f"v_dot2_f32_bf16 v{d}, v{64 + 4 * i + k}, v{8 + 4 * b + k}, {c}")
    e("s_nop 3")
    for sh in (8, 4, 2, 1):
        for d in range(24, 40):
            e(f"v_add_f32_dpp v{d}, v{d}, v{d} row_ror:{sh} row_mask:0xf bank_mask:0xf")
    e("v_lshlrev_b32 v43, 2, v53")
    e(f"v_add_u32 v43, {SCR + 512}, v43")
    for i in range(8):
        for b in range(2):
            e(f"ds_write_b32 v43, v{24 + 2 * i + b} offset:{512 * b + 64 * i}")
    e("s_waitcnt lgkmcnt(0)")
    e("s_barrier")
    e("v_cmp_gt_u32 vcc, 32, v0")
    e("s_and_saveexec_b64 s[56:57], vcc")
    e("s_cbranch_execz KM_QDONE")
    e("v_lshlrev_b32 v43, 5, v0")
    e(f"v_add_u32 v43, {SCR + 512}, v43")
    e(f"ds_read_b128 {vr(8, 4)}, v43")
    e(f"ds_read_b128 {vr(12, 4)}, v43 offset:16")
    e("s_waitcnt lgkmcnt(0)")
    for k in range(4):
        a_, b_ = 8 + 2 * k, 9 + 2 * k
        e(f"v_cvt_pk_bf16_f32 v{24 + k}, v{a_}, v{b_}")
        e(f"v_or_b32 v{24 + k}, 1, v{24 + k}")
        unpack2(32, 33, 24 + k)
        e(f"v_sub_f32 v32, v{a_}, v32")
        e(f"v_sub_f32 v33, v{b_}, v33")
        e(f"v_cvt_pk_bf16_f32 v{28 + k}, v32, v33")
        e(f"v_or_b32 v{28 + k}, 1, v{28 + k}")
    e("v_lshrrev_b32 v43, 4, v0")
    e("v_and_b32 v32, 15, v0")
    e("v_lshrrev_b32 v33, 1, v32")
    e("v_and_b32 v32, 1, v32")
    e("v_lshlrev_b32 v43, 15, v43")
    e("v_lshl_add_u32 v43, v33, 10, v43")
    e("v_lshl_add_u32 v43, v32, 9, v43")
    e("s_lshl_b32 s27, s39, 13")
    e("s_lshl_b32 s28, s38, 4")
    e("s_add_u32 s27, s27, s28")
    e(f"buffer_store_dwordx4 {vr(24, 4)}, v43, s[20:23], s27 offen sc1")
    e(f"s_add_u32 s27, s27, {QA_LO}")
    e(f"buffer_store_dwordx4 {vr(28, 4)}, v43, s[20:23], s27 offen sc1")
    lab("KM_QDONE")
    e("s_mov_b64 exec, s[56:57]")
    fill(99)
    e("v_and_b32 v56, 31, v1")
    e("v_lshrrev_b32 v57, 5, v1")
    e("v_and_b32 v58, 3, v1")
    e("v_lshlrev_b32 v58, 2, v58")
    e("v_bfe_u32 v59, v1, 2, 2")
    e("v_or_b32 v58, v58, v59")
    e("v_xor_b32 v58, v58, v57")
    e("v_lshlrev_b32 v58, 4, v58")
    for k in range(8):
        e(f"v_xor_b32 v{28 + k}, {32 * k}, v58")
    e("v_lshlrev_b32 v59, 10, v56")
    e("s_lshl_b32 s27, s26, 8")
    e("v_add_u32 v59, s27, v59")
    for j in range(4):
        e(f"s_add_u32 s27, s26, {j}")
        e("s_and_b32 s27, s27, 3")
        e("s_lshl_b32 s27, s27, 15")
        e(f"v_add_u32 v{24 + j}, s27, v59")
        e(f"s_sub_u32 s27, s26, {j}")
        e("s_and_b32 s27, s27, 3")
        e("s_lshl_b32 s27, s27, 12")
        e(f"s_add_u32 s27, s27, {RS}")
        e(f"v_add_u32 v{36 + j}, s27, v16")
    e("v_lshrrev_b32 v60, 4, v1")
    e("v_lshrrev_b32 v61, 5, v1")
    e("v_bfe_u32 v62, v1, 2, 2")
    e("v_and_b32 v63, 3, v1")
    e("v_and_b32 v64, 1, v60")
    e("v_lshlrev_b32 v64, 1, v64")
    e("v_lshrrev_b32 v65, 1, v63")
    e("v_add_u32 v64, v64, v65")
    e("v_lshl_or_b32 v65, v62, 2, v61")
    e("v_xor_b32 v64, v64, v65")
    e("v_lshlrev_b32 v64, 4, v64")
    e("v_and_b32 v65, 1, v63")
    e("v_lshl_add_u32 v64, v65, 3, v64")
    e("v_lshl_add_u32 v65, v61, 2, v62")
    e("v_lshl_add_u32 v64, v65, 10, v64")
    e("s_lshl_b32 s27, s26, 8")
    e("v_add_u32 v64, s27, v64")
    for cc in range(4):
        for v in range(2):
            e(f"v_xor_b32 v{40 + 2 * cc + v}, {64 * cc + 32 * v}, v64")
            e(f"v_add_u32 v{48 + 2 * cc + v}, 0x10000, v{40 + 2 * cc + v}")
    e("v_lshlrev_b32 v18, 2, v56")
    e(f"v_add_u32 v18, {MX}, v18")
    e("s_lshl_b32 s27, s26, 7")
    e("v_add_u32 v17, s27, v18")
    e(f"v_add_u32 v20, {PX}, v16")
    e("s_lshl_b32 s27, s26, 11")
    e("v_add_u32 v19, s27, v20")
    e("v_mov_b32 v8, 0xff800000")
    e("v_mov_b32 v9, 0")
    tile_to_lds()
    e("s_lshl_b32 s27, s36, 15")
    e("s_lshl_b32 s28, s26, 13")
    e("s_add_u32 s27, s27, s28")
    e("s_mov_b32 s44, 0x80000")
    lab("KM_QPOLL")
    for part in range(1 if HIONLY else 2):
        for s in range(8):
            if s % 4 == 0:
                e(f"s_add_u32 s28, s27, {part * QA_LO + s * 1024}")
            e(f"buffer_load_dwordx4 {vr(192 + 32 * part + 4 * s, 4)}, v16, s[20:23], s28 offen offset:{(s % 4) * 1024} sc1")
    e("s_waitcnt vmcnt(0)")
    e("v_and_b32 v11, v192, v193")
    for k in range(194, 224 if HIONLY else 256):
        e(f"v_and_b32 v11, v11, v{k}")
    e("v_and_b32 v11, 1, v11")
    e("v_cmp_eq_u32 vcc, 0, v11")
    e("s_cbranch_vccz KM_QOK")
    e("s_sleep 1")
    e("s_sub_u32 s44, s44, 1")
    e("s_cmp_lg_u32 s44, 0")
    e("s_cbranch_scc1 KM_QPOLL")
    lab("KM_QOK")
    e("s_lshl_b32 s27, s25, 16")
    e("s_add_u32 s31, s30, s27")
    e("s_add_u32 s31, s31, 393216")
    for (base, srdn) in ((128, 12), (160, 16)):
        for i in range(8):
            va = 6 if i < 4 else 7
            filler.append([f"buffer_load_dwordx4 {vr(base + 4 * i, 4)}, v{va}, s[{srdn}:{srdn+3}], s31 offen offset:{(i % 4) * 1024} nt"])
            filler.append([])
    e("s_barrier")
    prof_mark(0)
    a_tile(True)
    prof_mark(1)
    e("v_mov_b32 v13, v9")
    e("s_nop 1")
    e("v_permlane32_swap_b32 v9, v13")
    e("s_nop 1")
    e("v_add_f32 v9, v9, v13")
    e(f"ds_write_b32 v17, v9 offset:{LX - MX}")
    e("s_nop 7")
    e("s_barrier")
    e("v_and_b32 v11, 31, v1")
    e("v_lshrrev_b32 v12, 5, v1")
    e("s_movk_i32 s27, 1040")
    e("v_mul_lo_u32 v14, v11, s27")
    e("v_lshl_add_u32 v14, v12, 3, v14")
    e("s_lshl_b32 s28, s26, 8")
    e("v_add_u32 v14, s28, v14")
    for cc in range(4):
        for q in range(4):
            r0 = 192 + 16 * cc + 4 * q
            e(f"v_cvt_pk_bf16_f32 v{r0}, v{r0}, v{r0 + 1}")
            e(f"v_cvt_pk_bf16_f32 v{r0 + 1}, v{r0 + 2}, v{r0 + 3}")
            e(f"ds_write_b64 v14, {vr(r0, 2)} offset:{cc * 64 + q * 16}")
    e("s_waitcnt lgkmcnt(0)")
    e("s_barrier")
    e("s_mul_i32 s28, s26, 8320")
    e("v_add_u32 v14, s28, v16")
    for i in range(8):
        e(f"ds_read_b128 {vr(192 + 4 * i, 4)}, v14 offset:{1040 * i}")
    e("s_lshl_b32 s27, s36, 6")
    e("s_add_u32 s27, s27, s37")
    e("s_lshl_b32 s27, s27, 15")
    e("s_lshl_b32 s28, s26, 13")
    e("s_add_u32 s27, s27, s28")
    e(f"s_add_u32 s27, s27, {APART}")
    for i in range(8):
        if i == 4:
            e("s_add_u32 s27, s27, 4096")
        e(f"s_waitcnt lgkmcnt({7 - i})")
        e(f"buffer_store_dwordx4 {vr(192 + 4 * i, 4)}, v16, s[20:23], s27 offen offset:{(i % 4) * 1024}")
    e("s_cmp_lg_u32 s26, 0")
    e("s_cbranch_scc1 KM_ASTAT_DONE")
    for w in range(4):
        e(f"ds_read_b32 v{12 + w}, v18 offset:{LX - MX + 128 * w}")
    e("s_waitcnt lgkmcnt(0)")
    e("v_add_f32 v12, v12, v13")
    e("v_add_f32 v14, v14, v15")
    e("v_add_f32 v9, v12, v14")
    e("v_lshlrev_b32 v14, 9, v11")
    e("s_lshl_b32 s27, s36, 14")
    e("s_lshl_b32 s28, s37, 3")
    e("s_add_u32 s27, s27, s28")
    e(f"s_add_u32 s27, s27, {ASTAT}")
    e(f"buffer_store_dwordx2 v[8:9], v14, s[20:23], s27 offen")
    lab("KM_ASTAT_DONE")
    prof_mark(2)
    e("s_add_u32 s31, s31, 32768")
    e("s_nop 1")
    bloads(192, 224, 31)
    e("v_mov_b32 v8, 0xff800000")
    for j in range(9, 18):
        e(f"v_mov_b32 v{j}, 0")
    e("s_waitcnt vmcnt(16)")
    bscore(128)
    bpv(160)
    e("s_waitcnt vmcnt(0)")
    bscore(192)
    bpv(224)
    e("s_branch KM_BFIN")
    lab("KM_BONLY")
    e("s_sub_u32 s27, s25, 2")
    e("s_mul_i32 s27, s27, 196608")
    e("s_add_u32 s31, s30, s27")
    e("s_sub_u32 s31, s31, 32768")
    e("v_mov_b32 v8, 0xff800000")
    for j in range(9, 18):
        e(f"v_mov_b32 v{j}, 0")

    def qb_hook():
        e("s_waitcnt vmcnt(32)")
        e("v_add_f32 v44, v44, v45")
        e("v_add_f32 v46, v46, v47")
        e("v_add_f32 v44, v44, v46")
        e("v_cvt_pk_bf16_f32 v44, v44, v44")
        e("v_lshrrev_b32 v42, 1, v42")
        e(f"v_add_u32 v42, {SCR + 2048}, v42")
        e("ds_write_b16 v42, v44")
        e("s_waitcnt lgkmcnt(0)")
        e("s_barrier")
        e("v_and_b32 v43, 15, v1")
        e("v_lshlrev_b32 v43, 4, v43")
        e(f"v_add_u32 v43, {SCR + 2048}, v43")
        e(f"ds_read_b128 {vr(2, 4)}, v43")
        e("s_waitcnt lgkmcnt(0)")
    bsched(6, lambda c: 3, hook=qb_hook)
    lab("KM_BFIN")
    prof_mark(3)
    bcombine(BO, BS, "KM_BDONE")
    lab("KM_BDONE")
    lab("KM_END")
    e("s_endpgm")
    kernel_desc(L, 512, 256)
    return f"; @launch kernel={L} grid=(256,1,1) block=(256,1,1) lds={KM_LDS}"


def k3():
    L = "k3_kernel"
    kernel_header(L)
    e("s_cmp_ge_u32 s2, 544")
    e("s_cbranch_scc1 K3_END")
    e("s_cmp_ge_u32 s2, 512")
    e("s_cbranch_scc1 K3_RED")
    srd(20, "ws")
    e("v_and_b32 v1, 63, v0")
    e("v_lshrrev_b32 v2, 6, v0")
    e("s_nop 0")
    e("v_readfirstlane_b32 s26, v2")
    e("s_bfe_u32 s52, s2, 0x20006")
    e("s_and_b32 s53, s2, 63")
    e("s_and_b32 s54, s2, 31")
    e("s_bfe_u32 s55, s2, 0x10005")
    e("s_lshr_b32 s56, s2, 8")
    e("s_cmp_lg_u32 s56, 0")
    e("s_cbranch_scc1 K3_LB")
    srd(16, "A_wo"); srd(12, "A_wuv")
    e("s_branch K3_LD")
    lab("K3_LB")
    srd(16, "B_wo")
    lab("K3_LD")
    e("v_lshrrev_b32 v44, 2, v0")
    e("v_and_b32 v45, 3, v0")
    e("v_lshlrev_b32 v46, 16, v44")
    e("v_lshl_add_u32 v46, v45, 4, v46")
    e("v_lshlrev_b32 v16, 4, v1")
    e("s_waitcnt lgkmcnt(0)")
    srd_fin(16, "A_wo"); srd_fin(20, "ws")
    e("s_cmp_lg_u32 s56, 0")
    e("s_cbranch_scc1 K3_B")
    srd_fin(12, "A_wuv")
    e("v_lshlrev_b32 v4, 3, v0")
    e("v_lshlrev_b32 v5, 3, v1")
    e("s_lshl_b32 s28, s53, 9")
    e(f"s_add_u32 s28, s28, {ASTAT}")
    e("buffer_load_dwordx2 v[8:9], v5, s[20:23], s28 offen")
    e("v_and_b32 v12, 127, v0")
    e("v_lshrrev_b32 v13, 7, v0")
    e("v_lshlrev_b32 v12, 3, v12")
    e("v_lshl_add_u32 v12, v13, 20, v12")
    e("s_lshl_b32 s28, s55, 21")
    e("s_lshl_b32 s29, s54, 10")
    e("s_add_u32 s28, s28, s29")
    e(f"s_add_u32 s28, s28, {APART}")
    for s in range(32):
        e(f"buffer_load_dwordx2 {vr(64 + 2 * s, 2)}, v12, s[20:23], s28 offen")
        e("s_add_u32 s28, s28, 0x8000")
    e("s_lshl_b32 s28, s54, 8")
    e("s_lshl_b32 s29, s52, 6")
    e("s_add_u32 s28, s28, s29")
    for i in range(8):
        e(f"buffer_load_dwordx4 {vr(192 + 4 * i, 4)}, v46, s[12:15], s28 offen nt")
        e("s_add_u32 s28, s28, 8192")
    e("s_lshl_b32 s28, s54, 17")
    e("s_lshl_b32 s29, s52, 15")
    e("s_add_u32 s28, s28, s29")
    e("s_lshl_b32 s29, s26, 13")
    e("s_add_u32 s28, s28, s29")
    for i in range(8):
        if i == 4:
            e("s_add_u32 s28, s28, 4096")
        e(f"buffer_load_dwordx4 {vr(224 + 4 * i, 4)}, v16, s[16:19], s28 offen offset:{(i % 4) * 1024} nt")
    e("s_waitcnt vmcnt(48)")
    e("v_mov_b32 v10, v8")
    for sh in (8, 4, 2, 1):
        e("s_nop 1")
        e(f"v_max_f32_dpp v10, v10, v10 row_ror:{sh} row_mask:0xf bank_mask:0xf")
    e("v_mov_b32 v11, v10")
    e("s_nop 1")
    e("v_permlane16_swap_b32 v10, v11")
    e("s_nop 1")
    e("v_max_f32 v10, v10, v11")
    e("v_mov_b32 v11, v10")
    e("s_nop 1")
    e("v_permlane32_swap_b32 v10, v11")
    e("s_nop 1")
    e("v_max_f32 v10, v10, v11")
    e("v_sub_f32 v8, v8, v10")
    e("v_exp_f32 v8, v8")
    e("s_nop 0")
    e("v_mul_f32 v10, v8, v9")
    for sh in (8, 4, 2, 1):
        e("s_nop 1")
        e(f"v_add_f32_dpp v10, v10, v10 row_ror:{sh} row_mask:0xf bank_mask:0xf")
    e("v_mov_b32 v11, v10")
    e("s_nop 1")
    e("v_permlane16_swap_b32 v10, v11")
    e("s_nop 1")
    e("v_add_f32 v10, v10, v11")
    e("v_mov_b32 v11, v10")
    e("s_nop 1")
    e("v_permlane32_swap_b32 v10, v11")
    e("s_nop 1")
    e("v_add_f32 v10, v10, v11")
    e("v_rcp_f32 v6, v10")
    for k in range(4):
        e(f"v_mov_b32 v{40 + k}, 0")
    e("s_lshr_b32 s30, s26, 1")
    e("s_lshl_b32 s30, s30, 5")
    for s in range(32):
        e(f"s_add_u32 s31, s30, {s}")
        e(f"v_readlane_b32 s{60 + (s & 3)}, v8, s31")
        e(f"s_waitcnt vmcnt({47 - s})")
        unpack2(48, 49, 64 + 2 * s)
        unpack2(50, 51, 65 + 2 * s)
        for k in range(4):
            e(f"v_fmac_f32 v{40 + k}, s{60 + (s & 3)}, v{48 + k}")
    for k in range(4):
        e(f"v_mul_f32 v{40 + k}, v{40 + k}, v6")
    e("v_lshlrev_b32 v4, 4, v0")
    e(f"ds_write_b128 v4, {vr(40, 4)} offset:10240")
    e("s_waitcnt lgkmcnt(0)")
    e("s_barrier")
    e("v_lshlrev_b32 v5, 5, v44")
    e(f"ds_read_b128 {vr(8, 4)}, v5 offset:10240")
    e(f"ds_read_b128 {vr(12, 4)}, v5 offset:10256")
    e(f"ds_read_b128 {vr(16, 4)}, v5 offset:12288")
    e(f"ds_read_b128 {vr(20, 4)}, v5 offset:12304")
    for k in range(8):
        e(f"v_mov_b32 v{24 + k}, 0")
    e("s_waitcnt vmcnt(8) lgkmcnt(0)")
    for k in range(8):
        e(f"v_add_f32 v{8 + k}, v{8 + k}, v{16 + k}")
    for i in range(8):
        for k in range(4):
            unpack2(32 + 2 * k, 33 + 2 * k, 192 + 4 * i + k)
        for k in range(8):
            e(f"v_fmac_f32 v{24 + k}, v{32 + k}, v{8 + i}")
    e("v_lshlrev_b32 v5, 7, v44")
    e("v_lshl_add_u32 v5, v45, 5, v5")
    e(f"ds_write_b128 v5, {vr(24, 4)} offset:2048")
    e(f"ds_write_b128 v5, {vr(28, 4)} offset:2064")
    e("s_waitcnt lgkmcnt(0)")
    e("s_barrier")
    e("v_and_b32 v5, 31, v1")
    e("v_lshrrev_b32 v6, 5, v1")
    e("v_lshlrev_b32 v5, 2, v5")
    e("v_lshl_add_u32 v5, v6, 12, v5")
    for g in range(32):
        e(f"ds_read_b32 v{64 + g}, v5 offset:{2048 + 128 * g}")
    e("s_waitcnt lgkmcnt(0)")
    for n in (16, 8, 4, 2, 1):
        for g in range(n):
            e(f"v_add_f32 v{64 + g}, v{64 + g}, v{64 + n + g}")
    e("v_mov_b32 v65, v64")
    e("s_nop 1")
    e("v_permlane32_swap_b32 v64, v65")
    e("s_nop 1")
    e("v_add_f32 v64, v64, v65")
    e("v_cvt_pk_bf16_f32 v64, v64, v64")
    e("v_lshlrev_b32 v64, 16, v64")
    e("s_branch K3_OUT")
    lab("K3_B")
    e("v_mov_b32 v5, 0")
    e("s_lshl_b32 s28, s53, 6")
    e(f"s_add_u32 s28, s28, {BSTAT}")
    for k in range(2):
        e(f"buffer_load_dwordx4 {vr(8 + 4 * k, 4)}, v5, s[20:23], s28 offen offset:{16 * k}")
    e("v_and_b32 v5, 31, v1")
    e("v_lshlrev_b32 v5, 2, v5")
    e("s_lshl_b32 s28, s53, 12")
    e("s_lshl_b32 s29, s52, 7")
    e("s_add_u32 s28, s28, s29")
    e(f"s_add_u32 s28, s28, {BPART}")
    for r in range(4):
        e(f"buffer_load_dword v{64 + r}, v5, s[20:23], s28 offen offset:{512 * r}")
    e("s_lshl_b32 s28, s54, 17")
    e("s_lshl_b32 s29, s52, 15")
    e("s_add_u32 s28, s28, s29")
    e("s_lshl_b32 s29, s26, 13")
    e("s_add_u32 s28, s28, s29")
    for i in range(8):
        if i == 4:
            e("s_add_u32 s28, s28, 4096")
        e(f"buffer_load_dwordx4 {vr(224 + 4 * i, 4)}, v16, s[16:19], s28 offen offset:{(i % 4) * 1024} nt")
    e("s_waitcnt vmcnt(8)")
    e("v_max3_f32 v56, v8, v10, v12")
    e("v_max_f32 v56, v56, v14")
    for r in range(4):
        e(f"v_sub_f32 v{8 + 2 * r}, v{8 + 2 * r}, v56")
    for r in range(4):
        e(f"v_exp_f32 v{8 + 2 * r}, v{8 + 2 * r}")
    e("s_nop 0")
    e("v_mul_f32 v57, v8, v9")
    e("v_mul_f32 v58, v8, v64")
    for r in range(1, 4):
        e(f"v_fmac_f32 v57, v{8 + 2 * r}, v{9 + 2 * r}")
        e(f"v_fmac_f32 v58, v{8 + 2 * r}, v{64 + r}")
    e("v_rcp_f32 v57, v57")
    e("s_nop 0")
    e("v_mul_f32 v58, v58, v57")
    e("v_cvt_pk_bf16_f32 v58, v58, v58")
    e("v_lshlrev_b32 v64, 16, v58")
    lab("K3_OUT")
    e("s_lshl_b32 s30, s26, 3")
    for k in range(8):
        e(f"v_mov_b32 v{24 + k}, 0")
    e("s_waitcnt vmcnt(0)")
    for i in range(8):
        e(f"s_add_u32 s31, s30, {i}")
        e(f"v_readlane_b32 s{60 + i}, v64, s31")
    for i in range(8):
        for k in range(4):
            unpack2(32 + 2 * k, 33 + 2 * k, 224 + 4 * i + k)
        for k in range(8):
            e(f"v_fmac_f32 v{24 + k}, s{60 + i}, v{32 + k}")
    e("s_barrier")
    e("v_lshlrev_b32 v5, 5, v1")
    e("s_lshl_b32 s30, s26, 11")
    e("v_add_u32 v5, s30, v5")
    e(f"ds_write_b128 v5, {vr(24, 4)}")
    e(f"ds_write_b128 v5, {vr(28, 4)} offset:16")
    e("s_waitcnt lgkmcnt(0)")
    e("s_barrier")
    e("v_lshlrev_b32 v5, 3, v0")
    for w in range(4):
        e(f"ds_read_b64 {vr(8 + 2 * w, 2)}, v5 offset:{2048 * w}")
    e("s_waitcnt lgkmcnt(0)")
    e("v_add_f32 v8, v8, v10")
    e("v_add_f32 v9, v9, v11")
    e("v_add_f32 v12, v12, v14")
    e("v_add_f32 v13, v13, v15")
    e("v_add_f32 v8, v8, v12")
    e("v_add_f32 v9, v9, v13")
    e("s_lshl_b32 s28, s56, 19")
    e("s_lshl_b32 s29, s55, 18")
    e("s_add_u32 s28, s28, s29")
    e("s_lshl_b32 s29, s54, 13")
    e("s_add_u32 s28, s28, s29")
    e("s_lshl_b32 s29, s52, 11")
    e("s_add_u32 s28, s28, s29")
    e(f"s_add_u32 s28, s28, {OPA}")
    e("v_or_b32 v8, 1, v8")
    e("v_or_b32 v9, 1, v9")
    e("buffer_store_dwordx2 v[8:9], v5, s[20:23], s28 offen sc1")
    e("s_branch K3_END")
    lab("K3_RED")
    srd(20, "ws"); srd(8, "out")
    e("s_sub_u32 s3, s2, 512")
    e("s_lshr_b32 s24, s3, 3")
    e("s_and_b32 s25, s3, 7")
    e("v_and_b32 v1, 15, v0")
    e("v_lshrrev_b32 v2, 4, v0")
    e("v_lshlrev_b32 v3, 14, v2")
    e("v_lshl_add_u32 v3, v1, 4, v3")
    e("s_lshl_b32 s26, s24, 18")
    e("s_lshl_b32 s27, s25, 8")
    e("s_add_u32 s26, s26, s27")
    e(f"s_add_u32 s26, s26, {OPA}")
    e("s_mov_b32 s30, 0x80000")
    e("s_waitcnt lgkmcnt(0)")
    srd_fin(20, "ws"); srd_fin(8, "out")
    lab("K3_RLOOP")
    e("s_mov_b32 s27, s26")
    for i in range(8):
        if i % 2 == 0 and i:
            e("s_add_u32 s27, s27, 4096")
        e(f"buffer_load_dwordx4 {vr(8 + 4 * i, 4)}, v3, s[20:23], s27 offen offset:{(i % 2) * 2048} sc1")
    e("s_waitcnt vmcnt(0)")
    e("v_and_b32 v40, v8, v9")
    for k in range(10, 40):
        e(f"v_and_b32 v40, v40, v{k}")
    e("v_and_b32 v40, 1, v40")
    e("v_cmp_eq_u32 vcc, 0, v40")
    e("s_cbranch_vccz K3_ROK")
    e("s_sleep 2")
    e("s_sub_u32 s30, s30, 1")
    e("s_cmp_lg_u32 s30, 0")
    e("s_cbranch_scc1 K3_RLOOP")
    lab("K3_ROK")
    for n in (4, 2, 1):
        for i in range(n):
            for k in range(4):
                e(f"v_add_f32 v{8 + 4 * i + k}, v{8 + 4 * i + k}, v{8 + 4 * (i + n) + k}")
    e("v_lshlrev_b32 v4, 4, v0")
    e(f"ds_write_b128 v4, {vr(8, 4)}")
    e("s_waitcnt lgkmcnt(0)")
    e("s_barrier")
    e("v_cmp_gt_u32 vcc, 64, v0")
    e("s_and_saveexec_b64 s[28:29], vcc")
    e("s_cbranch_execz K3_END")
    e("v_lshlrev_b32 v4, 2, v0")
    for g in range(16):
        e(f"ds_read_b32 v{8 + g}, v4 offset:{256 * g}")
    e("s_waitcnt lgkmcnt(0)")
    for n in (8, 4, 2, 1):
        for g in range(n):
            e(f"v_add_f32 v{8 + g}, v{8 + g}, v{8 + n + g}")
    e("v_cvt_pk_bf16_f32 v8, v8, v8")
    e("s_and_b32 s26, s24, 1")
    e("s_lshl_b32 s26, s26, 11")
    e("s_lshr_b32 s27, s24, 1")
    e("s_lshl_b32 s27, s27, 10")
    e("s_add_u32 s26, s26, s27")
    e("s_lshl_b32 s27, s25, 7")
    e("s_add_u32 s26, s26, s27")
    e("v_lshlrev_b32 v4, 1, v0")
    e("buffer_store_short v8, v4, s[8:11], s26 offen")
    lab("K3_END")
    e("s_endpgm")
    kernel_desc(L, 256, 256)
    return f"; @launch kernel={L} grid=(544,1,1) block=(256,1,1) lds=14336"


def k4():
    L = "k4_kernel"
    kernel_header(L)
    e("s_cmp_ge_u32 s2, 32")
    e("s_cbranch_scc1 K4_END")
    srd(20, "ws"); srd(8, "out")
    e("s_lshr_b32 s24, s2, 3")
    e("s_and_b32 s25, s2, 7")
    e("v_and_b32 v1, 15, v0")
    e("v_lshrrev_b32 v2, 4, v0")
    e("v_lshlrev_b32 v3, 14, v2")
    e("v_lshl_add_u32 v3, v1, 4, v3")
    e("s_lshl_b32 s26, s24, 18")
    e("s_lshl_b32 s27, s25, 8")
    e("s_add_u32 s26, s26, s27")
    e(f"s_add_u32 s26, s26, {OPA}")
    e("s_waitcnt lgkmcnt(0)")
    srd_fin(20, "ws"); srd_fin(8, "out")
    for i in range(8):
        if i % 2 == 0 and i:
            e("s_add_u32 s26, s26, 4096")
        e(f"buffer_load_dwordx4 {vr(8 + 4 * i, 4)}, v3, s[20:23], s26 offen offset:{(i % 2) * 2048}")
    e("s_waitcnt vmcnt(0)")
    for n in (4, 2, 1):
        for i in range(n):
            for k in range(4):
                e(f"v_add_f32 v{8 + 4 * i + k}, v{8 + 4 * i + k}, v{8 + 4 * (i + n) + k}")
    e("v_lshlrev_b32 v4, 4, v0")
    e(f"ds_write_b128 v4, {vr(8, 4)}")
    e("s_waitcnt lgkmcnt(0)")
    e("s_barrier")
    e("v_cmp_gt_u32 vcc, 64, v0")
    e("s_and_saveexec_b64 s[28:29], vcc")
    e("s_cbranch_execz K4_END")
    e("v_lshlrev_b32 v4, 2, v0")
    for g in range(16):
        e(f"ds_read_b32 v{8 + g}, v4 offset:{256 * g}")
    e("s_waitcnt lgkmcnt(0)")
    for n in (8, 4, 2, 1):
        for g in range(n):
            e(f"v_add_f32 v{8 + g}, v{8 + g}, v{8 + n + g}")
    e("v_cvt_pk_bf16_f32 v8, v8, v8")
    e("s_and_b32 s26, s24, 1")
    e("s_lshl_b32 s26, s26, 11")
    e("s_lshr_b32 s27, s24, 1")
    e("s_lshl_b32 s27, s27, 10")
    e("s_add_u32 s26, s26, s27")
    e("s_lshl_b32 s27, s25, 7")
    e("s_add_u32 s26, s26, s27")
    e("v_lshlrev_b32 v4, 1, v0")
    e("buffer_store_short v8, v4, s[8:11], s26 offen")
    lab("K4_END")
    e("s_endpgm")
    kernel_desc(L, 48, 48)
    return f"; @launch kernel={L} grid=(32,1,1) block=(256,1,1) lds=4096"


LAUNCHES = []


def main():
    LAUNCHES.append(k1())
    LAUNCHES.append(km())
    LAUNCHES.append(k3())
    head = open(f"cdna_kernels/{NAME}.s.ref").read().split("; Override launch")[0]
    txt = head + "\n".join(LAUNCHES) + "\n"
    txt += '.amdgcn_target "amdgcn-amd-amdhsa--gfx950"\n.text\n'
    txt += "\n".join(out) + "\n"
    txt += '.section .rodata,"a"\n' + "\n".join(descs) + "\n"
    path = sys.argv[1] if len(sys.argv) > 1 else f"cdna_kernels/{NAME}.s"
    open(path, "w").write(txt)


if __name__ == "__main__":
    main()
```

```python
import sys

NAME = "concat_heads__compressed_kv_cla__sliding_block_cached__decode"

KA = dict(A_x=0, A_ckv=8, A_wq=16, A_wuk=24, A_wuv=32, A_wo=40, B_x=48, B_k=56, B_v=64,
          B_wq=72, B_wo=80, out=88, dbg=96, ws=104)
SZ = dict(A_x=2048, A_ckv=16777216, A_wq=4194304, A_wuk=4194304, A_wuv=4194304, A_wo=4194304,
          B_x=2048, B_k=134217728, B_v=134217728, B_wq=4194304, B_wo=4194304, out=4096, dbg=256,
          ws=536870912)

QA_HI = 0x00000
QA_LO = 0x10000
QB = 0x20000
ASTAT = 0x30000
BPART = 0x40000
BSTAT = 0x80000
CTX = 0x70000
OPART = 0x80000
APART = 0x100000

OPA = 0xA00000
SCALE_BITS = 0x3DB504F3
LOG2E_BITS = 0x3FB8AA3B

out = []
import os
DEBUG = bool(os.environ.get('DEBUG'))
PROF = bool(os.environ.get('PROF'))
PST = os.environ.get('PST', '')
HIONLY = bool(os.environ.get('HIONLY'))
PROFBASE = 0xC00000


def prof_start():
    if PROF:
        e("s_memrealtime s[90:91]")


def prof_mark(slot, t=21):
    if PROF:
        e("s_memrealtime s[92:93]")
        e("s_waitcnt lgkmcnt(0)")
        e("s_sub_u32 s92, s92, s90")
        e(f"v_mov_b32 v{t}, s92")
        e("s_lshl_b32 s94, s2, 7")
        e(f"s_add_u32 s94, s94, {PROFBASE + prof_kernel[0] * 0x10000 + slot * 4}")
        e(f"v_lshrrev_b32 v{t+1}, 6, v0")
        e(f"v_lshlrev_b32 v{t+1}, 5, v{t+1}")
        e(f"buffer_store_dword v{t}, v{t+1}, s[20:23], s94 offen")


prof_kernel = [0]


def e(s):
    out.append("    " + s)


def lab(s):
    out.append(s + ":")


def srd(dst, name):
    e(f"s_load_dwordx2 s[{dst}:{dst+1}], s[0:1], {KA[name]}")


def srd_fin(dst, name):
    e(f"s_mov_b32 s{dst+2}, {SZ[name]}")
    e(f"s_mov_b32 s{dst+3}, 0x20000")


def vr(a, n):
    return f"v[{a}:{a+n-1}]"


def ar(a, n):
    return f"a[{a}:{a+n-1}]"


def kernel_header(label):
    out.append(f".globl {label}")
    out.append(".p2align 8")
    out.append(f".type {label},@function")
    lab(label)


descs = []


def kernel_desc(label, vgpr, accum, sgpr=102):
    descs.append(f""".p2align 6
.amdhsa_kernel {label}
  .amdhsa_next_free_vgpr {vgpr}
  .amdhsa_next_free_sgpr {sgpr}
  .amdhsa_accum_offset {accum}
  .amdhsa_group_segment_fixed_size 0
  .amdhsa_kernarg_size 112
  .amdhsa_user_sgpr_count 2
  .amdhsa_user_sgpr_kernarg_segment_ptr 1
  .amdhsa_system_sgpr_workgroup_id_x 1
.end_amdhsa_kernel""")


def unpack2(dlo, dhi, src):
    e(f"v_lshlrev_b32 v{dlo}, 16, v{src}")
    e(f"v_and_b32 v{dhi}, 0xffff0000, v{src}")


def gemv_rows(nrows, wbase, xbase0, xbase1, acc, tmp, xt, vm_after):
    for i in range(nrows):
        e(f"s_waitcnt vmcnt({nrows - 1 - i + vm_after})")
        if i % 2 == 0:
            e(f"v_lshlrev_b32 v{xt}, 16, v{xbase0 + i // 2}")
            e(f"v_lshlrev_b32 v{xt+1}, 16, v{xbase1 + i // 2}")
        else:
            e(f"v_and_b32 v{xt}, 0xffff0000, v{xbase0 + i // 2}")
            e(f"v_and_b32 v{xt+1}, 0xffff0000, v{xbase1 + i // 2}")
        for k in range(4):
            unpack2(tmp + 2 * k, tmp + 2 * k + 1, wbase + 4 * i + k)
        for k in range(8):
            e(f"v_fmac_f32 v{acc + k}, v{tmp + k}, v{xt}")
            e(f"v_fmac_f32 v{acc + 8 + k}, v{tmp + k}, v{xt+1}")


QP = 0x90000


def k1():
    L = "k0_kernel"
    kernel_header(L)
    e("s_cmp_ge_u32 s2, 256")
    e("s_cbranch_scc1 K0_END")
    srd(20, "ws")
    e("s_and_b32 s24, s2, 31")
    e("s_bfe_u32 s25, s2, 0x20005")
    e("s_lshr_b32 s26, s2, 7")
    e("s_cmp_lg_u32 s26, 0")
    e("s_cbranch_scc1 K0_LB")
    srd(8, "A_x"); srd(12, "A_wq")
    e("s_branch K0_LD")
    lab("K0_LB")
    srd(8, "B_x"); srd(12, "B_wq")
    lab("K0_LD")
    e("v_and_b32 v1, 15, v0")
    e("v_lshrrev_b32 v2, 4, v0")
    e("v_lshlrev_b32 v3, 16, v2")
    e("v_lshl_add_u32 v3, v1, 4, v3")
    e("v_lshlrev_b32 v4, 4, v2")
    e("s_lshl_b32 s27, s25, 20")
    e("s_lshl_b32 s28, s24, 8")
    e("s_add_u32 s27, s27, s28")
    e("s_lshl_b32 s28, s25, 8")
    e("s_waitcnt lgkmcnt(0)")
    srd_fin(8, "A_x"); srd_fin(12, "A_wq"); srd_fin(20, "ws")
    e("buffer_load_dwordx4 v[8:11], v4, s[8:11], s28 offen")
    e("buffer_load_dwordx4 v[12:15], v4, s[8:11], s28 offen offset:1024")
    for i in range(8):
        e(f"buffer_load_dwordx4 {vr(40 + 4 * i, 4)}, v3, s[12:15], s27 offen nt")
        e("s_add_u32 s27, s27, 8192")
    for k in range(4):
        e(f"v_mov_b32 v{76 + k}, 0")
    e("v_lshlrev_b32 v80, 4, v0")
    e("s_lshl_b32 s29, s2, 12")
    e(f"s_add_u32 s29, s29, {OPA}")
    e("buffer_store_dwordx4 v[76:79], v80, s[20:23], s29 offen")
    e("v_lshlrev_b32 v80, 1, v0")
    e("s_lshl_b32 s29, s2, 9")
    e("buffer_store_short v76, v80, s[20:23], s29 offen")
    for k in range(16):
        e(f"v_mov_b32 v{16 + k}, 0")
    gemv_rows(8, 40, 8, 12, 16, 32, 6, 2)
    e("v_lshlrev_b32 v6, 10, v2")
    e("v_lshl_add_u32 v6, v1, 5, v6")
    e(f"ds_write_b128 v6, {vr(16, 4)}")
    e(f"ds_write_b128 v6, {vr(20, 4)} offset:16")
    e(f"ds_write_b128 v6, {vr(24, 4)} offset:512")
    e(f"ds_write_b128 v6, {vr(28, 4)} offset:528")
    e("s_waitcnt lgkmcnt(0)")
    e("s_barrier")
    e("v_lshlrev_b32 v6, 2, v0")
    for g in range(16):
        e(f"ds_read_b32 v{8 + g}, v6 offset:{1024 * g}")
    e("s_waitcnt lgkmcnt(0)")
    for n in (8, 4, 2, 1):
        for g in range(n):
            e(f"v_add_f32 v{8 + g}, v{8 + g}, v{8 + n + g}")
    e("s_lshl_b32 s27, s26, 17")
    e("s_lshl_b32 s28, s24, 12")
    e("s_add_u32 s27, s27, s28")
    e("s_lshl_b32 s28, s25, 10")
    e("s_add_u32 s27, s27, s28")
    e(f"s_add_u32 s27, s27, {QP}")
    e("buffer_store_dword v8, v6, s[20:23], s27 offen")
    lab("K0_END")
    e("s_endpgm")
    kernel_desc(L, 88, 88)
    return f"; @launch kernel={L} grid=(256,1,1) block=(256,1,1) lds=16384"


MX = 131072
LX = 131584
PX = 132096
BO = 140288
SCR = PX
RS = PX
BS = BO + 8192
KM_LDS = BS + 128
C3 = 132
C4 = 136
C5 = 168
C6 = 200
SC = " sc1"


def fsw(r):
    return ((r & 3) << 2) | ((r >> 2) & 3)


def bloads(K, V, soff):
    for (base, srdn) in ((K, 12), (V, 16)):
        for i in range(8):
            va = 6 if i < 4 else 7
            e(f"buffer_load_dwordx4 {vr(base + 4 * i, 4)}, v{va}, s[{srdn}:{srdn+3}], s{soff} offen offset:{(i % 4) * 1024} nt")


def round_scale(a, b, t):
    e(f"v_cvt_pk_bf16_f32 v{t}, v{a}, v{b}")
    unpack2(a, b, t)
    e(f"v_mul_f32 v{a}, s34, v{a}")
    e(f"v_mul_f32 v{b}, s34, v{b}")
    e(f"v_cvt_pk_bf16_f32 v{t}, v{a}, v{b}")
    unpack2(a, b, t)
    e(f"v_mul_f32 v{a}, s35, v{a}")
    e(f"v_mul_f32 v{b}, s35, v{b}")


def bscore(K):
    for k in range(4):
        for i in range(8):
            c = "0" if k == 0 else f"v{18+i}"
            e(f"v_dot2_f32_bf16 v{18+i}, v{K + 4*i + k}, v{2+k}, {c}")
    for sh in (8, 4, 2, 1):
        for i in range(8):
            e(f"v_add_f32_dpp v{18+i}, v{18+i}, v{18+i} row_ror:{sh} row_mask:0xf bank_mask:0xf")
    for i in range(0, 8, 2):
        round_scale(18 + i, 19 + i, 26)
    e("v_max3_f32 v26, v18, v19, v20")
    e("v_max3_f32 v26, v26, v21, v22")
    e("v_max3_f32 v26, v26, v23, v24")
    e("v_max3_f32 v26, v26, v25, v8")
    e("v_sub_f32 v27, v8, v26")
    e("v_exp_f32 v27, v27")
    e("v_mov_b32 v8, v26")
    for i in range(8):
        e(f"v_sub_f32 v{18+i}, v{18+i}, v26")
    for i in range(8):
        e(f"v_exp_f32 v{18+i}, v{18+i}")
    e("v_mul_f32 v9, v9, v27")
    for j in range(8):
        e(f"v_mul_f32 v{10+j}, v{10+j}, v27")
    for i in range(8):
        e(f"v_add_f32 v9, v9, v{18+i}")


def bpv(V):
    for i in range(8):
        for k in range(4):
            unpack2(34 + 2 * k, 35 + 2 * k, V + 4 * i + k)
        for j in range(8):
            e(f"v_fmac_f32 v{10+j}, v{34+j}, v{18+i}")


def bload1(base, srdn, soff):
    for i in range(8):
        va = 6 if i < 4 else 7
        e(f"buffer_load_dwordx4 {vr(base + 4 * i, 4)}, v{va}, s[{srdn}:{srdn+3}], s{soff} offen offset:{(i % 4) * 1024} nt")


def bsched(nunits, ahead, hook=None):
    bufs = [(128, 160), (192, 224)]
    n = 2 * nunits
    issued = 0
    for c in range(n):
        while issued < n and issued <= c + min(ahead(c), 3):
            u, isv = issued >> 1, issued & 1
            if not isv:
                e("s_add_u32 s31, s31, 32768")
                e("s_mov_b32 s33, s31") if False else None
            e(f"s_mov_b32 s{60 + (u & 1)}, s31") if not isv else None
            bload1(bufs[u & 1][isv], 16 if isv else 12, 60 + (u & 1))
            issued += 1
        if c == 0 and hook:
            hook()
        e(f"s_waitcnt vmcnt({8 * (issued - 1 - c)})")
        u, isv = c >> 1, c & 1
        if isv:
            bpv(bufs[u & 1][1])
        else:
            if u < 3:
                prof_mark(u)
            bscore(bufs[u & 1][0])


def bcombine(BO, BS, done):
    e("v_lshrrev_b32 v18, 4, v1")
    e("s_lshl_b32 s27, s26, 2")
    e("v_add_u32 v18, s27, v18")
    e("v_and_b32 v19, 15, v1")
    e("v_lshlrev_b32 v20, 9, v18")
    e("v_lshl_add_u32 v20, v19, 5, v20")
    e(f"v_add_u32 v20, {BO}, v20")
    e(f"ds_write_b128 v20, {vr(10, 4)}")
    e(f"ds_write_b128 v20, {vr(14, 4)} offset:16")
    e("v_lshlrev_b32 v21, 3, v18")
    e(f"v_add_u32 v21, {BS}, v21")
    e("ds_write_b64 v21, v[8:9]")
    e("s_waitcnt lgkmcnt(0)")
    e("s_barrier")
    e("s_cmp_ge_u32 s26, 2")
    e(f"s_cbranch_scc1 {done}")
    e(f"v_mov_b32 v21, {BS}")
    for s in range(16):
        e(f"ds_read_b64 {vr(64 + 2 * s, 2)}, v21 offset:{8 * s}")
    e("v_lshlrev_b32 v20, 2, v0")
    e(f"v_add_u32 v20, {BO}, v20")
    for s in range(16):
        e(f"ds_read_b32 v{96 + s}, v20 offset:{512 * s}")
    e("s_waitcnt lgkmcnt(0)")
    e("v_max3_f32 v8, v64, v66, v68")
    for s in range(3, 15, 2):
        e(f"v_max3_f32 v8, v8, v{64 + 2 * s}, v{66 + 2 * s}")
    e("v_max_f32 v8, v8, v94")
    for s in range(16):
        e(f"v_sub_f32 v{64 + 2 * s}, v{64 + 2 * s}, v8")
    for s in range(16):
        e(f"v_exp_f32 v{64 + 2 * s}, v{64 + 2 * s}")
    e("s_nop 0")
    e("v_mul_f32 v9, v64, v65")
    e("v_mul_f32 v10, v64, v96")
    for s in range(1, 16):
        e(f"v_fmac_f32 v9, v{64 + 2 * s}, v{65 + 2 * s}")
        e(f"v_fmac_f32 v10, v{64 + 2 * s}, v{96 + s}")
    e("s_lshl_b32 s27, s24, 3")
    e("s_add_u32 s27, s27, s25")
    e("s_lshl_b32 s28, s27, 9")
    e(f"s_add_u32 s28, s28, {BPART}")
    e("v_lshlrev_b32 v20, 2, v0")
    e(f"buffer_store_dword v10, v20, s[20:23], s28 offen")
    e("s_lshl_b32 s28, s27, 3")
    e(f"s_add_u32 s28, s28, {BSTAT}")
    e("v_mov_b32 v20, 0")
    e(f"buffer_store_dwordx2 v[8:9], v20, s[20:23], s28 offen")


def dma_tile():
    for i in range(32):
        if i % 4 == 0:
            e(f"s_add_u32 m0, s41, {i * 1024}")
            e(f"s_add_u32 s42, s40, {i * 1024}")
        e(f"v_xor_b32 v11, {fsw(i & 15) * 16}, v16")
        e(f"buffer_load_dwordx4 v11, s[8:11], s42 offen offset:{(i % 4) * 1024} nt lds")


npoll = [0]


def poll(off, target, soff=None):
    n = npoll[0]
    npoll[0] += 1
    e("s_cmp_lg_u32 s26, 0")
    e(f"s_cbranch_scc1 POLL_DONE{n}")
    e("v_mov_b32 v22, 0")
    e("s_mov_b32 s44, 0x40000")
    if soff is None:
        e(f"s_mov_b32 s45, {off}")
        soff = 45
    lab(f"POLL{n}")
    e(f"buffer_load_dword v21, v22, s[48:51], s{soff} offen{SC}")
    e("s_waitcnt vmcnt(0)")
    e("v_readfirstlane_b32 s43, v21")
    e(f"s_cmp_ge_u32 s43, {target}")
    e(f"s_cbranch_scc1 POLL_DONE{n}")
    e("s_sleep 4")
    e("s_sub_u32 s44, s44, 1")
    e("s_cmp_lg_u32 s44, 0")
    e(f"s_cbranch_scc1 POLL{n}")
    lab(f"POLL_DONE{n}")
    e("s_barrier")


def signal(soffs):
    n = npoll[0]
    npoll[0] += 1
    e("s_waitcnt vmcnt(0)")
    e("s_barrier")
    e("s_cmp_lg_u32 s26, 0")
    e(f"s_cbranch_scc1 SIG_DONE{n}")
    e("v_mov_b32 v21, 1")
    e("v_mov_b32 v22, 0")
    e("s_mov_b64 s[46:47], exec")
    e("s_mov_b64 exec, 1")
    for so in soffs:
        e(f"buffer_atomic_add v21, v22, s[48:51], s{so} offen sc1")
    e("s_mov_b64 exec, s[46:47]")
    lab(f"SIG_DONE{n}")


filler = []


def fill(n=1):
    for _ in range(n):
        if filler:
            for ins in filler.pop(0):
                e(ins)


def tile_loads(defer=False):
    for i in range(32):
        g = []
        if i % 4 == 0:
            g.append(f"s_add_u32 s42, s40, {i * 1024}")
        g.append(f"buffer_load_dwordx4 {ar(128 + 4 * i, 4)}, v16, s[8:11], s42 offen offset:{(i % 4) * 1024} nt")
        filler.append(g)
    if not defer:
        fill(32)


def tile_to_lds():
    e("v_add_u32 v12, s41, v16")
    for i in range(32):
        e(f"v_xor_b32 v{13 + (i & 1)}, {fsw(i & 15) * 16}, v12")
        e(f"s_waitcnt vmcnt({31 - i})")
        e(f"ds_write_b128 v{13 + (i & 1)}, {ar(128 + 4 * i, 4)} offset:{i * 1024}")
    e("s_waitcnt lgkmcnt(0)")


def a_tile(first):
    seq = [(j, k) for j in range(4) for k in range(8)]

    def sread(n):
        j, k = seq[n]
        t = 22 + (n & 1)
        e(f"v_add_u32 v{t}, v{24 + j}, v{28 + k}")
        e(f"ds_read_b128 {vr(72 + 4 * (n % 8), 4)}, v{t}")
    for n in range(8):
        sread(n)
    for n in range(32):
        j, k = seq[n]
        e(f"s_waitcnt lgkmcnt({min(7, 31 - n)})")
        f = vr(72 + 4 * (n % 8), 4)
        acc = ar(64 + 16 * j, 16)
        c = "0" if k == 0 else acc
        e(f"v_mfma_f32_32x32x16_bf16 {acc}, {f}, {vr(192 + 4 * k, 4)}, {c}")
        if not HIONLY:
            e(f"v_mfma_f32_32x32x16_bf16 {acc}, {f}, {vr(224 + 4 * k, 4)}, {acc}")
        if n + 8 < 32:
            sread(n + 8)
        if n % 2 == 1:
            fill(1)
    e("s_nop 15")
    for i in range(16):
        e(f"v_accvgpr_read_b32 v{56 + i}, a{64 + i}")
    for j in range(1, 4):
        for q in range(4):
            e(f"ds_write_b128 v36, {ar(64 + 16 * j + 4 * q, 4)} offset:{1024 * q}")
        e("s_waitcnt lgkmcnt(0)")
        e("s_barrier")
        for q in range(4):
            e(f"ds_read_b128 {vr(72 + 4 * q, 4)}, v{36 + j} offset:{1024 * q}")
        e("s_waitcnt lgkmcnt(0)")
        if j < 3:
            e("s_barrier")
        fill(1)
        for i in range(16):
            e(f"v_add_f32 v{56 + i}, v{56 + i}, v{72 + i}")
    for i in range(0, 16, 2):
        round_scale(56 + i, 57 + i, 11)
        if i % 4 == 0:
            fill(1)
    e("v_max3_f32 v12, v56, v57, v58")
    for i in range(59, 71, 2):
        e(f"v_max3_f32 v12, v12, v{i}, v{i+1}")
    e("v_max_f32 v12, v12, v71")
    e("v_mov_b32 v13, v12")
    e("s_nop 1")
    e("v_permlane32_swap_b32 v12, v13")
    e("s_nop 1")
    e("v_max_f32 v12, v12, v13")
    e("ds_write_b32 v17, v12")
    e("s_waitcnt lgkmcnt(0)")
    e("s_barrier")
    for w in range(4):
        e(f"ds_read_b32 v{12 + w}, v18 offset:{128 * w}")
    e("s_waitcnt lgkmcnt(0)")
    e("v_max3_f32 v12, v12, v13, v14")
    e("v_max3_f32 v12, v12, v15, v8")
    e("v_sub_f32 v10, v8, v12")
    e("v_exp_f32 v10, v10")
    e("v_mov_b32 v8, v12")
    for i in range(16):
        e(f"v_sub_f32 v{56+i}, v{56+i}, v12")
    for i in range(16):
        e(f"v_exp_f32 v{56+i}, v{56+i}")
    e("v_mul_f32 v9, v9, v10")
    for i in range(16):
        e(f"v_add_f32 v9, v9, v{56+i}")
    for i in range(8):
        e(f"v_cvt_pk_bf16_f32 v{96+i}, v{56+2*i}, v{57+2*i}")
    e(f"ds_write_b128 v19, {vr(96, 4)}")
    e(f"ds_write_b128 v19, {vr(100, 4)} offset:1024")
    e("s_waitcnt lgkmcnt(0)")
    e("s_barrier")
    for tu in range(8):
        e(f"ds_read_b128 {vr(64 + 4 * tu, 4)}, v20 offset:{(tu >> 1) * 2048 + (tu & 1) * 1024}")
    if not first:
        for i in range(64):
            e(f"v_mul_f32 v{192+i}, v{192+i}, v10")

    def trreads(tu):
        t, u = tu >> 1, tu & 1
        bufb = 96 + 16 * (tu & 1)
        for cc in range(4):
            for v in range(2):
                a = 40 + 8 * (t >> 1) + 2 * cc + v
                off = (32 * (t & 1) + 16 * u + 8 * v) * 1024
                e(f"ds_read_b64_tr_b16 {vr(bufb + 4 * cc + 2 * v, 2)}, v{a} offset:{off}")
    trreads(0)
    for tu in range(8):
        if tu + 1 < 8:
            trreads(tu + 1)
            e("s_waitcnt lgkmcnt(8)")
        else:
            e("s_waitcnt lgkmcnt(0)")
        bufb = 96 + 16 * (tu & 1)
        for cc in range(4):
            acc = vr(192 + 16 * cc, 16)
            c = "0" if (first and tu == 0) else acc
            e(f"v_mfma_f32_32x32x16_bf16 {acc}, {vr(bufb + 4 * cc, 4)}, {vr(64 + 4 * tu, 4)}, {c}")
        fill(1)
    fill(99)


def km():
    L = "km_kernel"
    kernel_header(L)
    e("s_cmp_ge_u32 s2, 256")
    e("s_cbranch_scc1 KM_END")
    prof_kernel[0] = 1
    prof_start()
    srd(8, "A_ckv"); srd(12, "B_k"); srd(16, "B_v"); srd(20, "ws"); srd(48, "dbg")
    e("s_and_b32 s3, s2, 7")
    e("s_lshr_b32 s4, s2, 3")
    e("s_lshr_b32 s5, s3, 2")
    e("s_lshl_b32 s24, s4, 1")
    e("s_or_b32 s24, s24, s5")
    e("s_add_u32 s25, s3, s4")
    e("s_and_b32 s25, s25, 3")
    e("v_and_b32 v1, 63, v0")
    e("v_lshrrev_b32 v2, 6, v0")
    e("s_nop 0")
    e("v_readfirstlane_b32 s26, v2")
    e(f"s_mov_b32 s34, {SCALE_BITS:#x}")
    e(f"s_mov_b32 s35, {LOG2E_BITS:#x}")
    e("v_lshlrev_b32 v16, 4, v1")
    e("s_lshl_b32 s27, s26, 13")
    e("v_add_u32 v6, s27, v16")
    e("v_add_u32 v7, 4096, v6")
    e("s_lshl_b32 s30, s24, 21")
    e("s_add_u32 s30, s30, 1572864")
    srd(52, "A_wuk")
    e("v_and_b32 v42, 127, v0")
    e("v_lshlrev_b32 v42, 2, v42")
    e("s_and_b32 s27, s24, 31")
    e("s_lshl_b32 s27, s27, 12")
    e("s_lshr_b32 s28, s24, 5")
    e("s_lshl_b32 s28, s28, 9")
    e("s_add_u32 s27, s27, s28")
    e(f"s_add_u32 s27, s27, {QP + 0x20000}")
    e("s_waitcnt lgkmcnt(0)")
    srd_fin(8, "A_ckv"); srd_fin(12, "B_k"); srd_fin(16, "B_v"); srd_fin(20, "ws"); srd_fin(48, "dbg"); srd_fin(52, "A_wuk")
    for mq in range(4):
        e(f"buffer_load_dword v{44 + mq}, v42, s[20:23], s27 offen offset:{1024 * mq}")
    e("s_cmp_ge_u32 s25, 2")
    e("s_cbranch_scc1 KM_BONLY")
    e("s_lshr_b32 s36, s24, 5")
    e("s_and_b32 s37, s24, 31")
    e("s_lshl_b32 s37, s37, 1")
    e("s_add_u32 s37, s37, s25")
    e("s_lshl_b32 s38, s24, 1")
    e("s_add_u32 s38, s38, s25")
    e("s_lshr_b32 s39, s38, 5")
    e("s_and_b32 s38, s38, 31")
    e("s_lshl_b32 s40, s36, 23")
    e("s_lshl_b32 s27, s37, 17")
    e("s_add_u32 s40, s40, s27")
    e("s_lshl_b32 s41, s26, 15")
    e("s_add_u32 s40, s40, s41")
    e("v_lshlrev_b32 v43, 2, v0")
    e("s_lshl_b32 s27, s38, 12")
    e(f"s_add_u32 s27, s27, {QP}")
    for mq in range(4):
        e(f"buffer_load_dword v{48 + mq}, v43, s[20:23], s27 offen offset:{1024 * mq}")
    e("v_and_b32 v52, 15, v0")
    e("v_lshrrev_b32 v53, 4, v0")
    e("v_lshlrev_b32 v54, 13, v53")
    e("v_lshl_add_u32 v54, v52, 4, v54")
    e("s_lshl_b32 s27, s39, 20")
    e("s_lshl_b32 s28, s38, 8")
    e("s_add_u32 s27, s27, s28")
    for i in range(8):
        e(f"buffer_load_dwordx4 {vr(64 + 4 * i, 4)}, v54, s[52:55], s27 offen nt")
        e("s_add_u32 s27, s27, 0x20000")
    tile_loads(defer=True)
    fill(6)
    e("s_waitcnt vmcnt(14)")
    e("v_add_f32 v44, v44, v45")
    e("v_add_f32 v46, v46, v47")
    e("v_add_f32 v48, v48, v49")
    e("v_add_f32 v50, v50, v51")
    e("v_add_f32 v44, v44, v46")
    e("v_add_f32 v48, v48, v50")
    e("v_cvt_pk_bf16_f32 v44, v44, v44")
    e("v_cvt_pk_bf16_f32 v48, v48, v48")
    e("v_lshrrev_b32 v42, 1, v42")
    e(f"v_add_u32 v42, {SCR + 2048}, v42")
    e("ds_write_b16 v42, v44")
    e("v_lshlrev_b32 v43, 1, v0")
    e(f"v_add_u32 v43, {SCR}, v43")
    e("ds_write_b16 v43, v48")
    fill(2)
    e("s_waitcnt lgkmcnt(0)")
    e("s_barrier")
    e("v_lshlrev_b32 v43, 4, v52")
    e(f"v_add_u32 v43, {SCR}, v43")
    e(f"ds_read_b128 {vr(8, 4)}, v43")
    e(f"ds_read_b128 {vr(12, 4)}, v43 offset:256")
    e(f"ds_read_b128 {vr(2, 4)}, v43 offset:2048")
    e("s_waitcnt vmcnt(8) lgkmcnt(0)")
    for k in range(4):
        for i in range(8):
            for b in range(2):
                d = 24 + 2 * i + b
                c = "0" if k == 0 else f"v{d}"
                e(f"v_dot2_f32_bf16 v{d}, v{64 + 4 * i + k}, v{8 + 4 * b + k}, {c}")
    e("s_nop 3")
    for sh in (8, 4, 2, 1):
        for d in range(24, 40):
            e(f"v_add_f32_dpp v{d}, v{d}, v{d} row_ror:{sh} row_mask:0xf bank_mask:0xf")
    e("v_lshlrev_b32 v43, 2, v53")
    e(f"v_add_u32 v43, {SCR + 512}, v43")
    for i in range(8):
        for b in range(2):
            e(f"ds_write_b32 v43, v{24 + 2 * i + b} offset:{512 * b + 64 * i}")
    e("s_waitcnt lgkmcnt(0)")
    e("s_barrier")
    e("v_cmp_gt_u32 vcc, 32, v0")
    e("s_and_saveexec_b64 s[56:57], vcc")
    e("s_cbranch_execz KM_QDONE")
    e("v_lshlrev_b32 v43, 5, v0")
    e(f"v_add_u32 v43, {SCR + 512}, v43")
    e(f"ds_read_b128 {vr(8, 4)}, v43")
    e(f"ds_read_b128 {vr(12, 4)}, v43 offset:16")
    e("s_waitcnt lgkmcnt(0)")
    for k in range(4):
        a_, b_ = 8 + 2 * k, 9 + 2 * k
        e(f"v_cvt_pk_bf16_f32 v{24 + k}, v{a_}, v{b_}")
        e(f"v_or_b32 v{24 + k}, 1, v{24 + k}")
        unpack2(32, 33, 24 + k)
        e(f"v_sub_f32 v32, v{a_}, v32")
        e(f"v_sub_f32 v33, v{b_}, v33")
        e(f"v_cvt_pk_bf16_f32 v{28 + k}, v32, v33")
        e(f"v_or_b32 v{28 + k}, 1, v{28 + k}")
    e("v_lshrrev_b32 v43, 4, v0")
    e("v_and_b32 v32, 15, v0")
    e("v_lshrrev_b32 v33, 1, v32")
    e("v_and_b32 v32, 1, v32")
    e("v_lshlrev_b32 v43, 15, v43")
    e("v_lshl_add_u32 v43, v33, 10, v43")
    e("v_lshl_add_u32 v43, v32, 9, v43")
    e("s_lshl_b32 s27, s39, 13")
    e("s_lshl_b32 s28, s38, 4")
    e("s_add_u32 s27, s27, s28")
    e(f"buffer_store_dwordx4 {vr(24, 4)}, v43, s[20:23], s27 offen sc1")
    e(f"s_add_u32 s27, s27, {QA_LO}")
    e(f"buffer_store_dwordx4 {vr(28, 4)}, v43, s[20:23], s27 offen sc1")
    lab("KM_QDONE")
    e("s_mov_b64 exec, s[56:57]")
    fill(99)
    e("v_and_b32 v56, 31, v1")
    e("v_lshrrev_b32 v57, 5, v1")
    e("v_and_b32 v58, 3, v1")
    e("v_lshlrev_b32 v58, 2, v58")
    e("v_bfe_u32 v59, v1, 2, 2")
    e("v_or_b32 v58, v58, v59")
    e("v_xor_b32 v58, v58, v57")
    e("v_lshlrev_b32 v58, 4, v58")
    for k in range(8):
        e(f"v_xor_b32 v{28 + k}, {32 * k}, v58")
    e("v_lshlrev_b32 v59, 10, v56")
    e("s_lshl_b32 s27, s26, 8")
    e("v_add_u32 v59, s27, v59")
    for j in range(4):
        e(f"s_add_u32 s27, s26, {j}")
        e("s_and_b32 s27, s27, 3")
        e("s_lshl_b32 s27, s27, 15")
        e(f"v_add_u32 v{24 + j}, s27, v59")
        e(f"s_sub_u32 s27, s26, {j}")
        e("s_and_b32 s27, s27, 3")
        e("s_lshl_b32 s27, s27, 12")
        e(f"s_add_u32 s27, s27, {RS}")
        e(f"v_add_u32 v{36 + j}, s27, v16")
    e("v_lshrrev_b32 v60, 4, v1")
    e("v_lshrrev_b32 v61, 5, v1")
    e("v_bfe_u32 v62, v1, 2, 2")
    e("v_and_b32 v63, 3, v1")
    e("v_and_b32 v64, 1, v60")
    e("v_lshlrev_b32 v64, 1, v64")
    e("v_lshrrev_b32 v65, 1, v63")
    e("v_add_u32 v64, v64, v65")
    e("v_lshl_or_b32 v65, v62, 2, v61")
    e("v_xor_b32 v64, v64, v65")
    e("v_lshlrev_b32 v64, 4, v64")
    e("v_and_b32 v65, 1, v63")
    e("v_lshl_add_u32 v64, v65, 3, v64")
    e("v_lshl_add_u32 v65, v61, 2, v62")
    e("v_lshl_add_u32 v64, v65, 10, v64")
    e("s_lshl_b32 s27, s26, 8")
    e("v_add_u32 v64, s27, v64")
    for cc in range(4):
        for v in range(2):
            e(f"v_xor_b32 v{40 + 2 * cc + v}, {64 * cc + 32 * v}, v64")
            e(f"v_add_u32 v{48 + 2 * cc + v}, 0x10000, v{40 + 2 * cc + v}")
    e("v_lshlrev_b32 v18, 2, v56")
    e(f"v_add_u32 v18, {MX}, v18")
    e("s_lshl_b32 s27, s26, 7")
    e("v_add_u32 v17, s27, v18")
    e(f"v_add_u32 v20, {PX}, v16")
    e("s_lshl_b32 s27, s26, 11")
    e("v_add_u32 v19, s27, v20")
    e("v_mov_b32 v8, 0xff800000")
    e("v_mov_b32 v9, 0")
    tile_to_lds()
    e("s_lshl_b32 s27, s36, 15")
    e("s_lshl_b32 s28, s26, 13")
    e("s_add_u32 s27, s27, s28")
    e("s_mov_b32 s44, 0x80000")
    lab("KM_QPOLL")
    for part in range(1 if HIONLY else 2):
        for s in range(8):
            if s % 4 == 0:
                e(f"s_add_u32 s28, s27, {part * QA_LO + s * 1024}")
            e(f"buffer_load_dwordx4 {vr(192 + 32 * part + 4 * s, 4)}, v16, s[20:23], s28 offen offset:{(s % 4) * 1024} sc1")
    e("s_waitcnt vmcnt(0)")
    e("v_and_b32 v11, v192, v193")
    for k in range(194, 224 if HIONLY else 256):
        e(f"v_and_b32 v11, v11, v{k}")
    e("v_and_b32 v11, 1, v11")
    e("v_cmp_eq_u32 vcc, 0, v11")
    e("s_cbranch_vccz KM_QOK")
    e("s_sleep 1")
    e("s_sub_u32 s44, s44, 1")
    e("s_cmp_lg_u32 s44, 0")
    e("s_cbranch_scc1 KM_QPOLL")
    lab("KM_QOK")
    e("s_lshl_b32 s27, s25, 16")
    e("s_add_u32 s31, s30, s27")
    e("s_add_u32 s31, s31, 393216")
    for (base, srdn) in ((128, 12), (160, 16)):
        for i in range(8):
            va = 6 if i < 4 else 7
            filler.append([f"buffer_load_dwordx4 {vr(base + 4 * i, 4)}, v{va}, s[{srdn}:{srdn+3}], s31 offen offset:{(i % 4) * 1024} nt"])
    e("s_add_u32 s33, s31, 32768")
    for (base, srdn) in ((128, 12), (160, 16)):
        for i in range(8):
            va = 6 if i < 4 else 7
            filler.append([f"buffer_load_dwordx4 {ar(base + 4 * i, 4)}, v{va}, s[{srdn}:{srdn+3}], s33 offen offset:{(i % 4) * 1024} nt"])
    e("s_barrier")
    prof_mark(0)
    a_tile(True)
    prof_mark(1)
    e("v_mov_b32 v13, v9")
    e("s_nop 1")
    e("v_permlane32_swap_b32 v9, v13")
    e("s_nop 1")
    e("v_add_f32 v9, v9, v13")
    e(f"ds_write_b32 v17, v9 offset:{LX - MX}")
    e("s_nop 7")
    e("s_barrier")
    e("v_and_b32 v11, 31, v1")
    e("v_lshrrev_b32 v12, 5, v1")
    e("s_movk_i32 s27, 1040")
    e("v_mul_lo_u32 v14, v11, s27")
    e("v_lshl_add_u32 v14, v12, 3, v14")
    e("s_lshl_b32 s28, s26, 8")
    e("v_add_u32 v14, s28, v14")
    for cc in range(4):
        for q in range(4):
            r0 = 192 + 16 * cc + 4 * q
            e(f"v_cvt_pk_bf16_f32 v{r0}, v{r0}, v{r0 + 1}")
            e(f"v_cvt_pk_bf16_f32 v{r0 + 1}, v{r0 + 2}, v{r0 + 3}")
            e(f"ds_write_b64 v14, {vr(r0, 2)} offset:{cc * 64 + q * 16}")
    e("s_waitcnt lgkmcnt(0)")
    e("s_barrier")
    e("s_mul_i32 s28, s26, 8320")
    e("v_add_u32 v14, s28, v16")
    for i in range(8):
        e(f"ds_read_b128 {vr(192 + 4 * i, 4)}, v14 offset:{1040 * i}")
    e("s_lshl_b32 s27, s36, 6")
    e("s_add_u32 s27, s27, s37")
    e("s_lshl_b32 s27, s27, 15")
    e("s_lshl_b32 s28, s26, 13")
    e("s_add_u32 s27, s27, s28")
    e(f"s_add_u32 s27, s27, {APART}")
    for i in range(8):
        if i == 4:
            e("s_add_u32 s27, s27, 4096")
        e(f"s_waitcnt lgkmcnt({7 - i})")
        e(f"buffer_store_dwordx4 {vr(192 + 4 * i, 4)}, v16, s[20:23], s27 offen offset:{(i % 4) * 1024}")
    e("s_cmp_lg_u32 s26, 0")
    e("s_cbranch_scc1 KM_ASTAT_DONE")
    for w in range(4):
        e(f"ds_read_b32 v{12 + w}, v18 offset:{LX - MX + 128 * w}")
    e("s_waitcnt lgkmcnt(0)")
    e("v_add_f32 v12, v12, v13")
    e("v_add_f32 v14, v14, v15")
    e("v_add_f32 v9, v12, v14")
    e("v_lshlrev_b32 v14, 9, v11")
    e("s_lshl_b32 s27, s36, 14")
    e("s_lshl_b32 s28, s37, 3")
    e("s_add_u32 s27, s27, s28")
    e(f"s_add_u32 s27, s27, {ASTAT}")
    e(f"buffer_store_dwordx2 v[8:9], v14, s[20:23], s27 offen")
    lab("KM_ASTAT_DONE")
    prof_mark(2)
    e("v_mov_b32 v8, 0xff800000")
    for j in range(9, 18):
        e(f"v_mov_b32 v{j}, 0")
    e("s_waitcnt vmcnt(0)")
    bscore(128)
    bpv(160)
    for i in range(64):
        e(f"v_accvgpr_read_b32 v{192 + i}, a{128 + i}")
    bscore(192)
    bpv(224)
    e("s_branch KM_BFIN")
    lab("KM_BONLY")
    e("s_sub_u32 s27, s25, 2")
    e("s_mul_i32 s27, s27, 196608")
    e("s_add_u32 s31, s30, s27")
    e("s_sub_u32 s31, s31, 32768")
    e("v_mov_b32 v8, 0xff800000")
    for j in range(9, 18):
        e(f"v_mov_b32 v{j}, 0")

    def qb_hook():
        e("s_waitcnt vmcnt(32)")
        e("v_add_f32 v44, v44, v45")
        e("v_add_f32 v46, v46, v47")
        e("v_add_f32 v44, v44, v46")
        e("v_cvt_pk_bf16_f32 v44, v44, v44")
        e("v_lshrrev_b32 v42, 1, v42")
        e(f"v_add_u32 v42, {SCR + 2048}, v42")
        e("ds_write_b16 v42, v44")
        e("s_waitcnt lgkmcnt(0)")
        e("s_barrier")
        e("v_and_b32 v43, 15, v1")
        e("v_lshlrev_b32 v43, 4, v43")
        e(f"v_add_u32 v43, {SCR + 2048}, v43")
        e(f"ds_read_b128 {vr(2, 4)}, v43")
        e("s_waitcnt lgkmcnt(0)")
    bsched(6, lambda c: 3, hook=qb_hook)
    lab("KM_BFIN")
    prof_mark(3)
    bcombine(BO, BS, "KM_BDONE")
    lab("KM_BDONE")
    lab("KM_END")
    e("s_endpgm")
    kernel_desc(L, 512, 256)
    return f"; @launch kernel={L} grid=(256,1,1) block=(256,1,1) lds={KM_LDS}"


def k3():
    L = "k3_kernel"
    kernel_header(L)
    e("s_cmp_ge_u32 s2, 544")
    e("s_cbranch_scc1 K3_END")
    e("s_cmp_ge_u32 s2, 512")
    e("s_cbranch_scc1 K3_RED")
    srd(20, "ws")
    e("v_and_b32 v1, 63, v0")
    e("v_lshrrev_b32 v2, 6, v0")
    e("s_nop 0")
    e("v_readfirstlane_b32 s26, v2")
    e("s_bfe_u32 s52, s2, 0x20006")
    e("s_and_b32 s53, s2, 63")
    e("s_and_b32 s54, s2, 31")
    e("s_bfe_u32 s55, s2, 0x10005")
    e("s_lshr_b32 s56, s2, 8")
    e("s_cmp_lg_u32 s56, 0")
    e("s_cbranch_scc1 K3_LB")
    srd(16, "A_wo"); srd(12, "A_wuv")
    e("s_branch K3_LD")
    lab("K3_LB")
    srd(16, "B_wo")
    lab("K3_LD")
    e("v_lshrrev_b32 v44, 2, v0")
    e("v_and_b32 v45, 3, v0")
    e("v_lshlrev_b32 v46, 16, v44")
    e("v_lshl_add_u32 v46, v45, 4, v46")
    e("v_lshlrev_b32 v16, 4, v1")
    e("s_waitcnt lgkmcnt(0)")
    srd_fin(16, "A_wo"); srd_fin(20, "ws")
    e("s_cmp_lg_u32 s56, 0")
    e("s_cbranch_scc1 K3_B")
    srd_fin(12, "A_wuv")
    e("v_lshlrev_b32 v4, 3, v0")
    e("v_lshlrev_b32 v5, 3, v1")
    e("s_lshl_b32 s28, s53, 9")
    e(f"s_add_u32 s28, s28, {ASTAT}")
    e("buffer_load_dwordx2 v[8:9], v5, s[20:23], s28 offen")
    e("v_and_b32 v12, 127, v0")
    e("v_lshrrev_b32 v13, 7, v0")
    e("v_lshlrev_b32 v12, 3, v12")
    e("v_lshl_add_u32 v12, v13, 20, v12")
    e("s_lshl_b32 s28, s55, 21")
    e("s_lshl_b32 s29, s54, 10")
    e("s_add_u32 s28, s28, s29")
    e(f"s_add_u32 s28, s28, {APART}")
    for s in range(32):
        e(f"buffer_load_dwordx2 {vr(64 + 2 * s, 2)}, v12, s[20:23], s28 offen")
        e("s_add_u32 s28, s28, 0x8000")
    e("s_lshl_b32 s28, s54, 8")
    e("s_lshl_b32 s29, s52, 6")
    e("s_add_u32 s28, s28, s29")
    for i in range(8):
        e(f"buffer_load_dwordx4 {vr(192 + 4 * i, 4)}, v46, s[12:15], s28 offen nt")
        e("s_add_u32 s28, s28, 8192")
    e("s_lshl_b32 s28, s54, 17")
    e("s_lshl_b32 s29, s52, 15")
    e("s_add_u32 s28, s28, s29")
    e("s_lshl_b32 s29, s26, 13")
    e("s_add_u32 s28, s28, s29")
    for i in range(8):
        if i == 4:
            e("s_add_u32 s28, s28, 4096")
        e(f"buffer_load_dwordx4 {vr(224 + 4 * i, 4)}, v16, s[16:19], s28 offen offset:{(i % 4) * 1024} nt")
    e("s_waitcnt vmcnt(48)")
    e("v_mov_b32 v10, v8")
    for sh in (8, 4, 2, 1):
        e("s_nop 1")
        e(f"v_max_f32_dpp v10, v10, v10 row_ror:{sh} row_mask:0xf bank_mask:0xf")
    e("v_mov_b32 v11, v10")
    e("s_nop 1")
    e("v_permlane16_swap_b32 v10, v11")
    e("s_nop 1")
    e("v_max_f32 v10, v10, v11")
    e("v_mov_b32 v11, v10")
    e("s_nop 1")
    e("v_permlane32_swap_b32 v10, v11")
    e("s_nop 1")
    e("v_max_f32 v10, v10, v11")
    e("v_sub_f32 v8, v8, v10")
    e("v_exp_f32 v8, v8")
    e("s_nop 0")
    e("v_mul_f32 v10, v8, v9")
    for sh in (8, 4, 2, 1):
        e("s_nop 1")
        e(f"v_add_f32_dpp v10, v10, v10 row_ror:{sh} row_mask:0xf bank_mask:0xf")
    e("v_mov_b32 v11, v10")
    e("s_nop 1")
    e("v_permlane16_swap_b32 v10, v11")
    e("s_nop 1")
    e("v_add_f32 v10, v10, v11")
    e("v_mov_b32 v11, v10")
    e("s_nop 1")
    e("v_permlane32_swap_b32 v10, v11")
    e("s_nop 1")
    e("v_add_f32 v10, v10, v11")
    e("v_rcp_f32 v6, v10")
    for k in range(4):
        e(f"v_mov_b32 v{40 + k}, 0")
    e("s_lshr_b32 s30, s26, 1")
    e("s_lshl_b32 s30, s30, 5")
    for s in range(32):
        e(f"s_add_u32 s31, s30, {s}")
        e(f"v_readlane_b32 s{60 + (s & 3)}, v8, s31")
        e(f"s_waitcnt vmcnt({47 - s})")
        unpack2(48, 49, 64 + 2 * s)
        unpack2(50, 51, 65 + 2 * s)
        for k in range(4):
            e(f"v_fmac_f32 v{40 + k}, s{60 + (s & 3)}, v{48 + k}")
    for k in range(4):
        e(f"v_mul_f32 v{40 + k}, v{40 + k}, v6")
    e("v_lshlrev_b32 v4, 4, v0")
    e(f"ds_write_b128 v4, {vr(40, 4)} offset:10240")
    e("s_waitcnt lgkmcnt(0)")
    e("s_barrier")
    e("v_lshlrev_b32 v5, 5, v44")
    e(f"ds_read_b128 {vr(8, 4)}, v5 offset:10240")
    e(f"ds_read_b128 {vr(12, 4)}, v5 offset:10256")
    e(f"ds_read_b128 {vr(16, 4)}, v5 offset:12288")
    e(f"ds_read_b128 {vr(20, 4)}, v5 offset:12304")
    for k in range(8):
        e(f"v_mov_b32 v{24 + k}, 0")
    e("s_waitcnt vmcnt(8) lgkmcnt(0)")
    for k in range(8):
        e(f"v_add_f32 v{8 + k}, v{8 + k}, v{16 + k}")
    for i in range(8):
        for k in range(4):
            unpack2(32 + 2 * k, 33 + 2 * k, 192 + 4 * i + k)
        for k in range(8):
            e(f"v_fmac_f32 v{24 + k}, v{32 + k}, v{8 + i}")
    e("v_lshlrev_b32 v5, 7, v44")
    e("v_lshl_add_u32 v5, v45, 5, v5")
    e(f"ds_write_b128 v5, {vr(24, 4)} offset:2048")
    e(f"ds_write_b128 v5, {vr(28, 4)} offset:2064")
    e("s_waitcnt lgkmcnt(0)")
    e("s_barrier")
    e("v_and_b32 v5, 31, v1")
    e("v_lshrrev_b32 v6, 5, v1")
    e("v_lshlrev_b32 v5, 2, v5")
    e("v_lshl_add_u32 v5, v6, 12, v5")
    for g in range(32):
        e(f"ds_read_b32 v{64 + g}, v5 offset:{2048 + 128 * g}")
    e("s_waitcnt lgkmcnt(0)")
    for n in (16, 8, 4, 2, 1):
        for g in range(n):
            e(f"v_add_f32 v{64 + g}, v{64 + g}, v{64 + n + g}")
    e("v_mov_b32 v65, v64")
    e("s_nop 1")
    e("v_permlane32_swap_b32 v64, v65")
    e("s_nop 1")
    e("v_add_f32 v64, v64, v65")
    e("v_cvt_pk_bf16_f32 v64, v64, v64")
    e("v_lshlrev_b32 v64, 16, v64")
    e("s_branch K3_OUT")
    lab("K3_B")
    e("v_mov_b32 v5, 0")
    e("s_lshl_b32 s28, s53, 6")
    e(f"s_add_u32 s28, s28, {BSTAT}")
    for k in range(2):
        e(f"buffer_load_dwordx4 {vr(8 + 4 * k, 4)}, v5, s[20:23], s28 offen offset:{16 * k}")
    e("v_and_b32 v5, 31, v1")
    e("v_lshlrev_b32 v5, 2, v5")
    e("s_lshl_b32 s28, s53, 12")
    e("s_lshl_b32 s29, s52, 7")
    e("s_add_u32 s28, s28, s29")
    e(f"s_add_u32 s28, s28, {BPART}")
    for r in range(4):
        e(f"buffer_load_dword v{64 + r}, v5, s[20:23], s28 offen offset:{512 * r}")
    e("s_lshl_b32 s28, s54, 17")
    e("s_lshl_b32 s29, s52, 15")
    e("s_add_u32 s28, s28, s29")
    e("s_lshl_b32 s29, s26, 13")
    e("s_add_u32 s28, s28, s29")
    for i in range(8):
        if i == 4:
            e("s_add_u32 s28, s28, 4096")
        e(f"buffer_load_dwordx4 {vr(224 + 4 * i, 4)}, v16, s[16:19], s28 offen offset:{(i % 4) * 1024} nt")
    e("s_waitcnt vmcnt(8)")
    e("v_max3_f32 v56, v8, v10, v12")
    e("v_max_f32 v56, v56, v14")
    for r in range(4):
        e(f"v_sub_f32 v{8 + 2 * r}, v{8 + 2 * r}, v56")
    for r in range(4):
        e(f"v_exp_f32 v{8 + 2 * r}, v{8 + 2 * r}")
    e("s_nop 0")
    e("v_mul_f32 v57, v8, v9")
    e("v_mul_f32 v58, v8, v64")
    for r in range(1, 4):
        e(f"v_fmac_f32 v57, v{8 + 2 * r}, v{9 + 2 * r}")
        e(f"v_fmac_f32 v58, v{8 + 2 * r}, v{64 + r}")
    e("v_rcp_f32 v57, v57")
    e("s_nop 0")
    e("v_mul_f32 v58, v58, v57")
    e("v_cvt_pk_bf16_f32 v58, v58, v58")
    e("v_lshlrev_b32 v64, 16, v58")
    lab("K3_OUT")
    e("s_lshl_b32 s30, s26, 3")
    for k in range(8):
        e(f"v_mov_b32 v{24 + k}, 0")
    e("s_waitcnt vmcnt(0)")
    for i in range(8):
        e(f"s_add_u32 s31, s30, {i}")
        e(f"v_readlane_b32 s{60 + i}, v64, s31")
    for i in range(8):
        for k in range(4):
            unpack2(32 + 2 * k, 33 + 2 * k, 224 + 4 * i + k)
        for k in range(8):
            e(f"v_fmac_f32 v{24 + k}, s{60 + i}, v{32 + k}")
    e("s_barrier")
    e("v_lshlrev_b32 v5, 5, v1")
    e("s_lshl_b32 s30, s26, 11")
    e("v_add_u32 v5, s30, v5")
    e(f"ds_write_b128 v5, {vr(24, 4)}")
    e(f"ds_write_b128 v5, {vr(28, 4)} offset:16")
    e("s_waitcnt lgkmcnt(0)")
    e("s_barrier")
    e("v_lshlrev_b32 v5, 3, v0")
    for w in range(4):
        e(f"ds_read_b64 {vr(8 + 2 * w, 2)}, v5 offset:{2048 * w}")
    e("s_waitcnt lgkmcnt(0)")
    e("v_add_f32 v8, v8, v10")
    e("v_add_f32 v9, v9, v11")
    e("v_add_f32 v12, v12, v14")
    e("v_add_f32 v13, v13, v15")
    e("v_add_f32 v8, v8, v12")
    e("v_add_f32 v9, v9, v13")
    e("s_lshl_b32 s28, s56, 19")
    e("s_lshl_b32 s29, s55, 18")
    e("s_add_u32 s28, s28, s29")
    e("s_lshl_b32 s29, s54, 13")
    e("s_add_u32 s28, s28, s29")
    e("s_lshl_b32 s29, s52, 11")
    e("s_add_u32 s28, s28, s29")
    e(f"s_add_u32 s28, s28, {OPA}")
    e("v_or_b32 v8, 1, v8")
    e("v_or_b32 v9, 1, v9")
    e("buffer_store_dwordx2 v[8:9], v5, s[20:23], s28 offen sc1")
    e("s_branch K3_END")
    lab("K3_RED")
    srd(20, "ws"); srd(8, "out")
    e("s_sub_u32 s3, s2, 512")
    e("s_lshr_b32 s24, s3, 3")
    e("s_and_b32 s25, s3, 7")
    e("v_and_b32 v1, 15, v0")
    e("v_lshrrev_b32 v2, 4, v0")
    e("v_lshlrev_b32 v3, 14, v2")
    e("v_lshl_add_u32 v3, v1, 4, v3")
    e("s_lshl_b32 s26, s24, 18")
    e("s_lshl_b32 s27, s25, 8")
    e("s_add_u32 s26, s26, s27")
    e(f"s_add_u32 s26, s26, {OPA}")
    e("s_mov_b32 s30, 0x80000")
    e("s_waitcnt lgkmcnt(0)")
    srd_fin(20, "ws"); srd_fin(8, "out")
    lab("K3_RLOOP")
    e("s_mov_b32 s27, s26")
    for i in range(8):
        if i % 2 == 0 and i:
            e("s_add_u32 s27, s27, 4096")
        e(f"buffer_load_dwordx4 {vr(8 + 4 * i, 4)}, v3, s[20:23], s27 offen offset:{(i % 2) * 2048} sc1")
    e("s_waitcnt vmcnt(0)")
    e("v_and_b32 v40, v8, v9")
    for k in range(10, 40):
        e(f"v_and_b32 v40, v40, v{k}")
    e("v_and_b32 v40, 1, v40")
    e("v_cmp_eq_u32 vcc, 0, v40")
    e("s_cbranch_vccz K3_ROK")
    e("s_sleep 2")
    e("s_sub_u32 s30, s30, 1")
    e("s_cmp_lg_u32 s30, 0")
    e("s_cbranch_scc1 K3_RLOOP")
    lab("K3_ROK")
    for n in (4, 2, 1):
        for i in range(n):
            for k in range(4):
                e(f"v_add_f32 v{8 + 4 * i + k}, v{8 + 4 * i + k}, v{8 + 4 * (i + n) + k}")
    e("v_lshlrev_b32 v4, 4, v0")
    e(f"ds_write_b128 v4, {vr(8, 4)}")
    e("s_waitcnt lgkmcnt(0)")
    e("s_barrier")
    e("v_cmp_gt_u32 vcc, 64, v0")
    e("s_and_saveexec_b64 s[28:29], vcc")
    e("s_cbranch_execz K3_END")
    e("v_lshlrev_b32 v4, 2, v0")
    for g in range(16):
        e(f"ds_read_b32 v{8 + g}, v4 offset:{256 * g}")
    e("s_waitcnt lgkmcnt(0)")
    for n in (8, 4, 2, 1):
        for g in range(n):
            e(f"v_add_f32 v{8 + g}, v{8 + g}, v{8 + n + g}")
    e("v_cvt_pk_bf16_f32 v8, v8, v8")
    e("s_and_b32 s26, s24, 1")
    e("s_lshl_b32 s26, s26, 11")
    e("s_lshr_b32 s27, s24, 1")
    e("s_lshl_b32 s27, s27, 10")
    e("s_add_u32 s26, s26, s27")
    e("s_lshl_b32 s27, s25, 7")
    e("s_add_u32 s26, s26, s27")
    e("v_lshlrev_b32 v4, 1, v0")
    e("buffer_store_short v8, v4, s[8:11], s26 offen")
    lab("K3_END")
    e("s_endpgm")
    kernel_desc(L, 256, 256)
    return f"; @launch kernel={L} grid=(544,1,1) block=(256,1,1) lds=14336"


def k4():
    L = "k4_kernel"
    kernel_header(L)
    e("s_cmp_ge_u32 s2, 32")
    e("s_cbranch_scc1 K4_END")
    srd(20, "ws"); srd(8, "out")
    e("s_lshr_b32 s24, s2, 3")
    e("s_and_b32 s25, s2, 7")
    e("v_and_b32 v1, 15, v0")
    e("v_lshrrev_b32 v2, 4, v0")
    e("v_lshlrev_b32 v3, 14, v2")
    e("v_lshl_add_u32 v3, v1, 4, v3")
    e("s_lshl_b32 s26, s24, 18")
    e("s_lshl_b32 s27, s25, 8")
    e("s_add_u32 s26, s26, s27")
    e(f"s_add_u32 s26, s26, {OPA}")
    e("s_waitcnt lgkmcnt(0)")
    srd_fin(20, "ws"); srd_fin(8, "out")
    for i in range(8):
        if i % 2 == 0 and i:
            e("s_add_u32 s26, s26, 4096")
        e(f"buffer_load_dwordx4 {vr(8 + 4 * i, 4)}, v3, s[20:23], s26 offen offset:{(i % 2) * 2048}")
    e("s_waitcnt vmcnt(0)")
    for n in (4, 2, 1):
        for i in range(n):
            for k in range(4):
                e(f"v_add_f32 v{8 + 4 * i + k}, v{8 + 4 * i + k}, v{8 + 4 * (i + n) + k}")
    e("v_lshlrev_b32 v4, 4, v0")
    e(f"ds_write_b128 v4, {vr(8, 4)}")
    e("s_waitcnt lgkmcnt(0)")
    e("s_barrier")
    e("v_cmp_gt_u32 vcc, 64, v0")
    e("s_and_saveexec_b64 s[28:29], vcc")
    e("s_cbranch_execz K4_END")
    e("v_lshlrev_b32 v4, 2, v0")
    for g in range(16):
        e(f"ds_read_b32 v{8 + g}, v4 offset:{256 * g}")
    e("s_waitcnt lgkmcnt(0)")
    for n in (8, 4, 2, 1):
        for g in range(n):
            e(f"v_add_f32 v{8 + g}, v{8 + g}, v{8 + n + g}")
    e("v_cvt_pk_bf16_f32 v8, v8, v8")
    e("s_and_b32 s26, s24, 1")
    e("s_lshl_b32 s26, s26, 11")
    e("s_lshr_b32 s27, s24, 1")
    e("s_lshl_b32 s27, s27, 10")
    e("s_add_u32 s26, s26, s27")
    e("s_lshl_b32 s27, s25, 7")
    e("s_add_u32 s26, s26, s27")
    e("v_lshlrev_b32 v4, 1, v0")
    e("buffer_store_short v8, v4, s[8:11], s26 offen")
    lab("K4_END")
    e("s_endpgm")
    kernel_desc(L, 48, 48)
    return f"; @launch kernel={L} grid=(32,1,1) block=(256,1,1) lds=4096"


LAUNCHES = []


def main():
    LAUNCHES.append(k1())
    LAUNCHES.append(km())
    LAUNCHES.append(k3())
    head = open(f"cdna_kernels/{NAME}.s.ref").read().split("; Override launch")[0]
    txt = head + "\n".join(LAUNCHES) + "\n"
    txt += '.amdgcn_target "amdgcn-amd-amdhsa--gfx950"\n.text\n'
    txt += "\n".join(out) + "\n"
    txt += '.section .rodata,"a"\n' + "\n".join(descs) + "\n"
    path = sys.argv[1] if len(sys.argv) > 1 else f"cdna_kernels/{NAME}.s"
    open(path, "w").write(txt)


if __name__ == "__main__":
    main()
```

```python
import sys

NAME = "concat_heads__compressed_kv_cla__sliding_block_cached__decode"

KA = dict(A_x=0, A_ckv=8, A_wq=16, A_wuk=24, A_wuv=32, A_wo=40, B_x=48, B_k=56, B_v=64,
          B_wq=72, B_wo=80, out=88, dbg=96, ws=104)
SZ = dict(A_x=2048, A_ckv=16777216, A_wq=4194304, A_wuk=4194304, A_wuv=4194304, A_wo=4194304,
          B_x=2048, B_k=134217728, B_v=134217728, B_wq=4194304, B_wo=4194304, out=4096, dbg=256,
          ws=536870912)

QA_HI = 0x00000
QA_LO = 0x10000
QB = 0x20000
ASTAT = 0x30000
BPART = 0x40000
BSTAT = 0x80000
CTX = 0x70000
OPART = 0x80000
APART = 0x100000

OPA = 0xA00000
SCALE_BITS = 0x3DB504F3
LOG2E_BITS = 0x3FB8AA3B

out = []
import os
DEBUG = bool(os.environ.get('DEBUG'))
PROF = bool(os.environ.get('PROF'))
PST = os.environ.get('PST', '')
DEEP = bool(os.environ.get('DEEP'))
HIONLY = bool(os.environ.get('HIONLY'))
PROFBASE = 0xC00000


def prof_start():
    if PROF:
        e("s_memrealtime s[90:91]")


def prof_mark(slot, t=21):
    if PROF:
        e("s_memrealtime s[92:93]")
        e("s_waitcnt lgkmcnt(0)")
        e("s_sub_u32 s92, s92, s90")
        e(f"v_mov_b32 v{t}, s92")
        e("s_lshl_b32 s94, s2, 7")
        e(f"s_add_u32 s94, s94, {PROFBASE + prof_kernel[0] * 0x10000 + slot * 4}")
        e(f"v_lshrrev_b32 v{t+1}, 6, v0")
        e(f"v_lshlrev_b32 v{t+1}, 5, v{t+1}")
        e(f"buffer_store_dword v{t}, v{t+1}, s[20:23], s94 offen")


prof_kernel = [0]


def e(s):
    out.append("    " + s)


def lab(s):
    out.append(s + ":")


def srd(dst, name):
    e(f"s_load_dwordx2 s[{dst}:{dst+1}], s[0:1], {KA[name]}")


def srd_fin(dst, name):
    e(f"s_mov_b32 s{dst+2}, {SZ[name]}")
    e(f"s_mov_b32 s{dst+3}, 0x20000")


def vr(a, n):
    return f"v[{a}:{a+n-1}]"


def ar(a, n):
    return f"a[{a}:{a+n-1}]"


def kernel_header(label):
    out.append(f".globl {label}")
    out.append(".p2align 8")
    out.append(f".type {label},@function")
    lab(label)


descs = []


def kernel_desc(label, vgpr, accum, sgpr=102):
    descs.append(f""".p2align 6
.amdhsa_kernel {label}
  .amdhsa_next_free_vgpr {vgpr}
  .amdhsa_next_free_sgpr {sgpr}
  .amdhsa_accum_offset {accum}
  .amdhsa_group_segment_fixed_size 0
  .amdhsa_kernarg_size 112
  .amdhsa_user_sgpr_count 2
  .amdhsa_user_sgpr_kernarg_segment_ptr 1
  .amdhsa_system_sgpr_workgroup_id_x 1
.end_amdhsa_kernel""")


def unpack2(dlo, dhi, src):
    e(f"v_lshlrev_b32 v{dlo}, 16, v{src}")
    e(f"v_and_b32 v{dhi}, 0xffff0000, v{src}")


def gemv_rows(nrows, wbase, xbase0, xbase1, acc, tmp, xt, vm_after):
    for i in range(nrows):
        e(f"s_waitcnt vmcnt({nrows - 1 - i + vm_after})")
        if i % 2 == 0:
            e(f"v_lshlrev_b32 v{xt}, 16, v{xbase0 + i // 2}")
            e(f"v_lshlrev_b32 v{xt+1}, 16, v{xbase1 + i // 2}")
        else:
            e(f"v_and_b32 v{xt}, 0xffff0000, v{xbase0 + i // 2}")
            e(f"v_and_b32 v{xt+1}, 0xffff0000, v{xbase1 + i // 2}")
        for k in range(4):
            unpack2(tmp + 2 * k, tmp + 2 * k + 1, wbase + 4 * i + k)
        for k in range(8):
            e(f"v_fmac_f32 v{acc + k}, v{tmp + k}, v{xt}")
            e(f"v_fmac_f32 v{acc + 8 + k}, v{tmp + k}, v{xt+1}")


QP = 0x90000


def k1():
    L = "k0_kernel"
    kernel_header(L)
    e("s_cmp_ge_u32 s2, 256")
    e("s_cbranch_scc1 K0_END")
    srd(20, "ws")
    e("s_and_b32 s24, s2, 31")
    e("s_bfe_u32 s25, s2, 0x20005")
    e("s_lshr_b32 s26, s2, 7")
    e("s_cmp_lg_u32 s26, 0")
    e("s_cbranch_scc1 K0_LB")
    srd(8, "A_x"); srd(12, "A_wq")
    e("s_branch K0_LD")
    lab("K0_LB")
    srd(8, "B_x"); srd(12, "B_wq")
    lab("K0_LD")
    e("v_and_b32 v1, 15, v0")
    e("v_lshrrev_b32 v2, 4, v0")
    e("v_lshlrev_b32 v3, 16, v2")
    e("v_lshl_add_u32 v3, v1, 4, v3")
    e("v_lshlrev_b32 v4, 4, v2")
    e("s_lshl_b32 s27, s25, 20")
    e("s_lshl_b32 s28, s24, 8")
    e("s_add_u32 s27, s27, s28")
    e("s_lshl_b32 s28, s25, 8")
    e("s_waitcnt lgkmcnt(0)")
    srd_fin(8, "A_x"); srd_fin(12, "A_wq"); srd_fin(20, "ws")
    e("buffer_load_dwordx4 v[8:11], v4, s[8:11], s28 offen")
    e("buffer_load_dwordx4 v[12:15], v4, s[8:11], s28 offen offset:1024")
    for i in range(8):
        e(f"buffer_load_dwordx4 {vr(40 + 4 * i, 4)}, v3, s[12:15], s27 offen nt")
        e("s_add_u32 s27, s27, 8192")
    for k in range(4):
        e(f"v_mov_b32 v{76 + k}, 0")
    e("v_lshlrev_b32 v80, 4, v0")
    e("s_lshl_b32 s29, s2, 12")
    e(f"s_add_u32 s29, s29, {OPA}")
    e("buffer_store_dwordx4 v[76:79], v80, s[20:23], s29 offen")
    e("v_lshlrev_b32 v80, 1, v0")
    e("s_lshl_b32 s29, s2, 9")
    e("buffer_store_short v76, v80, s[20:23], s29 offen")
    for k in range(16):
        e(f"v_mov_b32 v{16 + k}, 0")
    gemv_rows(8, 40, 8, 12, 16, 32, 6, 2)
    e("v_lshlrev_b32 v6, 10, v2")
    e("v_lshl_add_u32 v6, v1, 5, v6")
    e(f"ds_write_b128 v6, {vr(16, 4)}")
    e(f"ds_write_b128 v6, {vr(20, 4)} offset:16")
    e(f"ds_write_b128 v6, {vr(24, 4)} offset:512")
    e(f"ds_write_b128 v6, {vr(28, 4)} offset:528")
    e("s_waitcnt lgkmcnt(0)")
    e("s_barrier")
    e("v_lshlrev_b32 v6, 2, v0")
    for g in range(16):
        e(f"ds_read_b32 v{8 + g}, v6 offset:{1024 * g}")
    e("s_waitcnt lgkmcnt(0)")
    for n in (8, 4, 2, 1):
        for g in range(n):
            e(f"v_add_f32 v{8 + g}, v{8 + g}, v{8 + n + g}")
    e("s_lshl_b32 s27, s26, 17")
    e("s_lshl_b32 s28, s24, 12")
    e("s_add_u32 s27, s27, s28")
    e("s_lshl_b32 s28, s25, 10")
    e("s_add_u32 s27, s27, s28")
    e(f"s_add_u32 s27, s27, {QP}")
    e("buffer_store_dword v8, v6, s[20:23], s27 offen")
    lab("K0_END")
    e("s_endpgm")
    kernel_desc(L, 88, 88)
    return f"; @launch kernel={L} grid=(256,1,1) block=(256,1,1) lds=16384"


MX = 131072
LX = 131584
PX = 132096
BO = 140288
SCR = PX
RS = PX
BS = BO + 8192
KM_LDS = BS + 128
C3 = 132
C4 = 136
C5 = 168
C6 = 200
SC = " sc1"


def fsw(r):
    return ((r & 3) << 2) | ((r >> 2) & 3)


def bloads(K, V, soff):
    for (base, srdn) in ((K, 12), (V, 16)):
        for i in range(8):
            va = 6 if i < 4 else 7
            e(f"buffer_load_dwordx4 {vr(base + 4 * i, 4)}, v{va}, s[{srdn}:{srdn+3}], s{soff} offen offset:{(i % 4) * 1024} nt")


def round_scale(a, b, t):
    e(f"v_cvt_pk_bf16_f32 v{t}, v{a}, v{b}")
    unpack2(a, b, t)
    e(f"v_mul_f32 v{a}, s34, v{a}")
    e(f"v_mul_f32 v{b}, s34, v{b}")
    e(f"v_cvt_pk_bf16_f32 v{t}, v{a}, v{b}")
    unpack2(a, b, t)
    e(f"v_mul_f32 v{a}, s35, v{a}")
    e(f"v_mul_f32 v{b}, s35, v{b}")


def bscore(K):
    for k in range(4):
        for i in range(8):
            c = "0" if k == 0 else f"v{18+i}"
            e(f"v_dot2_f32_bf16 v{18+i}, v{K + 4*i + k}, v{2+k}, {c}")
    for sh in (8, 4, 2, 1):
        for i in range(8):
            e(f"v_add_f32_dpp v{18+i}, v{18+i}, v{18+i} row_ror:{sh} row_mask:0xf bank_mask:0xf")
    for i in range(0, 8, 2):
        round_scale(18 + i, 19 + i, 26)
    e("v_max3_f32 v26, v18, v19, v20")
    e("v_max3_f32 v26, v26, v21, v22")
    e("v_max3_f32 v26, v26, v23, v24")
    e("v_max3_f32 v26, v26, v25, v8")
    e("v_sub_f32 v27, v8, v26")
    e("v_exp_f32 v27, v27")
    e("v_mov_b32 v8, v26")
    for i in range(8):
        e(f"v_sub_f32 v{18+i}, v{18+i}, v26")
    for i in range(8):
        e(f"v_exp_f32 v{18+i}, v{18+i}")
    e("v_mul_f32 v9, v9, v27")
    for j in range(8):
        e(f"v_mul_f32 v{10+j}, v{10+j}, v27")
    for i in range(8):
        e(f"v_add_f32 v9, v9, v{18+i}")


def bpv(V):
    for i in range(8):
        for k in range(4):
            unpack2(34 + 2 * k, 35 + 2 * k, V + 4 * i + k)
        for j in range(8):
            e(f"v_fmac_f32 v{10+j}, v{34+j}, v{18+i}")


def bload1(base, srdn, soff):
    for i in range(8):
        va = 6 if i < 4 else 7
        e(f"buffer_load_dwordx4 {vr(base + 4 * i, 4)}, v{va}, s[{srdn}:{srdn+3}], s{soff} offen offset:{(i % 4) * 1024} nt")


def bsched(nunits, ahead, hook=None, deep=False):
    bufs = [(128, 160), (192, 224)]
    n = 2 * nunits
    issued = 0
    lim = 7 if deep else 3
    for c in range(n):
        while issued < n and issued <= c + min(ahead(c), lim):
            u, isv = issued >> 1, issued & 1
            if not isv:
                e("s_add_u32 s31, s31, 32768")
                e(f"s_mov_b32 s{60 + (u & 1)}, s31")
            if deep and u >= 2:
                for i in range(8):
                    va = 6 if i < 4 else 7
                    srdn = 16 if isv else 12
                    e(f"buffer_load_dwordx4 {ar((u - 2) * 64 + 32 * isv + 4 * i, 4)}, v{va}, s[{srdn}:{srdn+3}], s{60 + (u & 1)} offen offset:{(i % 4) * 1024} nt")
            else:
                bload1(bufs[u & 1][isv], 16 if isv else 12, 60 + (u & 1))
            issued += 1
        if c == 0 and hook:
            hook()
        e(f"s_waitcnt vmcnt({8 * (issued - 1 - c)})")
        u, isv = c >> 1, c & 1
        if deep and u >= 2:
            for i in range(32):
                e(f"v_accvgpr_read_b32 v{bufs[u & 1][isv] + i}, a{(u - 2) * 64 + 32 * isv + i}")
        if isv:
            bpv(bufs[u & 1][1])
        else:
            if u < 3:
                prof_mark(u)
            bscore(bufs[u & 1][0])


def bcombine(BO, BS, done):
    e("v_lshrrev_b32 v18, 4, v1")
    e("s_lshl_b32 s27, s26, 2")
    e("v_add_u32 v18, s27, v18")
    e("v_and_b32 v19, 15, v1")
    e("v_lshlrev_b32 v20, 9, v18")
    e("v_lshl_add_u32 v20, v19, 5, v20")
    e(f"v_add_u32 v20, {BO}, v20")
    e(f"ds_write_b128 v20, {vr(10, 4)}")
    e(f"ds_write_b128 v20, {vr(14, 4)} offset:16")
    e("v_lshlrev_b32 v21, 3, v18")
    e(f"v_add_u32 v21, {BS}, v21")
    e("ds_write_b64 v21, v[8:9]")
    e("s_waitcnt lgkmcnt(0)")
    e("s_barrier")
    e("s_cmp_ge_u32 s26, 2")
    e(f"s_cbranch_scc1 {done}")
    e(f"v_mov_b32 v21, {BS}")
    for s in range(16):
        e(f"ds_read_b64 {vr(64 + 2 * s, 2)}, v21 offset:{8 * s}")
    e("v_lshlrev_b32 v20, 2, v0")
    e(f"v_add_u32 v20, {BO}, v20")
    for s in range(16):
        e(f"ds_read_b32 v{96 + s}, v20 offset:{512 * s}")
    e("s_waitcnt lgkmcnt(0)")
    e("v_max3_f32 v8, v64, v66, v68")
    for s in range(3, 15, 2):
        e(f"v_max3_f32 v8, v8, v{64 + 2 * s}, v{66 + 2 * s}")
    e("v_max_f32 v8, v8, v94")
    for s in range(16):
        e(f"v_sub_f32 v{64 + 2 * s}, v{64 + 2 * s}, v8")
    for s in range(16):
        e(f"v_exp_f32 v{64 + 2 * s}, v{64 + 2 * s}")
    e("s_nop 0")
    e("v_mul_f32 v9, v64, v65")
    e("v_mul_f32 v10, v64, v96")
    for s in range(1, 16):
        e(f"v_fmac_f32 v9, v{64 + 2 * s}, v{65 + 2 * s}")
        e(f"v_fmac_f32 v10, v{64 + 2 * s}, v{96 + s}")
    e("s_lshl_b32 s27, s24, 3")
    e("s_add_u32 s27, s27, s25")
    e("s_lshl_b32 s28, s27, 9")
    e(f"s_add_u32 s28, s28, {BPART}")
    e("v_lshlrev_b32 v20, 2, v0")
    e(f"buffer_store_dword v10, v20, s[20:23], s28 offen")
    e("s_lshl_b32 s28, s27, 3")
    e(f"s_add_u32 s28, s28, {BSTAT}")
    e("v_mov_b32 v20, 0")
    e(f"buffer_store_dwordx2 v[8:9], v20, s[20:23], s28 offen")


def dma_tile():
    for i in range(32):
        if i % 4 == 0:
            e(f"s_add_u32 m0, s41, {i * 1024}")
            e(f"s_add_u32 s42, s40, {i * 1024}")
        e(f"v_xor_b32 v11, {fsw(i & 15) * 16}, v16")
        e(f"buffer_load_dwordx4 v11, s[8:11], s42 offen offset:{(i % 4) * 1024} nt lds")


npoll = [0]


def poll(off, target, soff=None):
    n = npoll[0]
    npoll[0] += 1
    e("s_cmp_lg_u32 s26, 0")
    e(f"s_cbranch_scc1 POLL_DONE{n}")
    e("v_mov_b32 v22, 0")
    e("s_mov_b32 s44, 0x40000")
    if soff is None:
        e(f"s_mov_b32 s45, {off}")
        soff = 45
    lab(f"POLL{n}")
    e(f"buffer_load_dword v21, v22, s[48:51], s{soff} offen{SC}")
    e("s_waitcnt vmcnt(0)")
    e("v_readfirstlane_b32 s43, v21")
    e(f"s_cmp_ge_u32 s43, {target}")
    e(f"s_cbranch_scc1 POLL_DONE{n}")
    e("s_sleep 4")
    e("s_sub_u32 s44, s44, 1")
    e("s_cmp_lg_u32 s44, 0")
    e(f"s_cbranch_scc1 POLL{n}")
    lab(f"POLL_DONE{n}")
    e("s_barrier")


def signal(soffs):
    n = npoll[0]
    npoll[0] += 1
    e("s_waitcnt vmcnt(0)")
    e("s_barrier")
    e("s_cmp_lg_u32 s26, 0")
    e(f"s_cbranch_scc1 SIG_DONE{n}")
    e("v_mov_b32 v21, 1")
    e("v_mov_b32 v22, 0")
    e("s_mov_b64 s[46:47], exec")
    e("s_mov_b64 exec, 1")
    for so in soffs:
        e(f"buffer_atomic_add v21, v22, s[48:51], s{so} offen sc1")
    e("s_mov_b64 exec, s[46:47]")
    lab(f"SIG_DONE{n}")


filler = []


def fill(n=1):
    for _ in range(n):
        if filler:
            for ins in filler.pop(0):
                e(ins)


def tile_loads(defer=False):
    for i in range(32):
        g = []
        if i % 4 == 0:
            g.append(f"s_add_u32 s42, s40, {i * 1024}")
        g.append(f"buffer_load_dwordx4 {ar(128 + 4 * i, 4)}, v16, s[8:11], s42 offen offset:{(i % 4) * 1024} nt")
        filler.append(g)
    if not defer:
        fill(32)


def tile_to_lds():
    e("v_add_u32 v12, s41, v16")
    for i in range(32):
        e(f"v_xor_b32 v{13 + (i & 1)}, {fsw(i & 15) * 16}, v12")
        e(f"s_waitcnt vmcnt({31 - i})")
        e(f"ds_write_b128 v{13 + (i & 1)}, {ar(128 + 4 * i, 4)} offset:{i * 1024}")
    e("s_waitcnt lgkmcnt(0)")


def a_tile(first):
    seq = [(j, k) for j in range(4) for k in range(8)]

    def sread(n):
        j, k = seq[n]
        t = 22 + (n & 1)
        e(f"v_add_u32 v{t}, v{24 + j}, v{28 + k}")
        e(f"ds_read_b128 {vr(72 + 4 * (n % 8), 4)}, v{t}")
    for n in range(8):
        sread(n)
    for n in range(32):
        j, k = seq[n]
        e(f"s_waitcnt lgkmcnt({min(7, 31 - n)})")
        f = vr(72 + 4 * (n % 8), 4)
        acc = ar(64 + 16 * j, 16)
        c = "0" if k == 0 else acc
        e(f"v_mfma_f32_32x32x16_bf16 {acc}, {f}, {vr(192 + 4 * k, 4)}, {c}")
        if not HIONLY:
            e(f"v_mfma_f32_32x32x16_bf16 {acc}, {f}, {vr(224 + 4 * k, 4)}, {acc}")
        if n + 8 < 32:
            sread(n + 8)
        if n % 2 == 1:
            fill(1)
    e("s_nop 15")
    for i in range(16):
        e(f"v_accvgpr_read_b32 v{56 + i}, a{64 + i}")
    for j in range(1, 4):
        for q in range(4):
            e(f"ds_write_b128 v36, {ar(64 + 16 * j + 4 * q, 4)} offset:{1024 * q}")
        e("s_waitcnt lgkmcnt(0)")
        e("s_barrier")
        for q in range(4):
            e(f"ds_read_b128 {vr(72 + 4 * q, 4)}, v{36 + j} offset:{1024 * q}")
        e("s_waitcnt lgkmcnt(0)")
        if j < 3:
            e("s_barrier")
        fill(1)
        for i in range(16):
            e(f"v_add_f32 v{56 + i}, v{56 + i}, v{72 + i}")
    for i in range(0, 16, 2):
        round_scale(56 + i, 57 + i, 11)
        if i % 4 == 0:
            fill(1)
    e("v_max3_f32 v12, v56, v57, v58")
    for i in range(59, 71, 2):
        e(f"v_max3_f32 v12, v12, v{i}, v{i+1}")
    e("v_max_f32 v12, v12, v71")
    e("v_mov_b32 v13, v12")
    e("s_nop 1")
    e("v_permlane32_swap_b32 v12, v13")
    e("s_nop 1")
    e("v_max_f32 v12, v12, v13")
    e("ds_write_b32 v17, v12")
    e("s_waitcnt lgkmcnt(0)")
    e("s_barrier")
    for w in range(4):
        e(f"ds_read_b32 v{12 + w}, v18 offset:{128 * w}")
    e("s_waitcnt lgkmcnt(0)")
    e("v_max3_f32 v12, v12, v13, v14")
    e("v_max3_f32 v12, v12, v15, v8")
    e("v_sub_f32 v10, v8, v12")
    e("v_exp_f32 v10, v10")
    e("v_mov_b32 v8, v12")
    for i in range(16):
        e(f"v_sub_f32 v{56+i}, v{56+i}, v12")
    for i in range(16):
        e(f"v_exp_f32 v{56+i}, v{56+i}")
    e("v_mul_f32 v9, v9, v10")
    for i in range(16):
        e(f"v_add_f32 v9, v9, v{56+i}")
    for i in range(8):
        e(f"v_cvt_pk_bf16_f32 v{96+i}, v{56+2*i}, v{57+2*i}")
    e(f"ds_write_b128 v19, {vr(96, 4)}")
    e(f"ds_write_b128 v19, {vr(100, 4)} offset:1024")
    e("s_waitcnt lgkmcnt(0)")
    e("s_barrier")
    for tu in range(8):
        e(f"ds_read_b128 {vr(64 + 4 * tu, 4)}, v20 offset:{(tu >> 1) * 2048 + (tu & 1) * 1024}")
    if not first:
        for i in range(64):
            e(f"v_mul_f32 v{192+i}, v{192+i}, v10")

    def trreads(tu):
        t, u = tu >> 1, tu & 1
        bufb = 96 + 16 * (tu & 1)
        for cc in range(4):
            for v in range(2):
                a = 40 + 8 * (t >> 1) + 2 * cc + v
                off = (32 * (t & 1) + 16 * u + 8 * v) * 1024
                e(f"ds_read_b64_tr_b16 {vr(bufb + 4 * cc + 2 * v, 2)}, v{a} offset:{off}")
    trreads(0)
    for tu in range(8):
        if tu + 1 < 8:
            trreads(tu + 1)
            e("s_waitcnt lgkmcnt(8)")
        else:
            e("s_waitcnt lgkmcnt(0)")
        bufb = 96 + 16 * (tu & 1)
        for cc in range(4):
            acc = vr(192 + 16 * cc, 16)
            c = "0" if (first and tu == 0) else acc
            e(f"v_mfma_f32_32x32x16_bf16 {acc}, {vr(bufb + 4 * cc, 4)}, {vr(64 + 4 * tu, 4)}, {c}")
        fill(1)
    fill(99)


def km():
    L = "km_kernel"
    kernel_header(L)
    e("s_cmp_ge_u32 s2, 256")
    e("s_cbranch_scc1 KM_END")
    prof_kernel[0] = 1
    prof_start()
    srd(8, "A_ckv"); srd(12, "B_k"); srd(16, "B_v"); srd(20, "ws"); srd(48, "dbg")
    e("s_and_b32 s3, s2, 7")
    e("s_lshr_b32 s4, s2, 3")
    e("s_lshr_b32 s5, s3, 2")
    e("s_lshl_b32 s24, s4, 1")
    e("s_or_b32 s24, s24, s5")
    e("s_add_u32 s25, s3, s4")
    e("s_and_b32 s25, s25, 3")
    e("v_and_b32 v1, 63, v0")
    e("v_lshrrev_b32 v2, 6, v0")
    e("s_nop 0")
    e("v_readfirstlane_b32 s26, v2")
    e(f"s_mov_b32 s34, {SCALE_BITS:#x}")
    e(f"s_mov_b32 s35, {LOG2E_BITS:#x}")
    e("v_lshlrev_b32 v16, 4, v1")
    e("s_lshl_b32 s27, s26, 13")
    e("v_add_u32 v6, s27, v16")
    e("v_add_u32 v7, 4096, v6")
    e("s_lshl_b32 s30, s24, 21")
    e("s_add_u32 s30, s30, 1572864")
    srd(52, "A_wuk")
    e("v_and_b32 v42, 127, v0")
    e("v_lshlrev_b32 v42, 2, v42")
    e("s_and_b32 s27, s24, 31")
    e("s_lshl_b32 s27, s27, 12")
    e("s_lshr_b32 s28, s24, 5")
    e("s_lshl_b32 s28, s28, 9")
    e("s_add_u32 s27, s27, s28")
    e(f"s_add_u32 s27, s27, {QP + 0x20000}")
    e("s_waitcnt lgkmcnt(0)")
    srd_fin(8, "A_ckv"); srd_fin(12, "B_k"); srd_fin(16, "B_v"); srd_fin(20, "ws"); srd_fin(48, "dbg"); srd_fin(52, "A_wuk")
    for mq in range(4):
        e(f"buffer_load_dword v{44 + mq}, v42, s[20:23], s27 offen offset:{1024 * mq}")
    e("s_cmp_ge_u32 s25, 2")
    e("s_cbranch_scc1 KM_BONLY")
    e("s_lshr_b32 s36, s24, 5")
    e("s_and_b32 s37, s24, 31")
    e("s_lshl_b32 s37, s37, 1")
    e("s_add_u32 s37, s37, s25")
    e("s_lshl_b32 s38, s24, 1")
    e("s_add_u32 s38, s38, s25")
    e("s_lshr_b32 s39, s38, 5")
    e("s_and_b32 s38, s38, 31")
    e("s_lshl_b32 s40, s36, 23")
    e("s_lshl_b32 s27, s37, 17")
    e("s_add_u32 s40, s40, s27")
    e("s_lshl_b32 s41, s26, 15")
    e("s_add_u32 s40, s40, s41")
    e("v_lshlrev_b32 v43, 2, v0")
    e("s_lshl_b32 s27, s38, 12")
    e(f"s_add_u32 s27, s27, {QP}")
    for mq in range(4):
        e(f"buffer_load_dword v{48 + mq}, v43, s[20:23], s27 offen offset:{1024 * mq}")
    e("v_and_b32 v52, 15, v0")
    e("v_lshrrev_b32 v53, 4, v0")
    e("v_lshlrev_b32 v54, 13, v53")
    e("v_lshl_add_u32 v54, v52, 4, v54")
    e("s_lshl_b32 s27, s39, 20")
    e("s_lshl_b32 s28, s38, 8")
    e("s_add_u32 s27, s27, s28")
    for i in range(8):
        e(f"buffer_load_dwordx4 {vr(64 + 4 * i, 4)}, v54, s[52:55], s27 offen nt")
        e("s_add_u32 s27, s27, 0x20000")
    tile_loads(defer=True)
    fill(6)
    e("s_waitcnt vmcnt(14)")
    e("v_add_f32 v44, v44, v45")
    e("v_add_f32 v46, v46, v47")
    e("v_add_f32 v48, v48, v49")
    e("v_add_f32 v50, v50, v51")
    e("v_add_f32 v44, v44, v46")
    e("v_add_f32 v48, v48, v50")
    e("v_cvt_pk_bf16_f32 v44, v44, v44")
    e("v_cvt_pk_bf16_f32 v48, v48, v48")
    e("v_lshrrev_b32 v42, 1, v42")
    e(f"v_add_u32 v42, {SCR + 2048}, v42")
    e("ds_write_b16 v42, v44")
    e("v_lshlrev_b32 v43, 1, v0")
    e(f"v_add_u32 v43, {SCR}, v43")
    e("ds_write_b16 v43, v48")
    fill(2)
    e("s_waitcnt lgkmcnt(0)")
    e("s_barrier")
    e("v_lshlrev_b32 v43, 4, v52")
    e(f"v_add_u32 v43, {SCR}, v43")
    e(f"ds_read_b128 {vr(8, 4)}, v43")
    e(f"ds_read_b128 {vr(12, 4)}, v43 offset:256")
    e(f"ds_read_b128 {vr(2, 4)}, v43 offset:2048")
    e("s_waitcnt vmcnt(8) lgkmcnt(0)")
    for k in range(4):
        for i in range(8):
            for b in range(2):
                d = 24 + 2 * i + b
                c = "0" if k == 0 else f"v{d}"
                e(f"v_dot2_f32_bf16 v{d}, v{64 + 4 * i + k}, v{8 + 4 * b + k}, {c}")
    e("s_nop 3")
    for sh in (8, 4, 2, 1):
        for d in range(24, 40):
            e(f"v_add_f32_dpp v{d}, v{d}, v{d} row_ror:{sh} row_mask:0xf bank_mask:0xf")
    e("v_lshlrev_b32 v43, 2, v53")
    e(f"v_add_u32 v43, {SCR + 512}, v43")
    for i in range(8):
        for b in range(2):
            e(f"ds_write_b32 v43, v{24 + 2 * i + b} offset:{512 * b + 64 * i}")
    e("s_waitcnt lgkmcnt(0)")
    e("s_barrier")
    e("v_cmp_gt_u32 vcc, 32, v0")
    e("s_and_saveexec_b64 s[56:57], vcc")
    e("s_cbranch_execz KM_QDONE")
    e("v_lshlrev_b32 v43, 5, v0")
    e(f"v_add_u32 v43, {SCR + 512}, v43")
    e(f"ds_read_b128 {vr(8, 4)}, v43")
    e(f"ds_read_b128 {vr(12, 4)}, v43 offset:16")
    e("s_waitcnt lgkmcnt(0)")
    for k in range(4):
        a_, b_ = 8 + 2 * k, 9 + 2 * k
        e(f"v_cvt_pk_bf16_f32 v{24 + k}, v{a_}, v{b_}")
        e(f"v_or_b32 v{24 + k}, 1, v{24 + k}")
        unpack2(32, 33, 24 + k)
        e(f"v_sub_f32 v32, v{a_}, v32")
        e(f"v_sub_f32 v33, v{b_}, v33")
        e(f"v_cvt_pk_bf16_f32 v{28 + k}, v32, v33")
        e(f"v_or_b32 v{28 + k}, 1, v{28 + k}")
    e("v_lshrrev_b32 v43, 4, v0")
    e("v_and_b32 v32, 15, v0")
    e("v_lshrrev_b32 v33, 1, v32")
    e("v_and_b32 v32, 1, v32")
    e("v_lshlrev_b32 v43, 15, v43")
    e("v_lshl_add_u32 v43, v33, 10, v43")
    e("v_lshl_add_u32 v43, v32, 9, v43")
    e("s_lshl_b32 s27, s39, 13")
    e("s_lshl_b32 s28, s38, 4")
    e("s_add_u32 s27, s27, s28")
    e(f"buffer_store_dwordx4 {vr(24, 4)}, v43, s[20:23], s27 offen sc1")
    e(f"s_add_u32 s27, s27, {QA_LO}")
    e(f"buffer_store_dwordx4 {vr(28, 4)}, v43, s[20:23], s27 offen sc1")
    lab("KM_QDONE")
    e("s_mov_b64 exec, s[56:57]")
    fill(99)
    e("v_and_b32 v56, 31, v1")
    e("v_lshrrev_b32 v57, 5, v1")
    e("v_and_b32 v58, 3, v1")
    e("v_lshlrev_b32 v58, 2, v58")
    e("v_bfe_u32 v59, v1, 2, 2")
    e("v_or_b32 v58, v58, v59")
    e("v_xor_b32 v58, v58, v57")
    e("v_lshlrev_b32 v58, 4, v58")
    for k in range(8):
        e(f"v_xor_b32 v{28 + k}, {32 * k}, v58")
    e("v_lshlrev_b32 v59, 10, v56")
    e("s_lshl_b32 s27, s26, 8")
    e("v_add_u32 v59, s27, v59")
    for j in range(4):
        e(f"s_add_u32 s27, s26, {j}")
        e("s_and_b32 s27, s27, 3")
        e("s_lshl_b32 s27, s27, 15")
        e(f"v_add_u32 v{24 + j}, s27, v59")
        e(f"s_sub_u32 s27, s26, {j}")
        e("s_and_b32 s27, s27, 3")
        e("s_lshl_b32 s27, s27, 12")
        e(f"s_add_u32 s27, s27, {RS}")
        e(f"v_add_u32 v{36 + j}, s27, v16")
    e("v_lshrrev_b32 v60, 4, v1")
    e("v_lshrrev_b32 v61, 5, v1")
    e("v_bfe_u32 v62, v1, 2, 2")
    e("v_and_b32 v63, 3, v1")
    e("v_and_b32 v64, 1, v60")
    e("v_lshlrev_b32 v64, 1, v64")
    e("v_lshrrev_b32 v65, 1, v63")
    e("v_add_u32 v64, v64, v65")
    e("v_lshl_or_b32 v65, v62, 2, v61")
    e("v_xor_b32 v64, v64, v65")
    e("v_lshlrev_b32 v64, 4, v64")
    e("v_and_b32 v65, 1, v63")
    e("v_lshl_add_u32 v64, v65, 3, v64")
    e("v_lshl_add_u32 v65, v61, 2, v62")
    e("v_lshl_add_u32 v64, v65, 10, v64")
    e("s_lshl_b32 s27, s26, 8")
    e("v_add_u32 v64, s27, v64")
    for cc in range(4):
        for v in range(2):
            e(f"v_xor_b32 v{40 + 2 * cc + v}, {64 * cc + 32 * v}, v64")
            e(f"v_add_u32 v{48 + 2 * cc + v}, 0x10000, v{40 + 2 * cc + v}")
    e("v_lshlrev_b32 v18, 2, v56")
    e(f"v_add_u32 v18, {MX}, v18")
    e("s_lshl_b32 s27, s26, 7")
    e("v_add_u32 v17, s27, v18")
    e(f"v_add_u32 v20, {PX}, v16")
    e("s_lshl_b32 s27, s26, 11")
    e("v_add_u32 v19, s27, v20")
    e("v_mov_b32 v8, 0xff800000")
    e("v_mov_b32 v9, 0")
    tile_to_lds()
    e("s_lshl_b32 s27, s36, 15")
    e("s_lshl_b32 s28, s26, 13")
    e("s_add_u32 s27, s27, s28")
    e("s_mov_b32 s44, 0x80000")
    lab("KM_QPOLL")
    for part in range(1 if HIONLY else 2):
        for s in range(8):
            if s % 4 == 0:
                e(f"s_add_u32 s28, s27, {part * QA_LO + s * 1024}")
            e(f"buffer_load_dwordx4 {vr(192 + 32 * part + 4 * s, 4)}, v16, s[20:23], s28 offen offset:{(s % 4) * 1024} sc1")
    e("s_waitcnt vmcnt(0)")
    e("v_and_b32 v11, v192, v193")
    for k in range(194, 224 if HIONLY else 256):
        e(f"v_and_b32 v11, v11, v{k}")
    e("v_and_b32 v11, 1, v11")
    e("v_cmp_eq_u32 vcc, 0, v11")
    e("s_cbranch_vccz KM_QOK")
    e("s_sleep 1")
    e("s_sub_u32 s44, s44, 1")
    e("s_cmp_lg_u32 s44, 0")
    e("s_cbranch_scc1 KM_QPOLL")
    lab("KM_QOK")
    e("s_lshl_b32 s27, s25, 16")
    e("s_add_u32 s31, s30, s27")
    e("s_add_u32 s31, s31, 393216")
    for (base, srdn) in ((128, 12), (160, 16)):
        for i in range(8):
            va = 6 if i < 4 else 7
            filler.append([f"buffer_load_dwordx4 {vr(base + 4 * i, 4)}, v{va}, s[{srdn}:{srdn+3}], s31 offen offset:{(i % 4) * 1024} nt"])
    e("s_add_u32 s33, s31, 32768")
    for (base, srdn) in ((128, 12), (160, 16)):
        for i in range(8):
            va = 6 if i < 4 else 7
            filler.append([f"buffer_load_dwordx4 {ar(base + 4 * i, 4)}, v{va}, s[{srdn}:{srdn+3}], s33 offen offset:{(i % 4) * 1024} nt"])
    e("s_barrier")
    prof_mark(0)
    a_tile(True)
    prof_mark(1)
    e("v_mov_b32 v13, v9")
    e("s_nop 1")
    e("v_permlane32_swap_b32 v9, v13")
    e("s_nop 1")
    e("v_add_f32 v9, v9, v13")
    e(f"ds_write_b32 v17, v9 offset:{LX - MX}")
    e("s_nop 7")
    e("s_barrier")
    e("v_and_b32 v11, 31, v1")
    e("v_lshrrev_b32 v12, 5, v1")
    e("s_movk_i32 s27, 1040")
    e("v_mul_lo_u32 v14, v11, s27")
    e("v_lshl_add_u32 v14, v12, 3, v14")
    e("s_lshl_b32 s28, s26, 8")
    e("v_add_u32 v14, s28, v14")
    for cc in range(4):
        for q in range(4):
            r0 = 192 + 16 * cc + 4 * q
            e(f"v_cvt_pk_bf16_f32 v{r0}, v{r0}, v{r0 + 1}")
            e(f"v_cvt_pk_bf16_f32 v{r0 + 1}, v{r0 + 2}, v{r0 + 3}")
            e(f"ds_write_b64 v14, {vr(r0, 2)} offset:{cc * 64 + q * 16}")
    e("s_waitcnt lgkmcnt(0)")
    e("s_barrier")
    e("s_mul_i32 s28, s26, 8320")
    e("v_add_u32 v14, s28, v16")
    for i in range(8):
        e(f"ds_read_b128 {vr(192 + 4 * i, 4)}, v14 offset:{1040 * i}")
    e("s_lshl_b32 s27, s36, 6")
    e("s_add_u32 s27, s27, s37")
    e("s_lshl_b32 s27, s27, 15")
    e("s_lshl_b32 s28, s26, 13")
    e("s_add_u32 s27, s27, s28")
    e(f"s_add_u32 s27, s27, {APART}")
    for i in range(8):
        if i == 4:
            e("s_add_u32 s27, s27, 4096")
        e(f"s_waitcnt lgkmcnt({7 - i})")
        e(f"buffer_store_dwordx4 {vr(192 + 4 * i, 4)}, v16, s[20:23], s27 offen offset:{(i % 4) * 1024}")
    e("s_cmp_lg_u32 s26, 0")
    e("s_cbranch_scc1 KM_ASTAT_DONE")
    for w in range(4):
        e(f"ds_read_b32 v{12 + w}, v18 offset:{LX - MX + 128 * w}")
    e("s_waitcnt lgkmcnt(0)")
    e("v_add_f32 v12, v12, v13")
    e("v_add_f32 v14, v14, v15")
    e("v_add_f32 v9, v12, v14")
    e("v_lshlrev_b32 v14, 9, v11")
    e("s_lshl_b32 s27, s36, 14")
    e("s_lshl_b32 s28, s37, 3")
    e("s_add_u32 s27, s27, s28")
    e(f"s_add_u32 s27, s27, {ASTAT}")
    e(f"buffer_store_dwordx2 v[8:9], v14, s[20:23], s27 offen")
    lab("KM_ASTAT_DONE")
    prof_mark(2)
    e("v_mov_b32 v8, 0xff800000")
    for j in range(9, 18):
        e(f"v_mov_b32 v{j}, 0")
    e("s_waitcnt vmcnt(0)")
    bscore(128)
    bpv(160)
    for i in range(64):
        e(f"v_accvgpr_read_b32 v{192 + i}, a{128 + i}")
    bscore(192)
    bpv(224)
    e("s_branch KM_BFIN")
    lab("KM_BONLY")
    e("s_sub_u32 s27, s25, 2")
    e("s_mul_i32 s27, s27, 196608")
    e("s_add_u32 s31, s30, s27")
    e("s_sub_u32 s31, s31, 32768")
    e("v_mov_b32 v8, 0xff800000")
    for j in range(9, 18):
        e(f"v_mov_b32 v{j}, 0")

    def qb_hook():
        e(f"s_waitcnt vmcnt({56 if DEEP else 32})")
        e("v_add_f32 v44, v44, v45")
        e("v_add_f32 v46, v46, v47")
        e("v_add_f32 v44, v44, v46")
        e("v_cvt_pk_bf16_f32 v44, v44, v44")
        e("v_lshrrev_b32 v42, 1, v42")
        e(f"v_add_u32 v42, {SCR + 2048}, v42")
        e("ds_write_b16 v42, v44")
        e("s_waitcnt lgkmcnt(0)")
        e("s_barrier")
        e("v_and_b32 v43, 15, v1")
        e("v_lshlrev_b32 v43, 4, v43")
        e(f"v_add_u32 v43, {SCR + 2048}, v43")
        e(f"ds_read_b128 {vr(2, 4)}, v43")
        e("s_waitcnt lgkmcnt(0)")
    bsched(6, lambda c: 6 if DEEP else 3, hook=qb_hook, deep=DEEP)
    lab("KM_BFIN")
    prof_mark(3)
    bcombine(BO, BS, "KM_BDONE")
    lab("KM_BDONE")
    lab("KM_END")
    e("s_endpgm")
    kernel_desc(L, 512, 256)
    return f"; @launch kernel={L} grid=(256,1,1) block=(256,1,1) lds={KM_LDS}"


def k3():
    L = "k3_kernel"
    kernel_header(L)
    e("s_cmp_ge_u32 s2, 544")
    e("s_cbranch_scc1 K3_END")
    e("s_cmp_ge_u32 s2, 512")
    e("s_cbranch_scc1 K3_RED")
    srd(20, "ws")
    e("v_and_b32 v1, 63, v0")
    e("v_lshrrev_b32 v2, 6, v0")
    e("s_nop 0")
    e("v_readfirstlane_b32 s26, v2")
    e("s_bfe_u32 s52, s2, 0x20006")
    e("s_and_b32 s53, s2, 63")
    e("s_and_b32 s54, s2, 31")
    e("s_bfe_u32 s55, s2, 0x10005")
    e("s_lshr_b32 s56, s2, 8")
    e("s_cmp_lg_u32 s56, 0")
    e("s_cbranch_scc1 K3_LB")
    srd(16, "A_wo"); srd(12, "A_wuv")
    e("s_branch K3_LD")
    lab("K3_LB")
    srd(16, "B_wo")
    lab("K3_LD")
    e("v_lshrrev_b32 v44, 2, v0")
    e("v_and_b32 v45, 3, v0")
    e("v_lshlrev_b32 v46, 16, v44")
    e("v_lshl_add_u32 v46, v45, 4, v46")
    e("v_lshlrev_b32 v16, 4, v1")
    e("s_waitcnt lgkmcnt(0)")
    srd_fin(16, "A_wo"); srd_fin(20, "ws")
    e("s_cmp_lg_u32 s56, 0")
    e("s_cbranch_scc1 K3_B")
    srd_fin(12, "A_wuv")
    e("v_lshlrev_b32 v4, 3, v0")
    e("v_lshlrev_b32 v5, 3, v1")
    e("s_lshl_b32 s28, s53, 9")
    e(f"s_add_u32 s28, s28, {ASTAT}")
    e("buffer_load_dwordx2 v[8:9], v5, s[20:23], s28 offen")
    e("v_and_b32 v12, 127, v0")
    e("v_lshrrev_b32 v13, 7, v0")
    e("v_lshlrev_b32 v12, 3, v12")
    e("v_lshl_add_u32 v12, v13, 20, v12")
    e("s_lshl_b32 s28, s55, 21")
    e("s_lshl_b32 s29, s54, 10")
    e("s_add_u32 s28, s28, s29")
    e(f"s_add_u32 s28, s28, {APART}")
    for s in range(32):
        e(f"buffer_load_dwordx2 {vr(64 + 2 * s, 2)}, v12, s[20:23], s28 offen")
        e("s_add_u32 s28, s28, 0x8000")
    e("s_lshl_b32 s28, s54, 8")
    e("s_lshl_b32 s29, s52, 6")
    e("s_add_u32 s28, s28, s29")
    for i in range(8):
        e(f"buffer_load_dwordx4 {vr(192 + 4 * i, 4)}, v46, s[12:15], s28 offen nt")
        e("s_add_u32 s28, s28, 8192")
    e("s_lshl_b32 s28, s54, 17")
    e("s_lshl_b32 s29, s52, 15")
    e("s_add_u32 s28, s28, s29")
    e("s_lshl_b32 s29, s26, 13")
    e("s_add_u32 s28, s28, s29")
    for i in range(8):
        if i == 4:
            e("s_add_u32 s28, s28, 4096")
        e(f"buffer_load_dwordx4 {vr(224 + 4 * i, 4)}, v16, s[16:19], s28 offen offset:{(i % 4) * 1024} nt")
    e("s_waitcnt vmcnt(48)")
    e("v_mov_b32 v10, v8")
    for sh in (8, 4, 2, 1):
        e("s_nop 1")
        e(f"v_max_f32_dpp v10, v10, v10 row_ror:{sh} row_mask:0xf bank_mask:0xf")
    e("v_mov_b32 v11, v10")
    e("s_nop 1")
    e("v_permlane16_swap_b32 v10, v11")
    e("s_nop 1")
    e("v_max_f32 v10, v10, v11")
    e("v_mov_b32 v11, v10")
    e("s_nop 1")
    e("v_permlane32_swap_b32 v10, v11")
    e("s_nop 1")
    e("v_max_f32 v10, v10, v11")
    e("v_sub_f32 v8, v8, v10")
    e("v_exp_f32 v8, v8")
    e("s_nop 0")
    e("v_mul_f32 v10, v8, v9")
    for sh in (8, 4, 2, 1):
        e("s_nop 1")
        e(f"v_add_f32_dpp v10, v10, v10 row_ror:{sh} row_mask:0xf bank_mask:0xf")
    e("v_mov_b32 v11, v10")
    e("s_nop 1")
    e("v_permlane16_swap_b32 v10, v11")
    e("s_nop 1")
    e("v_add_f32 v10, v10, v11")
    e("v_mov_b32 v11, v10")
    e("s_nop 1")
    e("v_permlane32_swap_b32 v10, v11")
    e("s_nop 1")
    e("v_add_f32 v10, v10, v11")
    e("v_rcp_f32 v6, v10")
    for k in range(4):
        e(f"v_mov_b32 v{40 + k}, 0")
    e("s_lshr_b32 s30, s26, 1")
    e("s_lshl_b32 s30, s30, 5")
    for s in range(32):
        e(f"s_add_u32 s31, s30, {s}")
        e(f"v_readlane_b32 s{60 + (s & 3)}, v8, s31")
        e(f"s_waitcnt vmcnt({47 - s})")
        unpack2(48, 49, 64 + 2 * s)
        unpack2(50, 51, 65 + 2 * s)
        for k in range(4):
            e(f"v_fmac_f32 v{40 + k}, s{60 + (s & 3)}, v{48 + k}")
    for k in range(4):
        e(f"v_mul_f32 v{40 + k}, v{40 + k}, v6")
    e("v_lshlrev_b32 v4, 4, v0")
    e(f"ds_write_b128 v4, {vr(40, 4)} offset:10240")
    e("s_waitcnt lgkmcnt(0)")
    e("s_barrier")
    e("v_lshlrev_b32 v5, 5, v44")
    e(f"ds_read_b128 {vr(8, 4)}, v5 offset:10240")
    e(f"ds_read_b128 {vr(12, 4)}, v5 offset:10256")
    e(f"ds_read_b128 {vr(16, 4)}, v5 offset:12288")
    e(f"ds_read_b128 {vr(20, 4)}, v5 offset:12304")
    for k in range(8):
        e(f"v_mov_b32 v{24 + k}, 0")
    e("s_waitcnt vmcnt(8) lgkmcnt(0)")
    for k in range(8):
        e(f"v_add_f32 v{8 + k}, v{8 + k}, v{16 + k}")
    for i in range(8):
        for k in range(4):
            unpack2(32 + 2 * k, 33 + 2 * k, 192 + 4 * i + k)
        for k in range(8):
            e(f"v_fmac_f32 v{24 + k}, v{32 + k}, v{8 + i}")
    e("v_lshlrev_b32 v5, 7, v44")
    e("v_lshl_add_u32 v5, v45, 5, v5")
    e(f"ds_write_b128 v5, {vr(24, 4)} offset:2048")
    e(f"ds_write_b128 v5, {vr(28, 4)} offset:2064")
    e("s_waitcnt lgkmcnt(0)")
    e("s_barrier")
    e("v_and_b32 v5, 31, v1")
    e("v_lshrrev_b32 v6, 5, v1")
    e("v_lshlrev_b32 v5, 2, v5")
    e("v_lshl_add_u32 v5, v6, 12, v5")
    for g in range(32):
        e(f"ds_read_b32 v{64 + g}, v5 offset:{2048 + 128 * g}")
    e("s_waitcnt lgkmcnt(0)")
    for n in (16, 8, 4, 2, 1):
        for g in range(n):
            e(f"v_add_f32 v{64 + g}, v{64 + g}, v{64 + n + g}")
    e("v_mov_b32 v65, v64")
    e("s_nop 1")
    e("v_permlane32_swap_b32 v64, v65")
    e("s_nop 1")
    e("v_add_f32 v64, v64, v65")
    e("v_cvt_pk_bf16_f32 v64, v64, v64")
    e("v_lshlrev_b32 v64, 16, v64")
    e("s_branch K3_OUT")
    lab("K3_B")
    e("v_mov_b32 v5, 0")
    e("s_lshl_b32 s28, s53, 6")
    e(f"s_add_u32 s28, s28, {BSTAT}")
    for k in range(2):
        e(f"buffer_load_dwordx4 {vr(8 + 4 * k, 4)}, v5, s[20:23], s28 offen offset:{16 * k}")
    e("v_and_b32 v5, 31, v1")
    e("v_lshlrev_b32 v5, 2, v5")
    e("s_lshl_b32 s28, s53, 12")
    e("s_lshl_b32 s29, s52, 7")
    e("s_add_u32 s28, s28, s29")
    e(f"s_add_u32 s28, s28, {BPART}")
    for r in range(4):
        e(f"buffer_load_dword v{64 + r}, v5, s[20:23], s28 offen offset:{512 * r}")
    e("s_lshl_b32 s28, s54, 17")
    e("s_lshl_b32 s29, s52, 15")
    e("s_add_u32 s28, s28, s29")
    e("s_lshl_b32 s29, s26, 13")
    e("s_add_u32 s28, s28, s29")
    for i in range(8):
        if i == 4:
            e("s_add_u32 s28, s28, 4096")
        e(f"buffer_load_dwordx4 {vr(224 + 4 * i, 4)}, v16, s[16:19], s28 offen offset:{(i % 4) * 1024} nt")
    e("s_waitcnt vmcnt(8)")
    e("v_max3_f32 v56, v8, v10, v12")
    e("v_max_f32 v56, v56, v14")
    for r in range(4):
        e(f"v_sub_f32 v{8 + 2 * r}, v{8 + 2 * r}, v56")
    for r in range(4):
        e(f"v_exp_f32 v{8 + 2 * r}, v{8 + 2 * r}")
    e("s_nop 0")
    e("v_mul_f32 v57, v8, v9")
    e("v_mul_f32 v58, v8, v64")
    for r in range(1, 4):
        e(f"v_fmac_f32 v57, v{8 + 2 * r}, v{9 + 2 * r}")
        e(f"v_fmac_f32 v58, v{8 + 2 * r}, v{64 + r}")
    e("v_rcp_f32 v57, v57")
    e("s_nop 0")
    e("v_mul_f32 v58, v58, v57")
    e("v_cvt_pk_bf16_f32 v58, v58, v58")
    e("v_lshlrev_b32 v64, 16, v58")
    lab("K3_OUT")
    e("s_lshl_b32 s30, s26, 3")
    for k in range(8):
        e(f"v_mov_b32 v{24 + k}, 0")
    e("s_waitcnt vmcnt(0)")
    for i in range(8):
        e(f"s_add_u32 s31, s30, {i}")
        e(f"v_readlane_b32 s{60 + i}, v64, s31")
    for i in range(8):
        for k in range(4):
            unpack2(32 + 2 * k, 33 + 2 * k, 224 + 4 * i + k)
        for k in range(8):
            e(f"v_fmac_f32 v{24 + k}, s{60 + i}, v{32 + k}")
    e("s_barrier")
    e("v_lshlrev_b32 v5, 5, v1")
    e("s_lshl_b32 s30, s26, 11")
    e("v_add_u32 v5, s30, v5")
    e(f"ds_write_b128 v5, {vr(24, 4)}")
    e(f"ds_write_b128 v5, {vr(28, 4)} offset:16")
    e("s_waitcnt lgkmcnt(0)")
    e("s_barrier")
    e("v_lshlrev_b32 v5, 3, v0")
    for w in range(4):
        e(f"ds_read_b64 {vr(8 + 2 * w, 2)}, v5 offset:{2048 * w}")
    e("s_waitcnt lgkmcnt(0)")
    e("v_add_f32 v8, v8, v10")
    e("v_add_f32 v9, v9, v11")
    e("v_add_f32 v12, v12, v14")
    e("v_add_f32 v13, v13, v15")
    e("v_add_f32 v8, v8, v12")
    e("v_add_f32 v9, v9, v13")
    e("s_lshl_b32 s28, s56, 19")
    e("s_lshl_b32 s29, s55, 18")
    e("s_add_u32 s28, s28, s29")
    e("s_lshl_b32 s29, s54, 13")
    e("s_add_u32 s28, s28, s29")
    e("s_lshl_b32 s29, s52, 11")
    e("s_add_u32 s28, s28, s29")
    e(f"s_add_u32 s28, s28, {OPA}")
    e("v_or_b32 v8, 1, v8")
    e("v_or_b32 v9, 1, v9")
    e("buffer_store_dwordx2 v[8:9], v5, s[20:23], s28 offen sc1")
    e("s_branch K3_END")
    lab("K3_RED")
    srd(20, "ws"); srd(8, "out")
    e("s_sub_u32 s3, s2, 512")
    e("s_lshr_b32 s24, s3, 3")
    e("s_and_b32 s25, s3, 7")
    e("v_and_b32 v1, 15, v0")
    e("v_lshrrev_b32 v2, 4, v0")
    e("v_lshlrev_b32 v3, 14, v2")
    e("v_lshl_add_u32 v3, v1, 4, v3")
    e("s_lshl_b32 s26, s24, 18")
    e("s_lshl_b32 s27, s25, 8")
    e("s_add_u32 s26, s26, s27")
    e(f"s_add_u32 s26, s26, {OPA}")
    e("s_mov_b32 s30, 0x80000")
    e("s_waitcnt lgkmcnt(0)")
    srd_fin(20, "ws"); srd_fin(8, "out")
    lab("K3_RLOOP")
    e("s_mov_b32 s27, s26")
    for i in range(8):
        if i % 2 == 0 and i:
            e("s_add_u32 s27, s27, 4096")
        e(f"buffer_load_dwordx4 {vr(8 + 4 * i, 4)}, v3, s[20:23], s27 offen offset:{(i % 2) * 2048} sc1")
    e("s_waitcnt vmcnt(0)")
    e("v_and_b32 v40, v8, v9")
    for k in range(10, 40):
        e(f"v_and_b32 v40, v40, v{k}")
    e("v_and_b32 v40, 1, v40")
    e("v_cmp_eq_u32 vcc, 0, v40")
    e("s_cbranch_vccz K3_ROK")
    e("s_sleep 2")
    e("s_sub_u32 s30, s30, 1")
    e("s_cmp_lg_u32 s30, 0")
    e("s_cbranch_scc1 K3_RLOOP")
    lab("K3_ROK")
    for n in (4, 2, 1):
        for i in range(n):
            for k in range(4):
                e(f"v_add_f32 v{8 + 4 * i + k}, v{8 + 4 * i + k}, v{8 + 4 * (i + n) + k}")
    e("v_lshlrev_b32 v4, 4, v0")
    e(f"ds_write_b128 v4, {vr(8, 4)}")
    e("s_waitcnt lgkmcnt(0)")
    e("s_barrier")
    e("v_cmp_gt_u32 vcc, 64, v0")
    e("s_and_saveexec_b64 s[28:29], vcc")
    e("s_cbranch_execz K3_END")
    e("v_lshlrev_b32 v4, 2, v0")
    for g in range(16):
        e(f"ds_read_b32 v{8 + g}, v4 offset:{256 * g}")
    e("s_waitcnt lgkmcnt(0)")
    for n in (8, 4, 2, 1):
        for g in range(n):
            e(f"v_add_f32 v{8 + g}, v{8 + g}, v{8 + n + g}")
    e("v_cvt_pk_bf16_f32 v8, v8, v8")
    e("s_and_b32 s26, s24, 1")
    e("s_lshl_b32 s26, s26, 11")
    e("s_lshr_b32 s27, s24, 1")
    e("s_lshl_b32 s27, s27, 10")
    e("s_add_u32 s26, s26, s27")
    e("s_lshl_b32 s27, s25, 7")
    e("s_add_u32 s26, s26, s27")
    e("v_lshlrev_b32 v4, 1, v0")
    e("buffer_store_short v8, v4, s[8:11], s26 offen")
    lab("K3_END")
    e("s_endpgm")
    kernel_desc(L, 256, 256)
    return f"; @launch kernel={L} grid=(544,1,1) block=(256,1,1) lds=14336"


def k4():
    L = "k4_kernel"
    kernel_header(L)
    e("s_cmp_ge_u32 s2, 32")
    e("s_cbranch_scc1 K4_END")
    srd(20, "ws"); srd(8, "out")
    e("s_lshr_b32 s24, s2, 3")
    e("s_and_b32 s25, s2, 7")
    e("v_and_b32 v1, 15, v0")
    e("v_lshrrev_b32 v2, 4, v0")
    e("v_lshlrev_b32 v3, 14, v2")
    e("v_lshl_add_u32 v3, v1, 4, v3")
    e("s_lshl_b32 s26, s24, 18")
    e("s_lshl_b32 s27, s25, 8")
    e("s_add_u32 s26, s26, s27")
    e(f"s_add_u32 s26, s26, {OPA}")
    e("s_waitcnt lgkmcnt(0)")
    srd_fin(20, "ws"); srd_fin(8, "out")
    for i in range(8):
        if i % 2 == 0 and i:
            e("s_add_u32 s26, s26, 4096")
        e(f"buffer_load_dwordx4 {vr(8 + 4 * i, 4)}, v3, s[20:23], s26 offen offset:{(i % 2) * 2048}")
    e("s_waitcnt vmcnt(0)")
    for n in (4, 2, 1):
        for i in range(n):
            for k in range(4):
                e(f"v_add_f32 v{8 + 4 * i + k}, v{8 + 4 * i + k}, v{8 + 4 * (i + n) + k}")
    e("v_lshlrev_b32 v4, 4, v0")
    e(f"ds_write_b128 v4, {vr(8, 4)}")
    e("s_waitcnt lgkmcnt(0)")
    e("s_barrier")
    e("v_cmp_gt_u32 vcc, 64, v0")
    e("s_and_saveexec_b64 s[28:29], vcc")
    e("s_cbranch_execz K4_END")
    e("v_lshlrev_b32 v4, 2, v0")
    for g in range(16):
        e(f"ds_read_b32 v{8 + g}, v4 offset:{256 * g}")
    e("s_waitcnt lgkmcnt(0)")
    for n in (8, 4, 2, 1):
        for g in range(n):
            e(f"v_add_f32 v{8 + g}, v{8 + g}, v{8 + n + g}")
    e("v_cvt_pk_bf16_f32 v8, v8, v8")
    e("s_and_b32 s26, s24, 1")
    e("s_lshl_b32 s26, s26, 11")
    e("s_lshr_b32 s27, s24, 1")
    e("s_lshl_b32 s27, s27, 10")
    e("s_add_u32 s26, s26, s27")
    e("s_lshl_b32 s27, s25, 7")
    e("s_add_u32 s26, s26, s27")
    e("v_lshlrev_b32 v4, 1, v0")
    e("buffer_store_short v8, v4, s[8:11], s26 offen")
    lab("K4_END")
    e("s_endpgm")
    kernel_desc(L, 48, 48)
    return f"; @launch kernel={L} grid=(32,1,1) block=(256,1,1) lds=4096"


LAUNCHES = []


def main():
    LAUNCHES.append(k1())
    LAUNCHES.append(km())
    LAUNCHES.append(k3())
    head = open(f"cdna_kernels/{NAME}.s.ref").read().split("; Override launch")[0]
    txt = head + "\n".join(LAUNCHES) + "\n"
    txt += '.amdgcn_target "amdgcn-amd-amdhsa--gfx950"\n.text\n'
    txt += "\n".join(out) + "\n"
    txt += '.section .rodata,"a"\n' + "\n".join(descs) + "\n"
    path = sys.argv[1] if len(sys.argv) > 1 else f"cdna_kernels/{NAME}.s"
    open(path, "w").write(txt)


if __name__ == "__main__":
    main()
```
